```python
import torch

def _softmax(x, axis=-1):
    return torch.softmax(x, dim=axis)
def _gelu(x):
    return torch.nn.functional.gelu(x, approximate="tanh")
def _silu(x):
    return torch.nn.functional.silu(x)
def _sigmoid(x):
    return torch.sigmoid(x)
def _layernorm(x, axis=-1, eps=1e-5):
    m = x.mean(dim=axis, keepdim=True)
    v = x.var(dim=axis, keepdim=True, unbiased=False)
    return (x - m) / torch.sqrt(v + eps)
def _scatter_add(tgt, idx, src, axis=0):
    return tgt.clone().index_add_(axis, idx, src)
def _segment_sum(src, seg, n):
    out = torch.zeros((n,) + src.shape[1:], dtype=src.dtype)
    return out.index_add_(0, seg, src)
def _pad(x, pw):
    flat = tuple(v for pair in reversed(pw) for v in pair)
    return torch.nn.functional.pad(x, flat)

kernel_name = 'interleave_layers__linear_attn_block__softmax_full_mha__prompt'

def setup_inputs():

    _w = (lambda a: (lambda t: t.to(torch.bfloat16) if t.is_floating_point() else t)(torch.as_tensor(a)))
    def _A_setup():
        B, S, D = 1, 2048, 448
        return {
            "x": _w((lambda *s: torch.randn(*s, dtype=torch.bfloat16) * 0.05)(B, S, D)),
            "wqkv": _w((lambda *s: torch.randn(*s, dtype=torch.bfloat16) * 0.1)(D, 3 * D)),
            "wo": _w((lambda *s: torch.randn(*s, dtype=torch.bfloat16) * 0.05)(D, D)),
        }
    _A_in = _A_setup()

    def _B_setup():
        B, S, D = 1, 2048, 448
        return {
            "x": _w((lambda *s: torch.randn(*s, dtype=torch.bfloat16) * 0.05)(B, S, D)),
            "wqkv": _w((lambda *s: torch.randn(*s, dtype=torch.bfloat16) * 0.1)(D, 3 * D)),
            "wo": _w((lambda *s: torch.randn(*s, dtype=torch.bfloat16) * 0.05)(D, D)),
        }
    _B_in = _B_setup()

    return {
        "A_x": _A_in["x"],
        "A_wqkv": _A_in["wqkv"],
        "A_wo": _A_in["wo"],
        "B_x": _B_in["x"],
        "B_wqkv": _B_in["wqkv"],
        "B_wo": _B_in["wo"],
    }

def reference(A_x, A_wqkv, A_wo, B_x, B_wqkv, B_wo):
    def _A_ref(x, wqkv, wo):
        B, S, D = x.shape
        H = 16; Dh = D // H
        qkv = (lambda x, *d: x.permute(*d))((x @ wqkv).reshape(B, S, 3, H, Dh), 2, 0, 3, 1, 4)
        q, k, v = qkv[0], qkv[1], qkv[2]
        phi = lambda t: torch.where(t > 0, t + 1, torch.exp(t)) + 1e-6
        pq, pk = phi(q), phi(k)
        kv = torch.einsum("bhsd,bhse->bhde", pk, v)
        z = torch.einsum("bhsd->bhd", pk)
        num = torch.einsum("bhqd,bhde->bhqe", pq, kv)
        den = torch.einsum("bhqd,bhd->bhq", pq, z)[..., None] + 1e-6
        o = num / den
        return (lambda x, *d: x.permute(*d))(o, 0, 2, 1, 3).reshape(B, S, D) @ wo

    def _B_ref(x, wqkv, wo):
        B, S, D = x.shape
        H = 16; Dh = D // H
        qkv = (lambda x, *d: x.permute(*d))((x @ wqkv).reshape(B, S, 3, H, Dh), 2, 0, 3, 1, 4)
        q, k, v = qkv[0], qkv[1], qkv[2]
        scale = Dh ** -0.5
        scores = torch.einsum("bhqd,bhkd->bhqk", q, k) * scale
        p = _softmax(scores, axis=-1)
        o = torch.einsum("bhqk,bhkd->bhqd", p, v)
        return (lambda x, *d: x.permute(*d))(o, 0, 2, 1, 3).reshape(B, S, D) @ wo

    x = A_x
    x = x + _A_ref(_layernorm(x, axis=-1), A_wqkv, A_wo)
    x = x + _B_ref(_layernorm(x, axis=-1), B_wqkv, B_wo)
    x = x + _A_ref(_layernorm(x, axis=-1), A_wqkv, A_wo)
    x = x + _B_ref(_layernorm(x, axis=-1), B_wqkv, B_wo)
    return x
```

```python
import re, copy

_REG = re.compile(r'^(-?\|?)(abs\()?([vsa])(\d+)\)?\|?$')
_RNG = re.compile(r'^(-?)([vsa])\[(\d+):(\d+)\]$')

def regs_of(op):
    op = op.strip()
    m = _RNG.match(op)
    if m:
        return {(m.group(2), i) for i in range(int(m.group(3)), int(m.group(4)) + 1)}
    m = _REG.match(op)
    if m:
        return {(m.group(3), int(m.group(4)))}
    if op in ('vcc', 'vcc_lo', 'vcc_hi'):
        return {('vcc', 0)}
    if op in ('exec', 'exec_lo', 'exec_hi'):
        return {('exec', 0)}
    if op == 'm0':
        return {('m0', 0)}
    return set()

TRANS = ('v_exp_f32', 'v_log_f32', 'v_rcp_f32', 'v_rsq_f32', 'v_sqrt_f32', 'v_sin_f32', 'v_cos_f32', 'v_rcp_iflag_f32',
         'v_exp_f16', 'v_rcp_f16')
NO_DST_S = ('s_cmp', 's_cbranch', 's_waitcnt', 's_barrier', 's_nop', 's_setprio', 's_endpgm', 's_branch', 's_sleep',
            's_bitcmp', 's_setreg', 's_sendmsg', 's_setpc')

class Inst:
    __slots__ = ('text', 'mn', 'kind', 'defs', 'uses', 'srcc', 'srca', 'passes', 'wide_store', 'lds_dma', 'dpp', 'ops')

def split_ops(s):
    out, depth, cur = [], 0, ''
    for ch in s:
        if ch in '[(':
            depth += 1
        if ch in '])':
            depth -= 1
        if ch == ',' and depth == 0:
            out.append(cur.strip()); cur = ''
        else:
            cur += ch
    if cur.strip():
        out.append(cur.strip())
    return out

def parse(text):
    t = text.split(';')[0].strip()
    parts = t.split(None, 1)
    mn = parts[0]
    rest = parts[1] if len(parts) > 1 else ''
    ops = split_ops(rest)
    mods = []
    if ops:
        last = ops[-1].split()
        ops[-1] = last[0]
        mods = last[1:]
    I = Inst()
    I.text = text; I.mn = mn; I.defs = set(); I.uses = set(); I.srcc = set(); I.srca = set(); I.passes = 0
    I.wide_store = False; I.lds_dma = False; I.dpp = ('_dpp' in mn) or any(m.startswith(('row_', 'quad_perm', 'wave_')) for m in mods)
    I.ops = ops
    R = [regs_of(o) for o in ops]
    base = mn.replace('_e32', '').replace('_e64', '')
    if mn.startswith('v_mfma'):
        I.kind = 'mfma'
        I.defs = R[0]; I.srca = R[1] | R[2]; I.srcc = R[3]; I.uses = R[1] | R[2] | R[3]
        I.passes = 8 if '32x32x16' in mn else (4 if '16x16x32' in mn else 16)
    elif mn.startswith('v_'):
        I.kind = 'trans' if base in TRANS else ('dot' if mn.startswith('v_dot') else 'valu')
        if mn.startswith('v_permlane') and 'swap' in mn:
            I.defs = R[0] | R[1]; I.uses = R[0] | R[1]
        elif mn.startswith('v_cmp'):
            I.defs = set(R[0]); I.uses = set().union(*R[1:])
            if mn.startswith('v_cmpx'):
                I.defs |= {('exec', 0)}
        elif base in ('v_add_co_u32', 'v_sub_co_u32', 'v_addc_co_u32', 'v_subb_co_u32', 'v_mad_u64_u32'):
            I.defs = R[0] | R[1]; I.uses = set().union(*R[2:])
        elif base == 'v_nop':
            pass
        else:
            I.defs = set(R[0]); I.uses = set().union(*R[1:]) if len(R) > 1 else set()
            if base.startswith(('v_fmac', 'v_dot2c', 'v_pk_fmac', 'v_writelane')) or 'UNUSED_PRESERVE' in text or I.dpp:
                I.uses |= R[0]
            if base == 'v_cndmask_b32' and len(ops) == 3:
                I.uses |= {('vcc', 0)}
    elif mn.startswith(('s_load', 's_buffer_load', 's_memtime', 's_memrealtime', 's_atomic')):
        I.kind = 'smem'
        I.defs = set(R[0]); I.uses = set().union(*R[1:]) if len(R) > 1 else set()
    elif mn.startswith('s_'):
        I.kind = 'salu'
        if mn.startswith(NO_DST_S):
            I.uses = set().union(*R) if R else set()
        else:
            I.defs = set(R[0]); I.uses = set().union(*R[1:]) if len(R) > 1 else set()
            if 'saveexec' in mn:
                I.defs |= {('exec', 0)}
            if mn in ('s_addk_i32', 's_mulk_i32'):
                I.uses |= R[0]
    elif mn.startswith(('buffer_', 'global_')):
        I.kind = 'vmem'
        if mn in ('buffer_inv', 'buffer_wbl2'):
            pass
        elif 'lds' in mods or '_lds_' in mn:
            I.lds_dma = True
            I.uses = set().union(*R) | {('m0', 0)}
        elif '_load_' in mn:
            I.defs = set(R[0]); I.uses = set().union(*R[1:])
            if 'd16' in mn:
                I.uses |= R[0]
        elif '_atomic_' in mn and 'sc0' in mods:
            if mn.startswith('buffer_'):
                I.defs = set(R[0]); I.uses = set().union(*R)
            else:
                I.defs = set(R[0]); I.uses = set().union(*R[1:])
        else:
            I.uses = set().union(*R)
            if 'dwordx3' in mn or 'dwordx4' in mn:
                I.wide_store = True
                I.srca = R[0] if mn.startswith('buffer_') else R[1]
    elif mn.startswith('ds_'):
        I.kind = 'ds'
        if mn.startswith(('ds_read', 'ds_bpermute', 'ds_permute', 'ds_swizzle')) or '_rtn' in mn:
            I.defs = set(R[0]); I.uses = set().union(*R[1:])
        else:
            I.uses = set().union(*R)
    else:
        raise ValueError('unknown instruction: ' + text)
    return I

def isv(rs):
    return {r for r in rs if r[0] in 'va'}
def iss(rs):
    return {r for r in rs if r[0] == 's' or r[0] == 'vcc'}

class State:
    def __init__(self):
        self.hist = []
        self.vm = []
        self.lg = []
    def key(self):
        return ([(i.text, d) for i, d in self.hist if d < 24], [sorted(x) for x in self.vm], [(k, sorted(x)) for k, x in self.lg])

class Asm:
    def __init__(self):
        self.lines = []
        self.st = State()
        self.auto = True
        self.maxv = -1; self.maxs = -1; self.maxa = -1

    def raw(self, s):
        self.lines.append(s)
    def comment(self, s):
        self.lines.append('  ; ' + s)
    def label(self, name, reset=True):
        self.lines.append(name + ':')
    def fresh(self):
        self.st = State()

    def _advance(self, n):
        self.st.hist = [(i, d + n) for i, d in self.st.hist if d + n < 24]

    def _need(self, P, d, C):
        need = 0
        pv = isv(P.defs)
        if P.kind in ('valu', 'trans', 'dot'):
            if C.kind == 'mfma' and pv & C.uses:
                need = max(need, 2)
            if C.mn.startswith(('v_readfirstlane', 'v_readlane')) and pv & C.uses:
                need = max(need, 1)
            if C.mn.startswith('v_permlane') and pv & C.uses:
                need = max(need, 2)
            if C.dpp and pv & C.uses:
                need = max(need, 2)
            ps = iss(P.defs)
            if ps:
                if C.kind in ('valu', 'trans', 'dot', 'mfma') and ps & C.uses:
                    need = max(need, 4 if C.mn.startswith(('v_readlane', 'v_writelane')) else 2)
                if C.kind == 'vmem' and ps & C.uses:
                    need = max(need, 5)
                if C.kind in ('salu', 'smem') and ps & C.uses:
                    need = max(need, 1)
            if ('exec', 0) in P.defs:
                if C.kind in ('mfma',) or C.mn.startswith(('v_permlane', 'v_readlane', 'v_readfirstlane', 'v_writelane')):
                    need = max(need, 4)
                if C.dpp:
                    need = max(need, 5)
            if P.kind == 'trans' and C.kind in ('valu', 'dot') and pv & C.uses:
                need = max(need, 1)
            if P.kind == 'dot' and C.kind in ('valu', 'trans', 'dot', 'mfma', 'vmem', 'ds') and pv & (C.uses | C.defs):
                same = (C.kind == 'dot' and C.mn == P.mn)
                if same:
                    ab = set().union(*[regs_of(o) for o in C.ops[1:3]])
                    if pv & ab:
                        need = max(need, 3)
                else:
                    need = max(need, 3)
            if 'sdwa' in P.mn and C.kind in ('valu', 'trans', 'dot') and pv & (C.uses | C.defs):
                need = max(need, 1)
        if P.kind == 'mfma':
            n = P.passes
            if C.kind == 'mfma':
                if pv & C.srca:
                    need = max(need, {4: 8, 8: 12, 16: 20}[n])
                if pv & C.srcc:
                    if not (C.srcc == P.defs and C.passes == P.passes):
                        need = max(need, {4: 6, 8: 10, 16: 18}[n])
                if pv & C.defs and not (pv & C.srcc):
                    need = max(need, {4: 6, 8: 10, 16: 18}[n])
            elif C.kind in ('valu', 'trans', 'dot', 'vmem', 'ds'):
                if pv & (C.uses | C.defs):
                    need = max(need, {4: 8, 8: 12, 16: 20}[n])
            if C.kind in ('valu', 'trans', 'dot') and isv(P.srcc) & C.defs:
                need = max(need, {4: 3, 8: 7, 16: 15}[n])
        if P.kind == 'salu' and ('m0', 0) in P.defs and C.lds_dma:
            need = max(need, 1)
        if P.kind == 'vmem' and P.wide_store and P.srca & C.defs:
            need = max(need, 2 if C.kind in ('valu', 'trans', 'dot', 'mfma') else 1)
        if P.kind == 'ds' and P.mn.startswith('ds_write') and False:
            pass
        return max(0, need - d)

    def _wait(self, C):
        st = self.st
        touch = C.uses | C.defs
        vmn = None
        for i, dst in enumerate(st.vm):
            if dst & touch:
                vmn = len(st.vm) - 1 - i
        lgn = None
        for i, (k, dst) in enumerate(st.lg):
            if dst & touch:
                n = len(st.lg) - 1 - i
                if any(kk == 'smem' for kk, _ in st.lg):
                    n = 0
                lgn = n
        if vmn is not None or lgn is not None:
            s = 's_waitcnt'
            if vmn is not None:
                s += f' vmcnt({min(vmn, 63)})'
            if lgn is not None:
                s += f' lgkmcnt({min(lgn, 15)})'
            self._emit_plain(s)

    def _apply_wait(self, text):
        m = re.search(r'vmcnt\((\d+)\)', text)
        if m:
            n = int(m.group(1))
            if len(self.st.vm) > n:
                self.st.vm = self.st.vm[len(self.st.vm) - n:] if n else []
        m = re.search(r'lgkmcnt\((\d+)\)', text)
        if m:
            n = int(m.group(1))
            if n == 0:
                self.st.lg = []
            elif not any(k == 'smem' for k, _ in self.st.lg):
                if len(self.st.lg) > n:
                    self.st.lg = self.st.lg[len(self.st.lg) - n:]

    def _emit_plain(self, text):
        I = parse(text)
        self.lines.append('  ' + text)
        if I.mn == 's_waitcnt':
            self._apply_wait(text)
        n = 1
        if I.mn == 's_nop':
            n = int(I.ops[0], 0) + 1
        self._advance(n)
        return I

    def __call__(self, text):
        for t in text.strip().split('\n'):
            t = t.strip()
            if t and not t.startswith(';'):
                self.inst(t)

    def wait_tag(self, tag, kind='vm'):
        q = self.st.vm if kind == 'vm' else [d for _, d in self.st.lg]
        n = None
        for i, dst in enumerate(q):
            if ('tag', tag) in dst:
                n = len(q) - 1 - i
        if n is not None:
            if kind == 'vm':
                self._emit_plain(f's_waitcnt vmcnt({n})')
            else:
                if any(k == 'smem' for k, _ in self.st.lg): n = 0
                self._emit_plain(f's_waitcnt lgkmcnt({min(n,15)})')

    def inst(self, text, tag=None):
        C = parse(text)
        for r in C.defs | C.uses:
            if r[0] == 'v': self.maxv = max(self.maxv, r[1])
            if r[0] == 's': self.maxs = max(self.maxs, r[1])
            if r[0] == 'a': self.maxa = max(self.maxa, r[1])
        if C.mn in ('s_waitcnt', 's_nop'):
            self._emit_plain(text)
            return
        if self.auto:
            self._wait(C)
            need = 0
            for P, d in self.st.hist:
                need = max(need, self._need(P, d, C))
            while need > 0:
                k = min(need, 16)
                self._emit_plain(f's_nop {k-1}')
                need -= k
        self.lines.append('  ' + text)
        self._advance(1)
        self.st.hist.append((C, 0))
        if C.kind == 'vmem' and C.mn not in ('buffer_inv', 'buffer_wbl2'):
            self.st.vm.append(set(C.defs) | ({('tag', tag)} if tag else set()))
            assert len(self.st.vm) <= 63, 'vmcnt overflow'
        elif C.kind == 'vmem':
            self.st.vm.append(set())
        elif C.kind == 'ds':
            self.st.lg.append(('ds', set(C.defs) | ({('tag', tag)} if tag else set())))
        elif C.kind == 'smem':
            self.st.lg.append(('smem', set(C.defs)))

    def loop(self, label, body, tail):
        self.lines.append(label + ':')
        start = len(self.lines)
        body(); tail()
        text1 = self.lines[start:]
        st1 = copy.deepcopy(self.st)
        saved = self.lines
        self.lines = []
        body(); tail()
        text2 = self.lines
        self.lines = saved
        if text1 != text2:
            import difflib
            d = '\n'.join(difflib.unified_diff(text1, text2, lineterm='', n=2))
            raise RuntimeError(f'loop {label}: steady state differs from first iteration\n' + d)
        return

    def text(self):
        return '\n'.join(self.lines) + '\n'


def kernel_header(name):
    return f'.globl {name}\n.p2align 8\n.type {name},@function\n{name}:'

def kernel_desc(name, vgpr, sgpr, accum=None):
    if accum is None:
        accum = (vgpr + 3) // 4 * 4
    return f'''.p2align 6
.amdhsa_kernel {name}
  .amdhsa_next_free_vgpr {vgpr}
  .amdhsa_next_free_sgpr {sgpr}
  .amdhsa_accum_offset {accum}
  .amdhsa_group_segment_fixed_size 0
  .amdhsa_kernarg_size 72
  .amdhsa_user_sgpr_count 2
  .amdhsa_user_sgpr_kernarg_segment_ptr 1
  .amdhsa_system_sgpr_workgroup_id_x 1
.end_amdhsa_kernel'''
```

```python
import sys, struct, math
sys.path.insert(0, 'dev')
from asmlib import *

NAME = 'interleave_layers__linear_attn_block__softmax_full_mha__prompt'

def f32(x):
    return '0x%08x' % struct.unpack('<I', struct.pack('<f', x))[0]

WP_HEAD = 87 * 1024
WP_SIZE = 16 * WP_HEAD
WO_SIZE = 14 * 32 * 1024
X_SIZE = 64 * 28 * 1024
_off = 0
def alloc(n, al=4096):
    global _off
    _off = (_off + al - 1) // al * al
    r = _off
    _off += n
    return r
WS_W = [alloc(WP_SIZE), alloc(WP_SIZE)]
WS_WO = [alloc(WO_SIZE, 65536), alloc(WO_SIZE, 65536)]
WS_X = [alloc(X_SIZE) for _ in range(4)]
WS_Q = alloc(16 * 64 * 2048, 65536)
WS_KV = alloc(16 * 64 * 4096)
WS_O = alloc(64 * 16 * 2048, 65536)
WS_ST0 = alloc(2048 * 8)
WS_ZERO = alloc(0)
WS_KVACC = [alloc(16 * 4096), alloc(16 * 4096)]
WS_ST = [WS_ST0] + [alloc(2048 * 8) for _ in range(3)]
ZERO_SIZE = _off - WS_ZERO
assert ZERO_SIZE == 11 * 16384
WS_TOTAL = 1 << 28
OOB = 0x40000000

LOG2E = 1.4426950408889634
QSCALE = 28 ** -0.5 * LOG2E
ONES2 = 0x3f803f80

kernels = []
launches = []

def ws_srd(a, sd=8, tmp=None):
    a(f's_and_b32 s{sd+1}, s{sd+1}, 0xffff')
    a(f's_mov_b32 s{sd+2}, {WS_TOTAL}')
    a(f's_mov_b32 s{sd+3}, 0x20000')

def gen_prep():
    a = Asm()
    a.raw(kernel_header('prep_kernel'))
    a('s_load_dwordx2 s[8:9], s[0:1], 64')
    a('s_load_dwordx4 s[16:19], s[0:1], 0')
    a('s_load_dwordx2 s[20:21], s[0:1], 16')
    a('s_load_dwordx4 s[24:27], s[0:1], 32')
    a('v_and_b32 v1, 63, v0')
    a('v_lshrrev_b32 v2, 6, v0')
    a('v_and_b32 v3, 31, v0')
    a('v_bfe_u32 v4, v0, 5, 1')
    a('v_lshlrev_b32 v5, 4, v1')
    a(f's_mov_b32 s30, {ONES2}')
    a('s_mov_b32 s31, 0x05040100')
    a('s_mov_b32 s32, 0x07060302')
    a('s_mov_b32 s15, 0x20000')
    a('s_waitcnt lgkmcnt(0)')
    ws_srd(a)
    a('s_cmp_lt_u32 s2, 96')
    a('s_cbranch_scc1 prep_W')
    a('s_cmp_lt_u32 s2, 124')
    a('s_cbranch_scc1 prep_WO')
    a('s_cmp_lt_u32 s2, 188')
    a('s_cbranch_scc1 prep_X')
    a('s_cmp_lt_u32 s2, 199')
    a('s_cbranch_scc0 prep_end')
    a('s_sub_u32 s3, s2, 188')
    a('s_lshl_b32 s3, s3, 14')
    a(f's_add_u32 s3, s3, {WS_ZERO}')
    a('v_lshlrev_b32 v6, 4, v0')
    for i in range(4):
        a(f'v_mov_b32 v{8+i}, 0')
    for i in range(4):
        a(f'buffer_store_dwordx4 v[8:11], v6, s[8:11], s3 offen')
        if i < 3:
            a('s_add_u32 s3, s3, 4096')
    a.label('prep_end')
    a('s_endpgm')

    a.label('prep_W'); a.fresh()
    a('s_cmp_ge_u32 s2, 48')
    a('s_cselect_b32 s12, s24, s18')
    a('s_cselect_b32 s13, s25, s19')
    a(f's_mov_b32 s33, {WS_W[0]}')
    a(f's_cselect_b32 s33, {WS_W[1]}, s33')
    a('s_cselect_b32 s3, 48, 0')
    a('s_sub_u32 s3, s2, s3')
    a('s_and_b32 s13, s13, 0xffff')
    a(f's_mov_b32 s14, {448*1344*2}')
    a('s_mul_i32 s4, s3, 171')
    a('s_lshr_b32 s4, s4, 9')
    a('s_mul_i32 s5, s4, 3')
    a('s_sub_u32 s5, s3, s5')
    a('s_mul_i32 s6, s5, 448')
    a('s_mul_i32 s7, s4, 28')
    a('s_add_u32 s6, s6, s7')
    a('v_mul_u32_u24 v6, %d, v4' % (4 * 1344))
    a('v_add3_u32 v6, v6, v3, s6')
    a('v_lshlrev_b32 v6, 1, v6')
    a(f's_mov_b32 s7, {7*16*2688}')
    a('v_mul_lo_u32 v7, v2, s7')
    a('v_add_u32 v6, v6, v7')
    a(f'v_mov_b32 v7, {OOB}')
    a('v_cmp_gt_u32 vcc, 28, v3')
    a('v_cndmask_b32 v6, v7, v6, vcc')
    LO, HI = 16, 48
    for tt in range(7):
        for r in range(4):
            a(f's_mov_b32 s7, {(16*tt + 8*(r>>1) + 2*(r&1))*2688}')
            a(f'buffer_load_ushort v{LO+4*tt+r}, v6, s[12:15], s7 offen')
            a(f'buffer_load_ushort v{HI+4*tt+r}, v6, s[12:15], s7 offen offset:2688')
    a(f's_mul_i32 s6, s4, {WP_HEAD}')
    a('s_add_u32 s33, s33, s6')
    a('s_lshl_b32 s6, s5, 10')
    a('s_add_u32 s33, s33, s6')
    a('v_mul_u32_u24 v8, %d, v2' % (7 * 3072))
    a('v_add_u32 v8, v8, v5')
    a('v_mov_b32 v9, 0')
    a('s_mov_b32 s34, s33')
    for tt in range(7):
        for r in range(4):
            a(f'v_perm_b32 v{LO+4*tt+r}, v{HI+4*tt+r}, v{LO+4*tt+r}, s31')
        a(f'buffer_store_dwordx4 v[{LO+4*tt}:{LO+4*tt+3}], v8, s[8:11], s34 offen')
        a('s_add_u32 s34, s34, 3072')
        for r in range(4):
            a(f'v_dot2_f32_bf16 v9, v{LO+4*tt+r}, s30, v9')
    a('v_lshlrev_b32 v10, 2, v0')
    a('ds_write_b32 v10, v9')
    a('s_waitcnt lgkmcnt(0)')
    a('s_barrier')
    a('v_readfirstlane_b32 s6, v2')
    a('s_cmp_lg_u32 s6, 0')
    a('s_cbranch_scc1 prep_end')
    a('v_lshlrev_b32 v10, 2, v3')
    for k in range(4):
        a(f'ds_read2_b32 v[{16+2*k}:{17+2*k}], v10 offset0:{64*k} offset1:{64*k+32}')
    a('v_add_f32 v16, v16, v17')
    for k in range(2, 8):
        a(f'v_add_f32 v16, v16, v{16+k}')
    a('v_cmp_eq_u32 vcc, 0, v4')
    a('v_cndmask_b32 v16, 0, v16, vcc')
    a('v_and_b32 v17, 0xffff0000, v16')
    a('v_sub_f32 v18, v16, v17')
    a('v_and_b32 v19, 0xffff0000, v18')
    a('v_sub_f32 v20, v18, v19')
    a('v_perm_b32 v24, v19, v17, s32')
    a('v_perm_b32 v25, v17, v20, s32')
    a('v_perm_b32 v26, v17, v19, s32')
    a('v_mov_b32 v27, 0')
    a(f's_add_u32 s33, s33, {28*3072}')
    a('buffer_store_dwordx4 v[24:27], v5, s[8:11], s33 offen')
    a('s_endpgm')

    a.label('prep_WO'); a.fresh()
    a('s_cmp_ge_u32 s2, 110')
    a('s_cselect_b32 s12, s26, s20')
    a('s_cselect_b32 s13, s27, s21')
    a(f's_mov_b32 s33, {WS_WO[0]}')
    a(f's_cselect_b32 s33, {WS_WO[1]}, s33')
    a('s_cselect_b32 s3, 14, 0')
    a('s_sub_u32 s3, s2, s3')
    a('s_sub_u32 s3, s3, 96')
    a('s_and_b32 s13, s13, 0xffff')
    a(f's_mov_b32 s14, {448*448*2}')
    a('v_mul_u32_u24 v6, 112, v2')
    a('v_lshl_add_u32 v6, v4, 2, v6')
    a('v_mul_u32_u24 v6, 448, v6')
    a('s_lshl_b32 s4, s3, 5')
    a('v_add3_u32 v6, v6, v3, s4')
    a('v_lshlrev_b32 v6, 1, v6')
    a(f'v_mov_b32 v7, {OOB}')
    a('v_cmp_eq_u32 vcc, 0, v4')
    a('v_cndmask_b32 v7, v7, v6, vcc')
    a('s_lshl_b32 s4, s3, 15')
    a('s_add_u32 s33, s33, s4')
    a('v_lshl_add_u32 v8, v2, 13, v5')
    for half in range(2):
        for s4 in range(4):
            ss = half * 4 + s4
            u = ss & 1
            for q in range(2):
                a(f's_mov_b32 s7, {(28*(ss>>1) + 16*u + 8*q)*896}')
                vo = 'v7' if (u == 1 and q == 1) else 'v6'
                for j in range(4):
                    dst = (LO if j % 2 == 0 else HI) + 4 * s4 + 2 * q + (j >> 1)
                    a(f'buffer_load_ushort v{dst}, {vo}, s[12:15], s7 offen offset:{j*896}')
        for s4 in range(4):
            for r in range(4):
                a(f'v_perm_b32 v{80+16*half+4*s4+r}, v{HI+4*s4+r}, v{LO+4*s4+r}, s31')
            a(f'buffer_store_dwordx4 v[{80+16*half+4*s4}:{80+16*half+4*s4+3}], v8, s[8:11], s33 offen offset:{s4*1024}')
        a('s_add_u32 s33, s33, 4096')
    a('s_endpgm')

    a.label('prep_X'); a.fresh()
    a('s_mov_b32 s12, s16')
    a('s_and_b32 s13, s17, 0xffff')
    a(f's_mov_b32 s14, {2048*448*2}')
    a('s_sub_u32 s3, s2, 124')
    a('s_lshl_b32 s4, s3, 5')
    a('v_add_u32 v6, s4, v3')
    a('v_mul_u32_u24 v6, 896, v6')
    a('v_lshl_add_u32 v6, v4, 3, v6')
    a('v_mul_u32_u24 v7, 224, v2')
    a('v_add_u32 v6, v6, v7')
    for tt in range(7):
        a(f'buffer_load_dwordx2 v[{16+4*tt}:{17+4*tt}], v6, s[12:15], 0 offen offset:{tt*32}')
        a(f'buffer_load_dwordx2 v[{18+4*tt}:{19+4*tt}], v6, s[12:15], 0 offen offset:{tt*32+16}')
    a(f's_mul_i32 s33, s3, {28*1024}')
    a(f's_add_u32 s33, s33, {WS_X[0]}')
    a('v_mul_u32_u24 v8, %d, v2' % (7 * 1024))
    a('v_add_u32 v8, v8, v5')
    a('v_mov_b32 v10, 0')
    a('v_mov_b32 v11, 0')
    for tt in range(7):
        if tt == 4:
            a('s_add_u32 s33, s33, 4096')
        a(f'buffer_store_dwordx4 v[{16+4*tt}:{19+4*tt}], v8, s[8:11], s33 offen offset:{(tt%4)*1024}')
        for r in range(4):
            a(f'v_dot2_f32_bf16 v10, v{16+4*tt+r}, s30, v10')
            a(f'v_dot2_f32_bf16 v11, v{16+4*tt+r}, v{16+4*tt+r}, v11')
    a('v_lshlrev_b32 v12, 3, v0')
    a('ds_write_b64 v12, v[10:11]')
    a('s_waitcnt lgkmcnt(0)')
    a('s_barrier')
    a('v_readfirstlane_b32 s6, v2')
    a('s_cmp_lg_u32 s6, 0')
    a('s_cbranch_scc1 prep_end')
    a('v_lshlrev_b32 v12, 3, v3')
    for k in range(8):
        a(f'ds_read_b64 v[{48+2*k}:{49+2*k}], v12 offset:{256*k}')
    for k in range(1, 8):
        a(f'v_pk_add_f32 v[48:49], v[48:49], v[{48+2*k}:{49+2*k}]')
    a('s_lshl_b32 s4, s3, 8')
    a(f's_add_u32 s4, s4, {WS_ST0}')
    a('buffer_store_dwordx2 v[48:49], v12, s[8:11], s4 offen')
    a('s_endpgm')
    kernels.append(('prep_kernel', a.text(), 128, 40, 128))

QKV_LDS_W = 0
QKV_LDS_R = 28 * 3072
QKV_LDS_KV = QKV_LDS_R + 512
QKV_LDS = QKV_LDS_KV + 16384

def gen_qkv(isA, entries):
    tag = 'qkva' if isA else 'qkvb'
    a = Asm()
    for (kn, xi, kvi) in entries:
        a.raw(kernel_header(kn))
        a(f's_mov_b32 s20, {WS_X[xi]}')
        a(f's_mov_b32 s21, {WS_ST[xi]}')
        if isA:
            a(f's_mov_b32 s22, {WS_KVACC[kvi]}')
        if (kn, xi, kvi) != entries[-1]:
            a(f's_branch {tag}_body')
    a.label(f'{tag}_body'); a.fresh()
    a('s_cmp_ge_u32 s2, 256')
    a(f's_cbranch_scc1 {tag}_end')
    a('s_load_dwordx2 s[8:9], s[0:1], 64')
    a('v_and_b32 v1, 63, v0')
    a('v_lshrrev_b32 v2, 6, v0')
    a('v_and_b32 v3, 31, v0')
    a('v_readfirstlane_b32 s4, v2')
    a('v_bfe_u32 v4, v0, 5, 1')
    a('v_lshlrev_b32 v1, 4, v1')
    a('s_and_b32 s5, s2, 7')
    a('s_lshr_b32 s6, s2, 3')
    a('s_lshr_b32 s7, s5, 1')
    a('s_lshl_b32 s7, s7, 2')
    a('s_and_b32 s12, s6, 3')
    a('s_add_u32 s7, s7, s12')
    a('s_and_b32 s5, s5, 1')
    a('s_lshl_b32 s5, s5, 3')
    a('s_lshr_b32 s6, s6, 2')
    a('s_add_u32 s5, s5, s6')
    a('s_lshl_b32 s7, s7, 2')
    a('s_add_u32 s7, s7, s4')
    a(f's_mul_i32 s12, s7, {28*1024}')
    a('s_add_u32 s20, s20, s12')
    a('s_lshl_b32 s12, s7, 8')
    a('s_add_u32 s21, s21, s12')
    a(f's_mul_i32 s13, s5, {WP_HEAD}')
    a(f's_add_u32 s13, s13, {WS_W[0 if isA else 1]}')
    a(f's_add_u32 s14, s13, {28*3072}')
    a('s_mul_i32 s15, s4, 3072')
    a('s_add_u32 s13, s13, s15')
    a('v_lshlrev_b32 v5, 3, v3')
    a('s_waitcnt lgkmcnt(0)')
    ws_srd(a)
    ST, WE, XE = 6, 8, 20
    ACC = 24
    WR = 72
    RS = 120
    RL = 136
    T = 152
    a(f'buffer_load_dwordx2 v[{ST}:{ST+1}], v5, s[8:11], s21 offen')
    for p in range(3):
        a(f'buffer_load_dwordx4 v[{WE+4*p}:{WE+4*p+3}], v1, s[8:11], s14 offen offset:{p*1024}')
    for g in range(7):
        a('s_mov_b32 m0, s15')
        for p in range(3):
            a.inst(f'buffer_load_dwordx4 v1, s[8:11], s13 offen offset:{p*1024} lds', tag=f'w{g}')
        for k in range(4):
            t = 4 * g + k
            a(f'buffer_load_dwordx4 a[{4*t}:{4*t+3}], v1, s[8:11], s20 offen offset:{k*1024}')
        if g < 6:
            a('s_add_u32 s15, s15, 12288')
            a('s_add_u32 s13, s13, 12288')
            a('s_add_u32 s20, s20, 4096')
    a(f's_mov_b32 s16, {f32(1.0/448)}')
    a('s_mov_b32 s17, 0x07060302')
    a(f'v_mul_f32 v{ST}, s16, v{ST}')
    a(f'v_mul_f32 v{ST+1}, s16, v{ST+1}')
    a(f'v_fma_f32 v{ST+1}, -v{ST}, v{ST}, v{ST+1}')
    a(f'v_max_f32 v{ST+1}, 0, v{ST+1}')
    a(f'v_add_f32 v{ST+1}, {f32(1e-5)}, v{ST+1}')
    a(f'v_rsq_f32 v{T}, v{ST+1}')
    a(f'v_sub_f32 v{ST}, 0, v{ST}')
    a(f'v_and_b32 v{T+4}, 0xffff0000, v{ST}')
    a(f'v_sub_f32 v{T+5}, v{ST}, v{T+4}')
    a(f'v_and_b32 v{T+6}, 0xffff0000, v{T+5}')
    a(f'v_sub_f32 v{T+7}, v{T+5}, v{T+6}')
    a(f'v_perm_b32 v{XE}, v{T+4}, v{T+4}, s17')
    a(f'v_perm_b32 v{XE+1}, v{T+6}, v{T+4}, s17')
    a(f'v_perm_b32 v{XE+2}, v{T+7}, v{T+6}, s17')
    a(f'v_mov_b32 v{XE+3}, 0')
    a('s_lshl_b32 s18, s4, 7')
    a(f's_add_u32 s18, s18, {QKV_LDS_R}')
    a(f'v_lshl_add_u32 v{T+8}, v3, 2, s18')
    a(f'ds_write_b32 v{T+8}, v{T}')
    a(f'v_lshl_add_u32 v{T+9}, v4, 4, s18')
    a('s_waitcnt lgkmcnt(0)')
    for g in range(4):
        a(f'ds_read_b128 v[{RS+4*g}:{RS+4*g+3}], v{T+9} offset:{32*g}')
    if isA:
        a(f's_mov_b32 s18, {f32(LOG2E)}')
        a(f'v_mul_f32 v{T+2}, s18, v{T}')
        for i in range(16):
            a(f'v_mul_f32 v{RL+i}, s18, v{RS+i}')
    else:
        a(f'v_mul_f32 v{T+2}, {f32(QSCALE)}, v{T}')
    trans = [True, not isA, False]
    def mm(p, w, x, c):
        d = f'v[{ACC+16*p}:{ACC+16*p+15}]'
        if trans[p]:
            a(f'v_mfma_f32_32x32x16_bf16 {d}, {w}, {x}, {c}')
        else:
            a(f'v_mfma_f32_32x32x16_bf16 {d}, {x}, {w}, {c}')
    for p in range(3):
        mm(p, f'v[{WE+4*p}:{WE+4*p+3}]', f'v[{XE}:{XE+3}]', '0')
    for g in range(7):
        a.wait_tag(f'w{g}')
        a('s_barrier')
        for f in range(12):
            off = (12 * g + f) * 1024
            if off < 65536:
                a(f'ds_read_b128 v[{WR+4*f}:{WR+4*f+3}], v1 offset:{off}')
            else:
                if off == 65536:
                    a(f'v_add_u32 v{T+10}, 65536, v1')
                a(f'ds_read_b128 v[{WR+4*f}:{WR+4*f+3}], v{T+10} offset:{off-65536}')
        for k in range(4):
            t = 4 * g + k
            for p in range(3):
                f = 3 * k + p
                mm(p, f'v[{WR+4*f}:{WR+4*f+3}]', f'a[{4*t}:{4*t+3}]', f'v[{ACC+16*p}:{ACC+16*p+15}]')
    QF, KF, VF = 72, 80, 88
    SD = 96
    def pkmul_lane(dst, src, sc):
        a(f'v_pk_mul_f32 v[{dst}:{dst+1}], v[{src}:{src+1}], v[{sc}:{sc+1}] op_sel_hi:[1,0]')
    def ones_lane28():
        a('s_mov_b32 exec_lo, 0x10000000')
        a('s_mov_b32 exec_hi, 0x10000000')
        for r in range(8):
            a(f'v_mov_b32 v{VF+r}, s19')
        a('s_mov_b64 exec, -1')
    a(f's_mov_b32 s19, {ONES2}')
    if not isA:
        AQ, AK, AV = ACC, ACC + 16, ACC + 32
        for r in range(8):
            pkmul_lane(AQ + 2 * r, AQ + 2 * r, T + 2)
            a(f'v_cvt_pk_bf16_f32 v{QF+r}, v{AQ+2*r}, v{AQ+2*r+1}')
        for r in range(8):
            pkmul_lane(AK + 2 * r, AK + 2 * r, T)
            a(f'v_cvt_pk_bf16_f32 v{KF+r}, v{AK+2*r}, v{AK+2*r+1}')
        a(f'v_mfma_f32_32x32x16_bf16 v[{SD}:{SD+15}], v[{KF}:{KF+3}], v[{QF}:{QF+3}], 0')
        a(f'v_mfma_f32_32x32x16_bf16 v[{SD}:{SD+15}], v[{KF+4}:{KF+7}], v[{QF+4}:{QF+7}], v[{SD}:{SD+15}]')
        a('s_lshl_b32 s12, s5, 18')
        a('s_lshl_b32 s13, s7, 12')
        a('s_add_u32 s12, s12, s13')
        a(f's_add_u32 s13, s12, {WS_KV}')
        a('s_lshr_b32 s12, s12, 1')
        a(f's_add_u32 s12, s12, {WS_Q}')
        for r in range(8):
            a(f'v_pk_mul_f32 v[{AV+2*r}:{AV+2*r+1}], v[{AV+2*r}:{AV+2*r+1}], v[{RS+2*r}:{RS+2*r+1}]')
            a(f'v_cvt_pk_bf16_f32 v{VF+r}, v{AV+2*r}, v{AV+2*r+1}')
        ones_lane28()
        a(f'buffer_store_dwordx4 v[{VF}:{VF+3}], v1, s[8:11], s13 offen offset:2048')
        a(f'buffer_store_dwordx4 v[{VF+4}:{VF+7}], v1, s[8:11], s13 offen offset:3072')
        a(f'buffer_store_dwordx4 v[{QF}:{QF+3}], v1, s[8:11], s12 offen')
        a(f'buffer_store_dwordx4 v[{KF}:{KF+3}], v1, s[8:11], s13 offen')
        a('s_mov_b32 exec_lo, 0')
        a(f'v_mov_b32 v{KF+6}, s19')
        a(f'v_mov_b32 v{KF+7}, 0x3f80')
        a('s_mov_b32 exec_lo, -1')
        a(f'buffer_store_dwordx4 v[{KF+4}:{KF+7}], v1, s[8:11], s13 offen offset:1024')
        a(f'v_max3_f32 v{T+4}, v{SD}, v{SD+1}, v{SD+2}')
        a(f'v_max3_f32 v{T+5}, v{SD+3}, v{SD+4}, v{SD+5}')
        for r in range(6, 16, 4):
            a(f'v_max3_f32 v{T+4}, v{SD+r}, v{SD+r+1}, v{T+4}')
            if r + 3 < 16:
                a(f'v_max3_f32 v{T+5}, v{SD+r+2}, v{SD+r+3}, v{T+5}')
        a(f'v_max_f32 v{T+4}, v{T+4}, v{T+5}')
        a(f'v_mov_b32 v{T+5}, v{T+4}')
        a(f'v_permlane32_swap_b32 v{T+4}, v{T+5}')
        a(f'v_max_f32 v{T+4}, v{T+4}, v{T+5}')
        a(f'v_sub_f32 v{T+4}, 0, v{T+4}')
        a(f'v_and_b32 v{T+5}, 0xffff0000, v{T+4}')
        a(f'v_sub_f32 v{T+6}, v{T+4}, v{T+5}')
        a('s_mov_b32 exec_lo, 0')
        a(f'v_perm_b32 v{QF+6}, v{T+6}, v{T+5}, s17')
        a('s_mov_b32 exec_lo, -1')
        a(f'buffer_store_dwordx4 v[{QF+4}:{QF+7}], v1, s[8:11], s12 offen offset:1024')
    else:
        AQ, AK, AV = ACC, ACC + 16, ACC + 32
        E = 96
        a(f's_mov_b32 s16, {f32(1e-6)}')
        a(f's_mov_b32 s17, {f32(1e-6)}')
        a(f'v_mov_b32 v{T+4}, 1.0')
        for r in range(8):
            a(f'v_pk_mul_f32 v[{E+2*r}:{E+2*r+1}], v[{AK+2*r}:{AK+2*r+1}], v[{RL+2*r}:{RL+2*r+1}]')
            a(f'v_pk_fma_f32 v[{AK+2*r}:{AK+2*r+1}], v[{AK+2*r}:{AK+2*r+1}], v[{RS+2*r}:{RS+2*r+1}], v[{T+4}:{T+5}] op_sel_hi:[1,1,0]')
            a(f'v_exp_f32 v{E+2*r}, v{E+2*r}')
            a(f'v_exp_f32 v{E+2*r+1}, v{E+2*r+1}')
            a(f'v_pk_mul_f32 v[{AV+2*r}:{AV+2*r+1}], v[{AV+2*r}:{AV+2*r+1}], v[{RS+2*r}:{RS+2*r+1}]')
            a(f'v_med3_f32 v{AK+2*r}, v{E+2*r}, v{AK+2*r}, 1.0')
            a(f'v_med3_f32 v{AK+2*r+1}, v{E+2*r+1}, v{AK+2*r+1}, 1.0')
            a(f'v_cvt_pk_bf16_f32 v{VF+r}, v{AV+2*r}, v{AV+2*r+1}')
            a(f'v_pk_add_f32 v[{AK+2*r}:{AK+2*r+1}], v[{AK+2*r}:{AK+2*r+1}], s[16:17]')
            a(f'v_cvt_pk_bf16_f32 v{KF+r}, v{AK+2*r}, v{AK+2*r+1}')
        ones_lane28()
        KVD = AV
        a(f'v_mfma_f32_32x32x16_bf16 v[{KVD}:{KVD+15}], v[{KF}:{KF+3}], v[{VF}:{VF+3}], 0')
        a(f'v_mfma_f32_32x32x16_bf16 v[{KVD}:{KVD+15}], v[{KF+4}:{KF+7}], v[{VF+4}:{VF+7}], v[{KVD}:{KVD+15}]')
        for r in range(8):
            pkmul_lane(E + 2 * r, AQ + 2 * r, T + 2)
            a(f'v_pk_fma_f32 v[{AQ+2*r}:{AQ+2*r+1}], v[{AQ+2*r}:{AQ+2*r+1}], v[{T}:{T+1}], v[{T+4}:{T+5}] op_sel_hi:[1,0,0]')
            a(f'v_exp_f32 v{E+2*r}, v{E+2*r}')
            a(f'v_exp_f32 v{E+2*r+1}, v{E+2*r+1}')
            if r == 2:
                a('s_lshl_b32 s18, s4, 12')
                a(f's_add_u32 s18, s18, {QKV_LDS_KV}')
                a(f'v_add_u32 v{T+8}, s18, v1')
                for rg in range(4):
                    a(f'ds_write_b128 v{T+8}, v[{KVD+4*rg}:{KVD+4*rg+3}] offset:{rg*1024}')
            a(f'v_med3_f32 v{AQ+2*r}, v{E+2*r}, v{AQ+2*r}, 1.0')
            a(f'v_med3_f32 v{AQ+2*r+1}, v{E+2*r+1}, v{AQ+2*r+1}, 1.0')
            a(f'v_pk_add_f32 v[{AQ+2*r}:{AQ+2*r+1}], v[{AQ+2*r}:{AQ+2*r+1}], s[16:17]')
            a(f'v_cvt_pk_bf16_f32 v{QF+r}, v{AQ+2*r}, v{AQ+2*r+1}')
        a('s_lshl_b32 s12, s7, 15')
        a('s_lshl_b32 s13, s5, 11')
        a('s_add_u32 s12, s12, s13')
        a(f's_add_u32 s12, s12, {WS_O}')
        a(f'buffer_store_dwordx4 v[{QF}:{QF+3}], v1, s[8:11], s12 offen')
        a(f'buffer_store_dwordx4 v[{QF+4}:{QF+7}], v1, s[8:11], s12 offen offset:1024')
        a('s_waitcnt lgkmcnt(0)')
        a('s_barrier')
        a(f'v_lshlrev_b32 v{T+8}, 2, v0')
        a(f'v_add_u32 v{T+9}, {QKV_LDS_KV}, v{T+8}')
        for k in range(4):
            a(f'ds_read2st64_b32 v[{E+4*k}:{E+4*k+1}], v{T+9} offset0:{4*k} offset1:{4*k+16}')
            a(f'ds_read2st64_b32 v[{E+4*k+2}:{E+4*k+3}], v{T+9} offset0:{4*k+32} offset1:{4*k+48}')
        a('s_lshl_b32 s13, s5, 12')
        a('s_add_u32 s22, s22, s13')
        for k in range(4):
            a(f'v_pk_add_f32 v[{E+4*k}:{E+4*k+1}], v[{E+4*k}:{E+4*k+1}], v[{E+4*k+2}:{E+4*k+3}]')
            a(f'v_add_f32 v{E+4*k}, v{E+4*k}, v{E+4*k+1}')
            if k == 3:
                a('s_cmp_ge_u32 s4, 2')
                a(f's_cbranch_scc1 {tag}_end')
            a(f'buffer_atomic_add_f32 v{E+4*k}, v{T+8}, s[8:11], s22 offen offset:{k*1024}')
    a.label(f'{tag}_end')
    a('s_endpgm')
    text = a.text()
    assert a.maxv < 168, a.maxv
    kernels.append((entries[0][0], text, 168 + 112, 32, 168))
    for e in entries[1:]:
        kernels.append((e[0], '', 168 + 112, 32, 168))

OP_LDS = 48 * 1024

def gen_outproj(isA, final, entries):
    tag = 'opa' if isA else ('opf' if final else 'opb')
    a = Asm()
    for e in entries:
        kn, xi, xo, kvi = e
        a.raw(kernel_header(kn))
        a(f's_mov_b32 s20, {WS_X[xi]}')
        if not final:
            a(f's_mov_b32 s21, {WS_X[xo]}')
            a(f's_mov_b32 s23, {WS_ST[xo]}')
        if isA:
            a(f's_mov_b32 s22, {WS_KVACC[kvi]}')
        if e != entries[-1]:
            a(f's_branch {tag}_body')
    a.label(f'{tag}_body'); a.fresh()
    a('s_cmp_ge_u32 s2, 224')
    a(f's_cbranch_scc1 {tag}_end')
    a('s_load_dwordx2 s[8:9], s[0:1], 64')
    if final:
        a('s_load_dwordx2 s[24:25], s[0:1], 48')
    a('v_and_b32 v1, 63, v0')
    a('v_lshrrev_b32 v2, 6, v0')
    a('v_and_b32 v3, 31, v0')
    a('v_readfirstlane_b32 s4, v2')
    a('v_bfe_u32 v4, v0, 5, 1')
    a('v_lshlrev_b32 v1, 4, v1')
    a('s_and_b32 s5, s2, 7')
    a('s_lshr_b32 s6, s2, 3')
    a('s_lshl_b32 s5, s5, 2')
    a('s_and_b32 s7, s6, 3')
    a('s_add_u32 s5, s5, s7')
    a('s_lshr_b32 s6, s6, 2')
    a('s_lshr_b32 s7, s4, 1')
    a('s_and_b32 s12, s4, 1')
    a('s_lshl_b32 s5, s5, 1')
    a('s_add_u32 s5, s5, s7')
    a('s_lshl_b32 s6, s6, 1')
    a('s_add_u32 s6, s6, s12')
    a('s_lshl_b32 s13, s4, 13')
    a('s_lshl_b32 s14, s5, 15')
    a('s_add_u32 s14, s14, s13')
    a(f's_add_u32 s14, s14, {WS_O}')
    a('s_xor_b32 s15, s14, 0x8000') if (WS_O % 65536 == 0) else None
    assert WS_O % 65536 == 0 and WS_WO[0] % 65536 == 0 and WS_WO[1] % 65536 == 0
    a('s_lshl_b32 s16, s6, 15')
    a('s_add_u32 s16, s16, s13')
    a(f's_add_u32 s16, s16, {WS_WO[0 if isA else 1]}')
    a('s_xor_b32 s17, s16, 0x8000')
    a(f's_mul_i32 s18, s5, {28*1024}')
    a('s_lshl_b32 s19, s6, 11')
    a('s_add_u32 s18, s18, s19')
    a('s_add_u32 s20, s20, s18')
    a('s_waitcnt lgkmcnt(0)')
    ws_srd(a)
    XF = 8
    OF = 16
    ACC = 80
    KV = 144
    D = 208
    T = 240
    a(f'buffer_load_dwordx4 v[{XF}:{XF+3}], v1, s[8:11], s20 offen')
    a(f'buffer_load_dwordx4 v[{XF+4}:{XF+7}], v1, s[8:11], s20 offen offset:1024')
    if isA:
        a('s_lshl_b32 s19, s4, 14')
        a('s_add_u32 s22, s22, s19')
    for half in range(2):
        if isA:
            for hh in range(2):
                for rg in range(4):
                    r = KV + 16 * (2 * half + hh) + 4 * rg
                    a(f'buffer_load_dwordx4 v[{r}:{r+3}], v1, s[8:11], s22 offen offset:{rg*1024}')
                a('s_add_u32 s22, s22, 4096')
        for s in range(4):
            for ar in range(2):
                r = OF + 32 * ar + 4 * (4 * half + s)
                a(f'buffer_load_dwordx4 v[{r}:{r+3}], v1, s[8:11], s{14+ar} offen offset:{s*1024}')
            for b in range(2):
                r = 32 * b + 4 * (4 * half + s)
                a(f'buffer_load_dwordx4 a[{r}:{r+3}], v1, s[8:11], s{16+b} offen offset:{s*1024}')
        if half == 0:
            for k in range(14, 18):
                a(f's_add_u32 s{k}, s{k}, 4096')
    for r in range(8):
        a(f'v_lshlrev_b32 v{ACC+2*r}, 16, v{XF+r}')
        a(f'v_and_b32 v{ACC+2*r+1}, 0xffff0000, v{XF+r}')
    if isA:
        a(f's_mov_b32 s26, {f32(1e-6)}')
    first = [False, True, True, True]
    def main_mm(s):
        for ar in range(2):
            for b in range(2):
                t = 2 * ar + b
                d = f'v[{ACC+16*t}:{ACC+16*t+15}]'
                c = '0' if first[t] else d
                first[t] = False
                a(f'v_mfma_f32_32x32x16_bf16 {d}, a[{32*b+4*s}:{32*b+4*s+3}], v[{OF+32*ar+4*s}:{OF+32*ar+4*s+3}], {c}')
    if not isA:
        for s in range(8):
            main_mm(s)
    else:
        for hh in range(4):
            kb = KV + 16 * hh
            for r in range(8):
                a(f'v_cvt_pk_bf16_f32 v{kb+r}, v{kb+2*r}, v{kb+2*r+1}')
            for ar in range(2):
                d = D + 16 * ar
                pq = OF + 32 * ar + 8 * hh
                a(f'v_mfma_f32_32x32x16_bf16 v[{d}:{d+15}], v[{kb}:{kb+3}], v[{pq}:{pq+3}], 0')
                a(f'v_mfma_f32_32x32x16_bf16 v[{d}:{d+15}], v[{kb+4}:{kb+7}], v[{pq+4}:{pq+7}], v[{d}:{d+15}]')
            if hh > 0:
                main_mm(2 * hh - 2)
                main_mm(2 * hh - 1)
            for ar in range(2):
                d = D + 16 * ar
                pq = OF + 32 * ar + 8 * hh
                t = T + 2 * ar
                a(f'v_add_f32 v{t}, s26, v{d+12}')
                a(f'v_mov_b32 v{t+1}, v{t}')
                a(f'v_permlane32_swap_b32 v{t+1}, v{t}')
                a(f'v_rcp_f32 v{t}, v{t}')
                for r in range(8):
                    a(f'v_pk_mul_f32 v[{d+2*r}:{d+2*r+1}], v[{d+2*r}:{d+2*r+1}], v[{t}:{t+1}] op_sel_hi:[1,0]')
                    a(f'v_cvt_pk_bf16_f32 v{pq+r}, v{d+2*r}, v{d+2*r+1}')
        main_mm(6)
        main_mm(7)
    for t in range(1, 4):
        a(f's_xor_b32 s19, s4, {t}')
        a('s_mul_i32 s19, s19, 12288')
        a(f'v_add_u32 v{T+4}, s19, v1')
        for rg in range(4):
            r = ACC + 16 * t + 4 * rg
            a(f'ds_write_b128 v{T+4}, v[{r}:{r+3}] offset:{(t-1)*4096 + rg*1024}')
    a('s_mul_i32 s19, s4, 12288')
    a(f'v_add_u32 v{T+4}, s19, v1')
    a('s_waitcnt lgkmcnt(0)')
    a('s_barrier')
    for t in range(1, 4):
        for rg in range(4):
            r = ACC + 16 * t + 4 * rg
            a(f'ds_read_b128 v[{r}:{r+3}], v{T+4} offset:{(t-1)*4096 + rg*1024}')
    for t in range(1, 4):
        for r in range(8):
            a(f'v_pk_add_f32 v[{ACC+2*r}:{ACC+2*r+1}], v[{ACC+2*r}:{ACC+2*r+1}], v[{ACC+16*t+2*r}:{ACC+16*t+2*r+1}]')
    for r in range(8):
        a(f'v_cvt_pk_bf16_f32 v{XF+r}, v{ACC+2*r}, v{ACC+2*r+1}')
    if not final:
        a('s_add_u32 s21, s21, s18')
        a(f'buffer_store_dwordx4 v[{XF}:{XF+3}], v1, s[8:11], s21 offen')
        a(f'buffer_store_dwordx4 v[{XF+4}:{XF+7}], v1, s[8:11], s21 offen offset:1024')
        a(f's_mov_b32 s19, {ONES2}')
        a(f'v_mov_b32 v{T}, 0')
        a(f'v_mov_b32 v{T+1}, 0')
        for r in range(8):
            a(f'v_dot2_f32_bf16 v{T}, v{XF+r}, s19, v{T}')
            a(f'v_dot2_f32_bf16 v{T+1}, v{XF+r}, v{XF+r}, v{T+1}')
        a(f'v_permlane32_swap_b32 v{T}, v{T+1}')
        a(f'v_add_f32 v{T}, v{T}, v{T+1}')
        a('v_lshlrev_b32 v5, 3, v3')
        a('v_lshl_add_u32 v5, v4, 2, v5')
        a('s_lshl_b32 s19, s5, 8')
        a('s_add_u32 s23, s23, s19')
        a(f'buffer_atomic_add_f32 v{T}, v5, s[8:11], s23 offen')
    else:
        a('s_and_b32 s25, s25, 0xffff')
        a(f's_mov_b32 s26, {2048*448*2}')
        a('s_mov_b32 s27, 0x20000')
        a('s_lshl_b32 s19, s5, 5')
        a('v_add_u32 v5, s19, v3')
        a('v_mul_u32_u24 v5, 896, v5')
        a('v_lshl_add_u32 v5, v4, 4, v5')
        a('s_lshl_b32 s19, s6, 6')
        for u in range(2):
            b = XF + 4 * u
            a(f'v_permlane32_swap_b32 v{b}, v{b+2}')
            a(f'v_permlane32_swap_b32 v{b+1}, v{b+3}')
            a(f'buffer_store_dwordx4 v[{b}:{b+3}], v5, s[24:27], s19 offen offset:{32*u}')
    a.label(f'{tag}_end')
    a('s_endpgm')
    assert a.maxv < 248
    kernels.append((entries[0][0], a.text(), 248 + 64, 32, 248))
    for e in entries[1:]:
        kernels.append((e[0], '', 248 + 64, 32, 248))

AT_LDS = 48 * 1024

def gen_attn():
    a = Asm()
    a.raw(kernel_header('attn_kernel'))
    a('s_cmp_ge_u32 s2, 256')
    a('s_cbranch_scc1 attn_end')
    a('s_load_dwordx2 s[8:9], s[0:1], 64')
    a('v_and_b32 v1, 63, v0')
    a('v_lshrrev_b32 v2, 6, v0')
    a('v_lshlrev_b32 v1, 4, v1')
    a('v_readfirstlane_b32 s4, v2')
    a('s_and_b32 s5, s2, 7')
    a('s_lshr_b32 s6, s2, 3')
    a('s_lshl_b32 s5, s5, 1')
    a('s_and_b32 s7, s6, 1')
    a('s_add_u32 s5, s5, s7')
    a('s_lshr_b32 s6, s6, 1')
    a('s_lshl_b32 s12, s5, 18')
    a(f's_add_u32 s12, s12, {WS_KV}')
    a('s_lshl_b32 s13, s4, 16')
    a('s_add_u32 s13, s13, s12')
    a('s_lshl_b32 s14, s5, 17')
    a('s_lshl_b32 s15, s6, 13')
    a('s_add_u32 s14, s14, s15')
    a(f's_add_u32 s14, s14, {WS_Q}')
    a('s_lshl_b32 s15, s4, 11')
    a('s_add_u32 s14, s14, s15')
    assert WS_Q % 8192 == 0
    a('s_waitcnt lgkmcnt(0)')
    ws_srd(a)
    Q = 8
    O = 40
    S = 104
    P = 136
    T = 144
    R = 0
    def kreg(j, t): return f'a[{R+16*j+4*t}:{R+16*j+4*t+3}]'
    def vreg(j, u): return f'a[{R+16*j+8+4*u}:{R+16*j+8+4*u+3}]'
    def qreg(i, t): return f'v[{Q+8*i+4*t}:{Q+8*i+4*t+3}]'
    def sreg(n): return f'v[{S+16*(n&1)}:{S+16*(n&1)+15}]'
    def oreg(i): return f'v[{O+16*i}:{O+16*i+15}]'
    def loadq(i):
        a(f's_xor_b32 s15, s14, {i*2048}')
        a(f'buffer_load_dwordx4 {qreg(i,0)}, v1, s[8:11], s15 offen')
        a(f'buffer_load_dwordx4 {qreg(i,1)}, v1, s[8:11], s15 offen offset:1024')
    def loadk(j, sreg_):
        a(f'buffer_load_dwordx4 {kreg(j,0)}, v1, s[8:11], {sreg_} offen')
        a(f'buffer_load_dwordx4 {kreg(j,1)}, v1, s[8:11], {sreg_} offen offset:1024')
    def loadv(j, sreg_):
        a(f'buffer_load_dwordx4 {vreg(j,0)}, v1, s[8:11], {sreg_} offen offset:2048')
        a(f'buffer_load_dwordx4 {vreg(j,1)}, v1, s[8:11], {sreg_} offen offset:3072')
    loadk(0, 's13')
    loadq(0); loadq(1); loadq(2); loadq(3)
    loadv(0, 's13')
    for j in range(1, 4):
        a('s_add_u32 s13, s13, 4096')
        loadk(j, 's13'); loadv(j, 's13')
    a('s_add_u32 s13, s13, 4096')
    for r in range(64):
        a(f'v_mov_b32 v{O+r}, 0')
    def M1(n):
        j, i = (n >> 2) & 3, n & 3
        a(f'v_mfma_f32_32x32x16_bf16 {sreg(n)}, {kreg(j,0)}, {qreg(i,0)}, 0')
    def M2(n):
        j, i = (n >> 2) & 3, n & 3
        a(f'v_mfma_f32_32x32x16_bf16 {sreg(n)}, {kreg(j,1)}, {qreg(i,1)}, {sreg(n)}')
    def PV(n, u):
        j, i = (n >> 2) & 3, n & 3
        a(f'v_mfma_f32_32x32x16_bf16 {oreg(i)}, {vreg(j,u)}, v[{P+4*u}:{P+4*u+3}], {oreg(i)}')
    def e(n, k):
        r = S + 16 * (n & 1) + k
        a(f'v_exp_f32 v{r}, v{r}')
    def c(n, k):
        r = S + 16 * (n & 1) + 2 * k
        a(f'v_cvt_pk_bf16_f32 v{P+k}, v{r}, v{r+1}')
    M1(0); M2(0); M1(1)
    a('s_mov_b32 s16, 4')
    a(f's_mov_b32 s17, {OOB}')
    a('s_waitcnt vmcnt(14)')
    for k in range(4): e(0, k)
    a('s_nop 0')
    def body():
        for n in range(16):
            j, i = n >> 2, n & 3
            e(n, 4); e(n, 5); c(n, 0); c(n, 1); e(n, 6); e(n, 7)
            M2(n + 1)
            c(n, 2); c(n, 3); e(n, 8); e(n, 9); e(n, 10); e(n, 11)
            PV(n, 0)
            if i == 3:
                if j == 0:
                    a('s_cmp_eq_u32 s16, 1')
                    a('s_cselect_b32 s13, s17, s13')
                loadk(j, 's13')
            e(n, 12); e(n, 13); c(n, 4); c(n, 5); e(n, 14); e(n, 15); c(n, 6); c(n, 7)
            M1(n + 2)
            e(n + 1, 0); e(n + 1, 1); e(n + 1, 2); e(n + 1, 3)
            PV(n, 1)
            if i == 3:
                loadv(j, 's13')
                a('s_add_u32 s13, s13, 4096')
    def tail():
        a('s_sub_u32 s16, s16, 1')
        a('s_cmp_lg_u32 s16, 0')
        a('s_cbranch_scc1 attn_loop')
    a.raw('.p2align 3')
    a.loop('attn_loop', body, tail)
    for t in range(1, 4):
        a(f's_xor_b32 s19, s4, {t}')
        a('s_mul_i32 s19, s19, 12288')
        a(f'v_add_u32 v{T+4}, s19, v1')
        for rg in range(4):
            r = O + 16 * t + 4 * rg
            a(f'ds_write_b128 v{T+4}, v[{r}:{r+3}] offset:{(t-1)*4096 + rg*1024}')
    a('s_mul_i32 s19, s4, 12288')
    a(f'v_add_u32 v{T+4}, s19, v1')
    a('s_waitcnt lgkmcnt(0)')
    a('s_barrier')
    for t in range(1, 4):
        for rg in range(4):
            r = O + 16 * t + 4 * rg
            a(f'ds_read_b128 v[{r}:{r+3}], v{T+4} offset:{(t-1)*4096 + rg*1024}')
    a('s_lshl_b32 s18, s6, 2')
    a('s_add_u32 s18, s18, s4')
    a('s_lshl_b32 s18, s18, 15')
    a('s_lshl_b32 s19, s5, 11')
    a('s_add_u32 s18, s18, s19')
    a(f's_add_u32 s18, s18, {WS_O}')
    a(f's_mov_b32 s20, {f32(2.0**-64)}')
    a(f's_mov_b32 s21, {f32(2.0**64)}')
    for t in range(1, 4):
        for r in range(8):
            a(f'v_pk_add_f32 v[{O+2*r}:{O+2*r+1}], v[{O+2*r}:{O+2*r+1}], v[{O+16*t+2*r}:{O+16*t+2*r+1}]')
    a(f'v_mov_b32 v{T}, v{O+12}')
    a(f'v_mov_b32 v{T+1}, v{O+12}')
    a(f'v_permlane32_swap_b32 v{T+1}, v{T}')
    a(f'v_cmp_le_f32 vcc, s20, v{T}')
    a(f'v_cmp_ge_f32 s[22:23], s21, v{T}')
    a('s_and_b64 vcc, vcc, s[22:23]')
    a('s_cmp_eq_u64 vcc, exec')
    a('s_cbranch_scc0 attn_slow')
    a.label('attn_fin')
    a(f'v_rcp_f32 v{T}, v{T}')
    for r in range(8):
        a(f'v_pk_mul_f32 v[{O+2*r}:{O+2*r+1}], v[{O+2*r}:{O+2*r+1}], v[{T}:{T+1}] op_sel_hi:[1,0]')
        a(f'v_cvt_pk_bf16_f32 v{P+r}, v{O+2*r}, v{O+2*r+1}')
    a(f'buffer_store_dwordx4 v[{P}:{P+3}], v1, s[8:11], s18 offen')
    a(f'buffer_store_dwordx4 v[{P+4}:{P+7}], v1, s[8:11], s18 offen offset:1024')
    a.label('attn_end')
    a('s_endpgm')
    a.label('attn_slow'); a.fresh()
    a('s_waitcnt vmcnt(0) lgkmcnt(0)')
    a('s_nop 15')
    a('s_mov_b32 exec_lo, 0')
    a(f'v_mov_b32 v{Q+6}, 0')
    a(f'v_mov_b32 v{Q+7}, 0')
    a('s_mov_b32 exec_lo, -1')
    a(f'v_mov_b32 v{T+2}, {f32(-3.0e38)}')
    a('s_mov_b32 s13, s12')
    a('s_mov_b32 s16, 64')
    a('s_nop 4')
    def body1():
        loadk(0, 's13')
        M1(0); M2(0)
        for r in range(0, 16, 2):
            a(f'v_max3_f32 v{T+2}, v{S+r}, v{S+r+1}, v{T+2}')
        a('s_add_u32 s13, s13, 4096')
        a('s_nop 4')
    def tail1():
        a('s_sub_u32 s16, s16, 1')
        a('s_cmp_lg_u32 s16, 0')
        a('s_cbranch_scc1 attn_slow1')
    a.loop('attn_slow1', body1, tail1)
    a(f'v_mov_b32 v{T+3}, v{T+2}')
    a(f'v_permlane32_swap_b32 v{T+2}, v{T+3}')
    a(f'v_max_f32 v{T+2}, v{T+2}, v{T+3}')
    for r in range(16):
        a(f'v_mov_b32 v{O+r}, 0')
    a('s_mov_b32 s13, s12')
    a('s_mov_b32 s16, 64')
    a('s_nop 15')
    def body2():
        loadk(0, 's13'); loadv(0, 's13')
        M1(0); M2(0)
        for r in range(16):
            a(f'v_sub_f32 v{S+r}, v{S+r}, v{T+2}')
        for r in range(16):
            e(0, r)
        for r in range(8):
            c(0, r)
        PV(0, 0); PV(0, 1)
        a('s_add_u32 s13, s13, 4096')
        a('s_nop 15')
    def tail2():
        a('s_sub_u32 s16, s16, 1')
        a('s_cmp_lg_u32 s16, 0')
        a('s_cbranch_scc1 attn_slow2')
    a.loop('attn_slow2', body2, tail2)
    a(f'v_mov_b32 v{T}, v{O+12}')
    a(f'v_mov_b32 v{T+1}, v{O+12}')
    a(f'v_permlane32_swap_b32 v{T+1}, v{T}')
    a('s_nop 4')
    a('s_branch attn_fin')
    assert a.maxv < 152
    kernels.append(('attn_kernel', a.text(), 152 + 64, 32, 152))

def build(path, extra_launches=0):
    gen_prep()
    gen_qkv(True, [('qkva0_kernel', 0, 0), ('qkva1_kernel', 2, 1)])
    gen_qkv(False, [('qkvb0_kernel', 1, 0), ('qkvb1_kernel', 3, 0)])
    gen_outproj(True, False, [('opa0_kernel', 0, 1, 0), ('opa1_kernel', 2, 3, 1)])
    gen_outproj(False, False, [('opb0_kernel', 1, 2, 0)])
    gen_outproj(False, True, [('opf_kernel', 3, None, 0)])
    gen_attn()
    L = [('prep_kernel', 199, 2048), ('qkva0_kernel', 256, QKV_LDS), ('opa0_kernel', 224, OP_LDS), ('qkvb0_kernel', 256, QKV_LDS),
         ('attn_kernel', 256, AT_LDS), ('opb0_kernel', 224, OP_LDS), ('qkva1_kernel', 256, QKV_LDS), ('opa1_kernel', 224, OP_LDS),
         ('qkvb1_kernel', 256, QKV_LDS), ('attn_kernel', 256, AT_LDS), ('opf_kernel', 224, OP_LDS)]
    L += [('opf_kernel', 224, OP_LDS)] * extra_launches
    out = []
    for k, g, lds in L:
        out.append(f'; @launch kernel={k} grid=({g},1,1) block=(256,1,1) lds={lds}')
    out.append('.amdgcn_target "amdgcn-amd-amdhsa--gfx950"')
    out.append('.text')
    for k in kernels:
        if k[1]:
            out.append(k[1])
    out.append('.section .rodata,"a"')
    for k in kernels:
        out.append(kernel_desc(k[0], k[2], k[3], k[4]))
    open(path, 'w').write('\n'.join(out) + '\n')

if __name__ == '__main__':
    path = sys.argv[1] if len(sys.argv) > 1 else f'cdna_kernels/{NAME}.s'
    extra = int(sys.argv[2]) if len(sys.argv) > 2 else 0
    build(path, extra)
    print('wrote', path)
```

```python
import re, copy

_REG = re.compile(r'^(-?\|?)(abs\()?([vsa])(\d+)\)?\|?$')
_RNG = re.compile(r'^(-?)([vsa])\[(\d+):(\d+)\]$')

def regs_of(op):
    op = op.strip()
    m = _RNG.match(op)
    if m:
        return {(m.group(2), i) for i in range(int(m.group(3)), int(m.group(4)) + 1)}
    m = _REG.match(op)
    if m:
        return {(m.group(3), int(m.group(4)))}
    if op in ('vcc', 'vcc_lo', 'vcc_hi'):
        return {('vcc', 0)}
    if op in ('exec', 'exec_lo', 'exec_hi'):
        return {('exec', 0)}
    if op == 'm0':
        return {('m0', 0)}
    return set()

TRANS = ('v_exp_f32', 'v_log_f32', 'v_rcp_f32', 'v_rsq_f32', 'v_sqrt_f32', 'v_sin_f32', 'v_cos_f32', 'v_rcp_iflag_f32',
         'v_exp_f16', 'v_rcp_f16')
NO_DST_S = ('s_cmp', 's_cbranch', 's_waitcnt', 's_barrier', 's_nop', 's_setprio', 's_endpgm', 's_branch', 's_sleep',
            's_bitcmp', 's_setreg', 's_sendmsg', 's_setpc')

class Inst:
    __slots__ = ('text', 'mn', 'kind', 'defs', 'uses', 'srcc', 'srca', 'passes', 'wide_store', 'lds_dma', 'dpp', 'ops')

def split_ops(s):
    out, depth, cur = [], 0, ''
    for ch in s:
        if ch in '[(':
            depth += 1
        if ch in '])':
            depth -= 1
        if ch == ',' and depth == 0:
            out.append(cur.strip()); cur = ''
        else:
            cur += ch
    if cur.strip():
        out.append(cur.strip())
    return out

def parse(text):
    t = text.split(';')[0].strip()
    parts = t.split(None, 1)
    mn = parts[0]
    rest = parts[1] if len(parts) > 1 else ''
    ops = split_ops(rest)
    mods = []
    if ops:
        last = ops[-1].split()
        ops[-1] = last[0]
        mods = last[1:]
    I = Inst()
    I.text = text; I.mn = mn; I.defs = set(); I.uses = set(); I.srcc = set(); I.srca = set(); I.passes = 0
    I.wide_store = False; I.lds_dma = False; I.dpp = ('_dpp' in mn) or any(m.startswith(('row_', 'quad_perm', 'wave_')) for m in mods)
    I.ops = ops
    R = [regs_of(o) for o in ops]
    base = mn.replace('_e32', '').replace('_e64', '')
    if mn.startswith('v_mfma'):
        I.kind = 'mfma'
        I.defs = R[0]; I.srca = R[1] | R[2]; I.srcc = R[3]; I.uses = R[1] | R[2] | R[3]
        I.passes = 8 if '32x32x16' in mn else (4 if '16x16x32' in mn else 16)
    elif mn.startswith('v_'):
        I.kind = 'trans' if base in TRANS else ('dot' if mn.startswith('v_dot') else 'valu')
        if mn.startswith('v_permlane') and 'swap' in mn:
            I.defs = R[0] | R[1]; I.uses = R[0] | R[1]
        elif mn.startswith('v_cmp'):
            I.defs = set(R[0]); I.uses = set().union(*R[1:])
            if mn.startswith('v_cmpx'):
                I.defs |= {('exec', 0)}
        elif base in ('v_add_co_u32', 'v_sub_co_u32', 'v_addc_co_u32', 'v_subb_co_u32', 'v_mad_u64_u32'):
            I.defs = R[0] | R[1]; I.uses = set().union(*R[2:])
        elif base == 'v_nop':
            pass
        else:
            I.defs = set(R[0]); I.uses = set().union(*R[1:]) if len(R) > 1 else set()
            if base.startswith(('v_fmac', 'v_dot2c', 'v_pk_fmac', 'v_writelane')) or 'UNUSED_PRESERVE' in text or I.dpp:
                I.uses |= R[0]
            if base == 'v_cndmask_b32' and len(ops) == 3:
                I.uses |= {('vcc', 0)}
    elif mn.startswith(('s_load', 's_buffer_load', 's_memtime', 's_memrealtime', 's_atomic')):
        I.kind = 'smem'
        I.defs = set(R[0]); I.uses = set().union(*R[1:]) if len(R) > 1 else set()
    elif mn.startswith('s_'):
        I.kind = 'salu'
        if mn.startswith(NO_DST_S):
            I.uses = set().union(*R) if R else set()
        else:
            I.defs = set(R[0]); I.uses = set().union(*R[1:]) if len(R) > 1 else set()
            if 'saveexec' in mn:
                I.defs |= {('exec', 0)}
            if mn in ('s_addk_i32', 's_mulk_i32'):
                I.uses |= R[0]
    elif mn.startswith(('buffer_', 'global_')):
        I.kind = 'vmem'
        if mn in ('buffer_inv', 'buffer_wbl2'):
            pass
        elif 'lds' in mods or '_lds_' in mn:
            I.lds_dma = True
            I.uses = set().union(*R) | {('m0', 0)}
        elif '_load_' in mn:
            I.defs = set(R[0]); I.uses = set().union(*R[1:])
            if 'd16' in mn:
                I.uses |= R[0]
        elif '_atomic_' in mn and 'sc0' in mods:
            if mn.startswith('buffer_'):
                I.defs = set(R[0]); I.uses = set().union(*R)
            else:
                I.defs = set(R[0]); I.uses = set().union(*R[1:])
        else:
            I.uses = set().union(*R)
            if 'dwordx3' in mn or 'dwordx4' in mn:
                I.wide_store = True
                I.srca = R[0] if mn.startswith('buffer_') else R[1]
    elif mn.startswith('ds_'):
        I.kind = 'ds'
        if mn.startswith(('ds_read', 'ds_bpermute', 'ds_permute', 'ds_swizzle')) or '_rtn' in mn:
            I.defs = set(R[0]); I.uses = set().union(*R[1:])
        else:
            I.uses = set().union(*R)
    else:
        raise ValueError('unknown instruction: ' + text)
    return I

def isv(rs):
    return {r for r in rs if r[0] in 'va'}
def iss(rs):
    return {r for r in rs if r[0] == 's' or r[0] == 'vcc'}

class State:
    def __init__(self):
        self.hist = []
        self.vm = []
        self.lg = []
    def key(self):
        return ([(i.text, d) for i, d in self.hist if d < 24], [sorted(x) for x in self.vm], [(k, sorted(x)) for k, x in self.lg])

class Asm:
    def __init__(self):
        self.lines = []
        self.st = State()
        self.auto = True
        self.tags = {}
        self.dummy = ('v', 255)
        self.maxv = -1; self.maxs = -1; self.maxa = -1

    def raw(self, s):
        self.lines.append(s)
    def comment(self, s):
        self.lines.append('  ; ' + s)
    def label(self, name, reset=True):
        self.lines.append(name + ':')
    def fresh(self):
        self.st = State()

    def _advance(self, n):
        self.st.hist = [(i, d + n) for i, d in self.st.hist if d + n < 24]

    def _need(self, P, d, C):
        need = 0
        pv = isv(P.defs)
        if P.kind in ('valu', 'trans', 'dot'):
            if C.kind == 'mfma' and pv & C.uses:
                need = max(need, 2)
            if C.mn.startswith(('v_readfirstlane', 'v_readlane')) and pv & C.uses:
                need = max(need, 1)
            if C.mn.startswith('v_permlane') and pv & C.uses:
                need = max(need, 2)
            if C.dpp and pv & C.uses:
                need = max(need, 2)
            ps = iss(P.defs)
            if ps:
                if C.kind in ('valu', 'trans', 'dot', 'mfma') and ps & C.uses:
                    need = max(need, 4 if C.mn.startswith(('v_readlane', 'v_writelane')) else 2)
                if C.kind == 'vmem' and ps & C.uses:
                    need = max(need, 5)
                if C.kind in ('salu', 'smem') and ps & C.uses:
                    need = max(need, 1)
            if ('exec', 0) in P.defs:
                if C.kind in ('mfma',) or C.mn.startswith(('v_permlane', 'v_readlane', 'v_readfirstlane', 'v_writelane')):
                    need = max(need, 4)
                if C.dpp:
                    need = max(need, 5)
            if P.kind == 'trans' and C.kind in ('valu', 'dot') and pv & C.uses:
                need = max(need, 1)
            if P.kind == 'dot' and C.kind in ('valu', 'trans', 'dot', 'mfma', 'vmem', 'ds') and pv & (C.uses | C.defs):
                same = (C.kind == 'dot' and C.mn == P.mn)
                if same:
                    ab = set().union(*[regs_of(o) for o in C.ops[1:3]])
                    if pv & ab:
                        need = max(need, 3)
                else:
                    need = max(need, 3)
            if 'sdwa' in P.mn and C.kind in ('valu', 'trans', 'dot') and pv & (C.uses | C.defs):
                need = max(need, 1)
        if P.kind == 'mfma':
            n = P.passes
            if C.kind == 'mfma':
                if pv & C.srca:
                    need = max(need, {4: 8, 8: 12, 16: 20}[n])
                if pv & C.srcc:
                    if not (C.srcc == P.defs and C.passes == P.passes):
                        need = max(need, {4: 6, 8: 10, 16: 18}[n])
                if pv & C.defs and not (pv & C.srcc):
                    need = max(need, {4: 6, 8: 10, 16: 18}[n])
            elif C.kind in ('valu', 'trans', 'dot', 'vmem', 'ds'):
                if pv & (C.uses | C.defs):
                    need = max(need, {4: 8, 8: 12, 16: 20}[n])
            if C.kind in ('valu', 'trans', 'dot') and isv(P.srcc) & C.defs:
                need = max(need, {4: 3, 8: 7, 16: 15}[n])
        if P.kind == 'salu' and ('m0', 0) in P.defs and C.lds_dma:
            need = max(need, 1)
        if P.kind == 'vmem' and P.wide_store and P.srca & C.defs:
            need = max(need, 2 if C.kind in ('valu', 'trans', 'dot', 'mfma') else 1)
        if P.kind == 'ds' and P.mn.startswith('ds_write') and False:
            pass
        return max(0, need - d)

    def _wait(self, C):
        st = self.st
        touch = C.uses | C.defs
        vmn = None
        for i, dst in enumerate(st.vm):
            if dst & touch:
                vmn = len(st.vm) - 1 - i
        lgn = None
        for i, (k, dst) in enumerate(st.lg):
            if dst & touch:
                n = len(st.lg) - 1 - i
                if any(kk == 'smem' for kk, _ in st.lg):
                    n = 0
                lgn = n
        if vmn is not None or lgn is not None:
            s = 's_waitcnt'
            if vmn is not None:
                s += f' vmcnt({min(vmn, 63)})'
            if lgn is not None:
                s += f' lgkmcnt({min(lgn, 15)})'
            self._emit_plain(s)

    def _apply_wait(self, text):
        m = re.search(r'vmcnt\((\d+)\)', text)
        if m:
            n = int(m.group(1))
            if len(self.st.vm) > n:
                self.st.vm = self.st.vm[len(self.st.vm) - n:] if n else []
        m = re.search(r'lgkmcnt\((\d+)\)', text)
        if m:
            n = int(m.group(1))
            if n == 0:
                self.st.lg = []
            elif not any(k == 'smem' for k, _ in self.st.lg):
                if len(self.st.lg) > n:
                    self.st.lg = self.st.lg[len(self.st.lg) - n:]

    def _emit_plain(self, text):
        I = parse(text)
        self.lines.append('  ' + text)
        if I.mn == 's_waitcnt':
            self._apply_wait(text)
        n = 1
        if I.mn == 's_nop':
            n = int(I.ops[0], 0) + 1
        self._advance(n)
        return I

    def __call__(self, text):
        for t in text.strip().split('\n'):
            t = t.strip()
            if t and not t.startswith(';'):
                self.inst(t)

    def wait_tag(self, tag, kind='vm'):
        q = self.st.vm if kind == 'vm' else [d for _, d in self.st.lg]
        n = None
        for i, dst in enumerate(q):
            if ('tag', tag) in dst:
                n = len(q) - 1 - i
        if n is not None:
            if kind == 'vm':
                self._emit_plain(f's_waitcnt vmcnt({n})')
            else:
                if any(k == 'smem' for k, _ in self.st.lg): n = 0
                self._emit_plain(f's_waitcnt lgkmcnt({min(n,15)})')

    def inst(self, text, tag=None):
        C = parse(text)
        if tag: self.tags[text] = tag
        if C.kind == 'vmem' and self.dummy in C.defs:
            C.defs = set()
        for r in C.defs | C.uses:
            if r[0] == 'v': self.maxv = max(self.maxv, r[1])
            if r[0] == 's': self.maxs = max(self.maxs, r[1])
            if r[0] == 'a': self.maxa = max(self.maxa, r[1])
        if C.mn in ('s_waitcnt', 's_nop'):
            self._emit_plain(text)
            return
        if self.auto:
            self._wait(C)
            need = 0
            for P, d in self.st.hist:
                need = max(need, self._need(P, d, C))
            while need > 0:
                k = min(need, 16)
                self._emit_plain(f's_nop {k-1}')
                need -= k
        self.lines.append('  ' + text)
        self._advance(1)
        self.st.hist.append((C, 0))
        if C.kind == 'vmem' and C.mn not in ('buffer_inv', 'buffer_wbl2'):
            self.st.vm.append(set(C.defs) | ({('tag', tag)} if tag else set()))
            assert len(self.st.vm) <= 63, 'vmcnt overflow'
        elif C.kind == 'vmem':
            self.st.vm.append(set())
        elif C.kind == 'ds':
            self.st.lg.append(('ds', set(C.defs) | ({('tag', tag)} if tag else set())))
        elif C.kind == 'smem':
            self.st.lg.append(('smem', set(C.defs)))

    def loop(self, label, body, tail):
        self.lines.append(label + ':')
        start = len(self.lines)
        body(); tail()
        text1 = self.lines[start:]
        saved = self.lines
        for rep in range(2):
            self.lines = []
            for ln in text1:
                t = ln.strip()
                if not t or t.startswith((';', '.')) or t.endswith(':'):
                    self.lines.append(ln); continue
                self.inst(t, tag=self.tags.get(t))
            text2 = self.lines
            if text1 != text2:
                import difflib
                d = '\n'.join(difflib.unified_diff(text1, text2, lineterm='', n=2))
                self.lines = saved
                raise RuntimeError(f'loop {label}: waits of the first iteration do not cover the steady state\n' + d)
        self.lines = saved

    def text(self):
        return '\n'.join(self.lines) + '\n'


def kernel_header(name):
    return f'.globl {name}\n.p2align 8\n.type {name},@function\n{name}:'

def kernel_desc(name, vgpr, sgpr, accum=None):
    if accum is None:
        accum = (vgpr + 3) // 4 * 4
    return f'''.p2align 6
.amdhsa_kernel {name}
  .amdhsa_next_free_vgpr {vgpr}
  .amdhsa_next_free_sgpr {sgpr}
  .amdhsa_accum_offset {accum}
  .amdhsa_group_segment_fixed_size 0
  .amdhsa_kernarg_size 72
  .amdhsa_user_sgpr_count 2
  .amdhsa_user_sgpr_kernarg_segment_ptr 1
  .amdhsa_system_sgpr_workgroup_id_x 1
.end_amdhsa_kernel'''
```

```python
import sys, struct
sys.path.insert(0, 'dev')
from asmlib import *

NAME = 'interleave_layers__linear_attn_block__softmax_full_mha__prompt'
KNAME = NAME + '_kernel'

def f32(x):
    return '0x%08x' % struct.unpack('<I', struct.pack('<f', x))[0]

WP_HEAD = 87 * 1024
WP_SIZE = 16 * WP_HEAD
WO_SIZE = 14 * 32 * 1024
X_SIZE = 64 * 28 * 1024
ST_SIZE = 14 * 2048 * 8
_off = 0
def alloc(n, al=65536):
    global _off
    _off = (_off + al - 1) // al * al
    r = _off
    _off += n
    return r
WS_W = [alloc(WP_SIZE), alloc(WP_SIZE)]
WS_WO = [alloc(WO_SIZE), alloc(WO_SIZE)]
WS_X = [alloc(X_SIZE) for _ in range(4)]
WS_ST = [alloc(ST_SIZE) for _ in range(4)]
WS_Q = [alloc(16 * 64 * 2048) for _ in range(2)]
WS_KV = [alloc(16 * 64 * 4096) for _ in range(2)]
WS_PQ = [alloc(64 * 16 * 2048) for _ in range(2)]
WS_O = [alloc(64 * 16 * 2048) for _ in range(2)]
WS_ZERO = alloc(0)
WS_KVACC = [alloc(16 * 4096), alloc(16 * 4096)]
WS_FLAG = alloc(256 * 128, 4096)
ZERO_SIZE = _off - WS_ZERO
NZERO = ZERO_SIZE // 16384
assert ZERO_SIZE == NZERO * 16384 and NZERO == 10
WS_TOTAL = 1 << 28
WS_DBG = 64 << 20
OOB = 0x40000000

LOG2E = 1.4426950408889634
QSCALE = 28 ** -0.5 * LOG2E
ONES2 = 0x3f803f80
SC = 'sc1'

L_W = 0
L_S = 84 * 1024
L_M = L_S + 65536
LDS_TOTAL = L_M + 2048

R_WA, R_X, R_WOA, R_Z, R_WB, R_WOB, R_END = 0, 48, 112, 126, 136, 184, 198

INSTR = False
STOP = 99
POLL_LIMIT = 400000

V_TID, V_L16, V_N, V_HF, V_T0, V_T1, V_PL, V_ST = 0, 1, 2, 3, 4, 5, 6, 7
S_WAVE = 's4'
S_RB, S_HQ, S_RP, S_CP, S_HA, S_QB, S_FLAG = 's40', 's41', 's42', 's43', 's44', 's45', 's46'
WOA = 128

a = Asm()
_uid = [0]
def uid(p):
    _uid[0] += 1
    return f'{p}_{_uid[0]}'

_nst = [0]
def stamp(name=''):
    if INSTR:
        i = _nst[0]; _nst[0] += 1
        a('s_memrealtime s[96:97]')
        a('s_waitcnt lgkmcnt(0)')
        a(f'v_writelane_b32 v{V_ST}, s96, {i}')
        STAMPS.append(name)
STAMPS = []

def poll(srd, mask, target, cmp='le'):
    L = uid('poll')
    if mask == -1:
        pass
    else:
        a(f's_mov_b64 exec, {mask}')
    a(f's_mov_b32 s48, {POLL_LIMIT}')
    a('s_waitcnt lgkmcnt(0)')
    a.raw(L + ':')
    a(f'buffer_load_dword v{V_PL}, v{V_T0}, {srd}, 0 offen sc1')
    a('s_sub_u32 s48, s48, 1')
    a('s_cbranch_scc1 k_end')
    a('s_waitcnt vmcnt(0)')
    a(f'v_cmp_le_u32 vcc, {target}, v{V_PL}')
    a('s_cmp_eq_u64 vcc, exec')
    a(f's_cbranch_scc0 {L}')
    if mask != -1:
        a('s_mov_b64 exec, -1')

def signal(val):
    L = uid('sig')
    a('s_waitcnt vmcnt(0) lgkmcnt(0)')
    a('s_barrier')
    a(f's_cmp_lg_u32 {S_WAVE}, 0')
    a(f's_cbranch_scc1 {L}')
    a(f'v_mov_b32 v{V_T0}, {val}')
    a(f'v_mov_b32 v{V_T1}, 0')
    a('s_mov_b64 exec, 1')
    a.auto = False
    a.raw(f'  buffer_store_dword v{V_T0}, v{V_T1}, s[8:11], {S_FLAG} offen sc1')
    a.auto = True
    a('s_mov_b64 exec, -1')
    a('s_nop 1')
    a.raw(L + ':')

def maybe_stop(k):
    if STOP == k:
        a('s_branch k_fin')

def prologue():
    a.raw(kernel_header(KNAME))
    a('s_cmp_ge_u32 s2, 256')
    a('s_cbranch_scc1 k_end')
    a('s_load_dwordx2 s[8:9], s[0:1], 64')
    a('s_load_dwordx4 s[16:19], s[0:1], 0')
    a('s_load_dwordx2 s[20:21], s[0:1], 16')
    a('s_load_dwordx4 s[24:27], s[0:1], 32')
    a('s_load_dwordx2 s[32:33], s[0:1], 48')
    a('s_load_dwordx2 s[36:37], s[0:1], 56')
    a(f'v_and_b32 v{V_L16}, 63, v0')
    a(f'v_lshrrev_b32 v{V_T0}, 6, v0')
    a(f'v_and_b32 v{V_N}, 31, v0')
    a(f'v_readfirstlane_b32 {S_WAVE}, v{V_T0}')
    a(f'v_bfe_u32 v{V_HF}, v0, 5, 1')
    a(f'v_lshlrev_b32 v{V_L16}, 4, v{V_L16}')
    a(f'v_mov_b32 v{V_ST}, 0')
    a('s_and_b32 s5, s2, 7')
    a('s_lshr_b32 s6, s2, 3')
    a('s_lshl_b32 s7, s5, 1')
    a('s_and_b32 s12, s6, 1')
    a(f's_add_u32 {S_RB}, s7, s12')
    a(f's_lshr_b32 {S_HQ}, s6, 1')
    a(f's_mov_b32 {S_HA}, {S_RB}')
    a(f's_mov_b32 {S_QB}, {S_HQ}')
    a('s_lshl_b32 s7, s5, 2')
    a('s_and_b32 s12, s6, 3')
    a(f's_add_u32 {S_RP}, s7, s12')
    a(f's_lshr_b32 {S_CP}, s6, 2')
    a(f's_lshl_b32 {S_FLAG}, s2, 7')
    a(f's_add_u32 {S_FLAG}, {S_FLAG}, {WS_FLAG}')
    a('s_mov_b32 s15, 0x20000')
    a('s_mov_b32 s11, 0x20000')
    a('s_mov_b32 s35, 0x20000')
    a('s_mov_b32 s39, 0x20000')
    a(f's_mov_b32 s10, {WS_TOTAL}')
    a(f's_mov_b32 s34, {2048*448*2}')
    a('s_mov_b32 s38, 256')
    a('s_waitcnt lgkmcnt(0)')
    a('s_and_b32 s9, s9, 0xffff')
    a('s_and_b32 s33, s33, 0xffff')
    a('s_and_b32 s37, s37, 0xffff')
    stamp('start')

def phase_prep():
    a(f's_mov_b32 s50, {ONES2}')
    a('s_mov_b32 s51, 0x05040100')
    a('s_mov_b32 s52, 0x07060302')
    a(f'v_lshrrev_b32 v8, 6, v0')
    a(f's_cmp_lt_u32 s2, {R_X}')
    a('s_cbranch_scc1 prep_W')
    a(f's_cmp_lt_u32 s2, {R_WOA}')
    a('s_cbranch_scc1 prep_X')
    a(f's_cmp_lt_u32 s2, {R_Z}')
    a('s_cbranch_scc1 prep_WO')
    a(f's_cmp_lt_u32 s2, {R_WB}')
    a('s_cbranch_scc1 prep_Z')
    a(f's_cmp_lt_u32 s2, {R_WOB}')
    a('s_cbranch_scc1 prep_W')
    a(f's_cmp_lt_u32 s2, {R_END}')
    a('s_cbranch_scc1 prep_WO')
    a('s_branch prep_done')
    a.raw('prep_Z:'); a.fresh()
    a(f's_sub_u32 s3, s2, {R_Z}')
    a('s_lshl_b32 s53, s3, 14')
    a(f's_add_u32 s53, s53, {WS_ZERO}')
    a('v_lshlrev_b32 v9, 4, v0')
    for i in range(4):
        a(f'v_mov_b32 v{12+i}, 0')
    for i in range(4):
        a(f'buffer_store_dwordx4 v[12:15], v9, s[8:11], s53 offen {SC}')
        if i < 3:
            a('s_add_u32 s53, s53, 4096')
    a('s_waitcnt vmcnt(0)')
    a('s_barrier')
    a(f's_cmp_lg_u32 {S_WAVE}, 0')
    a('s_cbranch_scc1 prep_done')
    a('s_lshl_b32 s3, s3, 2')
    a('v_mov_b32 v13, 1')
    a('s_mov_b64 exec, 1')
    a('buffer_store_dword v13, v12, s[36:39], s3 offen sc1')
    a('s_mov_b64 exec, -1')
    a('s_branch prep_done')

    LO, HI = 16, 48
    a.raw('prep_W:'); a.fresh()
    a(f's_cmp_ge_u32 s2, {R_WB}')
    a('s_cselect_b32 s12, s24, s18')
    a('s_cselect_b32 s13, s25, s19')
    a(f's_mov_b32 s53, {WS_W[0]}')
    a(f's_cselect_b32 s53, {WS_W[1]}, s53')
    a(f's_cselect_b32 s3, {R_WB}, 0')
    a('s_sub_u32 s3, s2, s3')
    a('s_and_b32 s13, s13, 0xffff')
    a(f's_mov_b32 s14, {448*1344*2}')
    a('s_mul_i32 s54, s3, 171')
    a('s_lshr_b32 s54, s54, 9')
    a('s_mul_i32 s55, s54, 3')
    a('s_sub_u32 s55, s3, s55')
    a('s_mul_i32 s6, s55, 448')
    a('s_mul_i32 s7, s54, 28')
    a('s_add_u32 s6, s6, s7')
    a(f'v_mul_u32_u24 v9, {4*1344}, v{V_HF}')
    a(f'v_add3_u32 v9, v9, v{V_N}, s6')
    a('v_lshlrev_b32 v9, 1, v9')
    a(f's_mov_b32 s7, {7*16*2688}')
    a('v_mul_lo_u32 v10, v8, s7')
    a('v_add_u32 v9, v9, v10')
    a(f'v_mov_b32 v10, {OOB}')
    a(f'v_cmp_gt_u32 vcc, 28, v{V_N}')
    a('v_cndmask_b32 v9, v10, v9, vcc')
    for tt in range(7):
        for r in range(4):
            a(f's_mov_b32 s7, {(16*tt + 8*(r>>1) + 2*(r&1))*2688}')
            a(f'buffer_load_ushort v{LO+4*tt+r}, v9, s[12:15], s7 offen')
            a(f'buffer_load_ushort v{HI+4*tt+r}, v9, s[12:15], s7 offen offset:2688')
    a(f's_mul_i32 s6, s54, {WP_HEAD}')
    a('s_add_u32 s53, s53, s6')
    a('s_lshl_b32 s6, s55, 10')
    a('s_add_u32 s53, s53, s6')
    a(f'v_mul_u32_u24 v11, {7*3072}, v8')
    a(f'v_add_u32 v11, v11, v{V_L16}')
    a('v_mov_b32 v12, 0')
    a('s_mov_b32 s56, s53')
    for tt in range(7):
        for r in range(4):
            a(f'v_perm_b32 v{LO+4*tt+r}, v{HI+4*tt+r}, v{LO+4*tt+r}, s51')
        a(f'buffer_store_dwordx4 v[{LO+4*tt}:{LO+4*tt+3}], v11, s[8:11], s56 offen {SC}')
        a('s_add_u32 s56, s56, 3072')
        for r in range(4):
            a(f'v_dot2_f32_bf16 v12, v{LO+4*tt+r}, s50, v12')
    a('v_lshlrev_b32 v13, 2, v0')
    a('ds_write_b32 v13, v12')
    a('s_waitcnt lgkmcnt(0)')
    a('s_barrier')
    a(f's_cmp_lg_u32 {S_WAVE}, 0')
    a('s_cbranch_scc1 prep_done')
    a(f'v_lshlrev_b32 v13, 2, v{V_N}')
    B = 80
    for k in range(4):
        a(f'ds_read2_b32 v[{B+2*k}:{B+1+2*k}], v13 offset0:{64*k} offset1:{64*k+32}')
    a(f'v_add_f32 v{B}, v{B}, v{B+1}')
    for k in range(2, 8):
        a(f'v_add_f32 v{B}, v{B}, v{B+k}')
    a(f'v_cmp_eq_u32 vcc, 0, v{V_HF}')
    a(f'v_cndmask_b32 v{B}, 0, v{B}, vcc')
    a(f'v_and_b32 v{B+1}, 0xffff0000, v{B}')
    a(f'v_sub_f32 v{B+2}, v{B}, v{B+1}')
    a(f'v_and_b32 v{B+3}, 0xffff0000, v{B+2}')
    a(f'v_sub_f32 v{B+4}, v{B+2}, v{B+3}')
    a(f'v_perm_b32 v{B+8}, v{B+3}, v{B+1}, s52')
    a(f'v_perm_b32 v{B+9}, v{B+1}, v{B+4}, s52')
    a(f'v_perm_b32 v{B+10}, v{B+1}, v{B+3}, s52')
    a(f'v_mov_b32 v{B+11}, 0')
    a(f's_add_u32 s53, s53, {28*3072}')
    a(f'buffer_store_dwordx4 v[{B+8}:{B+11}], v{V_L16}, s[8:11], s53 offen {SC}')
    a('s_branch prep_done')

    a.raw('prep_WO:'); a.fresh()
    a(f's_cmp_ge_u32 s2, {R_WOB}')
    a('s_cselect_b32 s12, s26, s20')
    a('s_cselect_b32 s13, s27, s21')
    a(f's_mov_b32 s53, {WS_WO[0]}')
    a(f's_cselect_b32 s53, {WS_WO[1]}, s53')
    a(f's_cselect_b32 s3, {R_WOB-R_WOA}, 0')
    a('s_sub_u32 s3, s2, s3')
    a(f's_sub_u32 s3, s3, {R_WOA}')
    a('s_and_b32 s13, s13, 0xffff')
    a(f's_mov_b32 s14, {448*448*2}')
    a('v_mul_u32_u24 v9, 112, v8')
    a(f'v_lshl_add_u32 v9, v{V_HF}, 2, v9')
    a('v_mul_u32_u24 v9, 448, v9')
    a('s_lshl_b32 s54, s3, 5')
    a(f'v_add3_u32 v9, v9, v{V_N}, s54')
    a('v_lshlrev_b32 v9, 1, v9')
    a(f'v_mov_b32 v10, {OOB}')
    a(f'v_cmp_eq_u32 vcc, 0, v{V_HF}')
    a('v_cndmask_b32 v10, v10, v9, vcc')
    a('s_lshl_b32 s54, s3, 15')
    a('s_add_u32 s53, s53, s54')
    a(f'v_lshl_add_u32 v11, v8, 13, v{V_L16}')
    LO2, HI2 = 16, 48
    cnt = 0
    for ss in range(8):
        u = ss & 1
        for q in range(2):
            a(f's_mov_b32 s7, {(28*(ss>>1) + 16*u + 8*q)*896}')
            vo = 'v10' if (u == 1 and q == 1) else 'v9'
            for j in range(4):
                dst = (LO2 if j % 2 == 0 else HI2) + 4 * ss + 2 * q + (j >> 1)
                if cnt == 60:
                    a('s_waitcnt vmcnt(40)')
                cnt += 1
                a(f'buffer_load_ushort v{dst}, {vo}, s[12:15], s7 offen offset:{j*896}')
    for ss in range(8):
        for r in range(4):
            a(f'v_perm_b32 v{LO2+4*ss+r}, v{HI2+4*ss+r}, v{LO2+4*ss+r}, s51')
        if ss == 4:
            a('s_add_u32 s53, s53, 4096')
        a(f'buffer_store_dwordx4 v[{LO2+4*ss}:{LO2+4*ss+3}], v11, s[8:11], s53 offen offset:{(ss%4)*1024} {SC}')
    a('s_branch prep_done')

    a.raw('prep_X:'); a.fresh()
    a('s_mov_b32 s12, s16')
    a('s_and_b32 s13, s17, 0xffff')
    a(f's_mov_b32 s14, {2048*448*2}')
    a(f's_sub_u32 s3, s2, {R_X}')
    a('s_lshl_b32 s54, s3, 5')
    a(f'v_add_u32 v9, s54, v{V_N}')
    a('v_mul_u32_u24 v9, 896, v9')
    a(f'v_lshl_add_u32 v9, v{V_HF}, 3, v9')
    a('v_mul_u32_u24 v10, 224, v8')
    a('v_add_u32 v9, v9, v10')
    for tt in range(7):
        a(f'buffer_load_dwordx2 v[{16+4*tt}:{17+4*tt}], v9, s[12:15], 0 offen offset:{tt*32}')
        a(f'buffer_load_dwordx2 v[{18+4*tt}:{19+4*tt}], v9, s[12:15], 0 offen offset:{tt*32+16}')
    a(f's_mul_i32 s53, s3, {28*1024}')
    a(f's_add_u32 s53, s53, {WS_X[0]}')
    a(f'v_mul_u32_u24 v11, {7*1024}, v8')
    a(f'v_add_u32 v11, v11, v{V_L16}')
    a('v_mov_b32 v12, 0')
    a('v_mov_b32 v13, 0')
    for tt in range(7):
        if tt == 4:
            a('s_add_u32 s53, s53, 4096')
        a(f'buffer_store_dwordx4 v[{16+4*tt}:{19+4*tt}], v11, s[8:11], s53 offen offset:{(tt%4)*1024} {SC}')
        for r in range(4):
            a(f'v_dot2_f32_bf16 v12, v{16+4*tt+r}, s50, v12')
            a(f'v_dot2_f32_bf16 v13, v{16+4*tt+r}, v{16+4*tt+r}, v13')
    a('v_lshlrev_b32 v14, 3, v0')
    a('ds_write_b64 v14, v[12:13]')
    a('s_waitcnt lgkmcnt(0)')
    a('s_barrier')
    a(f's_cmp_lg_u32 {S_WAVE}, 0')
    a('s_cbranch_scc1 prep_done')
    a(f'v_lshlrev_b32 v14, 3, v{V_N}')
    for k in range(8):
        a(f'ds_read_b64 v[{48+2*k}:{49+2*k}], v14 offset:{256*k}')
    for k in range(1, 8):
        a(f'v_pk_add_f32 v[48:49], v[48:49], v[{48+2*k}:{49+2*k}]')
    a('s_lshl_b32 s54, s3, 8')
    a(f's_add_u32 s54, s54, {WS_ST[0]}')
    a(f'buffer_store_dwordx2 v[48:49], v14, s[8:11], s54 offen {SC}')

    a.raw('prep_done:'); a.fresh()
    a('s_nop 4')
    stamp('prep')
    a(f'v_lshrrev_b32 v{V_T0}, 2, v{V_L16}')
    poll('s[36:39]', (1 << NZERO) - 1, 1)
    signal(1)
    stamp('prep_sig')

def wo_load(which, k0, k1, sreg):
    for k in range(k0, k1):
        a(f'buffer_load_dwordx4 a[{WOA+4*k}:{WOA+4*k+3}], v{V_L16}, s[8:11], {sreg} offen offset:{(k%4)*1024} {SC}')
        if k % 4 == 3 and k != 31:
            a(f's_add_u32 {sreg}, {sreg}, 4096')

def wo_base(which, sreg):
    a(f's_and_b32 s49, {S_WAVE}, 1')
    a(f's_lshl_b32 {sreg}, {S_CP}, 1')
    a(f's_add_u32 {sreg}, {sreg}, s49')
    a(f's_lshl_b32 {sreg}, {sreg}, 15')
    a(f's_add_u32 {sreg}, {sreg}, {WS_WO[which]}')
    a(f's_cmp_ge_u32 {S_CP}, 7')
    a(f's_cselect_b32 {sreg}, {OOB}, {sreg}')

def w_dma_base(which, sg, sl):
    a(f's_mul_i32 {sl}, {S_WAVE}, {21*1024}')
    a(f's_mul_i32 {sg}, {S_HQ}, {WP_HEAD}')
    a(f's_add_u32 {sg}, {sg}, {sl}')
    a(f's_add_u32 {sg}, {sg}, {WS_W[which]}')

def w_dma(n, sg, sl, tag=None):
    a(f's_mov_b32 m0, {sl}')
    for i in range(n):
        a.inst(f'buffer_load_dwordx4 v{V_L16}, s[8:11], {sg} offen offset:{i*1024} {SC} lds', tag=tag)
    a(f's_add_u32 {sg}, {sg}, {n*1024}')
    a(f's_add_u32 {sl}, {sl}, {n*1024}')

def w_prefetch_all(which):
    w_dma_base(which, 's60', 's61')
    for n in (4, 4, 4, 4, 4, 1):
        w_dma(n, 's60', 's61')

def phase_qkv(isA, it, first, prog):
    xi = 2 * it + (0 if isA else 1)
    wsel = 0 if isA else 1
    ST, WE, XE = 8, 24, 36
    ACC = 40
    WR = 88
    RS = 136
    RL = 152
    T = 168
    a(f's_lshl_b32 s7, {S_RB}, 2')
    a(f's_add_u32 s7, s7, {S_WAVE}')
    a(f's_mul_i32 s20, s7, {28*1024}')
    a(f's_add_u32 s20, s20, {WS_X[xi]}')
    a('s_lshl_b32 s21, s7, 8')
    a(f's_add_u32 s21, s21, {WS_ST[xi]}')
    a(f's_mul_i32 s14, {S_HQ}, {WP_HEAD}')
    a(f's_add_u32 s13, s14, {WS_W[wsel]}')
    a(f's_add_u32 s14, s13, {28*3072}')
    a(f'v_lshlrev_b32 v{T+11}, 3, v{V_N}')
    if not first:
        a(f'v_lshl_add_u32 v{T+11}, v{V_HF}, 14, v{T+11}')
    a(f'v_add_u32 v{T+10}, 65536, v{V_L16}')
    a(f'v_lshrrev_b32 v{V_T1}, 4, v{V_L16}')
    if first:
        a(f's_mul_i32 s48, {S_HQ}, 3')
        a(f'v_add_u32 v{V_T0}, s48, v{V_T1}')
        a(f's_lshl_b32 s48, {S_RB}, 2')
        a(f's_add_u32 s48, s48, {R_X-3}')
        a(f'v_add_u32 v{V_PL}, s48, v{V_T1}')
        a(f'v_cmp_lt_u32 vcc, 2, v{V_T1}')
        a(f'v_cndmask_b32 v{V_T0}, v{V_T0}, v{V_PL}, vcc')
        a(f's_min_u32 s48, {S_CP}, 6')
        a('s_lshl_b32 s48, s48, 1')
        a(f's_add_u32 s48, s48, {R_WOA-7}')
        a(f'v_add_u32 v{V_PL}, s48, v{V_T1}')
        a(f'v_cmp_lt_u32 vcc, 6, v{V_T1}')
        a(f'v_cndmask_b32 v{V_T0}, v{V_T0}, v{V_PL}, vcc')
        mask = 0x1ff
    else:
        a('s_lshr_b32 s48, s7, 3')
        a('s_lshr_b32 s49, s7, 1')
        a('s_and_b32 s49, s49, 3')
        a('s_lshl_b32 s49, s49, 3')
        a('s_add_u32 s48, s48, s49')
        a(f'v_lshl_add_u32 v{V_T0}, v{V_T1}, 5, s48')
        mask = 0x7f
    a(f'v_lshlrev_b32 v{V_T0}, 7, v{V_T0}')
    a(f'v_add_u32 v{V_T0}, {WS_FLAG}, v{V_T0}')
    poll('s[8:11]', mask, prog)
    if not first:
        a('s_barrier')
    stamp(f'qkv{xi}_go')
    nst = 1 if first else 7
    for i in range(nst):
        a(f'buffer_load_dwordx2 v[{ST+2*i}:{ST+2*i+1}], v{T+11}, s[8:11], s21 offen {SC}')
        if i < nst - 1:
            a('s_add_u32 s21, s21, 32768')
    def xload(t):
        a(f'buffer_load_dwordx4 a[{4*t}:{4*t+3}], v{V_L16}, s[8:11], s20 offen offset:{(t%4)*1024} {SC}')
        if t % 4 == 3 and t != 27:
            a('s_add_u32 s20, s20, 4096')
    def weload():
        for p in range(3):
            a(f'buffer_load_dwordx4 v[{WE+4*p}:{WE+4*p+3}], v{V_L16}, s[8:11], s14 offen offset:{p*1024} {SC}')
    def stats():
        for i in range(1, nst):
            a(f'v_pk_add_f32 v[{ST}:{ST+1}], v[{ST}:{ST+1}], v[{ST+2*i}:{ST+2*i+1}]')
        if not first:
            a(f'v_mov_b32 v{ST+2}, v{ST}')
            a(f'v_mov_b32 v{ST+3}, v{ST+1}')
            a(f'v_permlane32_swap_b32 v{ST}, v{ST+2}')
            a(f'v_permlane32_swap_b32 v{ST+1}, v{ST+3}')
            a(f'v_pk_add_f32 v[{ST}:{ST+1}], v[{ST}:{ST+1}], v[{ST+2}:{ST+3}]')
        a(f's_mov_b32 s16, {f32(1.0/448)}')
        a('s_mov_b32 s17, 0x07060302')
        a(f'v_mul_f32 v{ST}, s16, v{ST}')
        a(f'v_mul_f32 v{ST+1}, s16, v{ST+1}')
        a(f'v_fma_f32 v{ST+1}, -v{ST}, v{ST}, v{ST+1}')
        a(f'v_max_f32 v{ST+1}, 0, v{ST+1}')
        a(f'v_add_f32 v{ST+1}, {f32(1e-5)}, v{ST+1}')
        a(f'v_rsq_f32 v{T}, v{ST+1}')
        a(f'v_sub_f32 v{ST}, 0, v{ST}')
        a(f'v_and_b32 v{T+4}, 0xffff0000, v{ST}')
        a(f'v_sub_f32 v{T+5}, v{ST}, v{T+4}')
        a(f'v_and_b32 v{T+6}, 0xffff0000, v{T+5}')
        a(f'v_sub_f32 v{T+7}, v{T+5}, v{T+6}')
        a(f'v_perm_b32 v{XE}, v{T+4}, v{T+4}, s17')
        a(f'v_perm_b32 v{XE+1}, v{T+6}, v{T+4}, s17')
        a(f'v_perm_b32 v{XE+2}, v{T+7}, v{T+6}, s17')
        a(f'v_mov_b32 v{XE+3}, 0')
        a(f's_lshl_b32 s18, {S_WAVE}, 7')
        a(f's_add_u32 s18, s18, {L_M}')
        a(f'v_lshl_add_u32 v{T+8}, v{V_N}, 2, s18')
        a.inst(f'ds_write_b32 v{T+8}, v{T}', tag='rsw')
        a(f'v_lshl_add_u32 v{T+9}, v{V_HF}, 4, s18')
        if isA:
            a(f's_mov_b32 s18, {f32(LOG2E)}')
            a(f'v_mul_f32 v{T+2}, s18, v{T}')
        else:
            a(f'v_mul_f32 v{T+2}, {f32(QSCALE)}, v{T}')
    def stats2():
        for g in range(4):
            a(f'ds_read_b128 v[{RS+4*g}:{RS+4*g+3}], v{T+9} offset:{32*g}')
    def stats3():
        if isA:
            for i in range(8):
                a(f'v_pk_mul_f32 v[{RL+2*i}:{RL+2*i+1}], v[{RS+2*i}:{RS+2*i+1}], s[18:19] op_sel_hi:[1,0]')
    trans = [True, not isA, False]
    started = [False] * 3
    def mm(p, w, x):
        d = f'v[{ACC+16*p}:{ACC+16*p+15}]'
        c = d if started[p] else '0'
        started[p] = True
        if trans[p]:
            a(f'v_mfma_f32_32x32x16_bf16 {d}, {w}, {x}, {c}')
        else:
            a(f'v_mfma_f32_32x32x16_bf16 {d}, {x}, {w}, {c}')
    def wread(f):
        off = L_W + f * 1024
        r = WR + 4 * (f % 12)
        if off < 65536:
            a(f'ds_read_b128 v[{r}:{r+3}], v{V_L16} offset:{off}')
        else:
            a(f'ds_read_b128 v[{r}:{r+3}], v{T+10} offset:{off-65536}')
    def wreg(f):
        r = WR + 4 * (f % 12)
        return f'v[{r}:{r+3}]'
    def extra():
        for p in range(3):
            mm(p, f'v[{WE+4*p}:{WE+4*p+3}]', f'v[{XE}:{XE+3}]')
    if first:
        a(f's_mul_i32 s15, {S_WAVE}, 3072')
        a('s_add_u32 s13, s13, s15')
        def issue(g):
            a('s_mov_b32 m0, s15')
            for p in range(3):
                a.inst(f'buffer_load_dwordx4 v{V_L16}, s[8:11], s13 offen offset:{p*1024} {SC} lds', tag=f'w{g}')
            for k in range(4):
                xload(4 * g + k)
            if g < 6:
                a('s_add_u32 s15, s15, 12288')
                a('s_add_u32 s13, s13, 12288')
        issue(0); issue(1); weload(); issue(2)
        stats(); stats2()
        wo_base(0, 's22')
        for g in range(7):
            a.wait_tag(f'w{g}')
            a('s_barrier')
            for f in range(12):
                wread(12 * g + f)
            if g + 3 < 7:
                issue(g + 3)
            else:
                wo_load(0, [0, 11, 22][g - 4], [11, 22, 32][g - 4], 's22')
            for k in range(4):
                t = 4 * g + k
                for p in range(3):
                    mm(p, wreg(3 * t + p), f'a[{4*t}:{4*t+3}]')
            if g == 1:
                stats3(); extra()
        a('s_mov_b32 s15, 0x20000')
    else:
        D = 12
        for t in range(D):
            xload(t)
        weload()
        for f in range(9):
            wread(f)
        for t in range(28):
            for p in range(3):
                f = 3 * t + p
                mm(p, wreg(f), f'a[{4*t}:{4*t+3}]')
                if f + 9 < 84:
                    wread(f + 9)
                if p == 0 and t + D < 28:
                    xload(t + D)
            if t == 1: stats()
            if t == 3: stats2()
            if t == 6: stats3()
            if t == 8: extra()
    stamp(f'qkv{xi}_mm')
    QF, KF, VF = 88, 96, 104
    SD = 112
    def pkmul_lane(dst, src, sc):
        a(f'v_pk_mul_f32 v[{dst}:{dst+1}], v[{src}:{src+1}], v[{sc}:{sc+1}] op_sel_hi:[1,0]')
    def ones_lane28():
        a('s_mov_b32 exec_lo, 0x10000000')
        a('s_mov_b32 exec_hi, 0x10000000')
        for r in range(8):
            a(f'v_mov_b32 v{VF+r}, s19')
        a('s_mov_b64 exec, -1')
    a(f's_mov_b32 s19, {ONES2}')
    AQ, AK, AV = ACC, ACC + 16, ACC + 32
    if not isA:
        a(f's_lshl_b32 s12, {S_HQ}, 18')
        a('s_lshl_b32 s13, s7, 12')
        a('s_add_u32 s12, s12, s13')
        a(f's_add_u32 s13, s12, {WS_KV[it]}')
        a('s_lshr_b32 s12, s12, 1')
        a(f's_add_u32 s12, s12, {WS_Q[it]}')
        for r in range(8):
            pkmul_lane(AQ + 2 * r, AQ + 2 * r, T + 2)
            a(f'v_cvt_pk_bf16_f32 v{QF+r}, v{AQ+2*r}, v{AQ+2*r+1}')
        a(f'buffer_store_dwordx4 v[{QF}:{QF+3}], v{V_L16}, s[8:11], s12 offen {SC}')
        for r in range(8):
            pkmul_lane(AK + 2 * r, AK + 2 * r, T)
            a(f'v_cvt_pk_bf16_f32 v{KF+r}, v{AK+2*r}, v{AK+2*r+1}')
        a(f'v_mfma_f32_32x32x16_bf16 v[{SD}:{SD+15}], v[{KF}:{KF+3}], v[{QF}:{QF+3}], 0')
        a(f'v_mfma_f32_32x32x16_bf16 v[{SD}:{SD+15}], v[{KF+4}:{KF+7}], v[{QF+4}:{QF+7}], v[{SD}:{SD+15}]')
        a(f'buffer_store_dwordx4 v[{KF}:{KF+3}], v{V_L16}, s[8:11], s13 offen {SC}')
        a('s_mov_b32 exec_lo, 0')
        a(f'v_mov_b32 v{KF+6}, s19')
        a(f'v_mov_b32 v{KF+7}, 0x3f80')
        a('s_mov_b32 exec_lo, -1')
        a(f'buffer_store_dwordx4 v[{KF+4}:{KF+7}], v{V_L16}, s[8:11], s13 offen offset:1024 {SC}')
        for r in range(8):
            a(f'v_pk_mul_f32 v[{AV+2*r}:{AV+2*r+1}], v[{AV+2*r}:{AV+2*r+1}], v[{RS+2*r}:{RS+2*r+1}]')
            a(f'v_cvt_pk_bf16_f32 v{VF+r}, v{AV+2*r}, v{AV+2*r+1}')
        ones_lane28()
        a(f'buffer_store_dwordx4 v[{VF}:{VF+3}], v{V_L16}, s[8:11], s13 offen offset:2048 {SC}')
        a(f'buffer_store_dwordx4 v[{VF+4}:{VF+7}], v{V_L16}, s[8:11], s13 offen offset:3072 {SC}')
        a(f'v_max3_f32 v{T+4}, v{SD}, v{SD+1}, v{SD+2}')
        a(f'v_max3_f32 v{T+5}, v{SD+3}, v{SD+4}, v{SD+5}')
        for r in range(6, 16, 4):
            a(f'v_max3_f32 v{T+4}, v{SD+r}, v{SD+r+1}, v{T+4}')
            if r + 3 < 16:
                a(f'v_max3_f32 v{T+5}, v{SD+r+2}, v{SD+r+3}, v{T+5}')
        a(f'v_max_f32 v{T+4}, v{T+4}, v{T+5}')
        a(f'v_mov_b32 v{T+5}, v{T+4}')
        a(f'v_permlane32_swap_b32 v{T+4}, v{T+5}')
        a(f'v_max_f32 v{T+4}, v{T+4}, v{T+5}')
        a(f'v_sub_f32 v{T+4}, 0, v{T+4}')
        a(f'v_and_b32 v{T+5}, 0xffff0000, v{T+4}')
        a(f'v_sub_f32 v{T+6}, v{T+4}, v{T+5}')
        a('s_mov_b32 exec_lo, 0')
        a(f'v_perm_b32 v{QF+6}, v{T+6}, v{T+5}, s17')
        a('s_mov_b32 exec_lo, -1')
        a(f'buffer_store_dwordx4 v[{QF+4}:{QF+7}], v{V_L16}, s[8:11], s12 offen offset:1024 {SC}')
    else:
        E = 112
        E2 = 8
        a(f's_mov_b32 s16, {f32(1e-6)}')
        a(f's_mov_b32 s17, {f32(1e-6)}')
        a(f'v_mov_b32 v{T+4}, 1.0')
        for r in range(8):
            a(f'v_pk_mul_f32 v[{E+2*r}:{E+2*r+1}], v[{AK+2*r}:{AK+2*r+1}], v[{RL+2*r}:{RL+2*r+1}]')
            a(f'v_pk_fma_f32 v[{AK+2*r}:{AK+2*r+1}], v[{AK+2*r}:{AK+2*r+1}], v[{RS+2*r}:{RS+2*r+1}], v[{T+4}:{T+5}] op_sel_hi:[1,1,0]')
            a(f'v_exp_f32 v{E+2*r}, v{E+2*r}')
            a(f'v_exp_f32 v{E+2*r+1}, v{E+2*r+1}')
            a(f'v_pk_mul_f32 v[{AV+2*r}:{AV+2*r+1}], v[{AV+2*r}:{AV+2*r+1}], v[{RS+2*r}:{RS+2*r+1}]')
            a(f'v_med3_f32 v{AK+2*r}, v{E+2*r}, v{AK+2*r}, 1.0')
            a(f'v_med3_f32 v{AK+2*r+1}, v{E+2*r+1}, v{AK+2*r+1}, 1.0')
            a(f'v_cvt_pk_bf16_f32 v{VF+r}, v{AV+2*r}, v{AV+2*r+1}')
            a(f'v_pk_add_f32 v[{AK+2*r}:{AK+2*r+1}], v[{AK+2*r}:{AK+2*r+1}], s[16:17]')
            a(f'v_cvt_pk_bf16_f32 v{KF+r}, v{AK+2*r}, v{AK+2*r+1}')
        ones_lane28()
        KVD = AV
        a(f'v_mfma_f32_32x32x16_bf16 v[{KVD}:{KVD+15}], v[{KF}:{KF+3}], v[{VF}:{VF+3}], 0')
        a(f'v_mfma_f32_32x32x16_bf16 v[{KVD}:{KVD+15}], v[{KF+4}:{KF+7}], v[{VF+4}:{VF+7}], v[{KVD}:{KVD+15}]')
        def qpart(r):
            pkmul_lane(E + 2 * r, AQ + 2 * r, T + 2)
            a(f'v_pk_fma_f32 v[{AQ+2*r}:{AQ+2*r+1}], v[{AQ+2*r}:{AQ+2*r+1}], v[{T}:{T+1}], v[{T+4}:{T+5}] op_sel_hi:[1,0,0]')
            a(f'v_exp_f32 v{E+2*r}, v{E+2*r}')
            a(f'v_exp_f32 v{E+2*r+1}, v{E+2*r+1}')
            a(f'v_med3_f32 v{AQ+2*r}, v{E+2*r}, v{AQ+2*r}, 1.0')
            a(f'v_med3_f32 v{AQ+2*r+1}, v{E+2*r+1}, v{AQ+2*r+1}, 1.0')
            a(f'v_pk_add_f32 v[{AQ+2*r}:{AQ+2*r+1}], v[{AQ+2*r}:{AQ+2*r+1}], s[16:17]')
            a(f'v_cvt_pk_bf16_f32 v{QF+r}, v{AQ+2*r}, v{AQ+2*r+1}')
        a(f's_lshl_b32 s18, {S_WAVE}, 12')
        a(f's_add_u32 s18, s18, {L_S}')
        a(f'v_add_u32 v{T+8}, s18, v{V_L16}')
        qpart(0); qpart(1)
        for rg in range(4):
            a(f'ds_write_b128 v{T+8}, v[{KVD+4*rg}:{KVD+4*rg+3}] offset:{rg*1024}')
        qpart(2)
        a(f'v_lshlrev_b32 v{T+8}, 2, v0')
        a(f'v_add_u32 v{T+9}, {L_S}, v{T+8}')
        a('s_waitcnt lgkmcnt(0)')
        a('s_barrier')
        for k in range(4):
            a(f'ds_read2st64_b32 v[{E2+4*k}:{E2+4*k+1}], v{T+9} offset0:{4*k} offset1:{4*k+16}')
            a(f'ds_read2st64_b32 v[{E2+4*k+2}:{E2+4*k+3}], v{T+9} offset0:{4*k+32} offset1:{4*k+48}')
        qpart(3)
        a(f's_lshl_b32 s22, {S_HQ}, 12')
        a(f's_add_u32 s22, s22, {WS_KVACC[it]}')
        a(f's_cmp_ge_u32 {S_WAVE}, 2')
        a(f's_cselect_b32 s23, {OOB}, s22')
        a('s_lshl_b32 s12, s7, 15')
        a(f's_lshl_b32 s13, {S_HQ}, 11')
        a('s_add_u32 s12, s12, s13')
        a(f's_add_u32 s12, s12, {WS_PQ[it]}')
        for k in range(4):
            a(f'v_pk_add_f32 v[{E2+4*k}:{E2+4*k+1}], v[{E2+4*k}:{E2+4*k+1}], v[{E2+4*k+2}:{E2+4*k+3}]')
            a(f'v_add_f32 v{E2+4*k}, v{E2+4*k}, v{E2+4*k+1}')
            a(f'buffer_atomic_add_f32 v{E2+4*k}, v{T+8}, s[8:11], {"s23" if k == 3 else "s22"} offen offset:{k*1024} sc1')
        a(f'buffer_store_dwordx4 v[{QF}:{QF+3}], v{V_L16}, s[8:11], s12 offen {SC}')
        for r in range(4, 8):
            qpart(r)
        a(f'buffer_store_dwordx4 v[{QF+4}:{QF+7}], v{V_L16}, s[8:11], s12 offen offset:1024 {SC}')
    stamp(f'qkv{xi}_epi')
    signal(prog + 1)
    stamp(f'qkv{xi}_sig')

def phase_op(isA, it, prog, after=None):
    xi = 2 * it + (0 if isA else 1)
    final = (xi == 3)
    skip = uid('op_skip')
    XF = 8
    ACC = 16
    OF = 32
    KV = 64
    PQ = 128
    D = 192
    T = 224
    if isA:
        a(f'v_lshlrev_b32 v{V_T0}, 7, v0')
        a(f'v_add_u32 v{V_T0}, {WS_FLAG}, v{V_T0}')
        poll('s[8:11]', -1, prog)
        a('s_barrier')
        a(f's_cmp_ge_u32 {S_CP}, 7')
        a(f's_cbranch_scc1 {skip}')
    else:
        a(f's_cmp_ge_u32 {S_CP}, 7')
        a(f's_cbranch_scc1 {skip}')
        a(f'v_lshrrev_b32 v{V_T1}, 4, v{V_L16}')
        a(f'v_lshrrev_b32 v{V_T0}, 1, v{V_T1}')
        a(f'v_and_b32 v{V_T1}, 1, v{V_T1}')
        a(f'v_lshl_add_u32 v{V_T0}, v{V_T1}, 3, v{V_T0}')
        a(f's_lshr_b32 s48, {S_RP}, 1')
        a('s_lshl_b32 s48, s48, 4')
        a(f'v_add_u32 v{V_T0}, s48, v{V_T0}')
        a(f'v_lshlrev_b32 v{V_T0}, 7, v{V_T0}')
        a(f'v_add_u32 v{V_T0}, {WS_FLAG}, v{V_T0}')
    a(f's_lshr_b32 s7, {S_WAVE}, 1')
    a(f's_and_b32 s12, {S_WAVE}, 1')
    a(f's_lshl_b32 s5, {S_RP}, 1')
    a('s_add_u32 s5, s5, s7')
    a(f's_lshl_b32 s6, {S_CP}, 1')
    a('s_add_u32 s6, s6, s12')
    a(f's_mul_i32 s18, s5, {28*1024}')
    a('s_lshl_b32 s19, s6, 11')
    a('s_add_u32 s18, s18, s19')
    a(f's_add_u32 s20, s18, {WS_X[xi]}')
    a('s_lshl_b32 s21, s7, 15')
    a(f's_add_u32 s21, s21, {L_S}')
    a(f'v_add_u32 v{T+4}, s21, v{V_L16}')
    a(f'buffer_load_dwordx4 v[{XF}:{XF+3}], v{V_L16}, s[8:11], s20 offen {SC}')
    a(f'buffer_load_dwordx4 v[{XF+4}:{XF+7}], v{V_L16}, s[8:11], s20 offen offset:1024 {SC}')
    def resid():
        for r in range(8):
            a(f'v_lshlrev_b32 v{ACC+2*r}, 16, v{XF+r}')
            a(f'v_and_b32 v{ACC+2*r+1}, 0xffff0000, v{XF+r}')
    acc = f'v[{ACC}:{ACC+15}]'
    def oread(c):
        for s in range(8):
            a(f'ds_read_b128 v[{OF+4*s}:{OF+4*s+3}], v{T+4} offset:{(8*c+s)*1024}')
    def main_mm(c, s0=0, s1=8):
        for s in range(s0, s1):
            k = 8 * c + s
            a(f'v_mfma_f32_32x32x16_bf16 {acc}, a[{WOA+4*k}:{WOA+4*k+3}], v[{OF+4*s}:{OF+4*s+3}], {acc}')
    if not isA:
        a('s_lshl_b32 s14, s5, 15')
        a('s_lshl_b32 s15, s12, 12')
        a('s_add_u32 s14, s14, s15')
        a(f's_add_u32 s14, s14, {WS_O[it]}')
        a('s_add_u32 s15, s15, s21')
        poll('s[8:11]', 0xffff, prog)
        stamp(f'op{xi}_go')
        for c in range(4):
            a('s_mov_b32 m0, s15')
            for i in range(4):
                a.inst(f'buffer_load_dwordx4 v{V_L16}, s[8:11], s14 offen offset:{i*1024} {SC} lds', tag=f'o{c}')
            if c < 3:
                a('s_add_u32 s14, s14, 8192')
                a('s_add_u32 s15, s15, 8192')
        a('s_mov_b32 s15, 0x20000')
        resid()
        for c in range(4):
            a.wait_tag(f'o{c}')
            a('s_barrier')
            oread(c)
            main_mm(c)
    else:
        stamp(f'op{xi}_go')
        a(f's_lshl_b32 s22, {S_WAVE}, 12')
        a(f's_add_u32 s22, s22, {WS_KVACC[it]}')
        a(f's_lshl_b32 s14, {S_RP}, 16')
        a(f's_lshl_b32 s16, {S_WAVE}, 11')
        a('s_add_u32 s14, s14, s16')
        a(f's_add_u32 s14, s14, {WS_PQ[it]}')
        a('s_add_u32 s17, s14, 32768')
        a(f's_add_u32 s16, s16, {L_S}')
        a(f'v_add_u32 v{T+5}, s16, v{V_L16}')
        for c in range(4):
            for rg in range(4):
                r = KV + 16 * c + 4 * rg
                a(f'buffer_load_dwordx4 v[{r}:{r+3}], v{V_L16}, s[8:11], s22 offen offset:{rg*1024} {SC}')
            for ar in range(2):
                for u in range(2):
                    r = PQ + 16 * c + 8 * ar + 4 * u
                    a(f'buffer_load_dwordx4 v[{r}:{r+3}], v{V_L16}, s[8:11], {"s17" if ar else "s14"} offen offset:{u*1024} {SC}')
            if c < 3:
                a('s_add_u32 s22, s22, 16384')
                a('s_add_u32 s14, s14, 8192')
                a('s_add_u32 s17, s17, 8192')
        resid()
        a(f's_mov_b32 s23, {f32(1e-6)}')
        for c in range(4):
            kb = KV + 16 * c
            for r in range(8):
                a(f'v_cvt_pk_bf16_f32 v{kb+r}, v{kb+2*r}, v{kb+2*r+1}')
            for ar in range(2):
                d = D + 16 * ar
                pq = PQ + 16 * c + 8 * ar
                a(f'v_mfma_f32_32x32x16_bf16 v[{d}:{d+15}], v[{kb}:{kb+3}], v[{pq}:{pq+3}], 0')
                a(f'v_mfma_f32_32x32x16_bf16 v[{d}:{d+15}], v[{kb+4}:{kb+7}], v[{pq+4}:{pq+7}], v[{d}:{d+15}]')
            if c > 0:
                main_mm(c - 1, 0, 2)
            for ar in range(2):
                d = D + 16 * ar
                pq = PQ + 16 * c + 8 * ar
                t = T + 2 * ar
                a(f'v_add_f32 v{t}, s23, v{d+12}')
                a(f'v_mov_b32 v{t+1}, v{t}')
                a(f'v_permlane32_swap_b32 v{t+1}, v{t}')
                a(f'v_rcp_f32 v{t}, v{t}')
                for r in range(8):
                    a(f'v_pk_mul_f32 v[{d+2*r}:{d+2*r+1}], v[{d+2*r}:{d+2*r+1}], v[{t}:{t+1}] op_sel_hi:[1,0]')
                    a(f'v_cvt_pk_bf16_f32 v{pq+r}, v{d+2*r}, v{d+2*r+1}')
                    if c > 0 and r in (1, 4, 7):
                        k = 2 + 3 * ar + (1, 4, 7).index(r)
                        main_mm(c - 1, k, k + 1)
                for u in range(2):
                    a(f'ds_write_b128 v{T+5}, v[{pq+4*u}:{pq+4*u+3}] offset:{ar*32768 + c*8192 + u*1024}')
            a('s_waitcnt lgkmcnt(0)')
            a('s_barrier')
            oread(c)
        main_mm(3)
    stamp(f'op{xi}_mm')
    for r in range(8):
        a(f'v_cvt_pk_bf16_f32 v{XF+r}, v{ACC+2*r}, v{ACC+2*r+1}')
    if not final:
        a(f's_add_u32 s21, s18, {WS_X[xi+1]}')
        a(f'buffer_store_dwordx4 v[{XF}:{XF+3}], v{V_L16}, s[8:11], s21 offen {SC}')
        a(f'buffer_store_dwordx4 v[{XF+4}:{XF+7}], v{V_L16}, s[8:11], s21 offen offset:1024 {SC}')
        a(f's_mov_b32 s19, {ONES2}')
        a(f'v_dot2_f32_bf16 v{T}, v{XF}, s19, 0')
        a(f'v_dot2_f32_bf16 v{T+1}, v{XF}, v{XF}, 0')
        for r in range(1, 8):
            a(f'v_dot2_f32_bf16 v{T}, v{XF+r}, s19, v{T}')
            a(f'v_dot2_f32_bf16 v{T+1}, v{XF+r}, v{XF+r}, v{T+1}')
        a(f'v_lshlrev_b32 v{T+6}, 3, v{V_N}')
        a(f'v_lshl_add_u32 v{T+6}, v{V_HF}, 2, v{T+6}')
        a('s_lshl_b32 s19, s5, 8')
        a('s_lshl_b32 s23, s6, 14')
        a('s_add_u32 s23, s23, s19')
        a(f's_add_u32 s23, s23, {WS_ST[xi+1]}')
        a(f'v_permlane32_swap_b32 v{T}, v{T+1}')
        a(f'v_add_f32 v{T}, v{T}, v{T+1}')
        a(f'buffer_store_dword v{T}, v{T+6}, s[8:11], s23 offen {SC}')
        stamp(f'op{xi}_epi')
        signal(prog + 1)
    else:
        a('s_lshl_b32 s19, s5, 5')
        a(f'v_add_u32 v{T+6}, s19, v{V_N}')
        a(f'v_mul_u32_u24 v{T+6}, 896, v{T+6}')
        a(f'v_lshl_add_u32 v{T+6}, v{V_HF}, 4, v{T+6}')
        a('s_lshl_b32 s19, s6, 6')
        for u in range(2):
            b = XF + 4 * u
            a(f'v_permlane32_swap_b32 v{b}, v{b+2}')
            a(f'v_permlane32_swap_b32 v{b+1}, v{b+3}')
            a(f'buffer_store_dwordx4 v[{b}:{b+3}], v{T+6}, s[32:35], s19 offen offset:{32*u}')
        stamp(f'op{xi}_epi')
    a.raw(skip + ':')
    a('s_waitcnt vmcnt(0) lgkmcnt(0)') if False else None
    a.fresh()
    a('s_nop 4')
    stamp(f'op{xi}_sig')

def phase_attn(it, prog):
    Q = 8
    O = 40
    S = 104
    P = 136
    T = 144
    R = 0
    sfx = f'_{it}'
    a(f's_lshl_b32 s12, {S_HA}, 18')
    a(f's_add_u32 s12, s12, {WS_KV[it]}')
    a(f's_lshl_b32 s13, {S_WAVE}, 16')
    a('s_add_u32 s13, s13, s12')
    a(f's_lshl_b32 s14, {S_HA}, 17')
    a(f's_lshl_b32 s16, {S_QB}, 13')
    a('s_add_u32 s14, s14, s16')
    a(f's_add_u32 s14, s14, {WS_Q[it]}')
    a(f's_lshl_b32 s16, {S_WAVE}, 11')
    a('s_add_u32 s14, s14, s16')
    for r in range(64):
        a(f'v_mov_b32 v{O+r}, 0')
    wo_base(1, 's22')
    if it == 0:
        w_dma_base(0, 's60', 's61')
    a(f'v_lshrrev_b32 v{V_T1}, 4, v{V_L16}')
    a(f'v_lshrrev_b32 v{V_T0}, 1, v{V_T1}')
    a(f'v_and_b32 v{V_T1}, 1, v{V_T1}')
    a(f'v_lshl_add_u32 v{V_T0}, v{V_T1}, 3, v{V_T0}')
    a(f's_lshl_b32 s48, {S_HA}, 4')
    a(f'v_add_u32 v{V_T0}, s48, v{V_T0}')
    a(f'v_lshlrev_b32 v{V_T0}, 7, v{V_T0}')
    a(f'v_add_u32 v{V_T0}, {WS_FLAG}, v{V_T0}')
    poll('s[8:11]', 0xffff, prog)
    stamp(f'attn{it}_go')
    def kreg(j, t): return f'a[{R+16*j+4*t}:{R+16*j+4*t+3}]'
    def vreg(j, u): return f'a[{R+16*j+8+4*u}:{R+16*j+8+4*u+3}]'
    def qreg(i, t): return f'v[{Q+8*i+4*t}:{Q+8*i+4*t+3}]'
    def sreg(n): return f'v[{S+16*(n&1)}:{S+16*(n&1)+15}]'
    def oreg(i): return f'v[{O+16*i}:{O+16*i+15}]'
    def loadq(i):
        a(f's_xor_b32 s16, s14, {i*2048}')
        a(f'buffer_load_dwordx4 {qreg(i,0)}, v{V_L16}, s[8:11], s16 offen {SC}')
        a(f'buffer_load_dwordx4 {qreg(i,1)}, v{V_L16}, s[8:11], s16 offen offset:1024 {SC}')
    def loadk(j, sr):
        a(f'buffer_load_dwordx4 {kreg(j,0)}, v{V_L16}, s[8:11], {sr} offen {SC}')
        a(f'buffer_load_dwordx4 {kreg(j,1)}, v{V_L16}, s[8:11], {sr} offen offset:1024 {SC}')
    def loadv(j, sr):
        a(f'buffer_load_dwordx4 {vreg(j,0)}, v{V_L16}, s[8:11], {sr} offen offset:2048 {SC}')
        a(f'buffer_load_dwordx4 {vreg(j,1)}, v{V_L16}, s[8:11], {sr} offen offset:3072 {SC}')
    def M1(n):
        j, i = (n >> 2) & 3, n & 3
        a(f'v_mfma_f32_32x32x16_bf16 {sreg(n)}, {kreg(j,0)}, {qreg(i,0)}, 0')
    def M2(n):
        j, i = (n >> 2) & 3, n & 3
        a(f'v_mfma_f32_32x32x16_bf16 {sreg(n)}, {kreg(j,1)}, {qreg(i,1)}, {sreg(n)}')
    def PV(n, u):
        j, i = (n >> 2) & 3, n & 3
        a(f'v_mfma_f32_32x32x16_bf16 {oreg(i)}, {vreg(j,u)}, v[{P+4*u}:{P+4*u+3}], {oreg(i)}')
    def e(n, k):
        r = S + 16 * (n & 1) + k
        a(f'v_exp_f32 v{r}, v{r}')
    def c(n, k):
        r = S + 16 * (n & 1) + 2 * k
        a(f'v_cvt_pk_bf16_f32 v{P+k}, v{r}, v{r+1}')
    loadk(0, 's13')
    loadq(0); loadq(1); loadq(2); loadq(3)
    loadv(0, 's13')
    for j in range(1, 4):
        a('s_add_u32 s13, s13, 4096')
        loadk(j, 's13'); loadv(j, 's13')
    a('s_add_u32 s13, s13, 4096')
    M1(0); M2(0); M1(1)
    a('s_mov_b32 s17, 3')
    a('s_waitcnt vmcnt(14)')
    for k in range(4): e(0, k)
    def body(last):
        wk = [0]
        for n in range(16):
            j, i = n >> 2, n & 3
            e(n, 4); e(n, 5); c(n, 0); c(n, 1); e(n, 6); e(n, 7)
            if not (last and n == 15):
                M2(n + 1)
            c(n, 2); c(n, 3); e(n, 8); e(n, 9); e(n, 10); e(n, 11)
            PV(n, 0)
            if last:
                wo_load(1, 2 * n, 2 * n + 2, 's22')
            elif i == 3:
                loadk(j, 's13')
            elif it == 0 and i == 1:
                w_dma([2, 2, 2, 1][j], 's60', 's61')
            e(n, 12); e(n, 13); c(n, 4); c(n, 5); e(n, 14); e(n, 15); c(n, 6); c(n, 7)
            if not (last and n >= 14):
                M1(n + 2)
            if not (last and n == 15):
                e(n + 1, 0); e(n + 1, 1); e(n + 1, 2); e(n + 1, 3)
            PV(n, 1)
            if i == 3 and not last:
                loadv(j, 's13')
                a('s_add_u32 s13, s13, 4096')
    def tail():
        a('s_sub_u32 s17, s17, 1')
        a('s_cmp_lg_u32 s17, 0')
        a(f's_cbranch_scc1 attn_loop{sfx}')
    a.raw('.p2align 3')
    a.loop(f'attn_loop{sfx}', lambda: body(False), tail)
    body(True)
    stamp(f'attn{it}_mm')
    for t in range(1, 4):
        a(f's_xor_b32 s19, {S_WAVE}, {t}')
        a('s_mul_i32 s19, s19, 12288')
        a(f's_add_u32 s19, s19, {L_S}')
        a(f'v_add_u32 v{T+4}, s19, v{V_L16}')
        for rg in range(4):
            r = O + 16 * t + 4 * rg
            a(f'ds_write_b128 v{T+4}, v[{r}:{r+3}] offset:{(t-1)*4096 + rg*1024}')
    a(f's_mul_i32 s19, {S_WAVE}, 12288')
    a(f's_add_u32 s19, s19, {L_S}')
    a(f'v_add_u32 v{T+4}, s19, v{V_L16}')
    a('s_waitcnt lgkmcnt(0)')
    a('s_barrier')
    for t in range(1, 4):
        for rg in range(4):
            r = O + 16 * t + 4 * rg
            a(f'ds_read_b128 v[{r}:{r+3}], v{T+4} offset:{(t-1)*4096 + rg*1024}')
    a(f's_lshl_b32 s18, {S_QB}, 2')
    a(f's_add_u32 s18, s18, {S_WAVE}')
    a('s_lshl_b32 s18, s18, 15')
    a(f's_lshl_b32 s19, {S_HA}, 11')
    a('s_add_u32 s18, s18, s19')
    a(f's_add_u32 s18, s18, {WS_O[it]}')
    a(f's_mov_b32 s20, {f32(2.0**-64)}')
    a(f's_mov_b32 s21, {f32(2.0**64)}')
    for t in range(1, 4):
        for r in range(8):
            a(f'v_pk_add_f32 v[{O+2*r}:{O+2*r+1}], v[{O+2*r}:{O+2*r+1}], v[{O+16*t+2*r}:{O+16*t+2*r+1}]')
    a(f'v_mov_b32 v{T}, v{O+12}')
    a(f'v_mov_b32 v{T+1}, v{O+12}')
    a(f'v_permlane32_swap_b32 v{T+1}, v{T}')
    a(f'v_cmp_le_f32 vcc, s20, v{T}')
    a(f'v_cmp_ge_f32 s[22:23], s21, v{T}')
    a('s_and_b64 vcc, vcc, s[22:23]')
    a('s_cmp_eq_u64 vcc, exec')
    a(f's_cbranch_scc0 attn_slow{sfx}')
    a.raw(f'attn_fin{sfx}:')
    a(f'v_rcp_f32 v{T}, v{T}')
    for r in range(8):
        a(f'v_pk_mul_f32 v[{O+2*r}:{O+2*r+1}], v[{O+2*r}:{O+2*r+1}], v[{T}:{T+1}] op_sel_hi:[1,0]')
        a(f'v_cvt_pk_bf16_f32 v{P+r}, v{O+2*r}, v{O+2*r+1}')
    a(f'buffer_store_dwordx4 v[{P}:{P+3}], v{V_L16}, s[8:11], s18 offen {SC}')
    a(f'buffer_store_dwordx4 v[{P+4}:{P+7}], v{V_L16}, s[8:11], s18 offen offset:1024 {SC}')
    stamp(f'attn{it}_epi')
    signal(prog + 1)
    stamp(f'attn{it}_sig')

    def slow():
        a.raw(f'attn_slow{sfx}:'); a.fresh()
        a('s_waitcnt vmcnt(0) lgkmcnt(0)')
        a('s_nop 15')
        a('s_mov_b32 exec_lo, 0')
        a(f'v_mov_b32 v{Q+6}, 0')
        a(f'v_mov_b32 v{Q+7}, 0')
        a('s_mov_b32 exec_lo, -1')
        a(f'v_mov_b32 v{T+2}, {f32(-3.0e38)}')
        a('s_mov_b32 s13, s12')
        a('s_mov_b32 s17, 64')
        a('s_nop 4')
        def body1():
            loadk(0, 's13')
            M1(0); M2(0)
            for r in range(0, 16, 2):
                a(f'v_max3_f32 v{T+2}, v{S+r}, v{S+r+1}, v{T+2}')
            a('s_add_u32 s13, s13, 4096')
            a('s_nop 4')
        def tail1():
            a('s_sub_u32 s17, s17, 1')
            a('s_cmp_lg_u32 s17, 0')
            a(f's_cbranch_scc1 attn_slow1{sfx}')
        a.loop(f'attn_slow1{sfx}', body1, tail1)
        a(f'v_mov_b32 v{T+3}, v{T+2}')
        a(f'v_permlane32_swap_b32 v{T+2}, v{T+3}')
        a(f'v_max_f32 v{T+2}, v{T+2}, v{T+3}')
        for r in range(16):
            a(f'v_mov_b32 v{O+r}, 0')
        a('s_mov_b32 s13, s12')
        a('s_mov_b32 s17, 64')
        a('s_nop 15')
        def body2():
            loadk(0, 's13'); loadv(0, 's13')
            M1(0); M2(0)
            for r in range(16):
                a(f'v_sub_f32 v{S+r}, v{S+r}, v{T+2}')
            for r in range(16):
                e(0, r)
            for r in range(8):
                c(0, r)
            PV(0, 0); PV(0, 1)
            a('s_add_u32 s13, s13, 4096')
            a('s_nop 15')
        def tail2():
            a('s_sub_u32 s17, s17, 1')
            a('s_cmp_lg_u32 s17, 0')
            a(f's_cbranch_scc1 attn_slow2{sfx}')
        a.loop(f'attn_slow2{sfx}', body2, tail2)
        a(f'v_mov_b32 v{T}, v{O+12}')
        a(f'v_mov_b32 v{T+1}, v{O+12}')
        a(f'v_permlane32_swap_b32 v{T+1}, v{T}')
        a('s_nop 4')
        a(f's_branch attn_fin{sfx}')
    return slow

def build(path):
    prologue()
    phase_prep(); maybe_stop(0)
    cold = []
    prog = 1
    for it in range(2):
        phase_qkv(True, it, it == 0, prog); prog += 1; maybe_stop(5 * it + 1)
        if it == 1:
            w_prefetch_all(1)
        phase_op(True, it, prog); prog += 1; maybe_stop(5 * it + 2)
        if it == 0:
            w_prefetch_all(1)
        phase_qkv(False, it, False, prog); prog += 1; maybe_stop(5 * it + 3)
        cold.append(phase_attn(it, prog)); prog += 1; maybe_stop(5 * it + 4)
        phase_op(False, it, prog); prog += 1; maybe_stop(5 * it + 5)
        if it == 0:
            wo_base(0, 's22')
            wo_load(0, 0, 32, 's22')
    a.raw('k_fin:')
    if INSTR:
        a('s_waitcnt vmcnt(0)')
        stamp('end')
        a('s_lshl_b32 s48, s2, 2')
        a(f's_add_u32 s48, s48, {S_WAVE}')
        a('s_lshl_b32 s48, s48, 8')
        a(f's_add_u32 s48, s48, {WS_DBG}')
        a(f'v_lshrrev_b32 v{V_T0}, 2, v{V_L16}')
        a(f'buffer_store_dword v{V_ST}, v{V_T0}, s[8:11], s48 offen')
    a.raw('k_end:')
    a('s_endpgm')
    for f in cold:
        f()
    out = ['; generated by dev/gen2.py -- interleaved linear-attention / softmax-MHA layers, persistent kernel, gfx950',
           f'; @launch grid=(256,1,1) block=(256,1,1) lds={LDS_TOTAL}',
           '.amdgcn_target "amdgcn-amd-amdhsa--gfx950"', '.text', a.text(), '.section .rodata,"a"',
           kernel_desc(KNAME, 512, 102 if INSTR else 72, 256)]
    open(path, 'w').write('\n'.join(out) + '\n')
    if INSTR:
        open(path + '.stamps', 'w').write('\n'.join(STAMPS))

if __name__ == '__main__':
    path = sys.argv[1] if len(sys.argv) > 1 else f'cdna_kernels/{NAME}.s'
    INSTR = 'instr' in sys.argv[2:]
    for x in sys.argv[2:]:
        if x.startswith('stop='):
            STOP = int(x[5:])
    build(path)
    print('wrote', path, 'maxv', a.maxv, 'maxa', a.maxa, 'maxs', a.maxs)
```

```python
import sys, struct
sys.path.insert(0, 'dev')
from asmlib import *

NAME = 'interleave_layers__linear_attn_block__softmax_full_mha__prompt'
KNAME = NAME + '_kernel'

def f32(x):
    return '0x%08x' % struct.unpack('<I', struct.pack('<f', x))[0]

X_SIZE = 64 * 28 * 1024
ST_SIZE = 14 * 2048 * 8
_off = 0
def alloc(n, al=65536):
    global _off
    _off = (_off + al - 1) // al * al
    r = _off
    _off += n
    return r
WS_XA = alloc(X_SIZE); WS_XB = alloc(X_SIZE)
WS_STA = alloc(ST_SIZE); WS_STB = alloc(ST_SIZE)
WS_OA = alloc(64 * 16 * 2048)
WS_Q = alloc(16 * 64 * 2048)
WS_KV = alloc(16 * 64 * 4096)
WS_O = alloc(64 * 16 * 2048)
BLK = alloc(0)
_off = 2 * BLK
IMG_HEAD = 84 * 1024
WS_IMG = [alloc(16 * IMG_HEAD), alloc(16 * IMG_HEAD)]
WS_ZERO = alloc(0)
WS_KVACC = alloc(2 * 16 * 4096)
WS_FLAG = alloc(256 * 128, 4096)
ZERO_SIZE = _off - WS_ZERO
NZERO = ZERO_SIZE // 16384
assert ZERO_SIZE == NZERO * 16384 and NZERO == 10
WS_TOTAL = 1 << 28
WS_DBG = 64 << 20
OOB = 0x40000000

LOG2E = 1.4426950408889634
QSCALE = 28 ** -0.5 * LOG2E
ONES2 = 0x3f803f80
SC = 'sc1'

L_W = 0
L_S = 84 * 1024
L_KV = L_S + 57344
L_M = L_KV + 16384
L_RS = L_M
L_CS = L_M + 512
LDS_TOTAL = 163840
L_RED = L_S + 4096

INSTR = False
CLK = 's_memrealtime'
FINE = False
DEBUGQ = False
FINE2 = False
TOUCH = True
POLL_LIMIT = 400000

V_L16, V_N, V_HF, V_T0, V_T1, V_PL, V_ST = 1, 2, 3, 4, 5, 6, 7
V_WD = 8
V_WT = 11
V_C8, V_TI, V_ONE = 13, 14, 15
S_WAVE = 's4'
S_RB, S_HQ, S_RP, S_CP, S_HA, S_QB, S_FLAG, S_BLK = 's40', 's41', 's42', 's43', 's41', 's40', 's46', 's47'
S_PROG, S_IT = 's62', 's63'
SRD_WS, SRD_OUT, SRD_DBG = 's[8:11]', 's[32:35]', 's[36:39]'
SRD_X0, SRD_W, SRD_WO = 's[64:67]', ['s[68:71]', 's[72:75]'], ['s[76:79]', 's[80:83]']
WOA = [0, 128]

a = Asm()
_uid = [0]
def uid(p):
    _uid[0] += 1
    return f'{p}_{_uid[0]}'

STAMPS = []
def stamp(name, looped=False):
    if INSTR:
        i = len(STAMPS)
        STAMPS.append((name, looped))
        a(f'{CLK} s[96:97]')
        if looped:
            a(f's_mul_i32 s98, {S_IT}, 27')
            a(f's_add_u32 s98, s98, {i}')
            a('s_mov_b32 m0, s98')
            a('s_waitcnt lgkmcnt(0)')
            a(f'v_writelane_b32 v{V_ST}, s96, m0')
        else:
            a('s_waitcnt lgkmcnt(0)')
            a(f'v_writelane_b32 v{V_ST}, s96, {i}')

def poll(srd, mask, target):
    L = uid('poll')
    if mask != -1:
        a(f's_mov_b64 exec, {mask}')
    a(f's_mov_b32 s48, {POLL_LIMIT}')
    a('s_waitcnt lgkmcnt(0)')
    a.raw(L + ':')
    a(f'buffer_load_dword v{V_PL}, v{V_T0}, {srd}, 0 offen sc1')
    a('s_sub_u32 s48, s48, 1')
    a('s_cbranch_scc1 k_end')
    a('s_waitcnt vmcnt(0)')
    a(f'v_cmp_le_u32 vcc, {target}, v{V_PL}')
    a('s_cmp_eq_u64 vcc, exec')
    a(f's_cbranch_scc0 {L}')
    if mask != -1:
        a('s_mov_b64 exec, -1')

def signal(inc=1, lg=True):
    L = uid('sig')
    a('s_waitcnt vmcnt(0) lgkmcnt(0)' if lg else 's_waitcnt vmcnt(0)')
    a('s_barrier')
    a(f's_cmp_lg_u32 {S_WAVE}, 0')
    a(f's_cbranch_scc1 {L}')
    sv = list(a.st.hist)
    a(f's_add_u32 s48, {S_PROG}, {inc}')
    a(f'v_mov_b32 v{V_T0}, s48')
    a(f'v_mov_b32 v{V_T1}, 0')
    a('s_mov_b64 exec, 1')
    a.raw(f'  buffer_store_dword v{V_T0}, v{V_T1}, {SRD_WS}, {S_FLAG} offen sc1')
    a('s_mov_b64 exec, -1')
    a('s_nop 1')
    a.st.hist = sv
    a.raw(L + ':')

def advance(n=1):
    a(f's_add_u32 {S_PROG}, {S_PROG}, {n}')

def flag_addr():
    a(f'v_lshlrev_b32 v{V_T0}, 7, v{V_T0}')
    a(f'v_add_u32 v{V_T0}, {WS_FLAG}, v{V_T0}')

def ids16(sreg):
    a(f'v_lshrrev_b32 v{V_T1}, 4, v{V_L16}')
    a(f'v_lshrrev_b32 v{V_T0}, 1, v{V_T1}')
    a(f'v_and_b32 v{V_T1}, 1, v{V_T1}')
    a(f'v_lshl_add_u32 v{V_T0}, v{V_T1}, 3, v{V_T0}')
    a(f's_lshl_b32 s48, {sreg}, 4')
    a(f'v_add_u32 v{V_T0}, s48, v{V_T0}')
    flag_addr()

def ids_qkv_rows(hreg):
    a(f'v_lshrrev_b32 v{V_T0}, 6, v{V_L16}')
    a(f'v_lshlrev_b32 v{V_T0}, 1, v{V_T0}')
    a(f'v_bfe_u32 v{V_T1}, v{V_L16}, 4, 2')
    a(f'v_lshl_add_u32 v{V_T0}, v{V_T1}, 3, v{V_T0}')
    a(f's_lshr_b32 s48, {hreg}, 3')
    a(f's_and_b32 s49, {hreg}, 7')
    a('s_lshl_b32 s49, s49, 5')
    a('s_add_u32 s48, s48, s49')
    a(f'v_add_u32 v{V_T0}, s48, v{V_T0}')
    flag_addr()

def ids_qkv_heads(rbreg):
    a(f'v_lshrrev_b32 v{V_T0}, 7, v{V_L16}')
    a(f'v_bfe_u32 v{V_T1}, v{V_L16}, 4, 3')
    a(f'v_lshl_add_u32 v{V_T0}, v{V_T1}, 5, v{V_T0}')
    a(f's_lshr_b32 s48, {rbreg}, 2')
    a('s_lshl_b32 s48, s48, 1')
    a(f's_and_b32 s49, {rbreg}, 3')
    a('s_lshl_b32 s49, s49, 3')
    a('s_add_u32 s48, s48, s49')
    a(f'v_add_u32 v{V_T0}, s48, v{V_T0}')
    flag_addr()

V_DUM = 250
def touch_lin(srd, soff, dst):
    a(f'v_lshlrev_b32 v{V_DUM}, 6, v{V_TI}')
    a(f'buffer_load_dword v{dst}, v{V_DUM}, {srd}, {soff} offen')
def touch_w(which, dst):
    a(f'v_lshrrev_b32 v{V_DUM}, 3, v{V_TI}')
    a(f'v_mul_u32_u24 v{V_DUM}, 896, v{V_DUM}')
    a(f'v_and_b32 v{dst}, 7, v{V_TI}')
    a(f'v_lshl_add_u32 v{V_DUM}, v{dst}, 6, v{V_DUM}')
    a(f's_lshr_b32 s48, {S_HQ}, 3')
    a('s_mul_i32 s48, s48, 448')
    a('s_add_u32 s48, s48, 256')
    a(f's_add_u32 s49, s48, {1024*896}')
    a(f'buffer_load_dword v{dst}, v{V_DUM}, {SRD_W[which]}, s48 offen')
    a(f'buffer_load_dword v{dst+1}, v{V_DUM}, {SRD_W[which]}, s49 offen')

def prologue():
    a.raw(kernel_header(KNAME))
    a('s_cmp_ge_u32 s2, 256')
    a('s_cbranch_scc1 k_end')
    a('s_load_dwordx2 s[64:65], s[0:1], 0')
    a('s_load_dwordx2 s[68:69], s[0:1], 8')
    a('s_load_dwordx2 s[8:9], s[0:1], 64')
    a('s_load_dwordx2 s[76:77], s[0:1], 16')
    a('s_load_dwordx2 s[72:73], s[0:1], 32')
    a('s_load_dwordx2 s[80:81], s[0:1], 40')
    a('s_load_dwordx2 s[32:33], s[0:1], 48')
    a('s_load_dwordx2 s[36:37], s[0:1], 56')
    a(f'v_and_b32 v13, 63, v0')
    a(f'v_lshrrev_b32 v{V_T0}, 6, v0')
    a(f'v_and_b32 v{V_N}, 31, v0')
    a(f'v_readfirstlane_b32 {S_WAVE}, v{V_T0}')
    a(f'v_bfe_u32 v{V_HF}, v0, 5, 1')
    a(f'v_lshlrev_b32 v{V_L16}, 4, v13')
    a(f'v_mov_b32 v{V_ST}, 0')
    a('s_and_b32 s5, s2, 7')
    a('s_lshr_b32 s6, s2, 3')
    a('s_lshl_b32 s7, s5, 1')
    a('s_and_b32 s7, s7, 12')
    a('s_and_b32 s12, s6, 3')
    a(f's_add_u32 {S_RB}, s7, s12')
    a('s_and_b32 s7, s5, 1')
    a('s_lshl_b32 s7, s7, 3')
    a('s_lshr_b32 s12, s6, 2')
    a(f's_add_u32 {S_HQ}, s7, s12')
    a('s_lshl_b32 s7, s5, 2')
    a('s_and_b32 s12, s6, 3')
    a(f's_add_u32 {S_RP}, s7, s12')
    a(f's_lshr_b32 {S_CP}, s6, 2')
    a(f's_lshl_b32 {S_FLAG}, s2, 7')
    a(f's_add_u32 {S_FLAG}, {S_FLAG}, {WS_FLAG}')
    a(f's_mov_b32 {S_BLK}, 0')
    a(f's_mov_b32 {S_PROG}, 0')
    a(f's_mov_b32 {S_IT}, 0')
    for r in (11, 35, 39, 67, 71, 75, 79, 83):
        a(f's_mov_b32 s{r}, 0x20000')
    a(f's_mov_b32 s10, {WS_TOTAL}')
    a(f's_mov_b32 s34, {2048*448*2}')
    a('s_mov_b32 s38, 256')
    a(f's_mov_b32 s66, {2048*448*2}')
    a(f's_mov_b32 s70, {448*1344*2+256}')
    a(f's_mov_b32 s74, {448*1344*2+256}')
    a(f's_mov_b32 s78, {448*448*2}')
    a(f's_mov_b32 s82, {448*448*2}')
    a('v_lshrrev_b32 v14, 2, v13')
    a('v_and_b32 v15, 3, v13')
    a(f'v_mul_u32_u24 v{V_WD+2}, 2688, v14')
    a(f'v_lshl_add_u32 v{V_WD+2}, v15, 4, v{V_WD+2}')
    a(f's_mul_i32 s12, {S_HQ}, 56')
    a('s_and_b32 s27, s12, 8')
    a('s_sub_u32 s12, s12, s27')
    a(f'v_add_u32 v{V_WD+2}, s12, v{V_WD+2}')
    a(f'v_add_u32 v{V_WD+1}, 128, v{V_WD+2}')
    a(f'v_add_u32 v{V_WD}, 256, v{V_WD+2}')
    a('v_and_b32 v14, 3, v14')
    a('v_lshlrev_b32 v14, 6, v14')
    a('v_lshl_add_u32 v14, v15, 3, v14')
    a('v_bfe_u32 v15, v13, 4, 1')
    a('v_lshl_add_u32 v14, v15, 5, v14')
    a(f'v_lshl_add_u32 v{V_WT}, v{V_HF}, 8, v14')
    a(f'v_add_u32 v{V_WT+1}, 65536, v{V_WT}')
    a(f'v_and_b32 v{V_C8}, 63, v14')
    a('s_lshl_b32 s12, s6, 8')
    a(f'v_add_u32 v{V_TI}, s12, v0')
    a(f'v_cmp_eq_u32 vcc, 28, v{V_N}')
    a(f'v_mov_b32 v{V_ONE}, {ONES2}')
    a(f'v_cndmask_b32 v{V_ONE}, 0, v{V_ONE}, vcc')
    a('s_waitcnt lgkmcnt(0)')
    for r in (68, 72):
        a(f's_sub_u32 s{r}, s{r}, 256')
        a(f's_subb_u32 s{r+1}, s{r+1}, 0')
    for r in (9, 33, 37, 65, 69, 73, 77, 81):
        a(f's_and_b32 s{r}, s{r}, 0xffff')
    stamp('start')

ZROLE0 = 246
def zero_issue():
    L = uid('z')
    a(f's_cmp_lt_u32 s2, {ZROLE0}')
    a(f's_cbranch_scc1 {L}')
    a(f's_sub_u32 s3, s2, {ZROLE0}')
    a('s_lshl_b32 s53, s3, 14')
    a(f's_add_u32 s53, s53, {WS_ZERO}')
    a('v_lshlrev_b32 v16, 4, v0')
    for i in range(4):
        a(f'v_mov_b32 v{20+i}, 0')
    for i in range(4):
        a.raw(f'  buffer_store_dwordx4 v[20:23], v16, {SRD_WS}, s53 offen {SC}')
        if i < 3:
            a('s_add_u32 s53, s53, 4096')
    a('s_nop 2')
    a.raw(L + ':')
def zero_publish():
    L = uid('z')
    a(f's_cmp_lt_u32 s2, {ZROLE0}')
    a(f's_cbranch_scc1 {L}')
    a(f's_cmp_lg_u32 {S_WAVE}, 0')
    a(f's_cbranch_scc1 {L}')
    a('s_lshl_b32 s3, s3, 2')
    a(f'v_mov_b32 v{V_T0}, 1')
    a(f'v_mov_b32 v{V_T1}, 0')
    a('s_mov_b64 exec, 1')
    a('s_waitcnt vmcnt(0)')
    a.raw(f'  buffer_store_dword v{V_T0}, v{V_T1}, {SRD_DBG}, s3 offen sc1')
    a('s_waitcnt vmcnt(0)')
    a('s_mov_b64 exec, -1')
    a.raw(L + ':')

def w_dma_step(which, sg, sl, tag=None, adv=1):
    a(f's_mov_b32 m0, {sl}')
    a(f's_add_u32 {sl}, {sl}, {3072*adv}')
    for p in range(3):
        a.inst(f'buffer_load_dwordx4 v{V_WD+p}, {SRD_W[which]}, {sg} offen offset:{p*1024} lds', tag=tag)
    a(f's_add_u32 {sg}, {sg}, {43008*adv}')

def img_base(which, sg, sl):
    a(f's_mul_i32 {sl}, {S_WAVE}, {21*1024}')
    a(f's_mul_i32 {sg}, {S_HQ}, {IMG_HEAD}')
    a(f's_add_u32 {sg}, {sg}, {sl}')
    a(f's_add_u32 {sg}, {sg}, {WS_IMG[which]}')

def img_dma(n, sg, sl):
    a(f's_mov_b32 m0, {sl}')
    a(f's_add_u32 {sl}, {sl}, {n*1024}')
    for i in range(n):
        a(f'buffer_load_dwordx4 v{V_L16}, {SRD_WS}, {sg} offen offset:{i*1024} {SC} lds')
    a(f's_add_u32 {sg}, {sg}, {n*1024}')

def w_prefetch(which, parts):
    for n in parts:
        img_dma(n, 's60', 's61')

def wtr(dst, f, base, qoff):
    off = L_W + f * 1024
    for q in range(2):
        o = off + q * qoff
        if o < 65536:
            a(f'ds_read_b64_tr_b16 v[{dst+2*q}:{dst+2*q+1}], v{base} offset:{o}')
        else:
            a(f'ds_read_b64_tr_b16 v[{dst+2*q}:{dst+2*q+1}], v{base+1} offset:{o-65536}')

def stage_wo_issue(which, tmp=16):
    L = uid('wo')
    a(f's_cmp_ge_u32 {S_CP}, 7')
    a(f's_cbranch_scc1 {L}')
    a(f'v_lshrrev_b32 v{tmp}, 7, v{V_L16}')
    a(f'v_mul_u32_u24 v{tmp}, 896, v{tmp}')
    a(f'v_and_b32 v{tmp+1}, 0x70, v{V_L16}')
    a(f's_lshl_b32 s48, {S_CP}, 7')
    a(f'v_add3_u32 v{tmp}, v{tmp}, v{tmp+1}, s48')
    a(f's_mul_i32 s48, {S_WAVE}, {112*896}')
    a(f's_mul_i32 s49, {S_WAVE}, {14*1024}')
    a(f's_add_u32 m0, s49, {L_S}')
    for i in range(14):
        a('s_nop 0')
        a.raw(f'  buffer_load_dwordx4 v{tmp}, {SRD_WO[which]}, s48 offen lds')
        if i < 13:
            a('s_add_u32 s48, s48, 7168')
            a('s_add_u32 m0, m0, 1024')
    a.raw(L + ':')

def stage_wo_read(which, younger, tmp=16):
    L = uid('wo')
    a(f's_cmp_ge_u32 {S_CP}, 7')
    a(f's_cbranch_scc1 {L}')
    a(f'v_bfe_u32 v{tmp}, v{V_L16}, 6, 2')
    a(f'v_lshl_add_u32 v{tmp}, v{V_HF}, 2, v{tmp}')
    a(f'v_lshlrev_b32 v{tmp}, 7, v{tmp}')
    a(f's_and_b32 s49, {S_WAVE}, 1')
    a('s_lshl_b32 s49, s49, 6')
    a(f's_add_u32 s49, s49, {L_S}')
    a(f'v_add3_u32 v{tmp}, v{tmp}, v{V_C8}, s49')
    if younger is not None:
        a.raw(f'  s_waitcnt vmcnt({younger})')
    a('s_barrier')
    B = WOA[which]
    n = 0
    for h in range(16):
        for u in range(2):
            for q in range(2):
                r = B + 4 * (2 * h + u) + 2 * q
                a(f'ds_read_b64_tr_b16 a[{r}:{r+1}], v{tmp} offset:{(28*h + 16*u + 8*q)*128}')
                n += 1
                if n % 12 == 0:
                    a('s_waitcnt lgkmcnt(4)')
    a('s_waitcnt lgkmcnt(0)')
    a('s_mov_b32 exec_lo, 0')
    for h in range(16):
        r = B + 4 * (2 * h + 1) + 2
        a(f'v_accvgpr_write_b32 a{r}, 0')
        a(f'v_accvgpr_write_b32 a{r+1}, 0')
    a('s_mov_b32 exec_lo, -1')
    a('s_nop 2')
    a.raw(L + ':')

def colsum(which, stride, R, C, tmp):
    a(f's_mul_i32 s12, {S_WAVE}, {21*1024 if stride == 3072 else 3072}')
    a(f'v_add_u32 v{tmp}, s12, v{V_WT}')
    a(f'v_add_u32 v{tmp+1}, s12, v{V_WT+1}')
    a(f's_mov_b32 s19, {ONES2}')
    n = 0
    for i in range(7):
        for p in range(3):
            f = 3 * i + p
            for q in range(2):
                o = i * stride + p * 1024 + q * 512
                a(f'ds_read_b64_tr_b16 v[{R+4*f+2*q}:{R+4*f+2*q+1}], v{tmp + (o >= 65536)} offset:{o % 65536}')
            if f % 6 == 5:
                a('s_waitcnt lgkmcnt(2)')
    for f in range(21):
        p = f % 3
        for r in range(4):
            c = '0' if (f < 3 and r == 0) else f'v{C+p}'
            a(f'v_dot2_f32_bf16 v{C+p}, v{R+4*f+r}, s19, {c}')
    for p in range(3):
        a(f'v_mov_b32 v{C+3+p}, v{C+p}')
    for p in range(3):
        a(f'v_permlane32_swap_b32 v{C+p}, v{C+3+p}')
    for p in range(3):
        a(f'v_add_f32 v{C+p}, v{C+p}, v{C+3+p}')
    a(f's_mul_i32 s12, {S_WAVE}, 384')
    a(f's_add_u32 s12, s12, {L_CS + which*1536}')
    a(f'v_lshl_add_u32 v{C+6}, v{V_N}, 2, s12')
    for p in range(3):
        a(f'ds_write_b32 v{C+6}, v{C+p} offset:{p*128}')

X, AK, AV, AQ, WR, RS, WE, XE, T, E = 16, 128, 144, 160, 176, 200, 216, 228, 232, 244
ST = AQ
NWR = 6

def ln_stats(isA):
    L = [f's_mov_b32 s16, {f32(1.0/448)}',
         f'v_mul_f32 v{ST}, s16, v{ST}',
         f'v_mul_f32 v{ST+1}, s16, v{ST+1}',
         f'v_fma_f32 v{ST+1}, -v{ST}, v{ST}, v{ST+1}',
         f'v_max_f32 v{ST+1}, 0, v{ST+1}',
         f'v_add_f32 v{ST+1}, {f32(1e-5)}, v{ST+1}',
         f'v_rsq_f32 v{T}, v{ST+1}',
         f'v_sub_f32 v{ST}, 0, v{ST}',
         f'ds_write_b32 v{T+8}, v{T}']
    L += [f'ds_read_b128 v[{RS+4*g}:{RS+4*g+3}], v{T+9} offset:{32*g}' for g in range(4)]
    L += [f'v_and_b32 v{T+4}, 0xffff0000, v{ST}',
          f'v_sub_f32 v{T+5}, v{ST}, v{T+4}',
          f'v_and_b32 v{T+6}, 0xffff0000, v{T+5}',
          f'v_sub_f32 v{T+7}, v{T+5}, v{T+6}',
          f'v_perm_b32 v{XE}, v{T+4}, v{T+4}, s17',
          f'v_perm_b32 v{XE+1}, v{T+6}, v{T+4}, s17',
          f'v_perm_b32 v{XE+2}, v{T+7}, v{T+6}, s17',
          f'v_mov_b32 v{XE+3}, 0',
          f'v_mul_f32 v{T+2}, {f32(LOG2E if isA else QSCALE)}, v{T}']
    return L

def rs_addr():
    a(f's_lshl_b32 s18, {S_WAVE}, 7')
    a(f's_add_u32 s18, s18, {L_RS}')
    a(f'v_lshl_add_u32 v{T+8}, v{V_N}, 2, s18')
    a(f'v_lshl_add_u32 v{T+9}, v{V_HF}, 4, s18')
    a('s_mov_b32 s17, 0x07060302')

def halves_add(r, n, tmp):
    return ([f'v_mov_b32 v{tmp+i}, v{r+i}' for i in range(n)] +
            [f'v_permlane32_swap_b32 v{r+i}, v{tmp+i}' for i in range(n)] +
            [f'v_add_f32 v{r+i}, v{r+i}, v{tmp+i}' for i in range(n)])

def we_build(which, R, adr):
    L = [f'v_lshlrev_b32 v{adr}, 2, v{V_N}', f'v_add_u32 v{adr}, {L_CS + which*1536}, v{adr}']
    for p in (1, 2, 0):
        L += [f'ds_read2_b32 v[{R+4*p}:{R+4*p+1}], v{adr} offset0:{32*p} offset1:{32*p+96}',
              f'ds_read_b32 v{R+4*p+2}, v{adr} offset:{128*p+768}',
              f'ds_read_b32 v{R+4*p+3}, v{adr} offset:{128*p+1152}']
    L += [f'v_cmp_eq_u32 s[56:57], 0, v{V_HF}']
    for p in (1, 2, 0):
        c = R + 4 * p
        L += [f'v_add_f32 v{c}, v{c}, v{c+1}', f'v_add_f32 v{c+2}, v{c+2}, v{c+3}', f'v_add_f32 v{c}, v{c}, v{c+2}',
              f'v_cndmask_b32 v{c}, 0, v{c}, s[56:57]',
              f'v_and_b32 v{c+1}, 0xffff0000, v{c}',
              f'v_sub_f32 v{c}, v{c}, v{c+1}',
              f'v_and_b32 v{c+2}, 0xffff0000, v{c}',
              f'v_sub_f32 v{c+3}, v{c}, v{c+2}',
              f'v_perm_b32 v{WE+4*p}, v{c+2}, v{c+1}, s17',
              f'v_perm_b32 v{WE+4*p+1}, v{c+1}, v{c+3}, s17',
              f'v_perm_b32 v{WE+4*p+2}, v{c+1}, v{c+2}, s17',
              f'v_mov_b32 v{WE+4*p+3}, 0']
    return L

AT_Q = 16

def phase_qkv(isA, first):
    lp = not isA
    nm = 'qa0' if first else ('qa1' if isA else 'qb')
    wsel = 0 if isA else 1
    trans = [True, not isA, False]
    accb = [AQ, AK, AV]
    started = [False] * 3
    fill = []
    def pop(n):
        for _ in range(n):
            if fill:
                x = fill.pop(0)
                if callable(x): x()
                else: a(x)
    def mm(p, w, x):
        d = f'v[{accb[p]}:{accb[p]+15}]'
        c = d if started[p] else '0'
        started[p] = True
        if trans[p]:
            a(f'v_mfma_f32_32x32x16_bf16 {d}, {w}, {x}, {c}')
        else:
            a(f'v_mfma_f32_32x32x16_bf16 {d}, {x}, {w}, {c}')
    seq = [(t, p) for t in range(28) for p in (1, 2)] + [(t, 0) for t in range(28)]
    WB, QO = (T + 10, 256) if first else (V_WT, 512)
    AH = NWR - 1
    def wread(i):
        if i < len(seq):
            t, p = seq[i]
            wtr(WR + 4 * (i % NWR), 3 * t + p, WB, QO)
    def wmm(i):
        t, p = seq[i]
        r = WR + 4 * (i % NWR)
        mm(p, f'v[{r}:{r+3}]', f'v[{X+4*t}:{X+4*t+3}]')
    def extra(p):
        mm(p, f'v[{WE+4*p}:{WE+4*p+3}]', f'v[{XE}:{XE+3}]')
    a(f's_lshl_b32 s7, {S_RB}, 2')
    a(f's_add_u32 s7, s7, {S_WAVE}')
    a(f's_mul_i32 s20, s7, {28*1024}')
    if first:
        XD, XA, CA, CS, CR = AQ + 4, AQ + 6, AQ + 10, AQ + 12, RS
        a(f'v_lshrrev_b32 v16, 7, v{V_L16}')
        a('v_mul_u32_u24 v16, 896, v16')
        a(f'v_bfe_u32 v17, v{V_L16}, 4, 3')
        a(f'v_lshrrev_b32 v18, 8, v{V_L16}')
        a('v_xor_b32 v17, v17, v18')
        a(f'v_lshl_add_u32 v{XD}, v17, 4, v16')
        a(f'v_xor_b32 v17, 4, v17')
        a(f'v_lshl_add_u32 v{XD+1}, v17, 4, v16')
        a(f's_mul_i32 s21, {S_WAVE}, 12288')
        a(f's_add_u32 s21, s21, {L_S}')
        a(f's_lshl_b32 s23, {S_RB}, 1')
        a(f's_add_u32 s23, s23, {S_HQ}')
        a('s_mul_i32 s24, s23, 37')
        a('s_lshr_b32 s24, s24, 8')
        a('s_mul_i32 s24, s24, 7')
        a('s_sub_u32 s23, s23, s24')
        a(f's_mul_i32 s15, {S_WAVE}, 3072')
        a(f's_mul_i32 s25, {S_WAVE}, 43008')
        def issue_w(g):
            a(f's_mul_i32 s13, s23, {4*43008}')
            a('s_add_u32 s13, s13, s25')
            w_dma_step(0, 's13', 's15', tag=f'w{g}', adv=4)
        def issue_x(g):
            a(f's_add_u32 m0, s21, {(g%3)*4096}')
            a('s_lshl_b32 s24, s23, 7')
            a('s_add_u32 s24, s24, s20')
            for i in range(4):
                if i: a('s_add_u32 s24, s24, 6144')
                a.inst(f'buffer_load_dwordx4 v{XD+(i&1)}, {SRD_X0}, s24 offen offset:{i*1024} lds', tag=f'g{g}')
            a('s_add_u32 s23, s23, 1')
            a('s_cmp_eq_u32 s23, 7')
            a('s_cselect_b32 s23, 0, s23')
        issue_w(0); issue_x(0)
        zero_issue()
        def touch_code():
            a('s_getpc_b64 s[54:55]')
            a.raw('pc_base:')
            a(f'v_lshlrev_b32 v{V_DUM}, 6, v{V_TI}')
            a(f'v_min_u32 v{V_DUM}, code_end-pc_base-4, v{V_DUM}')
            a(f'global_load_dword v{V_DUM+5}, v{V_DUM}, s[54:55]')
        a(f'v_bfe_u32 v26, v{V_N}, 1, 3')
        a(f'v_xor_b32 v26, v26, v{V_HF}')
        a(f'v_lshl_add_u32 v27, v{V_N}, 7, s21')
        for s in range(4):
            a(f'v_xor_b32 v28, {2*s}, v26')
            a(f'v_lshl_add_u32 v{XA+s}, v28, 4, v27')
        a(f'v_lshl_add_u32 v{WB}, v{V_HF}, 8, v{V_WT}')
        a(f'v_add_u32 v{WB}, s27, v{WB}')
        a(f'v_add_u32 v{WB+1}, 65536, v{WB}')
        a(f's_mul_i32 s12, {S_WAVE}, 3072')
        a('s_add_u32 s12, s12, s27')
        a(f'v_add_u32 v{CA}, s12, v{V_WT}')
        a(f'v_add_u32 v{CA+1}, s12, v{V_WT+1}')
        a(f's_mov_b32 s19, {ONES2}')
        for r in (ST, ST + 1, CS, CS + 1, CS + 2):
            a(f'v_mov_b32 v{r}, 0')
        rs_addr()
        issue_w(1); issue_x(1)
        def repack_load():
            for k in range(2):
                a(f's_add_u32 s24, s7, {64*k}')
                a('s_mul_i32 s25, s24, 171')
                a('s_lshr_b32 s25, s25, 9')
                a('s_mul_i32 s26, s25, 45')
                a('s_add_u32 s26, s26, s24')
                a('s_mul_i32 s26, s26, 896')
                a('s_add_u32 s26, s26, s27')
                a('s_lshl_b32 s25, s24, 10')
                a(f's_mul_i32 s{28+k}, {S_HQ}, {IMG_HEAD}')
                a(f's_add_u32 s{28+k}, s{28+k}, s25')
                a(f's_add_u32 s{28+k}, s{28+k}, {WS_IMG[0]}')
                if k:
                    a('s_cmp_ge_u32 s24, 84')
                    a(f's_cselect_b32 s26, {OOB}, s26')
                    a(f's_cselect_b32 s29, {OOB}, s29')
                for wh in (1, 0):
                    r = 128 + 8 * k + 4 * wh
                    a(f'buffer_load_dwordx4 a[{r}:{r+3}], v{V_WD}, {SRD_W[wh]}, s26 offen')
        def cs_read(gg, slot):
            for p in range(3):
                for q in range(2):
                    o = gg * 12288 + p * 1024 + q * 512
                    r = CR + 12 * slot + 4 * p + 2 * q
                    a(f'ds_read_b64_tr_b16 v[{r}:{r+1}], v{CA + (o >= 65536)} offset:{o % 65536}')
        def cs_dot(slot):
            for r in range(4):
                for p in range(3):
                    a(f'v_dot2_f32_bf16 v{CS+p}, v{CR+12*slot+4*p+r}, s19, v{CS+p}')
        def open_group(g):
            a.wait_tag(f'g{g}')
            if g == 6:
                a.wait_tag('csw', 'lg')
            a('s_barrier')
            if g == 0:
                zero_publish_light()
            for s in range(4):
                r = X + 16 * g + 4 * s
                a(f'ds_read_b128 v[{r}:{r+3}], v{XA+s} offset:{(g%3)*4096}')
            if g < 6:
                cs_read(g, 0)
        open_group(0)
        AH0 = 4
        for i in range(AH0):
            wread(i)
        for g in range(7):
            if FINE: stamp(f'qa0_g{g}')
            xb = X + 16 * g
            if g == 5:
                a.wait_tag('w6')
                cs_read(6, 1)
            for r in range(16):
                a(f'v_dot2_f32_bf16 v{ST}, v{xb+r}, s19, v{ST}')
                a(f'v_dot2_f32_bf16 v{ST+1}, v{xb+r}, v{xb+r}, v{ST+1}')
            if g < 6:
                cs_dot(0)
            if g == 5:
                cs_dot(1)
                for x in halves_add(CS, 3, CR): a(x)
                a(f's_mul_i32 s12, {S_WAVE}, 384'); a(f's_add_u32 s12, s12, {L_CS}'); a(f'v_lshl_add_u32 v{CR+3}, v{V_N}, 2, s12')
                for p2 in range(3):
                    a.inst(f'ds_write_b32 v{CR+3}, v{CS+p2} offset:{p2*128}', tag='csw')
            if g == 6:
                w = we_build(0, AQ + 4, T + 12)
                fill.extend(w[:11] + halves_add(ST, 2, ST + 2) + ln_stats(True) + w[11:])
            for fl in range(8):
                i = 8 * g + fl
                wmm(i)
                if g == 0:
                    if fl == 0: issue_w(2)
                    if fl == 1: issue_x(2)
                    if fl == 5: issue_w(3)
                    if fl == 7: issue_x(3)
                elif g + 3 < 7:
                    if fl == 0: issue_w(g + 3)
                    if fl == 2: issue_x(g + 3)
                if fl == 3 and g < 6:
                    open_group(g + 1)
                if fl == 6:
                    if g == 3: touch_lin(SRD_WO[0], '0', V_DUM + 4)
                    if g == 4:
                        if TOUCH: touch_code()
                        a(f'v_lshrrev_b32 v{V_T0}, 2, v{V_L16}')
                        a(f'buffer_load_dword v{V_PL}, v{V_T0}, {SRD_DBG}, 0 offen sc1')
                    if g == 5: repack_load()
                    if g == 6: touch_lin(SRD_WO[1], '0', V_DUM + 3)
                wread(i + AH0)
                pop(4)
        pop(99)
        wread(56 + AH0)
        extra(1); extra(2)
    else:
        xo, so = (WS_XB, WS_STB) if isA else (WS_XA, WS_STA)
        a(f's_add_u32 s20, s20, {xo}')
        a('s_lshl_b32 s21, s7, 8')
        a(f's_add_u32 s21, s21, {so}')
        if not isA:
            a(f's_add_u32 s20, s20, {S_BLK}')
            a(f's_add_u32 s21, s21, {S_BLK}')
        a(f'v_lshlrev_b32 v{T+11}, 3, v{V_N}')
        a(f'v_lshl_add_u32 v{T+11}, v{V_HF}, 14, v{T+11}')
        rs_addr()
        a(f'v_lshrrev_b32 v{V_T1}, 4, v{V_L16}')
        a('s_lshr_b32 s48, s7, 3')
        a('s_lshr_b32 s49, s7, 1')
        a('s_and_b32 s49, s49, 3')
        a('s_lshl_b32 s49, s49, 3')
        a('s_add_u32 s48, s48, s49')
        a(f'v_lshl_add_u32 v{V_T0}, v{V_T1}, 5, s48')
        flag_addr()
        a('s_waitcnt lgkmcnt(0)')
        a('s_barrier')
        for x in we_build(wsel, X, T + 10):
            a(x)
        for i in range(AH):
            wread(i)
        poll(SRD_WS, 0x7f, S_PROG)
        stamp(f'{nm}_go', lp)
        def xload(t):
            r = X + 4 * t
            a(f'buffer_load_dwordx4 v[{r}:{r+3}], v{V_L16}, {SRD_WS}, s20 offen offset:{(t%4)*1024} {SC}')
            if t % 4 == 3 and t != 27:
                a('s_add_u32 s20, s20, 4096')
        def stload(i):
            a(f'buffer_load_dwordx2 v[{ST+2*i}:{ST+2*i+1}], v{T+11}, {SRD_WS}, s21 offen {SC}')
            if i < 6:
                a('s_add_u32 s21, s21, 32768')
        for t in range(8):
            xload(t)
        nx = 8
        for i in range(56):
            t = i >> 1
            if i == 24:
                for k in range(1, 7):
                    fill.append(f'v_add_f32 v{ST}, v{ST}, v{ST+2*k}')
                    fill.append(f'v_add_f32 v{ST+1}, v{ST+1}, v{ST+2*k+1}')
                fill.extend(halves_add(ST, 2, ST + 2) + ln_stats(isA))
            if i == 48:
                assert not fill
                extra(1); extra(2)
            wmm(i)
            if i % 2 == 0:
                for _ in range(2 if i < 12 else 1):
                    if nx < 28:
                        xload(nx); nx += 1
            if i == 1:
                for k in range(7):
                    stload(k)
            wread(i + AH)
            pop(2)
            if FINE and not isA and i in (1, 17, 33): stamp(f'qb_t{t}', True)
        assert nx == 28 and not fill
    stamp(f'{nm}_mm', lp)
    KF, VF, QF = AK, AK + 8, AT_Q
    def pkmul_lane(dst, src, sc):
        a(f'v_pk_mul_f32 v[{dst}:{dst+1}], v[{src}:{src+1}], v[{sc}:{sc+1}] op_sel_hi:[1,0]')
    def v_pads():
        a('s_mov_b32 exec_lo, 0xf0000000')
        a('s_mov_b32 exec_hi, 0xf0000000')
        for r in range(8):
            a(f'v_mov_b32 v{VF+r}, v{V_ONE}')
        a('s_mov_b64 exec, -1')
    def v_epi():
        for r in range(8):
            a(f'v_pk_mul_f32 v[{AV+2*r}:{AV+2*r+1}], v[{AV+2*r}:{AV+2*r+1}], v[{RS+2*r}:{RS+2*r+1}]')
            a(f'v_cvt_pk_bf16_f32 v{VF+r}, v{AV+2*r}, v{AV+2*r+1}')
        v_pads()
    def pass2(npop, hooks):
        extra(0)
        for i in range(56, 84):
            wmm(i)
            wread(i + AH)
            pop(npop)
            if i - 56 in hooks:
                hooks[i - 56]()
    if not isA:
        a(f's_mov_b32 s19, {ONES2}')
        a(f's_lshl_b32 s12, {S_HQ}, 18')
        a('s_lshl_b32 s13, s7, 12')
        a('s_add_u32 s12, s12, s13')
        a(f's_add_u32 s13, s12, {WS_KV}')
        a(f's_add_u32 s13, s13, {S_BLK}')
        for r in range(8):
            pkmul_lane(AK + 2 * r, AK + 2 * r, T)
            a(f'v_cvt_pk_bf16_f32 v{KF+r}, v{AK+2*r}, v{AK+2*r+1}')
            if r == 3:
                a(f'buffer_store_dwordx4 v[{KF}:{KF+3}], v{V_L16}, {SRD_WS}, s13 offen {SC}')
        a('s_mov_b32 exec_lo, 0')
        a(f'v_mov_b32 v{KF+6}, s19')
        a(f'v_mov_b32 v{KF+7}, 0')
        a('s_mov_b32 exec_lo, -1')
        a(f'buffer_store_dwordx4 v[{KF+4}:{KF+7}], v{V_L16}, {SRD_WS}, s13 offen offset:1024 {SC}')
        v_epi()
        a(f'buffer_store_dwordx4 v[{VF}:{VF+3}], v{V_L16}, {SRD_WS}, s13 offen offset:2048 {SC}')
        a(f'buffer_store_dwordx4 v[{VF+4}:{VF+7}], v{V_L16}, {SRD_WS}, s13 offen offset:3072 {SC}')
        stamp(f'{nm}_epi', lp)
        pass2(0, {})
        signal(1, False); advance()
        stamp(f'{nm}_sig', lp)
        SD = AV
        for r in range(8):
            pkmul_lane(AQ + 2 * r, AQ + 2 * r, T + 2)
            a(f'v_cvt_pk_bf16_f32 v{QF+r}, v{AQ+2*r}, v{AQ+2*r+1}')
        a('s_mov_b32 exec_lo, 0')
        a(f'v_mov_b32 v{QF+6}, 0')
        a(f'v_mov_b32 v{QF+7}, 0')
        a('s_mov_b32 exec_lo, -1')
        a(f'v_mfma_f32_32x32x16_bf16 v[{SD}:{SD+15}], v[{KF}:{KF+3}], v[{QF}:{QF+3}], 0')
        a(f'v_mfma_f32_32x32x16_bf16 v[{SD}:{SD+15}], v[{KF+4}:{KF+7}], v[{QF+4}:{QF+7}], v[{SD}:{SD+15}]')
        a(f's_lshl_b32 s12, {S_WAVE}, 11')
        a(f's_add_u32 s13, s12, {L_KV}')
        a(f'v_add_u32 v{T+8}, s13, v{V_L16}')
        a(f'ds_write_b128 v{T+8}, v[{QF}:{QF+3}]')
        for i in range(1, 4):
            a(f's_xor_b32 s13, s12, {i*2048}')
            a(f's_add_u32 s13, s13, {L_KV}')
            a(f'v_add_u32 v{T+8+i}, s13, v{V_L16}')
        a(f'v_max3_f32 v{T+4}, v{SD}, v{SD+1}, v{SD+2}')
        a(f'v_max3_f32 v{T+5}, v{SD+3}, v{SD+4}, v{SD+5}')
        for r in range(6, 16, 4):
            a(f'v_max3_f32 v{T+4}, v{SD+r}, v{SD+r+1}, v{T+4}')
            if r + 3 < 16:
                a(f'v_max3_f32 v{T+5}, v{SD+r+2}, v{SD+r+3}, v{T+5}')
        a(f'v_max_f32 v{T+4}, v{T+4}, v{T+5}')
        a(f'v_mov_b32 v{T+5}, v{T+4}')
        a(f'v_permlane32_swap_b32 v{T+4}, v{T+5}')
        a(f'v_max_f32 v{T+4}, v{T+4}, v{T+5}')
        a(f'v_sub_f32 v{T+4}, 0, v{T+4}')
        a(f'v_and_b32 v{T+5}, 0xffff0000, v{T+4}')
        a(f'v_sub_f32 v{T+6}, v{T+4}, v{T+5}')
        a('s_mov_b32 exec_lo, 0')
        a(f'v_perm_b32 v{QF+6}, v{T+6}, v{T+5}, s17')
        a('s_mov_b32 exec_lo, -1')
        a(f'ds_write_b128 v{T+8}, v[{QF+4}:{QF+7}] offset:1024')
        a('s_waitcnt lgkmcnt(0)')
        a('s_barrier')
        for i in range(1, 4):
            for u in range(2):
                r = QF + 8 * i + 4 * u
                a(f'ds_read_b128 v[{r}:{r+3}], v{T+8+i} offset:{u*1024}')
        if DEBUGQ:
            a(f's_lshl_b32 s12, {S_HQ}, 17')
            a('s_lshl_b32 s13, s7, 11')
            a('s_add_u32 s12, s12, s13')
            a(f's_add_u32 s12, s12, {WS_Q}')
            a(f's_add_u32 s12, s12, {S_BLK}')
            a(f'buffer_store_dwordx4 v[{QF}:{QF+3}], v{V_L16}, {SRD_WS}, s12 offen')
            a(f'buffer_store_dwordx4 v[{QF+4}:{QF+7}], v{V_L16}, {SRD_WS}, s12 offen offset:1024')
        a('s_waitcnt lgkmcnt(0)')
    else:
        it = 0 if first else 1
        a(f's_mov_b32 s16, {f32(1e-6)}')
        a(f's_mov_b32 s17, {f32(1e-6)}')
        a(f's_mov_b32 s18, {f32(LOG2E)}')
        a(f's_lshl_b32 s19, {S_WAVE}, 12')
        a(f's_add_u32 s19, s19, {L_KV}')
        a(f'v_add_u32 v{T+8}, s19, v{V_L16}')
        a(f'v_lshlrev_b32 v{T+7}, 2, v0')
        a(f'v_add_u32 v{T+9}, {L_KV}, v{T+7}')
        a(f'v_mov_b32 v{T+4}, 1.0')
        for r in range(8):
            e = E + 2 * (r % 3)
            k = AK + 2 * r
            a(f'v_pk_mul_f32 v[{k}:{k+1}], v[{k}:{k+1}], v[{RS+2*r}:{RS+2*r+1}]')
            a(f'v_pk_mul_f32 v[{e}:{e+1}], v[{k}:{k+1}], s[18:19] op_sel_hi:[1,0]')
            a(f'v_pk_add_f32 v[{k}:{k+1}], v[{k}:{k+1}], 1.0 op_sel_hi:[1,0]')
            a(f'v_exp_f32 v{e}, v{e}')
            a(f'v_exp_f32 v{e+1}, v{e+1}')
            a(f'v_med3_f32 v{k}, v{e}, v{k}, 1.0')
            a(f'v_med3_f32 v{k+1}, v{e+1}, v{k+1}, 1.0')
            a(f'v_pk_add_f32 v[{k}:{k+1}], v[{k}:{k+1}], s[16:17]')
            a(f'v_cvt_pk_bf16_f32 v{KF+r}, v{k}, v{k+1}')
        v_epi()
        KVD = AV
        a(f'v_mfma_f32_32x32x16_bf16 v[{KVD}:{KVD+15}], v[{KF}:{KF+3}], v[{VF}:{VF+3}], 0')
        a(f'v_mfma_f32_32x32x16_bf16 v[{KVD}:{KVD+15}], v[{KF+4}:{KF+7}], v[{VF+4}:{VF+7}], v[{KVD}:{KVD+15}]')
        a(f's_lshl_b32 s22, {S_HQ}, 12')
        a(f's_add_u32 s22, s22, {WS_KVACC + it*65536}')
        a(f's_cmp_ge_u32 {S_WAVE}, 2')
        a(f's_cselect_b32 s23, {OOB}, s22')
        a('s_lshl_b32 s12, s7, 15')
        a(f's_lshl_b32 s13, {S_HQ}, 11')
        a('s_add_u32 s12, s12, s13')
        a(f's_add_u32 s12, s12, {WS_OA + it*BLK}')
        if first:
            Lk = uid('init')
            a(f'v_cmp_le_u32 vcc, 1, v{V_PL}')
            a(f's_and_b32 s48, vcc_lo, {(1 << NZERO) - 1}')
            a(f's_cmp_eq_u32 s48, {(1 << NZERO) - 1}')
            a(f's_cbranch_scc1 {Lk}')
            sv = (list(a.st.hist), list(a.st.vm), list(a.st.lg))
            poll(SRD_DBG, (1 << NZERO) - 1, 1)
            a.st.hist, a.st.vm, a.st.lg = sv
            a.raw(Lk + ':')
        E2 = RS
        def kvw(rg):
            return lambda: a.inst(f'ds_write_b128 v{T+8}, v[{KVD+4*rg}:{KVD+4*rg+3}] offset:{rg*1024}', tag='kvw')
        def kvbar():
            a.wait_tag('kvw', 'lg')
            a('s_barrier')
            for k in range(4):
                a(f'ds_read2st64_b32 v[{E2+4*k}:{E2+4*k+1}], v{T+9} offset0:{4*k} offset1:{4*k+16}')
                a(f'ds_read2st64_b32 v[{E2+4*k+2}:{E2+4*k+3}], v{T+9} offset0:{4*k+32} offset1:{4*k+48}')
        def kvat(k):
            def f():
                a(f'v_add_f32 v{E2+4*k}, v{E2+4*k}, v{E2+4*k+1}')
                a(f'v_add_f32 v{E2+4*k+2}, v{E2+4*k+2}, v{E2+4*k+3}')
                a(f'v_add_f32 v{E2+4*k}, v{E2+4*k}, v{E2+4*k+2}')
                a(f'buffer_atomic_add_f32 v{E2+4*k}, v{T+7}, {SRD_WS}, {"s23" if k == 3 else "s22"} offen offset:{k*1024} sc1')
            return f
        hooks = {1: kvw(0), 2: kvw(1), 3: kvw(2), 4: kvw(3), 7: kvbar, 10: kvat(0), 11: kvat(1), 12: kvat(2), 13: kvat(3)}
        if first:
            def repack_store():
                for k in range(2):
                    a(f'buffer_store_dwordx4 a[{128+8*k}:{131+8*k}], v{V_L16}, {SRD_WS}, s{28+k} offen {SC}')
                    a(f's_add_u32 s{28+k}, s{28+k}, {WS_IMG[1]-WS_IMG[0]}')
                    a(f'buffer_store_dwordx4 a[{132+8*k}:{135+8*k}], v{V_L16}, {SRD_WS}, s{28+k} offen {SC}')
            hooks[0] = repack_store
        pass2(0, hooks)
        stamp(f'{nm}_epi', lp)
        QF = X
        for r in range(8):
            e = E + 2 * (r % 3)
            q = AQ + 2 * r
            pkmul_lane(e, q, T + 2)
            a(f'v_pk_fma_f32 v[{q}:{q+1}], v[{q}:{q+1}], v[{T}:{T+1}], v[{T+4}:{T+5}] op_sel_hi:[1,0,0]')
            a(f'v_exp_f32 v{e}, v{e}')
            a(f'v_exp_f32 v{e+1}, v{e+1}')
            a(f'v_med3_f32 v{q}, v{e}, v{q}, 1.0')
            a(f'v_med3_f32 v{q+1}, v{e+1}, v{q+1}, 1.0')
            a(f'v_pk_add_f32 v[{q}:{q+1}], v[{q}:{q+1}], s[16:17]')
            a(f'v_cvt_pk_bf16_f32 v{QF+r}, v{q}, v{q+1}')
        a('s_mov_b32 exec_lo, 0')
        a(f'v_mov_b32 v{QF+6}, 0')
        a(f'v_mov_b32 v{QF+7}, 0')
        a('s_mov_b32 exec_lo, -1')
        signal(1); advance()
        stamp(f'{nm}_sg1', lp)
        if DEBUGQ:
            a(f's_add_u32 s13, s12, {WS_DBG + (8 << 20)}')
            a(f'buffer_store_dwordx4 v[{QF}:{QF+3}], v{V_L16}, {SRD_WS}, s13 offen')
            a(f'buffer_store_dwordx4 v[{QF+4}:{QF+7}], v{V_L16}, {SRD_WS}, s13 offen offset:1024')
        img_base(1, 's60', 's61')
        if first:
            stage_wo_issue(0, 32)
        else:
            w_prefetch(1, (4, 4, 3))
        ids_qkv_rows(S_HQ)
        poll(SRD_WS, 0xffff, S_PROG)
        stamp(f'{nm}_kv', lp)
        KV, D = 40, 56
        for rg in range(4):
            a(f'buffer_load_dwordx4 v[{KV+4*rg}:{KV+4*rg+3}], v{V_L16}, {SRD_WS}, s22 offen offset:{rg*1024} {SC}')
        for r in range(8):
            a(f'v_cvt_pk_bf16_f32 v{KV+r}, v{KV+2*r}, v{KV+2*r+1}')
            if r == 3:
                a(f'v_mfma_f32_32x32x16_bf16 v[{D}:{D+15}], v[{KV}:{KV+3}], v[{QF}:{QF+3}], 0')
        a(f'v_mfma_f32_32x32x16_bf16 v[{D}:{D+15}], v[{KV+4}:{KV+7}], v[{QF+4}:{QF+7}], v[{D}:{D+15}]')
        a(f'v_add_f32 v{T}, s16, v{D+12}')
        a(f'v_mov_b32 v{T+1}, v{T}')
        a(f'v_permlane32_swap_b32 v{T+1}, v{T}')
        a(f'v_rcp_f32 v{T}, v{T}')
        for r in range(8):
            pkmul_lane(D + 2 * r, D + 2 * r, T)
            a(f'v_cvt_pk_bf16_f32 v{QF+8+r}, v{D+2*r}, v{D+2*r+1}')
            if r == 3:
                a(f'buffer_store_dwordx4 v[{QF+8}:{QF+11}], v{V_L16}, {SRD_WS}, s12 offen {SC}')
        a(f'buffer_store_dwordx4 v[{QF+12}:{QF+15}], v{V_L16}, {SRD_WS}, s12 offen offset:1024 {SC}')
        if first:
            sv = (list(a.st.hist), list(a.st.vm), list(a.st.lg))
            stage_wo_read(0, None, 80)
            a.st.hist, a.st.vm, a.st.lg = sv
        signal(1); advance()
        stamp(f'{nm}_sig', lp)
        w_prefetch(1, (4, 4, 3) if first else (4, 4, 2))

def signal_n(inc, younger):
    L = uid('sig')
    a(f's_waitcnt vmcnt({younger})')
    a('s_barrier')
    a(f's_cmp_lg_u32 {S_WAVE}, 0')
    a(f's_cbranch_scc1 {L}')
    sv = list(a.st.hist)
    a(f's_add_u32 s48, {S_PROG}, {inc}')
    a(f'v_mov_b32 v{V_T0}, s48')
    a(f'v_mov_b32 v{V_T1}, 0')
    a('s_mov_b64 exec, 1')
    a.raw(f'  buffer_store_dword v{V_T0}, v{V_T1}, {SRD_WS}, {S_FLAG} offen sc1')
    a('s_mov_b64 exec, -1')
    a('s_nop 1')
    a.st.hist = sv
    a.raw(L + ':')

def zero_publish_light():
    L = uid('z')
    a(f's_cmp_lt_u32 s2, {ZROLE0}')
    a(f's_cbranch_scc1 {L}')
    a(f's_cmp_lg_u32 {S_WAVE}, 0')
    a(f's_cbranch_scc1 {L}')
    a('s_lshl_b32 s3, s3, 2')
    a(f'v_mov_b32 v{V_T0}, 1')
    a(f'v_mov_b32 v{V_T1}, 0')
    a('s_mov_b64 exec, 1')
    a.raw(f'  buffer_store_dword v{V_T0}, v{V_T1}, {SRD_DBG}, s3 offen sc1')
    a('s_mov_b64 exec, -1')
    a.raw(L + ':')

OP_CH = [(0, 4), (4, 8), (12, 8), (20, 8), (28, 4)]
def phase_op(isA):
    nm = 'oa' if isA else 'ob'
    join = uid('op_join')
    ACC = 16
    OF = 32
    XF = 96
    T = 104
    WB = WOA[0 if isA else 1]
    a(f's_cmp_ge_u32 {S_CP}, 7')
    a(f's_cbranch_scc1 {join}')
    a(f's_lshr_b32 s7, {S_WAVE}, 1')
    a(f's_and_b32 s12, {S_WAVE}, 1')
    a(f's_lshl_b32 s5, {S_RP}, 1')
    a('s_add_u32 s5, s5, s7')
    a(f's_lshl_b32 s6, {S_CP}, 1')
    a('s_add_u32 s6, s6, s12')
    a(f's_mul_i32 s18, s5, {28*1024}')
    a('s_lshl_b32 s21, s7, 15')
    a(f's_add_u32 s21, s21, {L_S}')
    a(f'v_add_u32 v{T+4}, s21, v{V_L16}')
    if isA:
        L1, L2 = uid('oa'), uid('oa')
        a(f's_cmp_lg_u32 {S_IT}, 0')
        a(f's_cbranch_scc1 {L1}')
        a(f'v_mul_u32_u24 v{T+6}, 896, v{V_N}')
        a(f'v_lshl_add_u32 v{T+6}, v{V_HF}, 3, v{T+6}')
        a('s_lshl_b32 s19, s6, 6')
        a('s_add_u32 s20, s18, s19')
        for k in range(4):
            a.raw(f'  buffer_load_dwordx2 v[{XF+2*k}:{XF+2*k+1}], v{T+6}, {SRD_X0}, s20 offen offset:{16*k}')
        a(f's_branch {L2}')
        a.raw(L1 + ':')
        a('s_lshl_b32 s19, s6, 11')
        a('s_add_u32 s20, s18, s19')
        a(f's_add_u32 s20, s20, {WS_XB}')
        a.raw(f'  buffer_load_dwordx4 v[{XF}:{XF+3}], v{V_L16}, {SRD_WS}, s20 offen {SC}')
        a.raw(f'  buffer_load_dwordx4 v[{XF+4}:{XF+7}], v{V_L16}, {SRD_WS}, s20 offen offset:1024 {SC}')
        a.raw(L2 + ':')
        a('s_lshl_b32 s19, s6, 11')
        a('s_add_u32 s18, s18, s19')
        a(f's_add_u32 s18, s18, {S_BLK}')
    else:
        a('s_lshl_b32 s19, s6, 11')
        a('s_add_u32 s18, s18, s19')
        a(f's_add_u32 s18, s18, {S_BLK}')
        a(f's_add_u32 s20, s18, {WS_XA}')
        a(f'buffer_load_dwordx4 v[{XF}:{XF+3}], v{V_L16}, {SRD_WS}, s20 offen {SC}')
        a(f'buffer_load_dwordx4 v[{XF+4}:{XF+7}], v{V_L16}, {SRD_WS}, s20 offen offset:1024 {SC}')
    acc = f'v[{ACC}:{ACC+15}]'
    xo, so = (WS_XA, WS_STA) if isA else (WS_XB, WS_STB)
    a(f's_add_u32 s51, s18, {xo}')
    a(f'v_lshlrev_b32 v{T+7}, 3, v{V_N}')
    a(f'v_lshl_add_u32 v{T+7}, v{V_HF}, 2, v{T+7}')
    a('s_lshl_b32 s19, s5, 8')
    a('s_lshl_b32 s52, s6, 14')
    a('s_add_u32 s52, s52, s19')
    a(f's_add_u32 s52, s52, {so}')
    a(f's_add_u32 s52, s52, {S_BLK}')
    a(f's_mov_b32 s19, {ONES2}')
    a('s_lshl_b32 s14, s5, 15')
    a(f's_add_u32 s14, s14, {WS_OA if isA else WS_O}')
    a(f's_add_u32 s14, s14, {S_BLK}')
    a('s_lshl_b32 s15, s12, 12')
    a('s_lshl_b32 s16, s12, 11')
    a('s_add_u32 s22, s15, s21'); a('s_add_u32 s23, s16, s21')
    a('s_add_u32 s15, s15, s14'); a('s_add_u32 s16, s16, s14')
    a(f's_lshr_b32 s50, {S_RP}, 1')
    ids_qkv_heads('s50')
    poll(SRD_WS, 0xffff, S_PROG)
    stamp(f'{nm}_go', True)
    for c, (k0, n) in enumerate(OP_CH):
        a(f's_add_u32 m0, {"s22" if n == 8 else "s23"}, {k0*1024}')
        a(f's_add_u32 s17, {"s15" if n == 8 else "s16"}, {k0*1024}')
        for i in range(n // 2):
            a.inst(f'buffer_load_dwordx4 v{V_L16}, {SRD_WS}, s17 offen offset:{i*1024} {SC} lds', tag=f'o{c}')
    for r in range(8):
        a(f'v_lshlrev_b32 v{ACC+2*r}, 16, v{XF+r}')
        a(f'v_and_b32 v{ACC+2*r+1}, 0xffff0000, v{XF+r}')
    def opn(c):
        k0, n = OP_CH[c]
        a.wait_tag(f'o{c}')
        a('s_barrier')
        for s in range(n):
            r = OF + 32 * (c & 1) + 4 * s
            a(f'ds_read_b128 v[{r}:{r+3}], v{T+4} offset:{(k0+s)*1024}')
    opn(0)
    for c, (k0, n) in enumerate(OP_CH):
        for s in range(n):
            r = OF + 32 * (c & 1) + 4 * s
            k = k0 + s
            a(f'v_mfma_f32_32x32x16_bf16 {acc}, a[{WB+4*k}:{WB+4*k+3}], v[{r}:{r+3}], {acc}')
            if s == n - 3 and c + 1 < len(OP_CH):
                opn(c + 1)
    stamp(f'{nm}_mm', True)
    for r in range(8):
        a(f'v_cvt_pk_bf16_f32 v{XF+r}, v{ACC+2*r}, v{ACC+2*r+1}')
    if not isA:
        a(f's_cmp_lg_u32 {S_IT}, 0')
        a('s_cbranch_scc1 op_final')
    a(f'buffer_store_dwordx4 v[{XF}:{XF+3}], v{V_L16}, {SRD_WS}, s51 offen {SC}')
    a(f'buffer_store_dwordx4 v[{XF+4}:{XF+7}], v{V_L16}, {SRD_WS}, s51 offen offset:1024 {SC}')
    a(f'v_dot2_f32_bf16 v{T}, v{XF}, s19, 0')
    a(f'v_dot2_f32_bf16 v{T+1}, v{XF}, v{XF}, 0')
    for r in range(1, 8):
        a(f'v_dot2_f32_bf16 v{T}, v{XF+r}, s19, v{T}')
        a(f'v_dot2_f32_bf16 v{T+1}, v{XF+r}, v{XF+r}, v{T+1}')
    a(f'v_permlane32_swap_b32 v{T}, v{T+1}')
    a(f'v_add_f32 v{T}, v{T}, v{T+1}')
    a(f'buffer_store_dword v{T}, v{T+7}, {SRD_WS}, s52 offen {SC}')
    stamp(f'{nm}_epi', True)
    signal()
    a.raw(join + ':')
    a.fresh()
    a('s_nop 4')
    advance()
    stamp(f'{nm}_sig', True)
    def final():
        a.raw('op_final:'); a.fresh()
        a('s_lshl_b32 s19, s5, 5')
        a(f'v_add_u32 v{T+6}, s19, v{V_N}')
        a(f'v_mul_u32_u24 v{T+6}, 896, v{T+6}')
        a(f'v_lshl_add_u32 v{T+6}, v{V_HF}, 4, v{T+6}')
        a('s_lshl_b32 s19, s6, 6')
        for u in range(2):
            b = XF + 4 * u
            a(f'v_permlane32_swap_b32 v{b}, v{b+2}')
            a(f'v_permlane32_swap_b32 v{b+1}, v{b+3}')
            a(f'buffer_store_dwordx4 v[{b}:{b+3}], v{T+6}, {SRD_OUT}, s19 offen offset:{32*u}')
    return final

def phase_attn():
    Q = 16
    O = 48
    S = 112
    P = 144
    T = 152
    R = 160
    ORD = [1, 2, 3, 0]
    a(f's_lshl_b32 s12, {S_HA}, 18')
    a(f's_add_u32 s12, s12, {WS_KV}')
    a(f's_add_u32 s12, s12, {S_BLK}')
    a(f's_lshl_b32 s13, {S_WAVE}, 16')
    a('s_add_u32 s13, s13, s12')
    for r in range(64):
        a(f'v_mov_b32 v{O+r}, 0')
    img_base(0, 's60', 's61')
    a(f's_cmp_lg_u32 {S_IT}, 0')
    a(f's_cselect_b32 s60, {OOB}, s60')
    a(f's_mov_b32 s18, {OOB}')
    a('s_mov_b32 s17, 5')
    for t in range(1, 4):
        a(f's_xor_b32 s19, {S_WAVE}, {t}')
        a('s_mul_i32 s19, s19, 12288')
        a(f's_add_u32 s19, s19, {L_RED + (t-1)*4096}')
        a(f'v_add_u32 v{T+3+t}, s19, v{V_L16}')
    a(f's_mul_i32 s19, {S_WAVE}, 12288')
    a(f's_add_u32 s19, s19, {L_RED}')
    a(f'v_add_u32 v{T+3}, s19, v{V_L16}')
    a(f's_lshl_b32 s51, {S_QB}, 2')
    a(f's_add_u32 s51, s51, {S_WAVE}')
    a('s_lshl_b32 s51, s51, 15')
    a(f's_lshl_b32 s19, {S_HA}, 11')
    a('s_add_u32 s51, s51, s19')
    a(f's_add_u32 s51, s51, {WS_O}')
    a(f's_add_u32 s51, s51, {S_BLK}')
    a(f's_mov_b32 s20, {f32(2.0**-64)}')
    a(f's_mov_b32 s21, {f32(2.0**64)}')
    a('s_waitcnt lgkmcnt(0)')
    a('s_barrier')
    ids_qkv_rows(S_HA)
    poll(SRD_WS, 0xffff, S_PROG)
    stamp('at_go', True)
    def kreg(j, t): return f'v[{R+16*j+4*t}:{R+16*j+4*t+3}]'
    def vreg(j, u): return f'v[{R+16*j+8+4*u}:{R+16*j+8+4*u+3}]'
    def qreg(i, t): return f'v[{Q+8*i+4*t}:{Q+8*i+4*t+3}]'
    def sreg(n): return f'v[{S+16*(n&1)}:{S+16*(n&1)+15}]'
    def oreg(i): return f'v[{O+16*i}:{O+16*i+15}]'
    def loadk(j, sr):
        a(f'buffer_load_dwordx4 {kreg(j,0)}, v{V_L16}, {SRD_WS}, {sr} offen {SC}')
        a(f'buffer_load_dwordx4 {kreg(j,1)}, v{V_L16}, {SRD_WS}, {sr} offen offset:1024 {SC}')
    def loadv(j, sr):
        a(f'buffer_load_dwordx4 {vreg(j,0)}, v{V_L16}, {SRD_WS}, {sr} offen offset:2048 {SC}')
        a(f'buffer_load_dwordx4 {vreg(j,1)}, v{V_L16}, {SRD_WS}, {sr} offen offset:3072 {SC}')
    def ji(n): return (n >> 2) % 3, ORD[n & 3]
    def M1(n, own=False):
        j, i = (0, 0) if own else ji(n)
        a(f'v_mfma_f32_32x32x16_bf16 {sreg(n)}, {kreg(j,0)}, {qreg(i,0)}, 0')
    def M2(n, own=False):
        j, i = (0, 0) if own else ji(n)
        a(f'v_mfma_f32_32x32x16_bf16 {sreg(n)}, {kreg(j,1)}, {qreg(i,1)}, {sreg(n)}')
    def PV(n, u, own=False):
        j, i = (0, 0) if own else ji(n)
        a(f'v_mfma_f32_32x32x16_bf16 {oreg(i)}, {vreg(j,u)}, v[{P+4*u}:{P+4*u+3}], {oreg(i)}')
    def e(n, k):
        r = S + 16 * (n & 1) + k
        a(f'v_exp_f32 v{r}, v{r}')
    def c(n, k):
        r = S + 16 * (n & 1) + 2 * k
        a(f'v_cvt_pk_bf16_f32 v{P+k}, v{r}, v{r+1}')
    loadk(0, 's13')
    loadv(0, 's13')
    a('s_add_u32 s13, s13, 4096')
    loadk(1, 's13'); loadv(1, 's13')
    a('s_add_u32 s13, s13, 4096')
    M1(0); M2(0); M1(1)
    for k in range(4): e(0, k)
    a('s_waitcnt vmcnt(4)')
    if FINE: stamp('at_pro', True)
    def step(n, slots, last=99):
        e(n, 4); e(n, 5); c(n, 0); c(n, 1); e(n, 6); e(n, 7)
        if n + 1 <= last: M2(n + 1)
        for x in slots[0]: x()
        c(n, 2); c(n, 3); e(n, 8); e(n, 9); e(n, 10); e(n, 11)
        PV(n, 0)
        for x in slots[1]: x()
        e(n, 12); e(n, 13); c(n, 4); c(n, 5); e(n, 14); e(n, 15); c(n, 6); c(n, 7)
        if n + 2 <= last: M1(n + 2)
        for x in slots[2]: x()
        if n + 1 <= last:
            e(n + 1, 0); e(n + 1, 1); e(n + 1, 2); e(n + 1, 3)
        PV(n, 1)
        for x in slots[3]: x()
    I = lambda t: (lambda: a(t))
    def dman(n):
        for p in range(n):
            a(f'buffer_load_dwordx4 v{V_L16}, {SRD_WS}, s60 offen offset:{p*1024} {SC} lds')
    def body():
        for n in range(12):
            j, i = n >> 2, n & 3
            sl = [[], [], [], []]
            if i == 0:
                sl[1] = [lambda: loadk((j + 2) % 3, 's13'), lambda: loadv((j + 2) % 3, 's13')]
                sl[2] = [I('s_add_u32 s13, s13, 4096')]
                if j == 1:
                    sl[3] = [I('s_cmp_eq_u32 s17, 1')]
            elif i == 1:
                if j == 1:
                    sl[0] = [I('s_cselect_b32 s13, s18, s13')]
                if j == 0:
                    sl[1] = [I('s_mov_b32 m0, s61')]
                    sl[2] = [lambda: dman(4)]
                    sl[3] = [I('s_add_u32 s60, s60, 4096')]
            elif i == 2:
                sl[1] = [I(f's_waitcnt vmcnt({4 + (4 if j < 2 else 0)})')]
                if j == 0:
                    sl[2] = [I('s_add_u32 s61, s61, 4096')]
            elif i == 3 and j == 2:
                sl[1] = [I('s_sub_u32 s17, s17, 1')]
                sl[2] = [I('s_cmp_lg_u32 s17, 0')]
            step(n, sl)
    def tail():
        a('s_cbranch_scc1 attn_loop')
    a.raw('.p2align 3')
    a.loop('attn_loop', body, tail)
    def W(t, rg):
        r = O + 16 * t + 4 * rg
        return I(f'ds_write_b128 v{T+3+t}, v[{r}:{r+3}] offset:{rg*1024}')
    step(0, [[I('s_mov_b32 m0, s61')], [lambda: dman(1)], [], []], 3)
    step(1, [[], [W(1, 0)], [W(1, 1)], [W(1, 2)]], 3)
    step(2, [[W(1, 3)], [W(2, 0)], [W(2, 1)], [W(2, 2)]], 3)
    step(3, [[W(2, 3)], [W(3, 0), W(3, 1)], [W(3, 2), W(3, 3)], []], 3)
    stamp('at_mm', True)
    a('s_waitcnt lgkmcnt(0)')
    a('s_barrier')
    for t in range(1, 4):
        for rg in range(4):
            r = O + 16 * t + 4 * rg
            a(f'ds_read_b128 v[{r}:{r+3}], v{T+3} offset:{(t-1)*4096 + rg*1024}')
    for t in range(1, 4):
        for r in range(8):
            a(f'v_pk_add_f32 v[{O+2*r}:{O+2*r+1}], v[{O+2*r}:{O+2*r+1}], v[{O+16*t+2*r}:{O+16*t+2*r+1}]')
    a(f'v_mov_b32 v{T}, v{O+12}')
    a(f'v_mov_b32 v{T+1}, v{O+12}')
    a(f'v_permlane32_swap_b32 v{T+1}, v{T}')
    a(f'v_cmp_le_f32 vcc, s20, v{T}')
    a(f'v_cmp_ge_f32 s[22:23], s21, v{T}')
    a('s_and_b64 vcc, vcc, s[22:23]')
    a('s_cmp_eq_u64 vcc, exec')
    a('s_cbranch_scc0 attn_slow')
    a.raw('attn_fin:')
    a(f'v_rcp_f32 v{T}, v{T}')
    for r in range(8):
        a(f'v_pk_mul_f32 v[{O+2*r}:{O+2*r+1}], v[{O+2*r}:{O+2*r+1}], v[{T}:{T+1}] op_sel_hi:[1,0]')
        a(f'v_cvt_pk_bf16_f32 v{P+r}, v{O+2*r}, v{O+2*r+1}')
        if r == 3:
            a(f'buffer_store_dwordx4 v[{P}:{P+3}], v{V_L16}, {SRD_WS}, s51 offen {SC}')
    a(f'buffer_store_dwordx4 v[{P+4}:{P+7}], v{V_L16}, {SRD_WS}, s51 offen offset:1024 {SC}')
    stamp('at_epi', True)
    signal(); advance()
    stamp('at_sig', True)

    def slow():
        a.raw('attn_slow:'); a.fresh()
        a('s_waitcnt vmcnt(0) lgkmcnt(0)')
        a('s_nop 15')
        a('s_mov_b32 exec_lo, 0')
        a(f'v_mov_b32 v{Q+6}, 0')
        a(f'v_mov_b32 v{Q+7}, 0')
        a('s_mov_b32 exec_lo, -1')
        a(f'v_mov_b32 v{T+2}, {f32(-3.0e38)}')
        a('s_mov_b32 s13, s12')
        a('s_mov_b32 s17, 64')
        a('s_nop 4')
        def body1():
            loadk(0, 's13')
            M1(0, True); M2(0, True)
            for r in range(0, 16, 2):
                a(f'v_max3_f32 v{T+2}, v{S+r}, v{S+r+1}, v{T+2}')
            a('s_add_u32 s13, s13, 4096')
            a('s_nop 4')
        def tail1():
            a('s_sub_u32 s17, s17, 1')
            a('s_cmp_lg_u32 s17, 0')
            a('s_cbranch_scc1 attn_slow1')
        a.loop('attn_slow1', body1, tail1)
        a(f'v_mov_b32 v{T+3}, v{T+2}')
        a(f'v_permlane32_swap_b32 v{T+2}, v{T+3}')
        a(f'v_max_f32 v{T+2}, v{T+2}, v{T+3}')
        for r in range(16):
            a(f'v_mov_b32 v{O+r}, 0')
        a('s_mov_b32 s13, s12')
        a('s_mov_b32 s17, 64')
        a('s_nop 15')
        def body2():
            loadk(0, 's13'); loadv(0, 's13')
            M1(0, True); M2(0, True)
            for r in range(16):
                a(f'v_sub_f32 v{S+r}, v{S+r}, v{T+2}')
            for r in range(16):
                e(0, r)
            for r in range(8):
                c(0, r)
            PV(0, 0, True); PV(0, 1, True)
            a('s_add_u32 s13, s13, 4096')
            a('s_nop 15')
        def tail2():
            a('s_sub_u32 s17, s17, 1')
            a('s_cmp_lg_u32 s17, 0')
            a('s_cbranch_scc1 attn_slow2')
        a.loop('attn_slow2', body2, tail2)
        a(f'v_mov_b32 v{T}, v{O+12}')
        a(f'v_mov_b32 v{T+1}, v{O+12}')
        a(f'v_permlane32_swap_b32 v{T+1}, v{T}')
        a('s_nop 4')
        a('s_branch attn_fin')
    return slow

def build(path):
    prologue()
    phase_qkv(True, True)
    a.raw('layer_loop:'); a.fresh()
    phase_op(True)
    L = uid('c')
    a(f's_cmp_lg_u32 {S_IT}, 0')
    a(f's_cbranch_scc1 {L}')
    w_prefetch(1, (4, 4, 2))
    stage_wo_issue(1)
    a(f's_cmp_ge_u32 {S_CP}, 7')
    a('s_cbranch_scc1 cs_all')
    a('s_waitcnt vmcnt(14)')
    a('s_branch cs_go')
    a.raw('cs_all:')
    a('s_waitcnt vmcnt(0)')
    a.raw('cs_go:'); a.fresh()
    colsum(1, 3072, 24, 16, 108)
    a('s_branch qb_go')
    a.raw(L + ':'); a.fresh()
    a('s_waitcnt vmcnt(0)')
    a.raw('qb_go:'); a.fresh()
    a('s_nop 4')
    phase_qkv(False, False)
    L = uid('c')
    a(f's_cmp_lg_u32 {S_IT}, 0')
    a(f's_cbranch_scc1 {L}')
    stage_wo_read(1, None, 60)
    a.raw(L + ':'); a.fresh()
    a('s_nop 4')
    slow = phase_attn()
    final = phase_op(False)
    a(f's_cmp_lg_u32 {S_IT}, 0')
    a('s_cbranch_scc1 k_fin')
    phase_qkv(True, False)
    a(f's_mov_b32 {S_IT}, 1')
    a(f's_mov_b32 {S_BLK}, {BLK}')
    a('s_branch layer_loop')
    final()
    a.raw('k_fin:')
    if INSTR:
        a('s_waitcnt vmcnt(0)')
        a(f'{CLK} s[96:97]')
        a('s_waitcnt lgkmcnt(0)')
        a(f'v_writelane_b32 v{V_ST}, s96, 63')
        a('s_lshl_b32 s48, s2, 2')
        a(f's_add_u32 s48, s48, {S_WAVE}')
        a('s_lshl_b32 s48, s48, 8')
        a(f's_add_u32 s48, s48, {WS_DBG}')
        a(f'v_lshrrev_b32 v{V_T0}, 2, v{V_L16}')
        a(f'buffer_store_dword v{V_ST}, v{V_T0}, {SRD_WS}, s48 offen')
    a.raw('k_end:')
    a('s_endpgm')
    slow()
    a.raw('code_end:')
    out = ['; generated by dev/gen5.py -- interleaved linear-attention / softmax-MHA layers, persistent kernel, gfx950',
           f'; @launch grid=(256,1,1) block=(256,1,1) lds={LDS_TOTAL}',
           '.amdgcn_target "amdgcn-amd-amdhsa--gfx950"', '.text', a.text(), '.section .rodata,"a"',
           kernel_desc(KNAME, 512, 102 if INSTR else 90, 256)]
    open(path, 'w').write('\n'.join(out) + '\n')
    if INSTR:
        names = {}
        for i, (n, lp) in enumerate(STAMPS):
            names[i] = n + ('0' if lp else '')
            if lp:
                names[i + 27] = n + '1'
        names[63] = 'end'
        assert len(STAMPS) <= 40
        open(path + '.stamps', 'w').write('\n'.join(f'{i} {n}' for i, n in sorted(names.items())))

if __name__ == '__main__':
    path = sys.argv[1] if len(sys.argv) > 1 else f'cdna_kernels/{NAME}.s'
    INSTR = 'instr' in sys.argv[2:]
    if 'cyc' in sys.argv[2:]: CLK = 's_memtime'
    FINE = 'fine' in sys.argv[2:]
    DEBUGQ = 'debugq' in sys.argv[2:]
    FINE2 = 'fine2' in sys.argv[2:]
    TOUCH = 'notouch' not in sys.argv[2:]
    build(path)
    print('wrote', path, 'maxv', a.maxv, 'maxa', a.maxa, 'maxs', a.maxs)
```

```python
import sys, struct
sys.path.insert(0, 'dev')
from asmlib import *

NAME = 'interleave_layers__linear_attn_block__softmax_full_mha__prompt'
KNAME = NAME + '_kernel'

def f32(x):
    return '0x%08x' % struct.unpack('<I', struct.pack('<f', x))[0]

X_SIZE = 64 * 28 * 1024
ST_SIZE = 14 * 2048 * 8
_off = 0
def alloc(n, al=65536):
    global _off
    _off = (_off + al - 1) // al * al
    r = _off
    _off += n
    return r
REUSE = 'noreuse' not in sys.argv
if REUSE:
    WS_XA = WS_XB = alloc(X_SIZE)
    WS_STA = WS_STB = alloc(ST_SIZE, 4096)
    WS_O = WS_OA = alloc(64 * 16 * 2048)
    WS_KV = alloc(2 * 16 * 64 * 4096)
    WS_Q = 0
    BLK = 0
    KVB = 16 * 64 * 4096
else:
    WS_XA = alloc(X_SIZE); WS_XB = alloc(X_SIZE)
    WS_STA = alloc(ST_SIZE); WS_STB = alloc(ST_SIZE)
    WS_OA = alloc(64 * 16 * 2048)
    WS_Q = alloc(16 * 64 * 2048)
    WS_KV = alloc(16 * 64 * 4096)
    WS_O = alloc(64 * 16 * 2048)
    BLK = alloc(0)
    KVB = BLK
    _off = 2 * BLK
IMG_HEAD = 84 * 1024
WS_IMG = [alloc(16 * IMG_HEAD), alloc(16 * IMG_HEAD)]
WS_ZERO = alloc(0)
WS_KVACC = alloc(2 * 16 * 4096)
WS_FLAG = alloc(256 * 128, 4096)
WS_LFLAG = alloc(256 * 128, 4096)
WS_CS = alloc(16384, 4096)
ZERO_SIZE = _off - WS_ZERO
NZERO = ZERO_SIZE // 16384
assert ZERO_SIZE == NZERO * 16384 and NZERO == 13
WS_TOTAL = 1 << 28
WS_DBG = 64 << 20
OOB = 0x40000000

LOG2E = 1.4426950408889634
QSCALE = 28 ** -0.5 * LOG2E
ONES2 = 0x3f803f80
SC = 'sc1'
LD = 'sc1'

L_W = 0
L_S = 84 * 1024
L_KV = L_S + 57344
L_M = L_KV + 16384
L_RS = L_M
L_CS = L_M + 512
LDS_TOTAL = 163840
L_RED = L_S + 4096

INSTR = False
CLK = 's_memrealtime'
FINE = False
PRE = True
RBX = 1
FORCE_GLOBAL = False
DEBUGQ = False
FINE2 = False
TOUCH = True
POLL_LIMIT = 400000

V_L16, V_N, V_HF, V_T0, V_T1, V_PL, V_ST = 1, 2, 3, 4, 5, 6, 7
V_CS = [8, 11]
V_H64, V_ONE = 14, 15
S_WAVE = 's4'
S_RB, S_HQ, S_RP, S_CP, S_HA, S_QB, S_FLAG, S_BLK = 's40', 's41', 's42', 's43', 's41', 's40', 's46', 's47'
S_PROG, S_IT = 's62', 's63'
S_KVB = 's90'
S_XT, S_STT, S_OT = 's84', 's85', 's86'
S_LOC, S_XCC = 's44', 's45'
SRD_WS, SRD_OUT, SRD_DBG = 's[8:11]', 's[32:35]', 's[36:39]'
SRD_X0, SRD_W, SRD_WO = 's[64:67]', ['s[68:71]', 's[72:75]'], ['s[76:79]', 's[80:83]']
WOA = [0, 128]

a = Asm()
_uid = [0]
def uid(p):
    _uid[0] += 1
    return f'{p}_{_uid[0]}'

STAMPS = []
def stamp(name, looped=False):
    if INSTR:
        i = len(STAMPS)
        STAMPS.append((name, looped))
        a(f'{CLK} s[96:97]')
        if looped:
            a(f's_mul_i32 s98, {S_IT}, 27')
            a(f's_add_u32 s98, s98, {i}')
            a('s_mov_b32 m0, s98')
            a('s_waitcnt lgkmcnt(0)')
            a(f'v_writelane_b32 v{V_ST}, s96, m0')
        else:
            a('s_waitcnt lgkmcnt(0)')
            a(f'v_writelane_b32 v{V_ST}, s96, {i}')

def poll(srd, mask, target):
    L = uid('poll')
    if mask != -1:
        a(f's_mov_b64 exec, {mask}')
    a(f's_mov_b32 s48, {POLL_LIMIT}')
    a('s_waitcnt lgkmcnt(0)')
    a.raw(L + ':')
    a(f'buffer_load_dword v{V_PL}, v{V_T0}, {srd}, 0 offen sc1')
    a('s_sub_u32 s48, s48, 1')
    a('s_cbranch_scc1 k_end')
    a('s_waitcnt vmcnt(0)')
    a(f'v_cmp_le_u32 vcc, {target}, v{V_PL}')
    a('s_cmp_eq_u64 vcc, exec')
    a(f's_cbranch_scc0 {L}')
    if mask != -1:
        a('s_mov_b64 exec, -1')

def signal(inc=1, lg=True, local=False, with_xcc=False, wait_tag=None):
    L = uid('sig')
    if wait_tag:
        a.wait_tag(wait_tag)
    else:
        a('s_waitcnt vmcnt(0) lgkmcnt(0)' if lg else 's_waitcnt vmcnt(0)')
    a('s_barrier')
    a(f's_cmp_lg_u32 {S_WAVE}, 0')
    a(f's_cbranch_scc1 {L}')
    sv = list(a.st.hist)
    a(f's_add_u32 s48, {S_PROG}, {inc}')
    a(f'v_mov_b32 v{V_T0}, s48')
    a(f'v_mov_b32 v{V_PL}, 0')
    a('s_mov_b64 exec, 1')
    if with_xcc:
        a(f'v_mov_b32 v{V_T1}, {S_XCC}')
        a.raw(f'  buffer_store_dwordx2 v[{V_T0}:{V_T1}], v{V_PL}, {SRD_WS}, {S_FLAG} offen sc1')
    elif local:
        a(f's_add_u32 s48, {S_FLAG}, {WS_LFLAG - WS_FLAG}')
        lstore([f'buffer_store_dword v{V_T0}, v{V_PL}, {SRD_WS}, s48 offen'], track=False)
    else:
        a.raw(f'  buffer_store_dword v{V_T0}, v{V_PL}, {SRD_WS}, {S_FLAG} offen sc1')
    a('s_mov_b64 exec, -1')
    a('s_nop 1')
    a.st.hist = sv
    a.raw(L + ':')

def lstore(stores, track=True):
    L1, L2 = uid('ls'), uid('ls')
    a(f's_cmp_lg_u32 {S_LOC}, 0')
    a(f's_cbranch_scc1 {L1}')
    n0 = len(a.lines)
    sv = (list(a.st.hist), list(a.st.vm), list(a.st.lg))
    for x in stores:
        a(x + ' sc1')
    t1 = a.lines[n0:]
    a.raw(f'  s_branch {L2}')
    a.raw(L1 + ':')
    a.st.hist, a.st.vm, a.st.lg = list(sv[0]), list(sv[1]), list(sv[2])
    for x in stores:
        a(x)
    a.raw(L2 + ':')
    if not track:
        a.st.vm = list(sv[1])

def advance(n=1):
    a(f's_add_u32 {S_PROG}, {S_PROG}, {n}')

def flag_addr(local=False):
    a(f'v_lshlrev_b32 v{V_T0}, 7, v{V_T0}')
    a(f'v_add_u32 v{V_T0}, {WS_LFLAG if local else WS_FLAG}, v{V_T0}')

def ids16(sreg):
    a(f'v_lshrrev_b32 v{V_T1}, 4, v{V_L16}')
    a(f'v_lshrrev_b32 v{V_T0}, 1, v{V_T1}')
    a(f'v_and_b32 v{V_T1}, 1, v{V_T1}')
    a(f'v_lshl_add_u32 v{V_T0}, v{V_T1}, 3, v{V_T0}')
    a(f's_lshl_b32 s48, {sreg}, 4')
    a(f'v_add_u32 v{V_T0}, s48, v{V_T0}')
    flag_addr()

def ids_qkv_rows(hreg):
    if RBX == 1:
        return ids16(hreg)
    a(f'v_lshrrev_b32 v{V_T0}, 6, v{V_L16}')
    a(f'v_lshlrev_b32 v{V_T0}, 1, v{V_T0}')
    a(f'v_bfe_u32 v{V_T1}, v{V_L16}, 4, 2')
    a(f'v_lshl_add_u32 v{V_T0}, v{V_T1}, 3, v{V_T0}')
    a(f's_lshr_b32 s48, {hreg}, 3')
    a(f's_and_b32 s49, {hreg}, 7')
    a('s_lshl_b32 s49, s49, 5')
    a('s_add_u32 s48, s48, s49')
    a(f'v_add_u32 v{V_T0}, s48, v{V_T0}')
    flag_addr()

def ids_qkv_heads(rbreg):
    if RBX == 1:
        a(f's_lshr_b32 s48, {rbreg}, 1')
        a(f's_and_b32 s49, {rbreg}, 1')
        a('s_lshl_b32 s49, s49, 3')
        a('s_add_u32 s48, s48, s49')
        a(f'v_add_u32 v{V_T0}, s48, v{V_L16}')
        return flag_addr(True)
    a(f'v_lshrrev_b32 v{V_T0}, 7, v{V_L16}')
    a(f'v_bfe_u32 v{V_T1}, v{V_L16}, 4, 3')
    a(f'v_lshl_add_u32 v{V_T0}, v{V_T1}, 5, v{V_T0}')
    a(f's_lshr_b32 s48, {rbreg}, 2')
    a('s_lshl_b32 s48, s48, 1')
    a(f's_and_b32 s49, {rbreg}, 3')
    a('s_lshl_b32 s49, s49, 3')
    a('s_add_u32 s48, s48, s49')
    a(f'v_add_u32 v{V_T0}, s48, v{V_T0}')
    flag_addr()

V_DUM = 250
def pretouch_setup(isA, blk):
    o, x, st = (WS_OA, WS_XA, WS_STA) if isA else (WS_O, WS_XB, WS_STB)
    for r, base, off in (('s87', S_OT, o), ('s88', S_XT, x), ('s89', S_STT, st)):
        if isinstance(blk, int):
            a(f's_add_u32 {r}, {base}, {off + blk}')
        else:
            a(f's_add_u32 {r}, {base}, {off}')
            a(f's_add_u32 {r}, {r}, {blk}')
    a(f'v_lshlrev_b32 v{V_DUM}, 1, v{V_L16}')
def pretouch():
    if PRE:
        a(f'buffer_load_dword v255, v{V_DUM}, {SRD_WS}, s87 offen sc1')
        a(f'buffer_load_dword v255, v{V_DUM}, {SRD_WS}, s88 offen sc1')
        a('s_mov_b64 exec, 0xff')
        a(f'buffer_load_dword v255, v{V_DUM}, {SRD_WS}, s89 offen sc1')
        a('s_mov_b64 exec, -1')

def touch_img(which):
    a(f's_mul_i32 s48, {S_HQ}, {IMG_HEAD}')
    a(f's_and_b32 s49, {S_RB}, 1')
    a(f's_lshl_b32 s49, s49, 2')
    a(f's_add_u32 s49, s49, {S_WAVE}')
    a(f's_mul_i32 s49, s49, {IMG_HEAD // 8}')
    a('s_add_u32 s48, s48, s49')
    a(f's_add_u32 s48, s48, {WS_IMG[which]}')
    a(f'v_lshlrev_b32 v254, 2, v{V_L16}')
    for k in range(3):
        a(f'buffer_load_dword v255, v254, {SRD_WS}, s48 offen sc1')
        if k < 2:
            a('s_add_u32 s48, s48, 4096')

def prologue():
    a.raw(kernel_header(KNAME))
    a('s_cmp_ge_u32 s2, 256')
    a('s_cbranch_scc1 k_end')
    a('s_getpc_b64 s[54:55]')
    a.raw('pc_base:')
    a('s_lshr_b32 s6, s2, 3')
    a('s_and_b32 s6, s6, 1')
    a('s_lshl_b32 s6, s6, 14')
    a('v_lshl_add_u32 v254, v0, 6, s6')
    a('v_min_u32 v254, code_end-pc_base-4, v254')
    a('s_cmp_ge_u32 s2, 16')
    a('s_cbranch_scc1 no_code_touch')
    a.raw('  global_load_dword v255, v254, s[54:55]')
    a.raw('no_code_touch:')
    a('s_load_dwordx2 s[64:65], s[0:1], 0')
    a('s_load_dwordx2 s[68:69], s[0:1], 8')
    a('s_load_dwordx2 s[8:9], s[0:1], 64')
    a('s_load_dwordx2 s[76:77], s[0:1], 16')
    a('s_load_dwordx2 s[72:73], s[0:1], 32')
    a('s_load_dwordx2 s[80:81], s[0:1], 40')
    a('s_load_dwordx2 s[32:33], s[0:1], 48')
    a('s_load_dwordx2 s[36:37], s[0:1], 56')
    a(f'v_and_b32 v13, 63, v0')
    a(f'v_lshrrev_b32 v{V_T0}, 6, v0')
    a(f'v_and_b32 v{V_N}, 31, v0')
    a(f'v_readfirstlane_b32 {S_WAVE}, v{V_T0}')
    a(f'v_bfe_u32 v{V_HF}, v0, 5, 1')
    a(f'v_lshlrev_b32 v{V_L16}, 4, v13')
    a(f'v_mov_b32 v{V_ST}, 0')
    a('s_and_b32 s5, s2, 7')
    a('s_lshr_b32 s6, s2, 3')
    if RBX == 2:
        a('s_lshl_b32 s7, s5, 1')
        a('s_and_b32 s7, s7, 12')
        a('s_and_b32 s12, s6, 3')
        a(f's_add_u32 {S_RB}, s7, s12')
        a('s_and_b32 s7, s5, 1')
        a('s_lshl_b32 s7, s7, 3')
        a('s_lshr_b32 s12, s6, 2')
        a(f's_add_u32 {S_HQ}, s7, s12')
    else:
        a('s_lshl_b32 s7, s5, 1')
        a('s_and_b32 s12, s6, 1')
        a(f's_add_u32 {S_RB}, s7, s12')
        a(f's_lshr_b32 {S_HQ}, s6, 1')
    a('s_lshl_b32 s7, s5, 2')
    a('s_and_b32 s12, s6, 3')
    a(f's_add_u32 {S_RP}, s7, s12')
    a(f's_lshr_b32 {S_CP}, s6, 2')
    a(f's_lshr_b32 s7, {S_WAVE}, 1')
    a(f's_lshl_b32 s12, {S_RP}, 1')
    a('s_add_u32 s7, s7, s12')
    a(f's_and_b32 s12, {S_WAVE}, 1')
    a(f's_min_u32 s13, {S_CP}, 6')
    a('s_lshl_b32 s13, s13, 1')
    a('s_add_u32 s12, s12, s13')
    a(f's_mul_i32 {S_XT}, s7, {28*1024}')
    a('s_lshl_b32 s13, s12, 11')
    a(f's_add_u32 {S_XT}, {S_XT}, s13')
    a(f's_lshl_b32 {S_STT}, s12, 14')
    a('s_lshl_b32 s13, s7, 8')
    a(f's_add_u32 {S_STT}, {S_STT}, s13')
    a(f's_lshl_b32 {S_OT}, {S_RB}, 2')
    a(f's_add_u32 {S_OT}, {S_OT}, {S_WAVE}')
    a(f's_lshl_b32 {S_OT}, {S_OT}, 15')
    a(f's_lshl_b32 s13, {S_HQ}, 11')
    a(f's_add_u32 {S_OT}, {S_OT}, s13')
    a(f's_lshl_b32 {S_FLAG}, s2, 7')
    a(f's_add_u32 {S_FLAG}, {S_FLAG}, {WS_FLAG}')
    a(f's_mov_b32 {S_BLK}, 0')
    a(f's_mov_b32 {S_KVB}, 0')
    a(f's_getreg_b32 {S_XCC}, hwreg(HW_REG_XCC_ID, 0, 4)')
    a(f's_add_u32 {S_XCC}, {S_XCC}, 1')
    a(f's_mov_b32 {S_LOC}, 0')
    a(f's_mov_b32 {S_PROG}, 0')
    a(f's_mov_b32 {S_IT}, 0')
    for r in (11, 35, 39, 67, 71, 75, 79, 83):
        a(f's_mov_b32 s{r}, 0x20000')
    a(f's_mov_b32 s10, {WS_TOTAL}')
    a(f's_mov_b32 s34, {2048*448*2}')
    a('s_mov_b32 s38, 256')
    a(f's_mov_b32 s66, {2048*448*2}')
    a(f's_mov_b32 s70, {448*1344*2}')
    a(f's_mov_b32 s74, {448*1344*2}')
    a(f's_mov_b32 s78, {448*448*2}')
    a(f's_mov_b32 s82, {448*448*2}')
    a(f'v_add_u32 v{V_H64}, 65536, v{V_L16}')
    a(f'v_cmp_eq_u32 vcc, 28, v{V_N}')
    a(f'v_mov_b32 v{V_ONE}, {ONES2}')
    a(f'v_cndmask_b32 v{V_ONE}, 0, v{V_ONE}, vcc')
    a('s_waitcnt lgkmcnt(0)')
    for r in (9, 33, 37, 65, 69, 73, 77, 81):
        a(f's_and_b32 s{r}, s{r}, 0xffff')
    stamp('start')

ZROLE0 = 243
def zero_role():
    L = uid('z')
    a(f's_cmp_lt_u32 s2, {ZROLE0}')
    a(f's_cbranch_scc1 {L}')
    a(f's_sub_u32 s3, s2, {ZROLE0}')
    a('s_lshl_b32 s53, s3, 14')
    a(f's_add_u32 s53, s53, {WS_ZERO}')
    a('v_lshlrev_b32 v16, 4, v0')
    for i in range(4):
        a(f'v_mov_b32 v{20+i}, 0')
    for i in range(4):
        a.raw(f'  buffer_store_dwordx4 v[20:23], v16, {SRD_WS}, s53 offen {SC}')
        if i < 3:
            a('s_add_u32 s53, s53, 4096')
    a('s_lshl_b32 s3, s3, 2')
    a(f'v_mov_b32 v{V_T0}, 1')
    a('s_waitcnt vmcnt(0)')
    a('s_barrier')
    a(f's_cmp_lg_u32 {S_WAVE}, 0')
    a(f's_cbranch_scc1 {L}')
    a('s_mov_b64 exec, 1')
    a.raw(f'  buffer_store_dword v{V_T0}, v20, {SRD_DBG}, s3 offen sc1')
    a('s_mov_b64 exec, -1')
    a('s_nop 2')
    a.raw(L + ':')

def img_base(which, sg, sl):
    a(f's_mul_i32 {sl}, {S_WAVE}, {21*1024}')
    a(f's_mul_i32 {sg}, {S_HQ}, {IMG_HEAD}')
    a(f's_add_u32 {sg}, {sg}, {sl}')
    a(f's_add_u32 {sg}, {sg}, {WS_IMG[which]}')

def img_dma(n, sg, sl):
    a(f's_mov_b32 m0, {sl}')
    a(f's_add_u32 {sl}, {sl}, {n*1024}')
    for i in range(n):
        a(f'buffer_load_dwordx4 v{V_L16}, {SRD_WS}, {sg} offen offset:{i*1024} {SC} lds')
    a(f's_add_u32 {sg}, {sg}, {n*1024}')

def w_prefetch(which, parts):
    for n in parts:
        img_dma(n, 's60', 's61')

def stage_wo_issue(which, lds, tmp, tag, defer=False):
    a(f'v_lshrrev_b32 v{tmp}, 7, v{V_L16}')
    a(f'v_mul_u32_u24 v{tmp}, 896, v{tmp}')
    a(f'v_lshrrev_b32 v{tmp+1}, 2, v{V_L16}')
    a(f'v_and_b32 v{tmp+1}, 64, v{tmp+1}')
    a(f'v_xor_b32 v{tmp+1}, v{tmp+1}, v{V_L16}')
    a(f'v_and_b32 v{tmp+1}, 0x70, v{tmp+1}')
    a(f's_min_u32 s48, {S_CP}, 6')
    a('s_lshl_b32 s48, s48, 7')
    a(f'v_add3_u32 v{tmp}, v{tmp}, v{tmp+1}, s48')
    a(f's_mul_i32 s26, {S_WAVE}, {112*896}')
    a(f's_mul_i32 s27, {S_WAVE}, {14*1024}')
    def one(i, wh=which, tg=tag):
        a(f's_add_u32 m0, s27, {lds + i*1024}')
        a(f's_add_u32 s25, s26, {i*7168}')
        a.inst(f'buffer_load_dwordx4 v{tmp}, {SRD_WO[wh]}, s25 offen lds', tag=tg)
    class TH(list): pass
    th = TH((lambda i=i: one(i)) for i in range(14))
    th.one = one
    return th

def stage_wo_addr(lds, tmp):
    a(f'v_bfe_u32 v{tmp}, v{V_L16}, 6, 2')
    a(f'v_lshl_add_u32 v{tmp}, v{V_HF}, 2, v{tmp}')
    a(f'v_lshlrev_b32 v{tmp}, 7, v{tmp}')
    a(f'v_bfe_u32 v{tmp+1}, v{V_L16}, 7, 1')
    a(f's_and_b32 s49, {S_WAVE}, 1')
    a(f'v_xor_b32 v{tmp+1}, s49, v{tmp+1}')
    a(f'v_lshl_add_u32 v{tmp}, v{tmp+1}, 6, v{tmp}')
    a(f'v_bfe_u32 v{tmp+1}, v{V_L16}, 8, 1')
    a(f'v_lshl_add_u32 v{tmp}, v{tmp+1}, 5, v{tmp}')
    a(f'v_bfe_u32 v{tmp+1}, v{V_L16}, 4, 2')
    a(f'v_lshl_add_u32 v{tmp}, v{tmp+1}, 3, v{tmp}')
    a(f'v_add_u32 v{tmp}, {lds}, v{tmp}')

def stage_wo_reads(which, tmp):
    B = WOA[which]
    return [f'ds_read_b64_tr_b16 a[{B + 4*(2*h+u) + 2*q}:{B + 4*(2*h+u) + 2*q + 1}], v{tmp} offset:{(28*h + 16*u + 8*q)*128}'
            for h in range(16) for u in range(2) for q in range(2)]

def stage_wo_pads(which):
    B = WOA[which]
    a('s_mov_b32 exec_lo, 0')
    for h in range(16):
        r = B + 4 * (2 * h + 1) + 2
        a(f'v_accvgpr_write_b32 a{r}, 0')
        a(f'v_accvgpr_write_b32 a{r+1}, 0')
    a('s_mov_b32 exec_lo, -1')

X, AK, AV, AQ, WR, RS, WE, XE, T, E = 16, 128, 144, 160, 176, 200, 216, 228, 232, 244
ST = AQ
NWR = 6

def ln_stats(isA):
    L = [f's_mov_b32 s16, {f32(1.0/448)}',
         f'v_mul_f32 v{ST}, s16, v{ST}',
         f'v_mul_f32 v{ST+1}, s16, v{ST+1}',
         f'v_fma_f32 v{ST+1}, -v{ST}, v{ST}, v{ST+1}',
         f'v_max_f32 v{ST+1}, 0, v{ST+1}',
         f'v_add_f32 v{ST+1}, {f32(1e-5)}, v{ST+1}',
         f'v_rsq_f32 v{T}, v{ST+1}',
         f'v_sub_f32 v{ST}, 0, v{ST}',
         f'ds_write_b32 v{T+8}, v{T}']
    L += [f'ds_read_b128 v[{RS+4*g}:{RS+4*g+3}], v{T+9} offset:{32*g}' for g in range(4)]
    L += [f'v_and_b32 v{T+4}, 0xffff0000, v{ST}',
          f'v_sub_f32 v{T+5}, v{ST}, v{T+4}',
          f'v_and_b32 v{T+6}, 0xffff0000, v{T+5}',
          f'v_sub_f32 v{T+7}, v{T+5}, v{T+6}',
          f'v_perm_b32 v{XE}, v{T+4}, v{T+4}, s17',
          f'v_perm_b32 v{XE+1}, v{T+6}, v{T+4}, s17',
          f'v_perm_b32 v{XE+2}, v{T+7}, v{T+6}, s17',
          f'v_mov_b32 v{XE+3}, 0',
          f'v_mul_f32 v{T+2}, {f32(LOG2E if isA else QSCALE)}, v{T}']
    return L

def rs_addr():
    a(f's_lshl_b32 s18, {S_WAVE}, 7')
    a(f's_add_u32 s18, s18, {L_RS}')
    a(f'v_lshl_add_u32 v{T+8}, v{V_N}, 2, s18')
    a(f'v_lshl_add_u32 v{T+9}, v{V_HF}, 4, s18')
    a('s_mov_b32 s17, 0x07060302')

def halves_add(r, n, tmp):
    return ([f'v_mov_b32 v{tmp+i}, v{r+i}' for i in range(n)] +
            [f'v_permlane32_swap_b32 v{r+i}, v{tmp+i}' for i in range(n)] +
            [f'v_add_f32 v{r+i}, v{r+i}, v{tmp+i}' for i in range(n)])

def we_build(which, c):
    L = [f'v_cmp_eq_u32 s[56:57], 0, v{V_HF}']
    for p in (1, 2, 0):
        L += [f'v_cndmask_b32 v{c}, 0, v{V_CS[which]+p}, s[56:57]',
              f'v_and_b32 v{c+1}, 0xffff0000, v{c}',
              f'v_sub_f32 v{c}, v{c}, v{c+1}',
              f'v_and_b32 v{c+2}, 0xffff0000, v{c}',
              f'v_sub_f32 v{c+3}, v{c}, v{c+2}',
              f'v_perm_b32 v{WE+4*p}, v{c+2}, v{c+1}, s17',
              f'v_perm_b32 v{WE+4*p+1}, v{c+1}, v{c+3}, s17',
              f'v_perm_b32 v{WE+4*p+2}, v{c+1}, v{c+2}, s17',
              f'v_mov_b32 v{WE+4*p+3}, 0']
    return L

AT_Q = 16

def phase_qkv(isA, first):
    lp = not isA
    nm = 'qa0' if first else ('qa1' if isA else 'qb')
    wsel = 0 if isA else 1
    trans = [True, not isA, False]
    accb = [AQ, AK, AV]
    started = [False] * 3
    fill = []
    def pop(n):
        for _ in range(n):
            if fill:
                x = fill.pop(0)
                if callable(x): x()
                else: a(x)
    def mm(p, w, x):
        d = f'v[{accb[p]}:{accb[p]+15}]'
        c = d if started[p] else '0'
        started[p] = True
        if trans[p]:
            a(f'v_mfma_f32_32x32x16_bf16 {d}, {w}, {x}, {c}')
        else:
            a(f'v_mfma_f32_32x32x16_bf16 {d}, {x}, {w}, {c}')
    seq = [(t, p) for t in range(28) for p in (1, 2)] + [(t, 0) for t in range(28)]
    AH = NWR - 1
    def wread(i):
        if i < len(seq):
            t, p = seq[i]
            r = WR + 4 * (i % NWR)
            o = L_W + (3 * t + p) * 1024
            a(f'ds_read_b128 v[{r}:{r+3}], v{V_L16 if o < 65536 else V_H64} offset:{o % 65536}')
    def wmm(i):
        t, p = seq[i]
        r = WR + 4 * (i % NWR)
        mm(p, f'v[{r}:{r+3}]', f'v[{X+4*t}:{X+4*t+3}]')
    def extra(p):
        mm(p, f'v[{WE+4*p}:{WE+4*p+3}]', f'v[{XE}:{XE+3}]')
    a(f's_lshl_b32 s7, {S_RB}, 2')
    a(f's_add_u32 s7, s7, {S_WAVE}')
    a(f's_mul_i32 s20, s7, {28*1024}')
    if first:
        XD, XA, F, TM = AQ + 4, AQ + 6, AK, AV
        zero_role()
        a(f'v_lshrrev_b32 v{TM}, 6, v{V_L16}')
        a(f'v_mul_u32_u24 v{TM}, 2688, v{TM}')
        a(f'v_and_b32 v{TM+1}, 48, v{V_L16}')
        a(f's_mul_i32 s12, {S_HQ}, 56')
        a(f'v_add3_u32 v{TM}, v{TM}, v{TM+1}, s12')
        a(f's_lshl_b32 s13, {S_WAVE}, 12')
        a(f's_add_u32 s13, s13, {L_KV}')
        for k in range(2):
            a(f's_add_u32 s24, s7, {64*k}')
            a('s_mul_i32 s25, s24, 171')
            a('s_lshr_b32 s25, s25, 9')
            a('s_mul_i32 s26, s25, 45')
            a('s_add_u32 s26, s26, s24')
            a('s_mul_i32 s26, s26, 896')
            if k:
                a('s_cmp_ge_u32 s24, 84')
                a(f's_cselect_b32 s26, {OOB}, s26')
            for wh in range(2):
                a(f's_add_u32 m0, s13, {(2*k+wh)*1024}')
                a.inst(f'buffer_load_dwordx4 v{TM}, {SRD_W[wh]}, s26 offen lds', tag='rp')
            a('s_mul_i32 s25, s25, 3')
            a('s_sub_u32 s25, s24, s25')
            a(f's_mul_i32 s{30+k}, {S_HQ}, 3')
            a(f's_add_u32 s{30+k}, s{30+k}, s25')
            a(f's_lshl_b32 s{30+k}, s{30+k}, 7')
            a(f's_add_u32 s{30+k}, s{30+k}, {WS_CS}')
            a('s_lshl_b32 s25, s24, 10')
            a(f's_mul_i32 s{28+k}, {S_HQ}, {IMG_HEAD}')
            a(f's_add_u32 s{28+k}, s{28+k}, s25')
            a(f's_add_u32 s{28+k}, s{28+k}, {WS_IMG[0]}')
            if k:
                a('s_cmp_ge_u32 s24, 84')
                a(f's_cselect_b32 s29, {OOB}, s29')
                a(f's_cselect_b32 s31, {OOB}, s31')
        a(f'v_lshrrev_b32 v{TM+2}, 7, v{V_L16}')
        a(f'v_mul_u32_u24 v{TM+2}, 896, v{TM+2}')
        a(f'v_bfe_u32 v{TM+3}, v{V_L16}, 4, 3')
        a(f'v_lshrrev_b32 v{TM+4}, 8, v{V_L16}')
        a(f'v_xor_b32 v{TM+3}, v{TM+3}, v{TM+4}')
        a(f'v_lshl_add_u32 v{XD}, v{TM+3}, 4, v{TM+2}')
        a(f'v_xor_b32 v{TM+3}, 4, v{TM+3}')
        a(f'v_lshl_add_u32 v{XD+1}, v{TM+3}, 4, v{TM+2}')
        a(f's_mul_i32 s21, {S_WAVE}, 20480')
        a(f's_add_u32 s21, s21, 57344')
        a('s_lshr_b32 s24, s2, 3')
        a('s_lshl_b32 s24, s24, 2')
        a(f's_add_u32 s24, s24, {S_WAVE}')
        a(f'v_lshlrev_b32 v{TM+5}, 3, v{V_L16}')
        a(f's_and_b32 s25, {S_RB}, 14')
        a(f's_mul_i32 s25, s25, {128*896}')
        a(f's_mul_i32 s26, s24, {14*128}')
        a('s_add_u32 s25, s25, s26')
        a('s_mov_b64 exec, 0x3fff')
        a(f'buffer_load_dword v255, v{TM+5}, {SRD_X0}, s25 offen')
        a(f's_mul_i32 s26, s24, {25*128}')
        a('s_mov_b64 exec, 0x1ffffff')
        a(f'buffer_load_dword v255, v{TM+5}, {SRD_WO[0]}, s26 offen')
        a(f'buffer_load_dword v255, v{TM+5}, {SRD_WO[1]}, s26 offen')
        a('s_mov_b64 exec, -1')
        def issue_x(g):
            a(f's_add_u32 m0, s21, {(g%5)*4096}')
            for i in range(4):
                a(f's_add_u32 s24, s20, {g*128 + i*6144}')
                a.inst(f'buffer_load_dwordx4 v{XD+(i&1)}, {SRD_X0}, s24 offen offset:{i*1024} lds', tag=f'x{g}')
        issue_x(0); issue_x(1)
        a(f'v_lshrrev_b32 v{V_T0}, 2, v{V_L16}')
        a(f'v_bfe_u32 v{TM+2}, v{V_N}, 1, 3')
        a(f'v_lshl_add_u32 v{TM+3}, v{V_N}, 7, s21')
        a(f'v_lshl_add_u32 v{TM+3}, v{V_HF}, 3, v{TM+3}')
        for q in range(8):
            a(f'v_xor_b32 v{TM+4}, {q}, v{TM+2}')
            a(f'v_lshl_add_u32 v{XA+q}, v{TM+4}, 4, v{TM+3}')
        a(f'v_and_b32 v{TM+2}, 0xc0, v{V_L16}')
        a(f'v_lshl_add_u32 v{TM+2}, v{V_HF}, 8, v{TM+2}')
        a(f'v_bfe_u32 v{TM+3}, v{V_L16}, 8, 1')
        a(f'v_lshl_add_u32 v{TM+2}, v{TM+3}, 5, v{TM+2}')
        a(f'v_bfe_u32 v{TM+3}, v{V_L16}, 4, 2')
        a(f'v_lshl_add_u32 v{TM+2}, v{TM+3}, 3, v{TM+2}')
        a(f'v_add_u32 v{TM+2}, s13, v{TM+2}')
        a(f'v_lshlrev_b32 v{TM+3}, 2, v{V_N}')
        a(f's_mov_b32 s19, {ONES2}')
        a(f'v_mov_b32 v{ST}, 0')
        a(f'v_mov_b32 v{ST+1}, 0')
        rs_addr()
        a.wait_tag('rp')
        a(f'buffer_load_dword v{V_PL}, v{V_T0}, {SRD_DBG}, 0 offen sc1')
        if FINE: stamp('i_rp')
        for b in range(4):
            for q in range(2):
                a(f'ds_read_b64_tr_b16 v[{F+4*b+2*q}:{F+4*b+2*q+1}], v{TM+2} offset:{b*1024 + q*512}')
        for k in range(2):
            a(f'buffer_store_dwordx4 v[{F+8*k}:{F+8*k+3}], v{V_L16}, {SRD_WS}, s{28+k} offen {SC}')
            a(f's_add_u32 s{28+k}, s{28+k}, {WS_IMG[1]-WS_IMG[0]}')
            a(f'buffer_store_dwordx4 v[{F+8*k+4}:{F+8*k+7}], v{V_L16}, {SRD_WS}, s{28+k} offen {SC}')
        for r in range(4):
            for b in range(4):
                a(f'v_dot2_f32_bf16 v{TM+4+b}, v{F+4*b+r}, s19, {"0" if r == 0 else f"v{TM+4+b}"}')
        for x in halves_add(TM + 4, 4, TM + 8): a(x)
        issue_x(2); issue_x(3)
        Lk = uid('init')
        a(f'v_cmp_le_u32 vcc, 1, v{V_PL}')
        a(f's_and_b32 s48, vcc_lo, {(1 << NZERO) - 1}')
        a(f's_cmp_eq_u32 s48, {(1 << NZERO) - 1}')
        a(f's_cbranch_scc1 {Lk}')
        sv = (list(a.st.hist), list(a.st.vm), list(a.st.lg))
        poll(SRD_DBG, (1 << NZERO) - 1, 1)
        a.st.hist, a.st.vm, a.st.lg = sv
        a.raw(Lk + ':')
        a('s_mov_b32 exec_hi, 0')
        for k in range(2):
            a(f'buffer_atomic_add_f32 v{TM+4+2*k}, v{TM+3}, {SRD_WS}, s{30+k} offen sc1')
            a(f's_add_u32 s{30+k}, s{30+k}, {16*3*128}')
            a.inst(f'buffer_atomic_add_f32 v{TM+5+2*k}, v{TM+3}, {SRD_WS}, s{30+k} offen sc1', tag='pub')
        a('s_mov_b32 exec_hi, -1')
        def xread(g):
            a.wait_tag(f'x{g}')
            for q in range(8):
                r = X + 16 * g + 2 * q
                a.inst(f'ds_read_b64 v[{r}:{r+1}], v{XA+q} offset:{(g%5)*4096}', tag='xr')
            if g + 5 < 7:
                a.wait_tag('xr', 'lg')
                issue_x(g + 5)
        def xdot(g):
            for r in range(X + 16 * g, X + 16 * g + 16):
                a(f'v_dot2_f32_bf16 v{ST}, v{r}, s19, v{ST}')
                a(f'v_dot2_f32_bf16 v{ST+1}, v{r}, v{r}, v{ST+1}')
        issue_x(4)
        xread(0); xread(1); xdot(0); xread(2); xdot(1); xread(3)
        signal(1, wait_tag='pub', with_xcc=True); advance()
        if FINE: stamp('i_sig')
        xread(4); xdot(2); xread(5); xdot(3); xread(6); xdot(4)
        woa = stage_wo_issue(0, L_S, 251, 'woa', defer=True)
        wob = [(lambda i=i: woa.one(i, 1, 'wob')) for i in range(14)]
        ids_qkv_rows(S_HQ)
        a('s_and_b32 s48, s2, 7')
        a('s_lshl_b32 s48, s48, 7')
        a(f's_add_u32 s48, s48, {WS_FLAG + 4}')
        a(f'v_lshl_add_u32 v{V_T1}, v{V_N}, 10, s48')
        a(f'v_cmp_eq_u32 vcc, 1, v{V_HF}')
        a(f'v_cndmask_b32 v{V_T0}, v{V_T0}, v{V_T1}, vcc')
        a('s_mov_b32 s58, 0xffff')
        a('s_mov_b32 s59, -1')
        a(f's_mul_i32 s15, {S_WAVE}, 3072')
        a(f's_mul_i32 s13, {S_HQ}, {IMG_HEAD}')
        a('s_add_u32 s13, s13, s15')
        a(f's_add_u32 s13, s13, {WS_IMG[0]}')
        a(f's_mul_i32 s14, {S_HQ}, 384')
        a(f's_add_u32 s14, s14, {WS_CS}')
        a('s_waitcnt lgkmcnt(0)')
        a('s_barrier')
        poll(SRD_WS, 's[58:59]', S_PROG)
        stamp(f'{nm}_go', lp)
        for g in range(7):
            a(f's_add_u32 m0, s15, {g*12288}')
            a(f's_add_u32 s24, s13, {g*12288}')
            for p in (1, 2):
                a.inst(f'buffer_load_dwordx4 v{V_L16}, {SRD_WS}, s24 offen offset:{p*1024} {SC} lds', tag=f'g{g}')
            if g == 1:
                for wh in range(2):
                    for p in range(3):
                        a(f'buffer_load_dword v{V_CS[wh]+p}, v{TM+3}, {SRD_WS}, s14 offen offset:{p*128} {SC}')
                    if wh == 0:
                        a(f's_add_u32 s14, s14, {16*3*128}')
        a(f'v_cmp_eq_u32 vcc, {S_XCC}, v{V_PL}')
        a('s_cmp_eq_u32 vcc_hi, -1')
        a(f's_cselect_b32 {S_LOC}, {0 if FORCE_GLOBAL else 1}, 0')
        def qdma(g):
            a(f's_add_u32 m0, s15, {g*12288}')
            a(f's_add_u32 s24, s13, {g*12288}')
            a.inst(f'buffer_load_dwordx4 v{V_L16}, {SRD_WS}, s24 offen {SC} lds', tag='wq')
        def open_group(g):
            a.wait_tag(f'g{g}')
            a('s_barrier')
        xdot(5); xdot(6)
        for x in halves_add(ST, 2, ST + 2) + ln_stats(True): a(x)
        stage_wo_addr(L_S, 252)
        AH0 = 4
        open_group(0)
        for i in range(AH0):
            wread(i)
        later = [(lambda g=g: qdma(g)) for g in range(7)] + list(woa)
        for g in range(7):
            if g == 1:
                fill.extend(we_build(0, T + 4))
            if g == 4:
                assert not fill
                extra(1); extra(2)
            for fl in range(8):
                i = 8 * g + fl
                wmm(i)
                if g >= 1 and fl != 3 and later:
                    later.pop(0)()
                if g == 5 and fl == 0:
                    pretouch_setup(True, 0); pretouch()
                if fl == 3 and g < 6:
                    open_group(g + 1)
                if fl == 3 and g == 6:
                    a.wait_tag('woa')
                    a('s_barrier')
                wread(i + AH0)
                pop(3)
        assert not later
        wread(56 + AH0)
        fill.extend(stage_wo_reads(0, 252))
    else:
        xo, so = (WS_XB, WS_STB) if isA else (WS_XA, WS_STA)
        a(f's_add_u32 s20, s20, {xo}')
        a('s_lshl_b32 s21, s7, 8')
        a(f's_add_u32 s21, s21, {so}')
        if not isA:
            a(f's_add_u32 s20, s20, {S_BLK}')
            a(f's_add_u32 s21, s21, {S_BLK}')
        a(f'v_lshlrev_b32 v{T+11}, 3, v{V_N}')
        a(f'v_lshl_add_u32 v{T+11}, v{V_HF}, 14, v{T+11}')
        rs_addr()
        pretouch_setup(isA, BLK if isA else S_BLK)
        a(f'v_lshrrev_b32 v{V_T1}, 4, v{V_L16}')
        a('s_lshr_b32 s48, s7, 3')
        a('s_lshr_b32 s49, s7, 1')
        a('s_and_b32 s49, s49, 3')
        a('s_lshl_b32 s49, s49, 3')
        a('s_add_u32 s48, s48, s49')
        a(f'v_lshl_add_u32 v{V_T0}, v{V_T1}, 5, s48')
        flag_addr(True)
        for x in we_build(wsel, X):
            a(x)
        for i in range(AH):
            wread(i)
        poll(SRD_WS, 0x7f, S_PROG)
        stamp(f'{nm}_go', lp)
        def xload(t):
            r = X + 4 * t
            a(f'buffer_load_dwordx4 v[{r}:{r+3}], v{V_L16}, {SRD_WS}, s20 offen offset:{(t%4)*1024} {LD}')
            if t % 4 == 3 and t != 27:
                a('s_add_u32 s20, s20, 4096')
        def stload(i):
            a(f'buffer_load_dwordx2 v[{ST+2*i}:{ST+2*i+1}], v{T+11}, {SRD_WS}, s21 offen {LD}')
            if i < 6:
                a('s_add_u32 s21, s21, 32768')
        for t in range(8):
            xload(t)
        nx = 8
        for i in range(56):
            t = i >> 1
            if i == 24:
                for k in range(1, 7):
                    fill.append(f'v_add_f32 v{ST}, v{ST}, v{ST+2*k}')
                    fill.append(f'v_add_f32 v{ST+1}, v{ST+1}, v{ST+2*k+1}')
                fill.extend(halves_add(ST, 2, ST + 2) + ln_stats(isA))
            if i == 48:
                assert not fill
                extra(1); extra(2)
            wmm(i)
            if i % 2 == 0:
                for _ in range(2 if i < 12 else 1):
                    if nx < 28:
                        xload(nx); nx += 1
            if i == 1:
                for k in range(7):
                    stload(k)
            if i == 31:
                assert nx == 28
                pretouch()
            wread(i + AH)
            pop(2)
            if FINE and not isA and i in (1, 17, 33): stamp(f'qb_t{t}', True)
        assert nx == 28 and not fill
    stamp(f'{nm}_mm', lp)
    KF, VF, QF = AK, AK + 8, AT_Q
    def pkmul_lane(dst, src, sc):
        a(f'v_pk_mul_f32 v[{dst}:{dst+1}], v[{src}:{src+1}], v[{sc}:{sc+1}] op_sel_hi:[1,0]')
    def v_pads():
        a('s_mov_b32 exec_lo, 0xf0000000')
        a('s_mov_b32 exec_hi, 0xf0000000')
        for r in range(8):
            a(f'v_mov_b32 v{VF+r}, v{V_ONE}')
        a('s_mov_b64 exec, -1')
    def v_epi():
        for r in range(8):
            a(f'v_pk_mul_f32 v[{AV+2*r}:{AV+2*r+1}], v[{AV+2*r}:{AV+2*r+1}], v[{RS+2*r}:{RS+2*r+1}]')
            a(f'v_cvt_pk_bf16_f32 v{VF+r}, v{AV+2*r}, v{AV+2*r+1}')
        v_pads()
    def pass2(npop, hooks):
        extra(0)
        for i in range(56, 84):
            wmm(i)
            wread(i + AH)
            pop(npop)
            if i - 56 in hooks:
                hooks[i - 56]()
    if not isA:
        a(f's_mov_b32 s19, {ONES2}')
        a(f's_lshl_b32 s12, {S_HQ}, 18')
        a('s_lshl_b32 s13, s7, 12')
        a('s_add_u32 s12, s12, s13')
        a(f's_add_u32 s13, s12, {WS_KV}')
        a(f's_add_u32 s13, s13, {S_KVB}')
        for r in range(8):
            pkmul_lane(AK + 2 * r, AK + 2 * r, T)
            a(f'v_cvt_pk_bf16_f32 v{KF+r}, v{AK+2*r}, v{AK+2*r+1}')
            if r == 3:
                a(f'buffer_store_dwordx4 v[{KF}:{KF+3}], v{V_L16}, {SRD_WS}, s13 offen {SC}')
        a('s_mov_b32 exec_lo, 0')
        a(f'v_mov_b32 v{KF+6}, s19')
        a(f'v_mov_b32 v{KF+7}, 0')
        a('s_mov_b32 exec_lo, -1')
        a(f'buffer_store_dwordx4 v[{KF+4}:{KF+7}], v{V_L16}, {SRD_WS}, s13 offen offset:1024 {SC}')
        v_epi()
        a(f'buffer_store_dwordx4 v[{VF}:{VF+3}], v{V_L16}, {SRD_WS}, s13 offen offset:2048 {SC}')
        a(f'buffer_store_dwordx4 v[{VF+4}:{VF+7}], v{V_L16}, {SRD_WS}, s13 offen offset:3072 {SC}')
        stamp(f'{nm}_epi', lp)
        pass2(0, {})
        signal(1, False); advance()
        stamp(f'{nm}_sig', lp)
        SD = AV
        for r in range(8):
            pkmul_lane(AQ + 2 * r, AQ + 2 * r, T + 2)
            a(f'v_cvt_pk_bf16_f32 v{QF+r}, v{AQ+2*r}, v{AQ+2*r+1}')
        a('s_mov_b32 exec_lo, 0')
        a(f'v_mov_b32 v{QF+6}, 0')
        a(f'v_mov_b32 v{QF+7}, 0')
        a('s_mov_b32 exec_lo, -1')
        a(f'v_mfma_f32_32x32x16_bf16 v[{SD}:{SD+15}], v[{KF}:{KF+3}], v[{QF}:{QF+3}], 0')
        a(f'v_mfma_f32_32x32x16_bf16 v[{SD}:{SD+15}], v[{KF+4}:{KF+7}], v[{QF+4}:{QF+7}], v[{SD}:{SD+15}]')
        a(f's_lshl_b32 s12, {S_WAVE}, 11')
        a(f's_add_u32 s13, s12, {L_KV}')
        a(f'v_add_u32 v{T+8}, s13, v{V_L16}')
        a(f'ds_write_b128 v{T+8}, v[{QF}:{QF+3}]')
        for i in range(1, 4):
            a(f's_xor_b32 s13, s12, {i*2048}')
            a(f's_add_u32 s13, s13, {L_KV}')
            a(f'v_add_u32 v{T+8+i}, s13, v{V_L16}')
        a(f'v_max3_f32 v{T+4}, v{SD}, v{SD+1}, v{SD+2}')
        a(f'v_max3_f32 v{T+5}, v{SD+3}, v{SD+4}, v{SD+5}')
        for r in range(6, 16, 4):
            a(f'v_max3_f32 v{T+4}, v{SD+r}, v{SD+r+1}, v{T+4}')
            if r + 3 < 16:
                a(f'v_max3_f32 v{T+5}, v{SD+r+2}, v{SD+r+3}, v{T+5}')
        a(f'v_max_f32 v{T+4}, v{T+4}, v{T+5}')
        a(f'v_mov_b32 v{T+5}, v{T+4}')
        a(f'v_permlane32_swap_b32 v{T+4}, v{T+5}')
        a(f'v_max_f32 v{T+4}, v{T+4}, v{T+5}')
        a(f'v_sub_f32 v{T+4}, 0, v{T+4}')
        a(f'v_and_b32 v{T+5}, 0xffff0000, v{T+4}')
        a(f'v_sub_f32 v{T+6}, v{T+4}, v{T+5}')
        a('s_mov_b32 exec_lo, 0')
        a(f'v_perm_b32 v{QF+6}, v{T+6}, v{T+5}, s17')
        a('s_mov_b32 exec_lo, -1')
        a(f'ds_write_b128 v{T+8}, v[{QF+4}:{QF+7}] offset:1024')
        a('s_waitcnt lgkmcnt(0)')
        a('s_barrier')
        for i in range(1, 4):
            for u in range(2):
                r = QF + 8 * i + 4 * u
                a(f'ds_read_b128 v[{r}:{r+3}], v{T+8+i} offset:{u*1024}')
        if DEBUGQ:
            a(f's_lshl_b32 s12, {S_HQ}, 17')
            a('s_lshl_b32 s13, s7, 11')
            a('s_add_u32 s12, s12, s13')
            a(f's_add_u32 s12, s12, {WS_Q}')
            a(f's_add_u32 s12, s12, {S_BLK}')
            a(f'buffer_store_dwordx4 v[{QF}:{QF+3}], v{V_L16}, {SRD_WS}, s12 offen')
            a(f'buffer_store_dwordx4 v[{QF+4}:{QF+7}], v{V_L16}, {SRD_WS}, s12 offen offset:1024')
        a('s_waitcnt lgkmcnt(0)')
    else:
        it = 0 if first else 1
        a(f's_mov_b32 s16, {f32(1e-6)}')
        a(f's_mov_b32 s17, {f32(1e-6)}')
        a(f's_mov_b32 s18, {f32(LOG2E)}')
        a(f's_lshl_b32 s19, {S_WAVE}, 12')
        a(f's_add_u32 s19, s19, {L_KV}')
        a(f'v_add_u32 v{T+8}, s19, v{V_L16}')
        a(f'v_lshlrev_b32 v{T+7}, 2, v0')
        a(f'v_add_u32 v{T+9}, {L_KV}, v{T+7}')
        a(f'v_mov_b32 v{T+4}, 1.0')
        for r in range(8):
            e = E + 2 * (r % 3)
            k = AK + 2 * r
            a(f'v_pk_mul_f32 v[{k}:{k+1}], v[{k}:{k+1}], v[{RS+2*r}:{RS+2*r+1}]')
            a(f'v_pk_mul_f32 v[{e}:{e+1}], v[{k}:{k+1}], s[18:19] op_sel_hi:[1,0]')
            a(f'v_pk_add_f32 v[{k}:{k+1}], v[{k}:{k+1}], 1.0 op_sel_hi:[1,0]')
            a(f'v_exp_f32 v{e}, v{e}')
            a(f'v_exp_f32 v{e+1}, v{e+1}')
            a(f'v_med3_f32 v{k}, v{e}, v{k}, 1.0')
            a(f'v_med3_f32 v{k+1}, v{e+1}, v{k+1}, 1.0')
            a(f'v_pk_add_f32 v[{k}:{k+1}], v[{k}:{k+1}], s[16:17]')
            a(f'v_cvt_pk_bf16_f32 v{KF+r}, v{k}, v{k+1}')
        v_epi()
        KVD = AV
        a(f'v_mfma_f32_32x32x16_bf16 v[{KVD}:{KVD+15}], v[{KF}:{KF+3}], v[{VF}:{VF+3}], 0')
        a(f'v_mfma_f32_32x32x16_bf16 v[{KVD}:{KVD+15}], v[{KF+4}:{KF+7}], v[{VF+4}:{VF+7}], v[{KVD}:{KVD+15}]')
        a(f's_lshl_b32 s22, {S_HQ}, 12')
        a(f's_add_u32 s22, s22, {WS_KVACC + it*65536}')
        a(f's_cmp_ge_u32 {S_WAVE}, 2')
        a(f's_cselect_b32 s23, {OOB}, s22')
        a('s_lshl_b32 s12, s7, 15')
        a(f's_lshl_b32 s13, {S_HQ}, 11')
        a('s_add_u32 s12, s12, s13')
        a(f's_add_u32 s12, s12, {WS_OA + it*BLK}')
        E2 = RS
        def kvw(rg):
            return lambda: a.inst(f'ds_write_b128 v{T+8}, v[{KVD+4*rg}:{KVD+4*rg+3}] offset:{rg*1024}', tag='kvw')
        def kvbar():
            a.wait_tag('kvw', 'lg')
            a('s_barrier')
            for k in range(4):
                a(f'ds_read2st64_b32 v[{E2+4*k}:{E2+4*k+1}], v{T+9} offset0:{4*k} offset1:{4*k+16}')
                a(f'ds_read2st64_b32 v[{E2+4*k+2}:{E2+4*k+3}], v{T+9} offset0:{4*k+32} offset1:{4*k+48}')
        def kvat(k):
            def f():
                a(f'v_add_f32 v{E2+4*k}, v{E2+4*k}, v{E2+4*k+1}')
                a(f'v_add_f32 v{E2+4*k+2}, v{E2+4*k+2}, v{E2+4*k+3}')
                a(f'v_add_f32 v{E2+4*k}, v{E2+4*k}, v{E2+4*k+2}')
                a.inst(f'buffer_atomic_add_f32 v{E2+4*k}, v{T+7}, {SRD_WS}, {"s23" if k == 3 else "s22"} offen offset:{k*1024} sc1', tag='kva')
            return f
        hooks = {1: kvw(0), 2: kvw(1), 3: kvw(2), 4: kvw(3), 7: kvbar, 10: kvat(0), 11: kvat(1), 12: kvat(2), 13: kvat(3)}
        if first:
            def wobar():
                assert not fill
                a('s_waitcnt lgkmcnt(0)')
                a('s_barrier')
            hooks[19] = wobar
            for k in range(7):
                hooks[20 + k] = (lambda k=k: (wob[2*k](), wob[2*k+1]()))
        pass2(4, hooks)
        stamp(f'{nm}_epi', lp)
        QF = X
        for r in range(8):
            e = E + 2 * (r % 3)
            q = AQ + 2 * r
            pkmul_lane(e, q, T + 2)
            a(f'v_pk_fma_f32 v[{q}:{q+1}], v[{q}:{q+1}], v[{T}:{T+1}], v[{T+4}:{T+5}] op_sel_hi:[1,0,0]')
            a(f'v_exp_f32 v{e}, v{e}')
            a(f'v_exp_f32 v{e+1}, v{e+1}')
            a(f'v_med3_f32 v{q}, v{e}, v{q}, 1.0')
            a(f'v_med3_f32 v{q+1}, v{e+1}, v{q+1}, 1.0')
            a(f'v_pk_add_f32 v[{q}:{q+1}], v[{q}:{q+1}], s[16:17]')
            a(f'v_cvt_pk_bf16_f32 v{QF+r}, v{q}, v{q+1}')
        a('s_mov_b32 exec_lo, 0')
        a(f'v_mov_b32 v{QF+6}, 0')
        a(f'v_mov_b32 v{QF+7}, 0')
        a('s_mov_b32 exec_lo, -1')
        signal(1, wait_tag='kva'); advance()
        stamp(f'{nm}_sg1', lp)
        if DEBUGQ:
            a(f's_add_u32 s13, s12, {WS_DBG + (8 << 20)}')
            a(f'buffer_store_dwordx4 v[{QF}:{QF+3}], v{V_L16}, {SRD_WS}, s13 offen')
            a(f'buffer_store_dwordx4 v[{QF+4}:{QF+7}], v{V_L16}, {SRD_WS}, s13 offen offset:1024')
        img_base(1, 's60', 's61')
        w_prefetch(1, (4, 4, 3))
        if first:
            stage_wo_pads(0)
            a.wait_tag('wob')
            a('s_barrier')
            for n, x in enumerate(stage_wo_reads(1, 252)):
                a(x)
                if n % 12 == 11: a('s_waitcnt lgkmcnt(4)')
            stage_wo_pads(1)
        ids_qkv_rows(S_HQ)
        poll(SRD_WS, 0xffff, S_PROG)
        stamp(f'{nm}_kv', lp)
        KV, D = 40, 56
        for rg in range(4):
            a(f'buffer_load_dwordx4 v[{KV+4*rg}:{KV+4*rg+3}], v{V_L16}, {SRD_WS}, s22 offen offset:{rg*1024} {SC}')
        for r in range(8):
            a(f'v_cvt_pk_bf16_f32 v{KV+r}, v{KV+2*r}, v{KV+2*r+1}')
            if r == 3:
                a(f'v_mfma_f32_32x32x16_bf16 v[{D}:{D+15}], v[{KV}:{KV+3}], v[{QF}:{QF+3}], 0')
        a(f'v_mfma_f32_32x32x16_bf16 v[{D}:{D+15}], v[{KV+4}:{KV+7}], v[{QF+4}:{QF+7}], v[{D}:{D+15}]')
        a(f'v_add_f32 v{T}, s16, v{D+12}')
        a(f'v_mov_b32 v{T+1}, v{T}')
        a(f'v_permlane32_swap_b32 v{T+1}, v{T}')
        a(f'v_rcp_f32 v{T}, v{T}')
        for r in range(8):
            pkmul_lane(D + 2 * r, D + 2 * r, T)
            a(f'v_cvt_pk_bf16_f32 v{QF+8+r}, v{D+2*r}, v{D+2*r+1}')
        lstore([f'buffer_store_dwordx4 v[{QF+8}:{QF+11}], v{V_L16}, {SRD_WS}, s12 offen',
                f'buffer_store_dwordx4 v[{QF+12}:{QF+15}], v{V_L16}, {SRD_WS}, s12 offen offset:1024'])
        signal(1, local=True); advance()
        stamp(f'{nm}_sig', lp)

OP_CH = [(0, 4), (4, 8), (12, 8), (20, 8), (28, 4)]
def phase_op(isA):
    nm = 'oa' if isA else 'ob'
    join = uid('op_join')
    ACC = 16
    OF = 32
    XF = 96
    T = 104
    WB = WOA[0 if isA else 1]
    skip = uid('op_skip')
    a(f's_cmp_ge_u32 {S_CP}, 7')
    a(f's_cbranch_scc1 {skip if isA else join}')
    a(f's_lshr_b32 s7, {S_WAVE}, 1')
    a(f's_and_b32 s12, {S_WAVE}, 1')
    a(f's_lshl_b32 s5, {S_RP}, 1')
    a('s_add_u32 s5, s5, s7')
    a(f's_lshl_b32 s6, {S_CP}, 1')
    a('s_add_u32 s6, s6, s12')
    a(f's_mul_i32 s18, s5, {28*1024}')
    a('s_lshl_b32 s21, s7, 15')
    a(f's_add_u32 s21, s21, {L_S}')
    a(f'v_add_u32 v{T+4}, s21, v{V_L16}')
    if isA:
        L1, L2 = uid('oa'), uid('oa')
        a(f's_cmp_lg_u32 {S_IT}, 0')
        a(f's_cbranch_scc1 {L1}')
        a(f'v_mul_u32_u24 v{T+6}, 896, v{V_N}')
        a(f'v_lshl_add_u32 v{T+6}, v{V_HF}, 3, v{T+6}')
        a('s_lshl_b32 s19, s6, 6')
        a('s_add_u32 s20, s18, s19')
        for k in range(4):
            a.raw(f'  buffer_load_dwordx2 v[{XF+2*k}:{XF+2*k+1}], v{T+6}, {SRD_X0}, s20 offen offset:{16*k}')
        a(f's_branch {L2}')
        a.raw(L1 + ':')
        a('s_lshl_b32 s19, s6, 11')
        a('s_add_u32 s20, s18, s19')
        a(f's_add_u32 s20, s20, {WS_XB}')
        a.raw(f'  buffer_load_dwordx4 v[{XF}:{XF+3}], v{V_L16}, {SRD_WS}, s20 offen {SC}')
        a.raw(f'  buffer_load_dwordx4 v[{XF+4}:{XF+7}], v{V_L16}, {SRD_WS}, s20 offen offset:1024 {SC}')
        a.raw(L2 + ':')
        a('s_lshl_b32 s19, s6, 11')
        a('s_add_u32 s18, s18, s19')
        a(f's_add_u32 s18, s18, {S_BLK}')
    else:
        a('s_lshl_b32 s19, s6, 11')
        a('s_add_u32 s18, s18, s19')
        a(f's_add_u32 s18, s18, {S_BLK}')
        a(f's_add_u32 s20, s18, {WS_XA}')
        a(f'buffer_load_dwordx4 v[{XF}:{XF+3}], v{V_L16}, {SRD_WS}, s20 offen {SC}')
        a(f'buffer_load_dwordx4 v[{XF+4}:{XF+7}], v{V_L16}, {SRD_WS}, s20 offen offset:1024 {SC}')
    acc = f'v[{ACC}:{ACC+15}]'
    xo, so = (WS_XA, WS_STA) if isA else (WS_XB, WS_STB)
    a(f's_add_u32 s51, s18, {xo}')
    a(f'v_lshlrev_b32 v{T+7}, 3, v{V_N}')
    a(f'v_lshl_add_u32 v{T+7}, v{V_HF}, 2, v{T+7}')
    a('s_lshl_b32 s19, s5, 8')
    a('s_lshl_b32 s52, s6, 14')
    a('s_add_u32 s52, s52, s19')
    a(f's_add_u32 s52, s52, {so}')
    a(f's_add_u32 s52, s52, {S_BLK}')
    a(f's_mov_b32 s19, {ONES2}')
    a('s_lshl_b32 s14, s5, 15')
    a(f's_add_u32 s14, s14, {WS_OA if isA else WS_O}')
    a(f's_add_u32 s14, s14, {S_BLK}')
    a('s_lshl_b32 s15, s12, 12')
    a('s_lshl_b32 s16, s12, 11')
    a('s_add_u32 s22, s15, s21'); a('s_add_u32 s23, s16, s21')
    a('s_add_u32 s15, s15, s14'); a('s_add_u32 s16, s16, s14')
    a(f's_lshr_b32 s50, {S_RP}, 1')
    ids_qkv_heads('s50')
    poll(SRD_WS, 0xffff, S_PROG)
    stamp(f'{nm}_go', True)
    for c, (k0, n) in enumerate(OP_CH):
        a(f's_add_u32 m0, {"s22" if n == 8 else "s23"}, {k0*1024}')
        a(f's_add_u32 s17, {"s15" if n == 8 else "s16"}, {k0*1024}')
        for i in range(n // 2):
            a.inst(f'buffer_load_dwordx4 v{V_L16}, {SRD_WS}, s17 offen offset:{i*1024} {LD} lds', tag=f'o{c}')
    for r in range(8):
        a(f'v_lshlrev_b32 v{ACC+2*r}, 16, v{XF+r}')
        a(f'v_and_b32 v{ACC+2*r+1}, 0xffff0000, v{XF+r}')
    def opn(c):
        k0, n = OP_CH[c]
        a.wait_tag(f'o{c}')
        a('s_barrier')
        for s in range(n):
            r = OF + 32 * (c & 1) + 4 * s
            a(f'ds_read_b128 v[{r}:{r+3}], v{T+4} offset:{(k0+s)*1024}')
    opn(0)
    for c, (k0, n) in enumerate(OP_CH):
        for s in range(n):
            r = OF + 32 * (c & 1) + 4 * s
            k = k0 + s
            a(f'v_mfma_f32_32x32x16_bf16 {acc}, a[{WB+4*k}:{WB+4*k+3}], v[{r}:{r+3}], {acc}')
            if isA and s == 0 and c < 3:
                w_prefetch(1, [(4, 4, 2)[c]])
            if s == n - 3 and c + 1 < len(OP_CH):
                opn(c + 1)
    stamp(f'{nm}_mm', True)
    for r in range(8):
        a(f'v_cvt_pk_bf16_f32 v{XF+r}, v{ACC+2*r}, v{ACC+2*r+1}')
    if not isA:
        a(f's_cmp_lg_u32 {S_IT}, 0')
        a('s_cbranch_scc1 op_final')
    lstore([f'buffer_store_dwordx4 v[{XF}:{XF+3}], v{V_L16}, {SRD_WS}, s51 offen',
            f'buffer_store_dwordx4 v[{XF+4}:{XF+7}], v{V_L16}, {SRD_WS}, s51 offen offset:1024'])
    a(f'v_dot2_f32_bf16 v{T}, v{XF}, s19, 0')
    a(f'v_dot2_f32_bf16 v{T+1}, v{XF}, v{XF}, 0')
    for r in range(1, 8):
        a(f'v_dot2_f32_bf16 v{T}, v{XF+r}, s19, v{T}')
        a(f'v_dot2_f32_bf16 v{T+1}, v{XF+r}, v{XF+r}, v{T+1}')
    a(f'v_permlane32_swap_b32 v{T}, v{T+1}')
    a(f'v_add_f32 v{T}, v{T}, v{T+1}')
    lstore([f'buffer_store_dword v{T}, v{T+7}, {SRD_WS}, s52 offen'])
    stamp(f'{nm}_epi', True)
    signal(local=True)
    if isA:
        a(f's_branch {join}')
        a.raw(skip + ':'); a.fresh()
        w_prefetch(1, (4, 4, 2))
        a('s_waitcnt vmcnt(0)')
        a('s_barrier')
    a.raw(join + ':')
    a.fresh()
    a('s_nop 4')
    advance()
    stamp(f'{nm}_sig', True)
    def final():
        a.raw('op_final:'); a.fresh()
        a('s_lshl_b32 s19, s5, 5')
        a(f'v_add_u32 v{T+6}, s19, v{V_N}')
        a(f'v_mul_u32_u24 v{T+6}, 896, v{T+6}')
        a(f'v_lshl_add_u32 v{T+6}, v{V_HF}, 4, v{T+6}')
        a('s_lshl_b32 s19, s6, 6')
        for u in range(2):
            b = XF + 4 * u
            a(f'v_permlane32_swap_b32 v{b}, v{b+2}')
            a(f'v_permlane32_swap_b32 v{b+1}, v{b+3}')
            a(f'buffer_store_dwordx4 v[{b}:{b+3}], v{T+6}, {SRD_OUT}, s19 offen offset:{32*u}')
    return final

def phase_attn():
    Q = 16
    O = 48
    S = 112
    P = 144
    T = 152
    R = 160
    ORD = [1, 2, 3, 0]
    a(f's_lshl_b32 s12, {S_HA}, 18')
    a(f's_add_u32 s12, s12, {WS_KV}')
    a(f's_add_u32 s12, s12, {S_KVB}')
    a(f's_lshl_b32 s13, {S_WAVE}, 16')
    a('s_add_u32 s13, s13, s12')
    for r in range(64):
        a(f'v_mov_b32 v{O+r}, 0')
    img_base(0, 's60', 's61')
    a(f's_cmp_lg_u32 {S_IT}, 0')
    a(f's_cselect_b32 s60, {OOB}, s60')
    a(f's_mov_b32 s18, {OOB}')
    a('s_mov_b32 s17, 5')
    for t in range(1, 4):
        a(f's_xor_b32 s19, {S_WAVE}, {t}')
        a('s_mul_i32 s19, s19, 12288')
        a(f's_add_u32 s19, s19, {L_RED + (t-1)*4096}')
        a(f'v_add_u32 v{T+3+t}, s19, v{V_L16}')
    a(f's_mul_i32 s19, {S_WAVE}, 12288')
    a(f's_add_u32 s19, s19, {L_RED}')
    a(f'v_add_u32 v{T+3}, s19, v{V_L16}')
    a(f's_lshl_b32 s51, {S_QB}, 2')
    a(f's_add_u32 s51, s51, {S_WAVE}')
    a('s_lshl_b32 s51, s51, 15')
    a(f's_lshl_b32 s19, {S_HA}, 11')
    a('s_add_u32 s51, s51, s19')
    a(f's_add_u32 s51, s51, {WS_O}')
    a(f's_add_u32 s51, s51, {S_BLK}')
    a(f's_mov_b32 s20, {f32(2.0**-64)}')
    a(f's_mov_b32 s21, {f32(2.0**64)}')
    ids_qkv_rows(S_HA)
    poll(SRD_WS, 0xffff, S_PROG)
    stamp('at_go', True)
    def kreg(j, t): return f'v[{R+16*j+4*t}:{R+16*j+4*t+3}]'
    def vreg(j, u): return f'v[{R+16*j+8+4*u}:{R+16*j+8+4*u+3}]'
    def qreg(i, t): return f'v[{Q+8*i+4*t}:{Q+8*i+4*t+3}]'
    def sreg(n): return f'v[{S+16*(n&1)}:{S+16*(n&1)+15}]'
    def oreg(i): return f'v[{O+16*i}:{O+16*i+15}]'
    def loadk(j, sr):
        a(f'buffer_load_dwordx4 {kreg(j,0)}, v{V_L16}, {SRD_WS}, {sr} offen {SC}')
        a(f'buffer_load_dwordx4 {kreg(j,1)}, v{V_L16}, {SRD_WS}, {sr} offen offset:1024 {SC}')
    def loadv(j, sr):
        a(f'buffer_load_dwordx4 {vreg(j,0)}, v{V_L16}, {SRD_WS}, {sr} offen offset:2048 {SC}')
        a(f'buffer_load_dwordx4 {vreg(j,1)}, v{V_L16}, {SRD_WS}, {sr} offen offset:3072 {SC}')
    def ji(n): return (n >> 2) % 3, ORD[n & 3]
    def M1(n, own=False):
        j, i = (0, 0) if own else ji(n)
        a(f'v_mfma_f32_32x32x16_bf16 {sreg(n)}, {kreg(j,0)}, {qreg(i,0)}, 0')
    def M2(n, own=False):
        j, i = (0, 0) if own else ji(n)
        a(f'v_mfma_f32_32x32x16_bf16 {sreg(n)}, {kreg(j,1)}, {qreg(i,1)}, {sreg(n)}')
    def PV(n, u, own=False):
        j, i = (0, 0) if own else ji(n)
        a(f'v_mfma_f32_32x32x16_bf16 {oreg(i)}, {vreg(j,u)}, v[{P+4*u}:{P+4*u+3}], {oreg(i)}')
    def e(n, k):
        r = S + 16 * (n & 1) + k
        a(f'v_exp_f32 v{r}, v{r}')
    def c(n, k):
        r = S + 16 * (n & 1) + 2 * k
        a(f'v_cvt_pk_bf16_f32 v{P+k}, v{r}, v{r+1}')
    loadk(0, 's13')
    loadv(0, 's13')
    a('s_add_u32 s13, s13, 4096')
    loadk(1, 's13'); loadv(1, 's13')
    a('s_add_u32 s13, s13, 4096')
    M1(0); M2(0); M1(1)
    for k in range(4): e(0, k)
    a('s_waitcnt vmcnt(4)')
    if FINE: stamp('at_pro', True)
    def step(n, slots, last=99):
        e(n, 4); e(n, 5); c(n, 0); c(n, 1); e(n, 6); e(n, 7)
        if n + 1 <= last: M2(n + 1)
        for x in slots[0]: x()
        c(n, 2); c(n, 3); e(n, 8); e(n, 9); e(n, 10); e(n, 11)
        PV(n, 0)
        for x in slots[1]: x()
        e(n, 12); e(n, 13); c(n, 4); c(n, 5); e(n, 14); e(n, 15); c(n, 6); c(n, 7)
        if n + 2 <= last: M1(n + 2)
        for x in slots[2]: x()
        if n + 1 <= last:
            e(n + 1, 0); e(n + 1, 1); e(n + 1, 2); e(n + 1, 3)
        PV(n, 1)
        for x in slots[3]: x()
    I = lambda t: (lambda: a(t))
    def dman(n):
        for p in range(n):
            a(f'buffer_load_dwordx4 v{V_L16}, {SRD_WS}, s60 offen offset:{p*1024} {SC} lds')
    def body():
        for n in range(12):
            j, i = n >> 2, n & 3
            sl = [[], [], [], []]
            if i == 0:
                sl[1] = [lambda: loadk((j + 2) % 3, 's13'), lambda: loadv((j + 2) % 3, 's13')]
                sl[2] = [I('s_add_u32 s13, s13, 4096')]
                if j == 1:
                    sl[3] = [I('s_cmp_eq_u32 s17, 1')]
            elif i == 1:
                if j == 1:
                    sl[0] = [I('s_cselect_b32 s13, s18, s13')]
                if j == 0:
                    sl[1] = [I('s_mov_b32 m0, s61')]
                    sl[2] = [lambda: dman(4)]
                    sl[3] = [I('s_add_u32 s60, s60, 4096')]
                if j == 2 and PRE:
                    sl[2] = [pretouch]
            elif i == 2:
                sl[1] = [I(f's_waitcnt vmcnt({4 + (4 if j < 2 else 0) + (3 if (j == 2 and PRE) else 0)})')]
                if j == 0:
                    sl[2] = [I('s_add_u32 s61, s61, 4096')]
            elif i == 3 and j == 2:
                sl[1] = [I('s_sub_u32 s17, s17, 1')]
                sl[2] = [I('s_cmp_lg_u32 s17, 0')]
            step(n, sl)
    def tail():
        a('s_cbranch_scc1 attn_loop')
    a.raw('.p2align 3')
    a.loop('attn_loop', body, tail)
    def W(t, rg):
        r = O + 16 * t + 4 * rg
        return I(f'ds_write_b128 v{T+3+t}, v[{r}:{r+3}] offset:{rg*1024}')
    step(0, [[I('s_mov_b32 m0, s61')], [lambda: dman(1)], [], []], 3)
    step(1, [[], [W(1, 0)], [W(1, 1)], [W(1, 2)]], 3)
    step(2, [[W(1, 3)], [W(2, 0)], [W(2, 1)], [W(2, 2)]], 3)
    step(3, [[W(2, 3)], [W(3, 0), W(3, 1)], [W(3, 2), W(3, 3)], []], 3)
    stamp('at_mm', True)
    a('s_waitcnt lgkmcnt(0)')
    a('s_barrier')
    for t in range(1, 4):
        for rg in range(4):
            r = O + 16 * t + 4 * rg
            a(f'ds_read_b128 v[{r}:{r+3}], v{T+3} offset:{(t-1)*4096 + rg*1024}')
    for t in range(1, 4):
        for r in range(8):
            a(f'v_pk_add_f32 v[{O+2*r}:{O+2*r+1}], v[{O+2*r}:{O+2*r+1}], v[{O+16*t+2*r}:{O+16*t+2*r+1}]')
    a(f'v_mov_b32 v{T}, v{O+12}')
    a(f'v_mov_b32 v{T+1}, v{O+12}')
    a(f'v_permlane32_swap_b32 v{T+1}, v{T}')
    a(f'v_cmp_le_f32 vcc, s20, v{T}')
    a(f'v_cmp_ge_f32 s[22:23], s21, v{T}')
    a('s_and_b64 vcc, vcc, s[22:23]')
    a('s_cmp_eq_u64 vcc, exec')
    a('s_cbranch_scc0 attn_slow')
    a.raw('attn_fin:')
    a(f'v_rcp_f32 v{T}, v{T}')
    for r in range(8):
        a(f'v_pk_mul_f32 v[{O+2*r}:{O+2*r+1}], v[{O+2*r}:{O+2*r+1}], v[{T}:{T+1}] op_sel_hi:[1,0]')
        a(f'v_cvt_pk_bf16_f32 v{P+r}, v{O+2*r}, v{O+2*r+1}')
    lstore([f'buffer_store_dwordx4 v[{P}:{P+3}], v{V_L16}, {SRD_WS}, s51 offen',
            f'buffer_store_dwordx4 v[{P+4}:{P+7}], v{V_L16}, {SRD_WS}, s51 offen offset:1024'])
    stamp('at_epi', True)
    signal(local=True); advance()
    stamp('at_sig', True)

    def slow():
        a.raw('attn_slow:'); a.fresh()
        a('s_waitcnt vmcnt(0) lgkmcnt(0)')
        a('s_nop 15')
        a('s_mov_b32 exec_lo, 0')
        a(f'v_mov_b32 v{Q+6}, 0')
        a(f'v_mov_b32 v{Q+7}, 0')
        a('s_mov_b32 exec_lo, -1')
        a(f'v_mov_b32 v{T+2}, {f32(-3.0e38)}')
        a('s_mov_b32 s13, s12')
        a('s_mov_b32 s17, 64')
        a('s_nop 4')
        def body1():
            loadk(0, 's13')
            M1(0, True); M2(0, True)
            for r in range(0, 16, 2):
                a(f'v_max3_f32 v{T+2}, v{S+r}, v{S+r+1}, v{T+2}')
            a('s_add_u32 s13, s13, 4096')
            a('s_nop 4')
        def tail1():
            a('s_sub_u32 s17, s17, 1')
            a('s_cmp_lg_u32 s17, 0')
            a('s_cbranch_scc1 attn_slow1')
        a.loop('attn_slow1', body1, tail1)
        a(f'v_mov_b32 v{T+3}, v{T+2}')
        a(f'v_permlane32_swap_b32 v{T+2}, v{T+3}')
        a(f'v_max_f32 v{T+2}, v{T+2}, v{T+3}')
        for r in range(16):
            a(f'v_mov_b32 v{O+r}, 0')
        a('s_mov_b32 s13, s12')
        a('s_mov_b32 s17, 64')
        a('s_nop 15')
        def body2():
            loadk(0, 's13'); loadv(0, 's13')
            M1(0, True); M2(0, True)
            for r in range(16):
                a(f'v_sub_f32 v{S+r}, v{S+r}, v{T+2}')
            for r in range(16):
                e(0, r)
            for r in range(8):
                c(0, r)
            PV(0, 0, True); PV(0, 1, True)
            a('s_add_u32 s13, s13, 4096')
            a('s_nop 15')
        def tail2():
            a('s_sub_u32 s17, s17, 1')
            a('s_cmp_lg_u32 s17, 0')
            a('s_cbranch_scc1 attn_slow2')
        a.loop('attn_slow2', body2, tail2)
        a(f'v_mov_b32 v{T}, v{O+12}')
        a(f'v_mov_b32 v{T+1}, v{O+12}')
        a(f'v_permlane32_swap_b32 v{T+1}, v{T}')
        a('s_nop 4')
        a('s_branch attn_fin')
    return slow

def build(path):
    prologue()
    phase_qkv(True, True)
    a.raw('layer_loop:'); a.fresh()
    phase_op(True)
    phase_qkv(False, False)
    slow = phase_attn()
    final = phase_op(False)
    a(f's_cmp_lg_u32 {S_IT}, 0')
    a('s_cbranch_scc1 k_fin')
    phase_qkv(True, False)
    a(f's_mov_b32 {S_IT}, 1')
    a(f's_mov_b32 {S_BLK}, {BLK}')
    a(f's_mov_b32 {S_KVB}, {KVB}')
    a('s_branch layer_loop')
    final()
    a.raw('k_fin:')
    if INSTR:
        a('s_waitcnt vmcnt(0)')
        a(f'{CLK} s[96:97]')
        a('s_waitcnt lgkmcnt(0)')
        a(f'v_writelane_b32 v{V_ST}, s96, 63')
        a('s_lshl_b32 s48, s2, 2')
        a(f's_add_u32 s48, s48, {S_WAVE}')
        a('s_lshl_b32 s48, s48, 8')
        a(f's_add_u32 s48, s48, {WS_DBG}')
        a(f'v_lshrrev_b32 v{V_T0}, 2, v{V_L16}')
        a(f'buffer_store_dword v{V_ST}, v{V_T0}, {SRD_WS}, s48 offen')
    a.raw('k_end:')
    a('s_endpgm')
    slow()
    a.raw('code_end:')
    out = ['; generated by dev/gen7.py -- interleaved linear-attention / softmax-MHA layers, persistent kernel, gfx950',
           f'; @launch grid=(256,1,1) block=(256,1,1) lds={LDS_TOTAL}',
           '.amdgcn_target "amdgcn-amd-amdhsa--gfx950"', '.text', a.text(), '.section .rodata,"a"',
           kernel_desc(KNAME, 512, 102 if INSTR else 96, 256)]
    open(path, 'w').write('\n'.join(out) + '\n')
    if INSTR:
        names = {}
        for i, (n, lp) in enumerate(STAMPS):
            names[i] = n + ('0' if lp else '')
            if lp:
                names[i + 27] = n + '1'
        names[63] = 'end'
        assert len(STAMPS) <= 40
        open(path + '.stamps', 'w').write('\n'.join(f'{i} {n}' for i, n in sorted(names.items())))

if __name__ == '__main__':
    path = sys.argv[1] if len(sys.argv) > 1 else f'cdna_kernels/{NAME}.s'
    INSTR = 'instr' in sys.argv[2:]
    if 'cyc' in sys.argv[2:]: CLK = 's_memtime'
    FINE = 'fine' in sys.argv[2:]
    PRE = 'nopre' not in sys.argv[2:]
    FORCE_GLOBAL = 'noloc' in sys.argv[2:]
    if 'ldplain' in sys.argv[2:]: LD = ''
    if 'ldnt' in sys.argv[2:]: LD = 'nt'
    if 'ldsc0' in sys.argv[2:]: LD = 'sc0'
    DEBUGQ = 'debugq' in sys.argv[2:]
    FINE2 = 'fine2' in sys.argv[2:]
    TOUCH = 'notouch' not in sys.argv[2:]
    build(path)
    print('wrote', path, 'maxv', a.maxv, 'maxa', a.maxa, 'maxs', a.maxs)
```

```python
import sys, struct
sys.path.insert(0, 'dev')
from asmlib import *

NAME = 'interleave_layers__linear_attn_block__softmax_full_mha__prompt'
KNAME = NAME + '_kernel'

def f32(x):
    return '0x%08x' % struct.unpack('<I', struct.pack('<f', x))[0]

X_SIZE = 64 * 28 * 1024
ST_SIZE = 14 * 2048 * 8
_off = 0
def alloc(n, al=65536):
    global _off
    _off = (_off + al - 1) // al * al
    r = _off
    _off += n
    return r
REUSE = 'noreuse' not in sys.argv
if REUSE:
    WS_XA = WS_XB = alloc(X_SIZE)
    WS_STA = WS_STB = alloc(ST_SIZE, 4096)
    WS_O = WS_OA = alloc(64 * 16 * 2048)
    WS_KV = alloc(2 * 16 * 64 * 4096)
    WS_Q = 0
    BLK = 0
    KVB = 16 * 64 * 4096
else:
    WS_XA = alloc(X_SIZE); WS_XB = alloc(X_SIZE)
    WS_STA = alloc(ST_SIZE); WS_STB = alloc(ST_SIZE)
    WS_OA = alloc(64 * 16 * 2048)
    WS_Q = alloc(16 * 64 * 2048)
    WS_KV = alloc(16 * 64 * 4096)
    WS_O = alloc(64 * 16 * 2048)
    BLK = alloc(0)
    KVB = BLK
    _off = 2 * BLK
IMG_HEAD = 84 * 1024
WS_IMG = [alloc(16 * IMG_HEAD), alloc(16 * IMG_HEAD)]
WS_ZERO = alloc(0)
WS_KVACC = alloc(2 * 16 * 4096)
WS_FLAG = alloc(256 * 128, 4096)
WS_LFLAG = alloc(256 * 128, 4096)
WS_CS = alloc(16384, 4096)
ZERO_SIZE = _off - WS_ZERO
NZERO = ZERO_SIZE // 16384
assert ZERO_SIZE == NZERO * 16384 and NZERO == 13
WS_TOTAL = 1 << 28
WS_DBG = 64 << 20
OOB = 0x40000000

LOG2E = 1.4426950408889634
QSCALE = 28 ** -0.5 * LOG2E
ONES2 = 0x3f803f80
SC = 'sc1'
LD = 'sc1'

L_W = 0
L_S = 84 * 1024
L_KV = L_S + 57344
L_M = L_KV + 16384
L_RS = L_M
L_CS = L_M + 512
LDS_TOTAL = 163840
L_RED = L_S + 4096

INSTR = False
CLK = 's_memrealtime'
FINE = False
DUR = False
WARM = False
PRE = True
RBX = 1
FORCE_GLOBAL = False
DEBUGQ = False
FINE2 = False
TOUCH = True
POLL_LIMIT = 400000

V_L16, V_N, V_HF, V_T0, V_T1, V_PL, V_ST = 1, 2, 3, 4, 5, 6, 7
V_CS = [8, 11]
V_H64, V_ONE = 14, 15
S_WAVE = 's4'
S_RB, S_HQ, S_RP, S_CP, S_HA, S_QB, S_FLAG, S_BLK = 's40', 's41', 's42', 's43', 's41', 's40', 's46', 's47'
S_PROG, S_IT = 's62', 's63'
S_KVB = 's90'
S_XT, S_STT, S_OT = 's84', 's85', 's86'
S_LOC, S_XCC = 's44', 's45'
SRD_WS, SRD_OUT, SRD_DBG = 's[8:11]', 's[32:35]', 's[36:39]'
SRD_X0, SRD_W, SRD_WO = 's[64:67]', ['s[68:71]', 's[72:75]'], ['s[76:79]', 's[80:83]']
WOA = [0, 128]

a = Asm()
_uid = [0]
def uid(p):
    _uid[0] += 1
    return f'{p}_{_uid[0]}'

STAMPS = []
def stamp(name, looped=False):
    if INSTR:
        i = len(STAMPS)
        STAMPS.append((name, looped))
        a(f'{CLK} s[96:97]')
        if looped:
            a(f's_mul_i32 s98, {S_IT}, 27')
            a(f's_add_u32 s98, s98, {i}')
            a('s_mov_b32 m0, s98')
            a('s_waitcnt lgkmcnt(0)')
            a(f'v_writelane_b32 v{V_ST}, s96, m0')
        else:
            a('s_waitcnt lgkmcnt(0)')
            a(f'v_writelane_b32 v{V_ST}, s96, {i}')

def poll(srd, mask, target):
    L = uid('poll')
    if mask != -1:
        a(f's_mov_b64 exec, {mask}')
    a(f's_mov_b32 s48, {POLL_LIMIT}')
    a('s_waitcnt lgkmcnt(0)')
    a.raw(L + ':')
    a(f'buffer_load_dword v{V_PL}, v{V_T0}, {srd}, 0 offen sc1')
    a('s_sub_u32 s48, s48, 1')
    a('s_cbranch_scc1 k_end')
    a('s_waitcnt vmcnt(0)')
    a(f'v_cmp_le_u32 vcc, {target}, v{V_PL}')
    a('s_cmp_eq_u64 vcc, exec')
    a(f's_cbranch_scc0 {L}')
    if mask != -1:
        a('s_mov_b64 exec, -1')

def signal(inc=1, lg=True, local=False, with_xcc=False, wait_tag=None, barrier=True):
    L = uid('sig')
    if barrier:
        if wait_tag:
            a.wait_tag(wait_tag)
        else:
            a('s_waitcnt vmcnt(0) lgkmcnt(0)' if lg else 's_waitcnt vmcnt(0)')
        a('s_barrier')
    a(f's_cmp_lg_u32 {S_WAVE}, 0')
    a(f's_cbranch_scc1 {L}')
    sv = list(a.st.hist)
    a(f's_add_u32 s48, {S_PROG}, {inc}')
    a(f'v_mov_b32 v{V_T0}, s48')
    a(f'v_mov_b32 v{V_PL}, 0')
    a('s_mov_b64 exec, 1')
    if with_xcc:
        a(f'v_mov_b32 v{V_T1}, {S_XCC}')
        a.raw(f'  buffer_store_dwordx2 v[{V_T0}:{V_T1}], v{V_PL}, {SRD_WS}, {S_FLAG} offen sc1')
    elif local:
        a(f's_add_u32 s48, {S_FLAG}, {WS_LFLAG - WS_FLAG}')
        lstore([f'buffer_store_dword v{V_T0}, v{V_PL}, {SRD_WS}, s48 offen'], track=False)
    else:
        a.raw(f'  buffer_store_dword v{V_T0}, v{V_PL}, {SRD_WS}, {S_FLAG} offen sc1')
    a('s_mov_b64 exec, -1')
    a('s_nop 1')
    a.st.hist = sv
    a.raw(L + ':')

def lstore(stores, track=True):
    L1, L2 = uid('ls'), uid('ls')
    a(f's_cmp_lg_u32 {S_LOC}, 0')
    a(f's_cbranch_scc1 {L1}')
    n0 = len(a.lines)
    sv = (list(a.st.hist), list(a.st.vm), list(a.st.lg))
    for x in stores:
        a(x + ' sc1')
    t1 = a.lines[n0:]
    a.raw(f'  s_branch {L2}')
    a.raw(L1 + ':')
    a.st.hist, a.st.vm, a.st.lg = list(sv[0]), list(sv[1]), list(sv[2])
    for x in stores:
        a(x)
    a.raw(L2 + ':')
    if not track:
        a.st.vm = list(sv[1])

def advance(n=1):
    a(f's_add_u32 {S_PROG}, {S_PROG}, {n}')

def flag_addr(local=False):
    a(f'v_lshlrev_b32 v{V_T0}, 7, v{V_T0}')
    a(f'v_add_u32 v{V_T0}, {WS_LFLAG if local else WS_FLAG}, v{V_T0}')

def ids16(sreg):
    a(f'v_lshrrev_b32 v{V_T1}, 4, v{V_L16}')
    a(f'v_lshrrev_b32 v{V_T0}, 1, v{V_T1}')
    a(f'v_and_b32 v{V_T1}, 1, v{V_T1}')
    a(f'v_lshl_add_u32 v{V_T0}, v{V_T1}, 3, v{V_T0}')
    a(f's_lshl_b32 s48, {sreg}, 4')
    a(f'v_add_u32 v{V_T0}, s48, v{V_T0}')
    flag_addr()

def ids_qkv_rows(hreg):
    if RBX == 1:
        return ids16(hreg)
    a(f'v_lshrrev_b32 v{V_T0}, 6, v{V_L16}')
    a(f'v_lshlrev_b32 v{V_T0}, 1, v{V_T0}')
    a(f'v_bfe_u32 v{V_T1}, v{V_L16}, 4, 2')
    a(f'v_lshl_add_u32 v{V_T0}, v{V_T1}, 3, v{V_T0}')
    a(f's_lshr_b32 s48, {hreg}, 3')
    a(f's_and_b32 s49, {hreg}, 7')
    a('s_lshl_b32 s49, s49, 5')
    a('s_add_u32 s48, s48, s49')
    a(f'v_add_u32 v{V_T0}, s48, v{V_T0}')
    flag_addr()

def ids_qkv_heads(rbreg):
    if RBX == 1:
        a(f's_lshr_b32 s48, {rbreg}, 1')
        a(f's_and_b32 s49, {rbreg}, 1')
        a('s_lshl_b32 s49, s49, 3')
        a('s_add_u32 s48, s48, s49')
        a(f'v_add_u32 v{V_T0}, s48, v{V_L16}')
        return flag_addr(True)
    a(f'v_lshrrev_b32 v{V_T0}, 7, v{V_L16}')
    a(f'v_bfe_u32 v{V_T1}, v{V_L16}, 4, 3')
    a(f'v_lshl_add_u32 v{V_T0}, v{V_T1}, 5, v{V_T0}')
    a(f's_lshr_b32 s48, {rbreg}, 2')
    a('s_lshl_b32 s48, s48, 1')
    a(f's_and_b32 s49, {rbreg}, 3')
    a('s_lshl_b32 s49, s49, 3')
    a('s_add_u32 s48, s48, s49')
    a(f'v_add_u32 v{V_T0}, s48, v{V_T0}')
    flag_addr()

V_DUM = 250
def pretouch_setup(isA, blk):
    o, x, st = (WS_OA, WS_XA, WS_STA) if isA else (WS_O, WS_XB, WS_STB)
    for r, base, off in (('s87', S_OT, o), ('s88', S_XT, x), ('s89', S_STT, st)):
        if isinstance(blk, int):
            a(f's_add_u32 {r}, {base}, {off + blk}')
        else:
            a(f's_add_u32 {r}, {base}, {off}')
            a(f's_add_u32 {r}, {r}, {blk}')
    a(f'v_lshlrev_b32 v{V_DUM}, 1, v{V_L16}')
def pretouch():
    if PRE:
        a(f'buffer_load_dword v255, v{V_DUM}, {SRD_WS}, s87 offen sc1')
        a(f'buffer_load_dword v255, v{V_DUM}, {SRD_WS}, s88 offen sc1')
        a('s_mov_b64 exec, 0xff')
        a(f'buffer_load_dword v255, v{V_DUM}, {SRD_WS}, s89 offen sc1')
        a('s_mov_b64 exec, -1')

def touch_img(which):
    a(f's_mul_i32 s48, {S_HQ}, {IMG_HEAD}')
    a(f's_and_b32 s49, {S_RB}, 1')
    a(f's_lshl_b32 s49, s49, 2')
    a(f's_add_u32 s49, s49, {S_WAVE}')
    a(f's_mul_i32 s49, s49, {IMG_HEAD // 8}')
    a('s_add_u32 s48, s48, s49')
    a(f's_add_u32 s48, s48, {WS_IMG[which]}')
    a(f'v_lshlrev_b32 v254, 2, v{V_L16}')
    for k in range(3):
        a(f'buffer_load_dword v255, v254, {SRD_WS}, s48 offen sc1')
        if k < 2:
            a('s_add_u32 s48, s48, 4096')

def prologue():
    a.raw(kernel_header(KNAME))
    a('s_cmp_ge_u32 s2, 256')
    a('s_cbranch_scc1 k_end')
    a('s_getpc_b64 s[54:55]')
    a.raw('pc_base:')
    a('s_lshr_b32 s6, s2, 3')
    a('s_and_b32 s6, s6, 1')
    a('s_lshl_b32 s6, s6, 14')
    a('v_lshl_add_u32 v254, v0, 6, s6')
    a('v_min_u32 v254, code_end-pc_base-4, v254')
    a('s_cmp_ge_u32 s2, 16')
    a('s_cbranch_scc1 no_code_touch')
    a.raw('  global_load_dword v255, v254, s[54:55]')
    a.raw('no_code_touch:')
    if DUR: a('s_memrealtime s[92:93]')
    a('s_load_dwordx2 s[64:65], s[0:1], 0')
    a('s_load_dwordx2 s[68:69], s[0:1], 8')
    a('s_load_dwordx2 s[8:9], s[0:1], 64')
    a('s_load_dwordx2 s[76:77], s[0:1], 16')
    a('s_load_dwordx2 s[72:73], s[0:1], 32')
    a('s_load_dwordx2 s[80:81], s[0:1], 40')
    a('s_load_dwordx2 s[32:33], s[0:1], 48')
    a('s_load_dwordx2 s[36:37], s[0:1], 56')
    a(f'v_and_b32 v13, 63, v0')
    a(f'v_lshrrev_b32 v{V_T0}, 6, v0')
    a(f'v_and_b32 v{V_N}, 31, v0')
    a(f'v_readfirstlane_b32 {S_WAVE}, v{V_T0}')
    a(f'v_bfe_u32 v{V_HF}, v0, 5, 1')
    a(f'v_lshlrev_b32 v{V_L16}, 4, v13')
    a(f'v_mov_b32 v{V_ST}, 0')
    a('s_and_b32 s5, s2, 7')
    a('s_lshr_b32 s6, s2, 3')
    if RBX == 2:
        a('s_lshl_b32 s7, s5, 1')
        a('s_and_b32 s7, s7, 12')
        a('s_and_b32 s12, s6, 3')
        a(f's_add_u32 {S_RB}, s7, s12')
        a('s_and_b32 s7, s5, 1')
        a('s_lshl_b32 s7, s7, 3')
        a('s_lshr_b32 s12, s6, 2')
        a(f's_add_u32 {S_HQ}, s7, s12')
    else:
        a('s_lshl_b32 s7, s5, 1')
        a('s_and_b32 s12, s6, 1')
        a(f's_add_u32 {S_RB}, s7, s12')
        a(f's_lshr_b32 {S_HQ}, s6, 1')
    a('s_lshl_b32 s7, s5, 2')
    a('s_and_b32 s12, s6, 3')
    a(f's_add_u32 {S_RP}, s7, s12')
    a(f's_lshr_b32 {S_CP}, s6, 2')
    a(f's_lshr_b32 s7, {S_WAVE}, 1')
    a(f's_lshl_b32 s12, {S_RP}, 1')
    a('s_add_u32 s7, s7, s12')
    a(f's_and_b32 s12, {S_WAVE}, 1')
    a(f's_min_u32 s13, {S_CP}, 6')
    a('s_lshl_b32 s13, s13, 1')
    a('s_add_u32 s12, s12, s13')
    a(f's_mul_i32 {S_XT}, s7, {28*1024}')
    a('s_lshl_b32 s13, s12, 11')
    a(f's_add_u32 {S_XT}, {S_XT}, s13')
    a(f's_lshl_b32 {S_STT}, s12, 14')
    a('s_lshl_b32 s13, s7, 8')
    a(f's_add_u32 {S_STT}, {S_STT}, s13')
    a(f's_lshl_b32 {S_OT}, {S_RB}, 2')
    a(f's_add_u32 {S_OT}, {S_OT}, {S_WAVE}')
    a(f's_lshl_b32 {S_OT}, {S_OT}, 15')
    a(f's_lshl_b32 s13, {S_HQ}, 11')
    a(f's_add_u32 {S_OT}, {S_OT}, s13')
    a(f's_lshl_b32 {S_FLAG}, s2, 7')
    a(f's_add_u32 {S_FLAG}, {S_FLAG}, {WS_FLAG}')
    a(f's_mov_b32 {S_BLK}, 0')
    a(f's_mov_b32 {S_KVB}, 0')
    a(f's_getreg_b32 {S_XCC}, hwreg(HW_REG_XCC_ID, 0, 4)')
    a(f's_add_u32 {S_XCC}, {S_XCC}, 1')
    a(f's_mov_b32 {S_LOC}, 0')
    a(f's_mov_b32 {S_PROG}, 0')
    a(f's_mov_b32 {S_IT}, 0')
    for r in (11, 35, 39, 67, 71, 75, 79, 83):
        a(f's_mov_b32 s{r}, 0x20000')
    a(f's_mov_b32 s10, {WS_TOTAL}')
    a(f's_mov_b32 s34, {2048*448*2}')
    a('s_mov_b32 s38, 256')
    a(f's_mov_b32 s66, {2048*448*2}')
    a(f's_mov_b32 s70, {448*1344*2}')
    a(f's_mov_b32 s74, {448*1344*2}')
    a(f's_mov_b32 s78, {448*448*2}')
    a(f's_mov_b32 s82, {448*448*2}')
    a(f'v_add_u32 v{V_H64}, 65536, v{V_L16}')
    a(f'v_cmp_eq_u32 vcc, 28, v{V_N}')
    a(f'v_mov_b32 v{V_ONE}, {ONES2}')
    a(f'v_cndmask_b32 v{V_ONE}, 0, v{V_ONE}, vcc')
    a('s_waitcnt lgkmcnt(0)')
    for r in (9, 33, 37, 65, 69, 73, 77, 81):
        a(f's_and_b32 s{r}, s{r}, 0xffff')
    stamp('start')

ZROLE0 = 243
def zero_role():
    L = uid('z')
    a(f's_cmp_lt_u32 s2, {ZROLE0}')
    a(f's_cbranch_scc1 {L}')
    a(f's_sub_u32 s3, s2, {ZROLE0}')
    a('s_lshl_b32 s53, s3, 14')
    a(f's_add_u32 s53, s53, {WS_ZERO}')
    a('v_lshlrev_b32 v16, 4, v0')
    for i in range(4):
        a(f'v_mov_b32 v{20+i}, 0')
    for i in range(4):
        a.raw(f'  buffer_store_dwordx4 v[20:23], v16, {SRD_WS}, s53 offen {SC}')
        if i < 3:
            a('s_add_u32 s53, s53, 4096')
    a('s_lshl_b32 s3, s3, 2')
    a.raw(L + ':')

def zero_publish():
    L = uid('z')
    a(f's_cmp_lt_u32 s2, {ZROLE0}')
    a(f's_cbranch_scc1 {L}')
    a(f's_cmp_lg_u32 {S_WAVE}, 0')
    a(f's_cbranch_scc1 {L}')
    sv = list(a.st.hist)
    a(f'v_mov_b32 v{V_T1}, 1')
    a(f'v_mov_b32 v{V_PL}, 0')
    a('s_mov_b64 exec, 1')
    a.raw(f'  buffer_store_dword v{V_T1}, v{V_PL}, {SRD_DBG}, s3 offen sc1')
    a('s_mov_b64 exec, -1')
    a.st.hist = sv
    a.raw(L + ':')

def img_base(which, sg, sl):
    a(f's_mul_i32 {sl}, {S_WAVE}, {21*1024}')
    a(f's_mul_i32 {sg}, {S_HQ}, {IMG_HEAD}')
    a(f's_add_u32 {sg}, {sg}, {sl}')
    a(f's_add_u32 {sg}, {sg}, {WS_IMG[which]}')

def img_dma(n, sg, sl):
    a(f's_mov_b32 m0, {sl}')
    a(f's_add_u32 {sl}, {sl}, {n*1024}')
    for i in range(n):
        a(f'buffer_load_dwordx4 v{V_L16}, {SRD_WS}, {sg} offen offset:{i*1024} {SC} lds')
    a(f's_add_u32 {sg}, {sg}, {n*1024}')

def w_prefetch(which, parts):
    for n in parts:
        img_dma(n, 's60', 's61')

def stage_wo_issue(which, lds, tmp, tag, defer=False):
    a(f'v_lshrrev_b32 v{tmp}, 7, v{V_L16}')
    a(f'v_mul_u32_u24 v{tmp}, 896, v{tmp}')
    a(f'v_lshrrev_b32 v{tmp+1}, 2, v{V_L16}')
    a(f'v_and_b32 v{tmp+1}, 64, v{tmp+1}')
    a(f'v_xor_b32 v{tmp+1}, v{tmp+1}, v{V_L16}')
    a(f'v_and_b32 v{tmp+1}, 0x70, v{tmp+1}')
    a(f's_min_u32 s48, {S_CP}, 6')
    a('s_lshl_b32 s48, s48, 7')
    a(f'v_add3_u32 v{tmp}, v{tmp}, v{tmp+1}, s48')
    a(f's_mul_i32 s26, {S_WAVE}, {112*896}')
    a(f's_mul_i32 s27, {S_WAVE}, {14*1024}')
    def one(i, wh=which, tg=tag):
        a(f's_add_u32 m0, s27, {lds + i*1024}')
        a(f's_add_u32 s25, s26, {i*7168}')
        a.inst(f'buffer_load_dwordx4 v{tmp}, {SRD_WO[wh]}, s25 offen lds', tag=tg)
    class TH(list): pass
    th = TH((lambda i=i: one(i)) for i in range(14))
    th.one = one
    return th

def stage_wo_addr(lds, tmp):
    a(f'v_bfe_u32 v{tmp}, v{V_L16}, 6, 2')
    a(f'v_lshl_add_u32 v{tmp}, v{V_HF}, 2, v{tmp}')
    a(f'v_lshlrev_b32 v{tmp}, 7, v{tmp}')
    a(f'v_bfe_u32 v{tmp+1}, v{V_L16}, 7, 1')
    a(f's_and_b32 s49, {S_WAVE}, 1')
    a(f'v_xor_b32 v{tmp+1}, s49, v{tmp+1}')
    a(f'v_lshl_add_u32 v{tmp}, v{tmp+1}, 6, v{tmp}')
    a(f'v_bfe_u32 v{tmp+1}, v{V_L16}, 8, 1')
    a(f'v_lshl_add_u32 v{tmp}, v{tmp+1}, 5, v{tmp}')
    a(f'v_bfe_u32 v{tmp+1}, v{V_L16}, 4, 2')
    a(f'v_lshl_add_u32 v{tmp}, v{tmp+1}, 3, v{tmp}')
    a(f'v_add_u32 v{tmp}, {lds}, v{tmp}')

def stage_wo_reads(which, tmp):
    B = WOA[which]
    return [f'ds_read_b64_tr_b16 a[{B + 4*(2*h+u) + 2*q}:{B + 4*(2*h+u) + 2*q + 1}], v{tmp} offset:{(28*h + 16*u + 8*q)*128}'
            for h in range(16) for u in range(2) for q in range(2)]

def stage_wo_pads(which):
    B = WOA[which]
    a('s_mov_b32 exec_lo, 0')
    for h in range(16):
        r = B + 4 * (2 * h + 1) + 2
        a(f'v_accvgpr_write_b32 a{r}, 0')
        a(f'v_accvgpr_write_b32 a{r+1}, 0')
    a('s_mov_b32 exec_lo, -1')

X, AK, AV, AQ, WR, RS, WE, XE, T, E = 16, 128, 144, 160, 176, 200, 216, 228, 232, 244
ST = AQ
NWR = 6

def ln_stats(isA):
    L = [f's_mov_b32 s16, {f32(1.0/448)}',
         f'v_mul_f32 v{ST}, s16, v{ST}',
         f'v_mul_f32 v{ST+1}, s16, v{ST+1}',
         f'v_fma_f32 v{ST+1}, -v{ST}, v{ST}, v{ST+1}',
         f'v_max_f32 v{ST+1}, 0, v{ST+1}',
         f'v_add_f32 v{ST+1}, {f32(1e-5)}, v{ST+1}',
         f'v_rsq_f32 v{T}, v{ST+1}',
         f'v_sub_f32 v{ST}, 0, v{ST}',
         f'ds_write_b32 v{T+8}, v{T}']
    L += [f'ds_read_b128 v[{RS+4*g}:{RS+4*g+3}], v{T+9} offset:{32*g}' for g in range(4)]
    L += [f'v_and_b32 v{T+4}, 0xffff0000, v{ST}',
          f'v_sub_f32 v{T+5}, v{ST}, v{T+4}',
          f'v_and_b32 v{T+6}, 0xffff0000, v{T+5}',
          f'v_sub_f32 v{T+7}, v{T+5}, v{T+6}',
          f'v_perm_b32 v{XE}, v{T+4}, v{T+4}, s17',
          f'v_perm_b32 v{XE+1}, v{T+6}, v{T+4}, s17',
          f'v_perm_b32 v{XE+2}, v{T+7}, v{T+6}, s17',
          f'v_mov_b32 v{XE+3}, 0',
          f'v_mul_f32 v{T+2}, {f32(LOG2E if isA else QSCALE)}, v{T}']
    return L

def rs_addr():
    a(f's_lshl_b32 s18, {S_WAVE}, 7')
    a(f's_add_u32 s18, s18, {L_RS}')
    a(f'v_lshl_add_u32 v{T+8}, v{V_N}, 2, s18')
    a(f'v_lshl_add_u32 v{T+9}, v{V_HF}, 4, s18')
    a('s_mov_b32 s17, 0x07060302')

def halves_add(r, n, tmp):
    return ([f'v_mov_b32 v{tmp+i}, v{r+i}' for i in range(n)] +
            [f'v_permlane32_swap_b32 v{r+i}, v{tmp+i}' for i in range(n)] +
            [f'v_add_f32 v{r+i}, v{r+i}, v{tmp+i}' for i in range(n)])

def we_build(which, c):
    L = [f'v_cmp_eq_u32 s[56:57], 0, v{V_HF}']
    for p in (1, 2, 0):
        L += [f'v_cndmask_b32 v{c}, 0, v{V_CS[which]+p}, s[56:57]',
              f'v_and_b32 v{c+1}, 0xffff0000, v{c}',
              f'v_sub_f32 v{c}, v{c}, v{c+1}',
              f'v_and_b32 v{c+2}, 0xffff0000, v{c}',
              f'v_sub_f32 v{c+3}, v{c}, v{c+2}',
              f'v_perm_b32 v{WE+4*p}, v{c+2}, v{c+1}, s17',
              f'v_perm_b32 v{WE+4*p+1}, v{c+1}, v{c+3}, s17',
              f'v_perm_b32 v{WE+4*p+2}, v{c+1}, v{c+2}, s17',
              f'v_mov_b32 v{WE+4*p+3}, 0']
    return L

AT_Q = 16

def phase_qkv(isA, first):
    lp = not isA
    nm = 'qa0' if first else ('qa1' if isA else 'qb')
    wsel = 0 if isA else 1
    trans = [True, not isA, False]
    accb = [AQ, AK, AV]
    started = [False] * 3
    fill = []
    def pop(n):
        for _ in range(n):
            if fill:
                x = fill.pop(0)
                if callable(x): x()
                else: a(x)
    def mm(p, w, x):
        d = f'v[{accb[p]}:{accb[p]+15}]'
        c = d if started[p] else '0'
        started[p] = True
        if trans[p]:
            a(f'v_mfma_f32_32x32x16_bf16 {d}, {w}, {x}, {c}')
        else:
            a(f'v_mfma_f32_32x32x16_bf16 {d}, {x}, {w}, {c}')
    seq = [(t, p) for t in range(28) for p in (1, 2)] + [(t, 0) for t in range(28)]
    AH = NWR - 1
    def wread(i):
        if i < len(seq):
            t, p = seq[i]
            r = WR + 4 * (i % NWR)
            o = L_W + (3 * t + p) * 1024
            if first:
                for q in range(2):
                    a(f'ds_read_b64_tr_b16 v[{r+2*q}:{r+2*q+1}], v{T+10 + (o >= 65536)} offset:{o % 65536 + q*512}')
            else:
                a(f'ds_read_b128 v[{r}:{r+3}], v{V_L16 if o < 65536 else V_H64} offset:{o % 65536}')
    def wmm(i):
        t, p = seq[i]
        r = WR + 4 * (i % NWR)
        mm(p, f'v[{r}:{r+3}]', f'v[{X+4*t}:{X+4*t+3}]')
    def extra(p):
        mm(p, f'v[{WE+4*p}:{WE+4*p+3}]', f'v[{XE}:{XE+3}]')
    a(f's_lshl_b32 s7, {S_RB}, 2')
    a(f's_add_u32 s7, s7, {S_WAVE}')
    a(f's_mul_i32 s20, s7, {28*1024}')
    if first:
        XD, XA, WDV, F, TM = AQ + 4, AQ + 6, AQ + 14, RS, WE
        zero_role()
        a(f'v_lshrrev_b32 v{WDV}, 6, v{V_L16}')
        a(f'v_mul_u32_u24 v{WDV}, 2688, v{WDV}')
        a(f'v_and_b32 v{TM}, 48, v{V_L16}')
        a(f's_mul_i32 s12, {S_HQ}, 56')
        a('s_and_b32 s14, s12, 8')
        a('s_sub_u32 s12, s12, s14')
        a(f'v_add3_u32 v{WDV}, v{WDV}, v{TM}, s12')
        a(f's_lshl_b32 s23, {S_RB}, 1')
        a(f's_add_u32 s23, s23, {S_HQ}')
        a('s_mul_i32 s24, s23, 37')
        a('s_lshr_b32 s24, s24, 8')
        a('s_mul_i32 s24, s24, 7')
        a('s_sub_u32 s23, s23, s24')
        a(f's_mul_i32 s15, {S_WAVE}, 3072')
        a(f's_mul_i32 s22, {S_WAVE}, 43008')
        def issue_w(g):
            a(f's_mul_i32 s24, s23, {4*43008}')
            a('s_add_u32 s24, s24, s22')
            for p in (1, 2):
                a(f's_add_u32 m0, s15, {g*12288 + p*1024}')
                a('s_add_u32 s24, s24, 896')
                a.inst(f'buffer_load_dwordx4 v{WDV}, {SRD_W[0]}, s24 offen lds', tag=f'w{g}')
        if FINE2: stamp('p_a')
        issue_w(0)
        a(f'v_lshrrev_b32 v{TM+2}, 7, v{V_L16}')
        a(f'v_mul_u32_u24 v{TM+2}, 896, v{TM+2}')
        a(f'v_bfe_u32 v{TM+3}, v{V_L16}, 4, 3')
        a(f'v_lshrrev_b32 v{TM+4}, 8, v{V_L16}')
        a(f'v_xor_b32 v{TM+3}, v{TM+3}, v{TM+4}')
        a(f'v_lshl_add_u32 v{XD}, v{TM+3}, 4, v{TM+2}')
        a(f'v_xor_b32 v{TM+3}, 4, v{TM+3}')
        a(f'v_lshl_add_u32 v{XD+1}, v{TM+3}, 4, v{TM+2}')
        a(f's_mul_i32 s21, {S_WAVE}, 12288')
        a(f's_add_u32 s21, s21, {L_S}')
        def rot_next():
            a('s_add_u32 s23, s23, 1')
            a('s_cmp_eq_u32 s23, 7')
            a('s_cselect_b32 s23, 0, s23')
        def issue_x(g):
            a(f's_add_u32 m0, s21, {(g%3)*4096}')
            a('s_lshl_b32 s24, s23, 7')
            a('s_add_u32 s24, s24, s20')
            for i in range(4):
                if i: a('s_add_u32 s24, s24, 6144')
                a.inst(f'buffer_load_dwordx4 v{XD+(i&1)}, {SRD_X0}, s24 offen offset:{i*1024} lds', tag=f'g{g}')
            rot_next()
        issue_x(0)
        if FINE2: stamp('p_x0')
        if WARM:
            a('s_lshr_b32 s24, s2, 3')
            a('s_lshl_b32 s24, s24, 2')
            a(f's_add_u32 s24, s24, {S_WAVE}')
            a(f'v_lshlrev_b32 v254, 3, v{V_L16}')
            a(f's_and_b32 s25, {S_RB}, 14')
            a(f's_mul_i32 s25, s25, {128*896}')
            a(f's_mul_i32 s26, s24, {14*128}')
            a('s_add_u32 s25, s25, s26')
            a('s_mov_b64 exec, 0x3fff')
            a(f'buffer_load_dword v255, v254, {SRD_X0}, s25 offen')
            a(f's_mul_i32 s26, s24, {74*128}')
            a('s_mov_b64 exec, 0x3ff')
            a(f'buffer_load_dword v255, v254, {SRD_W[0]}, s26 offen')
            a('s_mov_b64 exec, -1')
            a(f'buffer_load_dword v255, v254, {SRD_W[0]}, s26 offen offset:{10*128}')
        a(f's_lshl_b32 s13, {S_WAVE}, 12')
        a(f's_add_u32 s13, s13, {L_KV}')
        if FINE2: stamp('p_rp')
        a(f'v_bfe_u32 v{TM+2}, v{V_N}, 1, 3')
        a(f'v_lshl_add_u32 v{TM+3}, v{V_N}, 7, s21')
        a(f'v_lshl_add_u32 v{TM+3}, v{V_HF}, 3, v{TM+3}')
        for q in range(8):
            a(f'v_xor_b32 v{TM+4}, {q}, v{TM+2}')
            a(f'v_lshl_add_u32 v{XA+q}, v{TM+4}, 4, v{TM+3}')
        a(f'v_and_b32 v{TM+2}, 0xc0, v{V_L16}')
        a(f'v_lshl_add_u32 v{TM+2}, v{V_HF}, 8, v{TM+2}')
        a(f'v_bfe_u32 v{TM+3}, v{V_L16}, 8, 1')
        a(f'v_lshl_add_u32 v{TM+2}, v{TM+3}, 5, v{TM+2}')
        a(f'v_bfe_u32 v{TM+3}, v{V_L16}, 4, 2')
        a(f'v_lshl_add_u32 v{TM+2}, v{TM+3}, 3, v{TM+2}')
        a(f'v_add_u32 v{T+10}, s14, v{TM+2}')
        a(f'v_add_u32 v{T+11}, 65536, v{T+10}')
        a(f'v_add_u32 v{TM+2}, s13, v{T+10}')
        a(f'v_lshlrev_b32 v{E}, 2, v{V_N}')
        a(f'v_lshrrev_b32 v{V_T0}, 2, v{V_L16}')
        a(f's_mov_b32 s19, {ONES2}')
        a(f'v_mov_b32 v{ST}, 0')
        a(f'v_mov_b32 v{ST+1}, 0')
        rs_addr()
        CA, CS, CR = E + 1, E + 3, XE
        a(f'v_add_u32 v{CA}, s15, v{T+10}')
        a(f'v_add_u32 v{CA+1}, s15, v{T+11}')
        a(f'v_mov_b32 v{CS}, 0')
        a(f'v_mov_b32 v{CS+1}, 0')
        if FINE2: stamp('p_adr')
        issue_w(1); issue_x(1)
        if FINE2: stamp('p_g1')
        if FINE2:
            a.wait_tag('g0'); stamp('p_g0w')
        CRS = [[XE, T + 4], [V_CS[0], X + 108]]
        def cs_read(gg, slot):
            for k, p in enumerate((1, 2)):
                for q in range(2):
                    o = gg * 12288 + p * 1024 + q * 512
                    r = CRS[slot][k] + 2 * q
                    a(f'ds_read_b64_tr_b16 v[{r}:{r+1}], v{CA + (o >= 65536)} offset:{o % 65536}')
        def cs_dot(slot):
            for r in range(4):
                for k in range(2):
                    a(f'v_dot2_f32_bf16 v{CS+k}, v{CRS[slot][k]+r}, s19, v{CS+k}')
        def open_group(g):
            a.wait_tag(f'g{g}')
            if g == 5:
                a.wait_tag('pub')
            if g == 6:
                a.wait_tag('csw', 'lg')
            a('s_barrier')
            if g == 0:
                zero_publish()
            if g == 5:
                signal(1, with_xcc=True, barrier=False); advance()
                if FINE: stamp('i_sig')
            for q in range(8):
                r = X + 16 * g + 2 * q
                a(f'ds_read_b64 v[{r}:{r+1}], v{XA+q} offset:{(g%3)*4096}')
            if g < 6:
                cs_read(g, 0)
        def rp_issue():
            for k in range(2):
                a(f's_add_u32 s24, s7, {64*k}')
                a('s_mul_i32 s25, s24, 171')
                a('s_lshr_b32 s25, s25, 9')
                a('s_mul_i32 s26, s25, 45')
                a('s_add_u32 s26, s26, s24')
                a('s_mul_i32 s26, s26, 896')
                if k:
                    a('s_cmp_ge_u32 s24, 84')
                    a(f's_cselect_b32 s26, {OOB}, s26')
                for wh in range(2):
                    a(f's_add_u32 m0, s13, {(2*k+wh)*1024}')
                    a.inst(f'buffer_load_dwordx4 v{WDV}, {SRD_W[wh]}, s26 offen lds', tag='rp')
                a('s_mul_i32 s25, s25, 3')
                a('s_sub_u32 s25, s24, s25')
                a(f's_mul_i32 s{30+k}, {S_HQ}, 3')
                a(f's_add_u32 s{30+k}, s{30+k}, s25')
                a(f's_lshl_b32 s{30+k}, s{30+k}, 7')
                a(f's_add_u32 s{30+k}, s{30+k}, {WS_CS}')
                a('s_lshl_b32 s25, s24, 10')
                a(f's_mul_i32 s{28+k}, {S_HQ}, {IMG_HEAD}')
                a(f's_add_u32 s{28+k}, s{28+k}, s25')
                a(f's_add_u32 s{28+k}, s{28+k}, {WS_IMG[0]}')
                if k:
                    a('s_cmp_ge_u32 s24, 84')
                    a(f's_cselect_b32 s29, {OOB}, s29')
                    a(f's_cselect_b32 s31, {OOB}, s31')
        def rp_read():
            a.wait_tag('rp')
            for b in range(4):
                for q in range(2):
                    a(f'ds_read_b64_tr_b16 v[{F+4*b+2*q}:{F+4*b+2*q+1}], v{TM+2} offset:{b*1024 + q*512}')
        def rp_store():
            for k in range(2):
                a(f'buffer_store_dwordx4 v[{F+8*k}:{F+8*k+3}], v{V_L16}, {SRD_WS}, s{28+k} offen {SC}')
                a(f's_add_u32 s{28+k}, s{28+k}, {WS_IMG[1]-WS_IMG[0]}')
                a(f'buffer_store_dwordx4 v[{F+8*k+4}:{F+8*k+7}], v{V_L16}, {SRD_WS}, s{28+k} offen {SC}')
        def rp_dot():
            for r in range(4):
                for b in range(4):
                    a(f'v_dot2_f32_bf16 v{TM+4+b}, v{F+4*b+r}, s19, {"0" if r == 0 else f"v{TM+4+b}"}')
            fill.extend(halves_add(TM + 4, 4, TM + 8))
        def look(mask_lo, mask_hi, srd, target, pmask):
            Lk = uid('look')
            a(f'v_cmp_le_u32 vcc, {target}, v{V_PL}')
            a(f's_mov_b32 s58, {mask_lo}')
            a(f's_mov_b32 s59, {mask_hi}')
            a('s_and_b64 vcc, vcc, s[58:59]')
            a('s_cmp_eq_u64 vcc, s[58:59]')
            a(f's_cbranch_scc1 {Lk}')
            sv = (list(a.st.hist), list(a.st.vm), list(a.st.lg))
            poll(srd, 's[58:59]', target)
            a.st.hist, a.st.vm, a.st.lg = sv
            a.raw(Lk + ':')
        def rp_pub():
            assert not fill
            look((1 << NZERO) - 1, 0, SRD_DBG, 1, None)
            a('s_mov_b32 exec_hi, 0')
            for k in range(2):
                a(f'buffer_atomic_add_f32 v{TM+4+2*k}, v{E}, {SRD_WS}, s{30+k} offen sc1')
                a(f's_add_u32 s{30+k}, s{30+k}, {16*3*128}')
                a.inst(f'buffer_atomic_add_f32 v{TM+5+2*k}, v{E}, {SRD_WS}, s{30+k} offen sc1', tag='pub')
            a('s_mov_b32 exec_hi, -1')
        def warm_wo():
            a('s_lshr_b32 s24, s2, 3')
            a('s_lshl_b32 s24, s24, 2')
            a(f's_add_u32 s24, s24, {S_WAVE}')
            a(f'v_lshlrev_b32 v254, 3, v{V_L16}')
            a(f's_mul_i32 s26, s24, {25*128}')
            a('s_mov_b64 exec, 0x1ffffff')
            a(f'buffer_load_dword v255, v254, {SRD_WO[0]}, s26 offen')
            a(f'buffer_load_dword v255, v254, {SRD_WO[1]}, s26 offen')
            a('s_mov_b64 exec, -1')
        def flags_issue():
            ids_qkv_rows(S_HQ)
            a('s_and_b32 s48, s2, 7')
            a('s_lshl_b32 s48, s48, 7')
            a(f's_add_u32 s48, s48, {WS_FLAG + 4}')
            a(f'v_lshl_add_u32 v{V_T1}, v{V_N}, 10, s48')
            a(f'v_cmp_eq_u32 vcc, 1, v{V_HF}')
            a(f'v_cndmask_b32 v{V_T0}, v{V_T0}, v{V_T1}, vcc')
            a(f'buffer_load_dword v{V_PL}, v{V_T0}, {SRD_WS}, 0 offen sc1')
            a(f's_mul_i32 s28, {S_HQ}, {IMG_HEAD}')
            a('s_add_u32 s28, s28, s15')
            a(f's_add_u32 s28, s28, {WS_IMG[0]}')
            a(f's_mul_i32 s29, {S_HQ}, 384')
            a(f's_add_u32 s29, s29, {WS_CS}')
        def flags_check():
            look(0xffff, -1, SRD_WS, S_PROG, None)
            stamp(f'{nm}_go', lp)
            for wh in range(2):
                for p in (0, 1, 2):
                    a(f'buffer_load_dword v{V_CS[wh]+p}, v253, {SRD_WS}, s29 offen offset:{p*128} {SC}')
                if wh == 0:
                    a(f's_add_u32 s29, s29, {16*3*128}')
            a(f'v_cmp_eq_u32 vcc, {S_XCC}, v{V_PL}')
            a('s_cmp_eq_u32 vcc_hi, -1')
            a(f's_cselect_b32 {S_LOC}, {0 if FORCE_GLOBAL else 1}, 0')
        def issue_q(g):
            a(f's_mul_i32 s24, s23, {4*43008}')
            a('s_add_u32 s24, s24, s22')
            a(f's_add_u32 m0, s15, {g*12288}')
            rot_next()
            a.inst(f'buffer_load_dwordx4 v{WDV}, {SRD_W[0]}, s24 offen lds', tag='wq')
        AH0 = 4
        open_group(0)
        for i in range(AH0):
            wread(i)
        for g in range(7):
            if FINE: stamp(f'qa0_g{g}')
            if g == 5:
                a.wait_tag('w6')
                cs_read(6, 1)
            for r in range(X + 16 * g, X + 16 * g + 16):
                a(f'v_dot2_f32_bf16 v{ST}, v{r}, s19, v{ST}')
                a(f'v_dot2_f32_bf16 v{ST+1}, v{r}, v{r}, v{ST+1}')
            if g < 6:
                cs_dot(0)
            if g == 2:
                rp_dot()
            if g == 5:
                cs_dot(1)
                for x in halves_add(CS, 2, XE): a(x)
                a(f's_lshl_b32 s12, {S_WAVE}, 8')
                a(f's_add_u32 s12, s12, {L_CS}')
                a(f'v_add_u32 v{XE+2}, s12, v{E}')
                a.inst(f'ds_write2_b32 v{XE+2}, v{CS}, v{CS+1} offset0:0 offset1:32', tag='csw')
            if g == 6:
                c = TM
                L = [f'v_add_u32 v{CA}, {L_CS}, v{E}']
                for k in range(2):
                    L += [f'ds_read2_b32 v[{c+4*k}:{c+4*k+1}], v{CA} offset0:{32*k} offset1:{32*k+64}',
                          f'ds_read2_b32 v[{c+4*k+2}:{c+4*k+3}], v{CA} offset0:{32*k+128} offset1:{32*k+192}']
                L += halves_add(ST, 2, ST + 2) + ln_stats(True)
                for k in range(2):
                    L += [f'v_add_f32 v{c+4*k}, v{c+4*k}, v{c+4*k+1}', f'v_add_f32 v{c+4*k+2}, v{c+4*k+2}, v{c+4*k+3}',
                          f'v_add_f32 v{V_CS[0]+1+k}, v{c+4*k}, v{c+4*k+2}']
                L += we_build(0, T + 4)[:19]
                fill.extend(L)
            for fl in range(8):
                i = 8 * g + fl
                wmm(i)
                if g == 0:
                    if fl == 0: issue_w(2)
                    if fl == 1: issue_x(2)
                    if fl == 4: rp_issue()
                    if fl == 5: issue_w(3)
                    if fl == 7: issue_x(3)
                elif g + 3 < 7:
                    if fl == 5: issue_w(g + 3)
                    if fl == 6: issue_x(g + 3)
                if g == 1 and fl == 4: rp_read()
                if g == 1 and fl == 7: rp_store()
                if g == 2 and fl == 0: a(f'buffer_load_dword v{V_PL}, v{V_T0}, {SRD_DBG}, 0 offen sc1')
                if g == 3 and fl == 0: rp_pub()
                if g == 4 and fl != 3: issue_q(fl - (fl > 3))
                if g == 5 and fl == 0: warm_wo()
                if g == 5 and fl == 5:
                    pretouch_setup(True, 0); pretouch()
                if g == 6 and fl == 3:
                    a.wait_tag('wq')
                    a('s_barrier')
                if fl == 3 and g < 6:
                    open_group(g + 1)
                wread(i + AH0)
                pop(4)
        pop(99)
        extra(1); extra(2)
        wread(56 + AH0)
        a(f'v_mov_b32 v253, v{E}')
    else:
        xo, so = (WS_XB, WS_STB) if isA else (WS_XA, WS_STA)
        a(f's_add_u32 s20, s20, {xo}')
        a('s_lshl_b32 s21, s7, 8')
        a(f's_add_u32 s21, s21, {so}')
        if not isA:
            a(f's_add_u32 s20, s20, {S_BLK}')
            a(f's_add_u32 s21, s21, {S_BLK}')
        a(f'v_lshlrev_b32 v{T+11}, 3, v{V_N}')
        a(f'v_lshl_add_u32 v{T+11}, v{V_HF}, 14, v{T+11}')
        rs_addr()
        pretouch_setup(isA, BLK if isA else S_BLK)
        a(f'v_lshrrev_b32 v{V_T1}, 4, v{V_L16}')
        a('s_lshr_b32 s48, s7, 3')
        a('s_lshr_b32 s49, s7, 1')
        a('s_and_b32 s49, s49, 3')
        a('s_lshl_b32 s49, s49, 3')
        a('s_add_u32 s48, s48, s49')
        a(f'v_lshl_add_u32 v{V_T0}, v{V_T1}, 5, s48')
        flag_addr(True)
        for x in we_build(wsel, X):
            a(x)
        if not isA:
            wob = stage_wo_issue(1, L_S, 251, 'wob', defer=True)
            a(f's_cmp_lg_u32 {S_IT}, 0')
            a(f's_cselect_b32 s26, {OOB}, s26')
        for i in range(AH):
            wread(i)
        poll(SRD_WS, 0x7f, S_PROG)
        stamp(f'{nm}_go', lp)
        def xload(t):
            r = X + 4 * t
            a(f'buffer_load_dwordx4 v[{r}:{r+3}], v{V_L16}, {SRD_WS}, s20 offen offset:{(t%4)*1024} {LD}')
            if t % 4 == 3 and t != 27:
                a('s_add_u32 s20, s20, 4096')
        def stload(i):
            a(f'buffer_load_dwordx2 v[{ST+2*i}:{ST+2*i+1}], v{T+11}, {SRD_WS}, s21 offen {LD}')
            if i < 6:
                a('s_add_u32 s21, s21, 32768')
        for t in range(8):
            xload(t)
        nx = 8
        for i in range(56):
            t = i >> 1
            if i == 24:
                for k in range(1, 7):
                    fill.append(f'v_add_f32 v{ST}, v{ST}, v{ST+2*k}')
                    fill.append(f'v_add_f32 v{ST+1}, v{ST+1}, v{ST+2*k+1}')
                fill.extend(halves_add(ST, 2, ST + 2) + ln_stats(isA))
            if i == 48:
                assert not fill
                extra(1); extra(2)
            wmm(i)
            if i % 2 == 0:
                for _ in range(2 if i < 12 else 1):
                    if nx < 28:
                        xload(nx); nx += 1
            if i == 1:
                for k in range(7):
                    stload(k)
            if i == 31:
                assert nx == 28
                pretouch()
            wread(i + AH)
            pop(2)
            if False: stamp(f'qb_t{t}', True)
        assert nx == 28 and not fill
    stamp(f'{nm}_mm', lp)
    KF, VF, QF = AK, AK + 8, AT_Q
    def pkmul_lane(dst, src, sc):
        a(f'v_pk_mul_f32 v[{dst}:{dst+1}], v[{src}:{src+1}], v[{sc}:{sc+1}] op_sel_hi:[1,0]')
    def v_pads():
        a('s_mov_b32 exec_lo, 0xf0000000')
        a('s_mov_b32 exec_hi, 0xf0000000')
        for r in range(8):
            a(f'v_mov_b32 v{VF+r}, v{V_ONE}')
        a('s_mov_b64 exec, -1')
    def v_epi():
        for r in range(8):
            a(f'v_pk_mul_f32 v[{AV+2*r}:{AV+2*r+1}], v[{AV+2*r}:{AV+2*r+1}], v[{RS+2*r}:{RS+2*r+1}]')
            a(f'v_cvt_pk_bf16_f32 v{VF+r}, v{AV+2*r}, v{AV+2*r+1}')
        v_pads()
    def pass2(npop, hooks):
        if not first:
            extra(0)
        for i in range(56, 84):
            wmm(i)
            wread(i + AH)
            pop(npop)
            if i - 56 in hooks:
                hooks[i - 56]()
    if not isA:
        a(f's_mov_b32 s19, {ONES2}')
        a(f's_lshl_b32 s12, {S_HQ}, 18')
        a('s_lshl_b32 s13, s7, 12')
        a('s_add_u32 s12, s12, s13')
        a(f's_add_u32 s13, s12, {WS_KV}')
        a(f's_add_u32 s13, s13, {S_KVB}')
        for r in range(8):
            pkmul_lane(AK + 2 * r, AK + 2 * r, T)
            a(f'v_cvt_pk_bf16_f32 v{KF+r}, v{AK+2*r}, v{AK+2*r+1}')
            if r == 3:
                a(f'buffer_store_dwordx4 v[{KF}:{KF+3}], v{V_L16}, {SRD_WS}, s13 offen {SC}')
        a('s_mov_b32 exec_lo, 0')
        a(f'v_mov_b32 v{KF+6}, s19')
        a(f'v_mov_b32 v{KF+7}, 0')
        a('s_mov_b32 exec_lo, -1')
        a(f'buffer_store_dwordx4 v[{KF+4}:{KF+7}], v{V_L16}, {SRD_WS}, s13 offen offset:1024 {SC}')
        v_epi()
        a(f'buffer_store_dwordx4 v[{VF}:{VF+3}], v{V_L16}, {SRD_WS}, s13 offen offset:2048 {SC}')
        a.inst(f'buffer_store_dwordx4 v[{VF+4}:{VF+7}], v{V_L16}, {SRD_WS}, s13 offen offset:3072 {SC}', tag='kvs')
        stamp(f'{nm}_epi', lp)
        pass2(0, {2 * k: wob[k] for k in range(14)})
        signal(1, wait_tag='kvs'); advance()
        stamp(f'{nm}_sig', lp)
        SD = AV
        for r in range(8):
            pkmul_lane(AQ + 2 * r, AQ + 2 * r, T + 2)
            a(f'v_cvt_pk_bf16_f32 v{QF+r}, v{AQ+2*r}, v{AQ+2*r+1}')
        a('s_mov_b32 exec_lo, 0')
        a(f'v_mov_b32 v{QF+6}, 0')
        a(f'v_mov_b32 v{QF+7}, 0')
        a('s_mov_b32 exec_lo, -1')
        a(f'v_mfma_f32_32x32x16_bf16 v[{SD}:{SD+15}], v[{KF}:{KF+3}], v[{QF}:{QF+3}], 0')
        a(f'v_mfma_f32_32x32x16_bf16 v[{SD}:{SD+15}], v[{KF+4}:{KF+7}], v[{QF+4}:{QF+7}], v[{SD}:{SD+15}]')
        a(f's_lshl_b32 s12, {S_WAVE}, 11')
        a(f's_add_u32 s13, s12, {L_KV}')
        a(f'v_add_u32 v{T+8}, s13, v{V_L16}')
        a(f'ds_write_b128 v{T+8}, v[{QF}:{QF+3}]')
        for i in range(1, 4):
            a(f's_xor_b32 s13, s12, {i*2048}')
            a(f's_add_u32 s13, s13, {L_KV}')
            a(f'v_add_u32 v{T+8+i}, s13, v{V_L16}')
        a(f'v_max3_f32 v{T+4}, v{SD}, v{SD+1}, v{SD+2}')
        a(f'v_max3_f32 v{T+5}, v{SD+3}, v{SD+4}, v{SD+5}')
        for r in range(6, 16, 4):
            a(f'v_max3_f32 v{T+4}, v{SD+r}, v{SD+r+1}, v{T+4}')
            if r + 3 < 16:
                a(f'v_max3_f32 v{T+5}, v{SD+r+2}, v{SD+r+3}, v{T+5}')
        a(f'v_max_f32 v{T+4}, v{T+4}, v{T+5}')
        a(f'v_mov_b32 v{T+5}, v{T+4}')
        a(f'v_permlane32_swap_b32 v{T+4}, v{T+5}')
        a(f'v_max_f32 v{T+4}, v{T+4}, v{T+5}')
        a(f'v_sub_f32 v{T+4}, 0, v{T+4}')
        a(f'v_and_b32 v{T+5}, 0xffff0000, v{T+4}')
        a(f'v_sub_f32 v{T+6}, v{T+4}, v{T+5}')
        a('s_mov_b32 exec_lo, 0')
        a(f'v_perm_b32 v{QF+6}, v{T+6}, v{T+5}, s17')
        a('s_mov_b32 exec_lo, -1')
        a(f'ds_write_b128 v{T+8}, v[{QF+4}:{QF+7}] offset:1024')
        a.wait_tag('wob')
        a('s_waitcnt lgkmcnt(0)')
        a('s_barrier')
        for i in range(1, 4):
            for u in range(2):
                r = QF + 8 * i + 4 * u
                a(f'ds_read_b128 v[{r}:{r+3}], v{T+8+i} offset:{u*1024}')
        if DEBUGQ:
            a(f's_lshl_b32 s12, {S_HQ}, 17')
            a('s_lshl_b32 s13, s7, 11')
            a('s_add_u32 s12, s12, s13')
            a(f's_add_u32 s12, s12, {WS_Q}')
            a(f's_add_u32 s12, s12, {S_BLK}')
            a(f'buffer_store_dwordx4 v[{QF}:{QF+3}], v{V_L16}, {SRD_WS}, s12 offen')
            a(f'buffer_store_dwordx4 v[{QF+4}:{QF+7}], v{V_L16}, {SRD_WS}, s12 offen offset:1024')
        Lw = uid('wob')
        a(f's_cmp_lg_u32 {S_IT}, 0')
        a(f's_cbranch_scc1 {Lw}')
        stage_wo_addr(L_S, 252)
        for n, x in enumerate(stage_wo_reads(1, 252)):
            a(x)
            if n % 12 == 11: a('s_waitcnt lgkmcnt(4)')
        stage_wo_pads(1)
        a('s_waitcnt lgkmcnt(0)')
        a('s_barrier')
        a.raw(Lw + ':')
        a('s_waitcnt lgkmcnt(0)')
        a('s_nop 2')
    else:
        it = 0 if first else 1
        a(f's_mov_b32 s16, {f32(1e-6)}')
        a(f's_mov_b32 s17, {f32(1e-6)}')
        a(f's_mov_b32 s18, {f32(LOG2E)}')
        a(f's_lshl_b32 s19, {S_WAVE}, 12')
        a(f's_add_u32 s19, s19, {L_KV}')
        a(f'v_add_u32 v{T+8}, s19, v{V_L16}')
        a(f'v_lshlrev_b32 v{T+7}, 2, v0')
        a(f'v_add_u32 v{T+9}, {L_KV}, v{T+7}')
        a(f'v_mov_b32 v{T+4}, 1.0')
        for r in range(8):
            e = E + 2 * (r % 3)
            k = AK + 2 * r
            a(f'v_pk_mul_f32 v[{k}:{k+1}], v[{k}:{k+1}], v[{RS+2*r}:{RS+2*r+1}]')
            a(f'v_pk_mul_f32 v[{e}:{e+1}], v[{k}:{k+1}], s[18:19] op_sel_hi:[1,0]')
            a(f'v_pk_add_f32 v[{k}:{k+1}], v[{k}:{k+1}], 1.0 op_sel_hi:[1,0]')
            a(f'v_exp_f32 v{e}, v{e}')
            a(f'v_exp_f32 v{e+1}, v{e+1}')
            a(f'v_med3_f32 v{k}, v{e}, v{k}, 1.0')
            a(f'v_med3_f32 v{k+1}, v{e+1}, v{k+1}, 1.0')
            a(f'v_pk_add_f32 v[{k}:{k+1}], v[{k}:{k+1}], s[16:17]')
            a(f'v_cvt_pk_bf16_f32 v{KF+r}, v{k}, v{k+1}')
        v_epi()
        KVD = AV
        a(f'v_mfma_f32_32x32x16_bf16 v[{KVD}:{KVD+15}], v[{KF}:{KF+3}], v[{VF}:{VF+3}], 0')
        a(f'v_mfma_f32_32x32x16_bf16 v[{KVD}:{KVD+15}], v[{KF+4}:{KF+7}], v[{VF+4}:{VF+7}], v[{KVD}:{KVD+15}]')
        a(f's_lshl_b32 s22, {S_HQ}, 12')
        a(f's_add_u32 s22, s22, {WS_KVACC + it*65536}')
        a(f's_cmp_ge_u32 {S_WAVE}, 2')
        a(f's_cselect_b32 s23, {OOB}, s22')
        a('s_lshl_b32 s12, s7, 15')
        a(f's_lshl_b32 s13, {S_HQ}, 11')
        a('s_add_u32 s12, s12, s13')
        a(f's_add_u32 s12, s12, {WS_OA + it*BLK}')
        E2 = RS
        def kvw(rg):
            return lambda: a.inst(f'ds_write_b128 v{T+8}, v[{KVD+4*rg}:{KVD+4*rg+3}] offset:{rg*1024}', tag='kvw')
        def kvbar():
            a.wait_tag('kvw', 'lg')
            a('s_barrier')
            for k in range(4):
                a(f'ds_read2st64_b32 v[{E2+4*k}:{E2+4*k+1}], v{T+9} offset0:{4*k} offset1:{4*k+16}')
                a(f'ds_read2st64_b32 v[{E2+4*k+2}:{E2+4*k+3}], v{T+9} offset0:{4*k+32} offset1:{4*k+48}')
        def kvat(k):
            def f():
                a(f'v_add_f32 v{E2+4*k}, v{E2+4*k}, v{E2+4*k+1}')
                a(f'v_add_f32 v{E2+4*k+2}, v{E2+4*k+2}, v{E2+4*k+3}')
                a(f'v_add_f32 v{E2+4*k}, v{E2+4*k}, v{E2+4*k+2}')
                a.inst(f'buffer_atomic_add_f32 v{E2+4*k}, v{T+7}, {SRD_WS}, {"s23" if k == 3 else "s22"} offen offset:{k*1024} sc1', tag='kva')
            return f
        both = lambda f, g: (lambda: (f(), g()))
        hooks = {0: kvw(0), 1: kvw(1), 2: kvw(2), 3: kvw(3), 5: kvbar, 8: both(kvat(0), kvat(1)), 9: both(kvat(2), kvat(3))}
        if first:
            hooks = {k + 1: f for k, f in hooks.items()}
            hooks[0] = flags_issue
            woa = []
            def chk():
                flags_check()
                woa.extend(stage_wo_issue(0, L_S, 251, 'woa', defer=True))
            hooks[11] = chk
            for k in range(14):
                hooks[12 + k] = (lambda k=k: woa[k]())
            hooks[26] = lambda: stage_wo_addr(L_S, 252)
        pass2(0, hooks)
        if first:
            a('s_mov_b32 s17, 0x07060302')
            w = we_build(0, E)
            for x in w[:1] + w[19:]: a(x)
            a(f's_mov_b32 s17, {f32(1e-6)}')
            extra(0)
        signal(1, wait_tag='kva'); advance()
        stamp(f'{nm}_sg1', lp)
        img_base(1, 's60', 's61')
        w_prefetch(1, (4, 4, 3))
        QF = X
        for r in range(8):
            e = E + 2 * (r % 3)
            q = AQ + 2 * r
            pkmul_lane(e, q, T + 2)
            a(f'v_pk_fma_f32 v[{q}:{q+1}], v[{q}:{q+1}], v[{T}:{T+1}], v[{T+4}:{T+5}] op_sel_hi:[1,0,0]')
            a(f'v_exp_f32 v{e}, v{e}')
            a(f'v_exp_f32 v{e+1}, v{e+1}')
            a(f'v_med3_f32 v{q}, v{e}, v{q}, 1.0')
            a(f'v_med3_f32 v{q+1}, v{e+1}, v{q+1}, 1.0')
            a(f'v_pk_add_f32 v[{q}:{q+1}], v[{q}:{q+1}], s[16:17]')
            a(f'v_cvt_pk_bf16_f32 v{QF+r}, v{q}, v{q+1}')
        a('s_mov_b32 exec_lo, 0')
        a(f'v_mov_b32 v{QF+6}, 0')
        a(f'v_mov_b32 v{QF+7}, 0')
        a('s_mov_b32 exec_lo, -1')
        stamp(f'{nm}_epi', lp)
        if DEBUGQ:
            a(f's_add_u32 s13, s12, {WS_DBG + (8 << 20)}')
            a(f'buffer_store_dwordx4 v[{QF}:{QF+3}], v{V_L16}, {SRD_WS}, s13 offen')
            a(f'buffer_store_dwordx4 v[{QF+4}:{QF+7}], v{V_L16}, {SRD_WS}, s13 offen offset:1024')
        if first:
            a.wait_tag('woa')
            a('s_barrier')
            for n, x in enumerate(stage_wo_reads(0, 252)):
                a(x)
                if n % 12 == 11: a('s_waitcnt lgkmcnt(4)')
            stage_wo_pads(0)
        ids_qkv_rows(S_HQ)
        poll(SRD_WS, 0xffff, S_PROG)
        stamp(f'{nm}_kv', lp)
        KV, D = 40, 56
        for rg in range(4):
            a(f'buffer_load_dwordx4 v[{KV+4*rg}:{KV+4*rg+3}], v{V_L16}, {SRD_WS}, s22 offen offset:{rg*1024} {SC}')
        for r in range(8):
            a(f'v_cvt_pk_bf16_f32 v{KV+r}, v{KV+2*r}, v{KV+2*r+1}')
            if r == 3:
                a(f'v_mfma_f32_32x32x16_bf16 v[{D}:{D+15}], v[{KV}:{KV+3}], v[{QF}:{QF+3}], 0')
        a(f'v_mfma_f32_32x32x16_bf16 v[{D}:{D+15}], v[{KV+4}:{KV+7}], v[{QF+4}:{QF+7}], v[{D}:{D+15}]')
        a(f'v_add_f32 v{T}, s16, v{D+12}')
        a(f'v_mov_b32 v{T+1}, v{T}')
        a(f'v_permlane32_swap_b32 v{T+1}, v{T}')
        a(f'v_rcp_f32 v{T}, v{T}')
        for r in range(8):
            pkmul_lane(D + 2 * r, D + 2 * r, T)
            a(f'v_cvt_pk_bf16_f32 v{QF+8+r}, v{D+2*r}, v{D+2*r+1}')
        lstore([f'buffer_store_dwordx4 v[{QF+8}:{QF+11}], v{V_L16}, {SRD_WS}, s12 offen',
                f'buffer_store_dwordx4 v[{QF+12}:{QF+15}], v{V_L16}, {SRD_WS}, s12 offen offset:1024'])
        signal(1, local=True); advance()
        stamp(f'{nm}_sig', lp)

OP_CH = [(0, 4), (4, 8), (12, 8), (20, 8), (28, 4)]
def phase_op(isA):
    nm = 'oa' if isA else 'ob'
    join = uid('op_join')
    ACC = 16
    OF = 32
    XF = 96
    T = 104
    WB = WOA[0 if isA else 1]
    skip = uid('op_skip')
    a(f's_cmp_ge_u32 {S_CP}, 7')
    a(f's_cbranch_scc1 {skip if isA else join}')
    a(f's_lshr_b32 s7, {S_WAVE}, 1')
    a(f's_and_b32 s12, {S_WAVE}, 1')
    a(f's_lshl_b32 s5, {S_RP}, 1')
    a('s_add_u32 s5, s5, s7')
    a(f's_lshl_b32 s6, {S_CP}, 1')
    a('s_add_u32 s6, s6, s12')
    a(f's_mul_i32 s18, s5, {28*1024}')
    a('s_lshl_b32 s21, s7, 15')
    a(f's_add_u32 s21, s21, {L_S}')
    a(f'v_add_u32 v{T+4}, s21, v{V_L16}')
    if isA:
        L1, L2 = uid('oa'), uid('oa')
        a(f's_cmp_lg_u32 {S_IT}, 0')
        a(f's_cbranch_scc1 {L1}')
        a(f'v_mul_u32_u24 v{T+6}, 896, v{V_N}')
        a(f'v_lshl_add_u32 v{T+6}, v{V_HF}, 3, v{T+6}')
        a('s_lshl_b32 s19, s6, 6')
        a('s_add_u32 s20, s18, s19')
        for k in range(4):
            a.raw(f'  buffer_load_dwordx2 v[{XF+2*k}:{XF+2*k+1}], v{T+6}, {SRD_X0}, s20 offen offset:{16*k}')
        a(f's_branch {L2}')
        a.raw(L1 + ':')
        a('s_lshl_b32 s19, s6, 11')
        a('s_add_u32 s20, s18, s19')
        a(f's_add_u32 s20, s20, {WS_XB}')
        a.raw(f'  buffer_load_dwordx4 v[{XF}:{XF+3}], v{V_L16}, {SRD_WS}, s20 offen {SC}')
        a.raw(f'  buffer_load_dwordx4 v[{XF+4}:{XF+7}], v{V_L16}, {SRD_WS}, s20 offen offset:1024 {SC}')
        a.raw(L2 + ':')
        a('s_lshl_b32 s19, s6, 11')
        a('s_add_u32 s18, s18, s19')
        a(f's_add_u32 s18, s18, {S_BLK}')
    else:
        a('s_lshl_b32 s19, s6, 11')
        a('s_add_u32 s18, s18, s19')
        a(f's_add_u32 s18, s18, {S_BLK}')
        a(f's_add_u32 s20, s18, {WS_XA}')
        a(f'buffer_load_dwordx4 v[{XF}:{XF+3}], v{V_L16}, {SRD_WS}, s20 offen {SC}')
        a(f'buffer_load_dwordx4 v[{XF+4}:{XF+7}], v{V_L16}, {SRD_WS}, s20 offen offset:1024 {SC}')
    acc = f'v[{ACC}:{ACC+15}]'
    xo, so = (WS_XA, WS_STA) if isA else (WS_XB, WS_STB)
    a(f's_add_u32 s51, s18, {xo}')
    a(f'v_lshlrev_b32 v{T+7}, 3, v{V_N}')
    a(f'v_lshl_add_u32 v{T+7}, v{V_HF}, 2, v{T+7}')
    a('s_lshl_b32 s19, s5, 8')
    a('s_lshl_b32 s52, s6, 14')
    a('s_add_u32 s52, s52, s19')
    a(f's_add_u32 s52, s52, {so}')
    a(f's_add_u32 s52, s52, {S_BLK}')
    a(f's_mov_b32 s19, {ONES2}')
    a('s_lshl_b32 s14, s5, 15')
    a(f's_add_u32 s14, s14, {WS_OA if isA else WS_O}')
    a(f's_add_u32 s14, s14, {S_BLK}')
    a('s_lshl_b32 s15, s12, 12')
    a('s_lshl_b32 s16, s12, 11')
    a('s_add_u32 s22, s15, s21'); a('s_add_u32 s23, s16, s21')
    a('s_add_u32 s15, s15, s14'); a('s_add_u32 s16, s16, s14')
    a(f's_lshr_b32 s50, {S_RP}, 1')
    ids_qkv_heads('s50')
    poll(SRD_WS, 0xffff, S_PROG)
    stamp(f'{nm}_go', True)
    for c, (k0, n) in enumerate(OP_CH):
        a(f's_add_u32 m0, {"s22" if n == 8 else "s23"}, {k0*1024}')
        a(f's_add_u32 s17, {"s15" if n == 8 else "s16"}, {k0*1024}')
        for i in range(n // 2):
            a.inst(f'buffer_load_dwordx4 v{V_L16}, {SRD_WS}, s17 offen offset:{i*1024} {LD} lds', tag=f'o{c}')
    for r in range(8):
        a(f'v_lshlrev_b32 v{ACC+2*r}, 16, v{XF+r}')
        a(f'v_and_b32 v{ACC+2*r+1}, 0xffff0000, v{XF+r}')
    def opn(c):
        k0, n = OP_CH[c]
        a.wait_tag(f'o{c}')
        a('s_barrier')
        for s in range(n):
            r = OF + 32 * (c & 1) + 4 * s
            a(f'ds_read_b128 v[{r}:{r+3}], v{T+4} offset:{(k0+s)*1024}')
    opn(0)
    for c, (k0, n) in enumerate(OP_CH):
        for s in range(n):
            r = OF + 32 * (c & 1) + 4 * s
            k = k0 + s
            a(f'v_mfma_f32_32x32x16_bf16 {acc}, a[{WB+4*k}:{WB+4*k+3}], v[{r}:{r+3}], {acc}')
            if isA and s == 0 and c < 3:
                w_prefetch(1, [(4, 4, 2)[c]])
            if s == n - 3 and c + 1 < len(OP_CH):
                opn(c + 1)
    stamp(f'{nm}_mm', True)
    for r in range(8):
        a(f'v_cvt_pk_bf16_f32 v{XF+r}, v{ACC+2*r}, v{ACC+2*r+1}')
    if not isA:
        a(f's_cmp_lg_u32 {S_IT}, 0')
        a('s_cbranch_scc1 op_final')
    lstore([f'buffer_store_dwordx4 v[{XF}:{XF+3}], v{V_L16}, {SRD_WS}, s51 offen',
            f'buffer_store_dwordx4 v[{XF+4}:{XF+7}], v{V_L16}, {SRD_WS}, s51 offen offset:1024'])
    a(f'v_dot2_f32_bf16 v{T}, v{XF}, s19, 0')
    a(f'v_dot2_f32_bf16 v{T+1}, v{XF}, v{XF}, 0')
    for r in range(1, 8):
        a(f'v_dot2_f32_bf16 v{T}, v{XF+r}, s19, v{T}')
        a(f'v_dot2_f32_bf16 v{T+1}, v{XF+r}, v{XF+r}, v{T+1}')
    a(f'v_permlane32_swap_b32 v{T}, v{T+1}')
    a(f'v_add_f32 v{T}, v{T}, v{T+1}')
    lstore([f'buffer_store_dword v{T}, v{T+7}, {SRD_WS}, s52 offen'])
    stamp(f'{nm}_epi', True)
    signal(local=True)
    if isA:
        a(f's_branch {join}')
        a.raw(skip + ':'); a.fresh()
        w_prefetch(1, (4, 4, 2))
        a('s_waitcnt vmcnt(0)')
        a('s_barrier')
    a.raw(join + ':')
    a.fresh()
    a('s_nop 4')
    advance()
    stamp(f'{nm}_sig', True)
    def final():
        a.raw('op_final:'); a.fresh()
        a('s_lshl_b32 s19, s5, 5')
        a(f'v_add_u32 v{T+6}, s19, v{V_N}')
        a(f'v_mul_u32_u24 v{T+6}, 896, v{T+6}')
        a(f'v_lshl_add_u32 v{T+6}, v{V_HF}, 4, v{T+6}')
        a('s_lshl_b32 s19, s6, 6')
        for u in range(2):
            b = XF + 4 * u
            a(f'v_permlane32_swap_b32 v{b}, v{b+2}')
            a(f'v_permlane32_swap_b32 v{b+1}, v{b+3}')
            a(f'buffer_store_dwordx4 v[{b}:{b+3}], v{T+6}, {SRD_OUT}, s19 offen offset:{32*u}')
    return final

def phase_attn():
    Q = 16
    O = 48
    S = 112
    P = 144
    T = 152
    R = 160
    ORD = [1, 2, 3, 0]
    a(f's_lshl_b32 s12, {S_HA}, 18')
    a(f's_add_u32 s12, s12, {WS_KV}')
    a(f's_add_u32 s12, s12, {S_KVB}')
    a(f's_lshl_b32 s13, {S_WAVE}, 16')
    a('s_add_u32 s13, s13, s12')
    for r in range(64):
        a(f'v_mov_b32 v{O+r}, 0')
    img_base(0, 's60', 's61')
    a(f's_cmp_lg_u32 {S_IT}, 0')
    a(f's_cselect_b32 s60, {OOB}, s60')
    a(f's_mov_b32 s18, {OOB}')
    a('s_mov_b32 s17, 5')
    for t in range(1, 4):
        a(f's_xor_b32 s19, {S_WAVE}, {t}')
        a('s_mul_i32 s19, s19, 12288')
        a(f's_add_u32 s19, s19, {L_RED + (t-1)*4096}')
        a(f'v_add_u32 v{T+3+t}, s19, v{V_L16}')
    a(f's_mul_i32 s19, {S_WAVE}, 12288')
    a(f's_add_u32 s19, s19, {L_RED}')
    a(f'v_add_u32 v{T+3}, s19, v{V_L16}')
    a(f's_lshl_b32 s51, {S_QB}, 2')
    a(f's_add_u32 s51, s51, {S_WAVE}')
    a('s_lshl_b32 s51, s51, 15')
    a(f's_lshl_b32 s19, {S_HA}, 11')
    a('s_add_u32 s51, s51, s19')
    a(f's_add_u32 s51, s51, {WS_O}')
    a(f's_add_u32 s51, s51, {S_BLK}')
    a(f's_mov_b32 s20, {f32(2.0**-64)}')
    a(f's_mov_b32 s21, {f32(2.0**64)}')
    ids_qkv_rows(S_HA)
    poll(SRD_WS, 0xffff, S_PROG)
    stamp('at_go', True)
    def kreg(j, t): return f'v[{R+16*j+4*t}:{R+16*j+4*t+3}]'
    def vreg(j, u): return f'v[{R+16*j+8+4*u}:{R+16*j+8+4*u+3}]'
    def qreg(i, t): return f'v[{Q+8*i+4*t}:{Q+8*i+4*t+3}]'
    def sreg(n): return f'v[{S+16*(n&1)}:{S+16*(n&1)+15}]'
    def oreg(i): return f'v[{O+16*i}:{O+16*i+15}]'
    def loadk(j, sr):
        a(f'buffer_load_dwordx4 {kreg(j,0)}, v{V_L16}, {SRD_WS}, {sr} offen {SC}')
        a(f'buffer_load_dwordx4 {kreg(j,1)}, v{V_L16}, {SRD_WS}, {sr} offen offset:1024 {SC}')
    def loadv(j, sr):
        a(f'buffer_load_dwordx4 {vreg(j,0)}, v{V_L16}, {SRD_WS}, {sr} offen offset:2048 {SC}')
        a(f'buffer_load_dwordx4 {vreg(j,1)}, v{V_L16}, {SRD_WS}, {sr} offen offset:3072 {SC}')
    def ji(n): return (n >> 2) % 3, ORD[n & 3]
    def M1(n, own=False):
        j, i = (0, 0) if own else ji(n)
        a(f'v_mfma_f32_32x32x16_bf16 {sreg(n)}, {kreg(j,0)}, {qreg(i,0)}, 0')
    def M2(n, own=False):
        j, i = (0, 0) if own else ji(n)
        a(f'v_mfma_f32_32x32x16_bf16 {sreg(n)}, {kreg(j,1)}, {qreg(i,1)}, {sreg(n)}')
    def PV(n, u, own=False):
        j, i = (0, 0) if own else ji(n)
        a(f'v_mfma_f32_32x32x16_bf16 {oreg(i)}, {vreg(j,u)}, v[{P+4*u}:{P+4*u+3}], {oreg(i)}')
    def e(n, k):
        r = S + 16 * (n & 1) + k
        a(f'v_exp_f32 v{r}, v{r}')
    def c(n, k):
        r = S + 16 * (n & 1) + 2 * k
        a(f'v_cvt_pk_bf16_f32 v{P+k}, v{r}, v{r+1}')
    loadk(0, 's13')
    loadv(0, 's13')
    a('s_add_u32 s13, s13, 4096')
    loadk(1, 's13'); loadv(1, 's13')
    a('s_add_u32 s13, s13, 4096')
    M1(0); M2(0); M1(1)
    for k in range(4): e(0, k)
    a('s_waitcnt vmcnt(4)')
    if FINE: stamp('at_pro', True)
    def step(n, slots, last=99):
        e(n, 4); e(n, 5); c(n, 0); c(n, 1); e(n, 6); e(n, 7)
        if n + 1 <= last: M2(n + 1)
        for x in slots[0]: x()
        c(n, 2); c(n, 3); e(n, 8); e(n, 9); e(n, 10); e(n, 11)
        PV(n, 0)
        for x in slots[1]: x()
        e(n, 12); e(n, 13); c(n, 4); c(n, 5); e(n, 14); e(n, 15); c(n, 6); c(n, 7)
        if n + 2 <= last: M1(n + 2)
        for x in slots[2]: x()
        if n + 1 <= last:
            e(n + 1, 0); e(n + 1, 1); e(n + 1, 2); e(n + 1, 3)
        PV(n, 1)
        for x in slots[3]: x()
    I = lambda t: (lambda: a(t))
    def dman(n):
        for p in range(n):
            a(f'buffer_load_dwordx4 v{V_L16}, {SRD_WS}, s60 offen offset:{p*1024} {SC} lds')
    def body():
        for n in range(12):
            j, i = n >> 2, n & 3
            sl = [[], [], [], []]
            if i == 0:
                sl[1] = [lambda: loadk((j + 2) % 3, 's13'), lambda: loadv((j + 2) % 3, 's13')]
                sl[2] = [I('s_add_u32 s13, s13, 4096')]
                if j == 1:
                    sl[3] = [I('s_cmp_eq_u32 s17, 1')]
            elif i == 1:
                if j == 1:
                    sl[0] = [I('s_cselect_b32 s13, s18, s13')]
                if j == 0:
                    sl[1] = [I('s_mov_b32 m0, s61')]
                    sl[2] = [lambda: dman(4)]
                    sl[3] = [I('s_add_u32 s60, s60, 4096')]
                if j == 2 and PRE:
                    sl[2] = [pretouch]
            elif i == 2:
                sl[1] = [I(f's_waitcnt vmcnt({4 + (4 if j < 2 else 0) + (3 if (j == 2 and PRE) else 0)})')]
                if j == 0:
                    sl[2] = [I('s_add_u32 s61, s61, 4096')]
            elif i == 3 and j == 2:
                sl[1] = [I('s_sub_u32 s17, s17, 1')]
                sl[2] = [I('s_cmp_lg_u32 s17, 0')]
            step(n, sl)
    def tail():
        a('s_cbranch_scc1 attn_loop')
    a.raw('.p2align 3')
    a.loop('attn_loop', body, tail)
    def W(t, rg):
        r = O + 16 * t + 4 * rg
        return I(f'ds_write_b128 v{T+3+t}, v[{r}:{r+3}] offset:{rg*1024}')
    step(0, [[I('s_mov_b32 m0, s61')], [lambda: dman(1)], [], []], 3)
    step(1, [[], [W(1, 0)], [W(1, 1)], [W(1, 2)]], 3)
    step(2, [[W(1, 3)], [W(2, 0)], [W(2, 1)], [W(2, 2)]], 3)
    step(3, [[W(2, 3)], [W(3, 0), W(3, 1)], [W(3, 2), W(3, 3)], []], 3)
    stamp('at_mm', True)
    a('s_waitcnt lgkmcnt(0)')
    a('s_barrier')
    for t in range(1, 4):
        for rg in range(4):
            r = O + 16 * t + 4 * rg
            a(f'ds_read_b128 v[{r}:{r+3}], v{T+3} offset:{(t-1)*4096 + rg*1024}')
    for t in range(1, 4):
        for r in range(8):
            a(f'v_pk_add_f32 v[{O+2*r}:{O+2*r+1}], v[{O+2*r}:{O+2*r+1}], v[{O+16*t+2*r}:{O+16*t+2*r+1}]')
    a(f'v_mov_b32 v{T}, v{O+12}')
    a(f'v_mov_b32 v{T+1}, v{O+12}')
    a(f'v_permlane32_swap_b32 v{T+1}, v{T}')
    a(f'v_cmp_le_f32 vcc, s20, v{T}')
    a(f'v_cmp_ge_f32 s[22:23], s21, v{T}')
    a('s_and_b64 vcc, vcc, s[22:23]')
    a('s_cmp_eq_u64 vcc, exec')
    a('s_cbranch_scc0 attn_slow')
    a.raw('attn_fin:')
    a(f'v_rcp_f32 v{T}, v{T}')
    for r in range(8):
        a(f'v_pk_mul_f32 v[{O+2*r}:{O+2*r+1}], v[{O+2*r}:{O+2*r+1}], v[{T}:{T+1}] op_sel_hi:[1,0]')
        a(f'v_cvt_pk_bf16_f32 v{P+r}, v{O+2*r}, v{O+2*r+1}')
    lstore([f'buffer_store_dwordx4 v[{P}:{P+3}], v{V_L16}, {SRD_WS}, s51 offen',
            f'buffer_store_dwordx4 v[{P+4}:{P+7}], v{V_L16}, {SRD_WS}, s51 offen offset:1024'])
    stamp('at_epi', True)
    signal(local=True); advance()
    stamp('at_sig', True)

    def slow():
        a.raw('attn_slow:'); a.fresh()
        a('s_waitcnt vmcnt(0) lgkmcnt(0)')
        a('s_nop 15')
        a('s_mov_b32 exec_lo, 0')
        a(f'v_mov_b32 v{Q+6}, 0')
        a(f'v_mov_b32 v{Q+7}, 0')
        a('s_mov_b32 exec_lo, -1')
        a(f'v_mov_b32 v{T+2}, {f32(-3.0e38)}')
        a('s_mov_b32 s13, s12')
        a('s_mov_b32 s17, 64')
        a('s_nop 4')
        def body1():
            loadk(0, 's13')
            M1(0, True); M2(0, True)
            for r in range(0, 16, 2):
                a(f'v_max3_f32 v{T+2}, v{S+r}, v{S+r+1}, v{T+2}')
            a('s_add_u32 s13, s13, 4096')
            a('s_nop 4')
        def tail1():
            a('s_sub_u32 s17, s17, 1')
            a('s_cmp_lg_u32 s17, 0')
            a('s_cbranch_scc1 attn_slow1')
        a.loop('attn_slow1', body1, tail1)
        a(f'v_mov_b32 v{T+3}, v{T+2}')
        a(f'v_permlane32_swap_b32 v{T+2}, v{T+3}')
        a(f'v_max_f32 v{T+2}, v{T+2}, v{T+3}')
        for r in range(16):
            a(f'v_mov_b32 v{O+r}, 0')
        a('s_mov_b32 s13, s12')
        a('s_mov_b32 s17, 64')
        a('s_nop 15')
        def body2():
            loadk(0, 's13'); loadv(0, 's13')
            M1(0, True); M2(0, True)
            for r in range(16):
                a(f'v_sub_f32 v{S+r}, v{S+r}, v{T+2}')
            for r in range(16):
                e(0, r)
            for r in range(8):
                c(0, r)
            PV(0, 0, True); PV(0, 1, True)
            a('s_add_u32 s13, s13, 4096')
            a('s_nop 15')
        def tail2():
            a('s_sub_u32 s17, s17, 1')
            a('s_cmp_lg_u32 s17, 0')
            a('s_cbranch_scc1 attn_slow2')
        a.loop('attn_slow2', body2, tail2)
        a(f'v_mov_b32 v{T}, v{O+12}')
        a(f'v_mov_b32 v{T+1}, v{O+12}')
        a(f'v_permlane32_swap_b32 v{T+1}, v{T}')
        a('s_nop 4')
        a('s_branch attn_fin')
    return slow

def build(path):
    prologue()
    phase_qkv(True, True)
    a.raw('layer_loop:'); a.fresh()
    phase_op(True)
    phase_qkv(False, False)
    slow = phase_attn()
    final = phase_op(False)
    a(f's_cmp_lg_u32 {S_IT}, 0')
    a('s_cbranch_scc1 k_fin')
    phase_qkv(True, False)
    a(f's_mov_b32 {S_IT}, 1')
    a(f's_mov_b32 {S_BLK}, {BLK}')
    a(f's_mov_b32 {S_KVB}, {KVB}')
    a('s_branch layer_loop')
    final()
    a.raw('k_fin:')
    if INSTR:
        a('s_waitcnt vmcnt(0)')
        a(f'{CLK} s[96:97]')
        a('s_waitcnt lgkmcnt(0)')
        a(f'v_writelane_b32 v{V_ST}, s96, 63')
        a('s_lshl_b32 s48, s2, 2')
        a(f's_add_u32 s48, s48, {S_WAVE}')
        a('s_lshl_b32 s48, s48, 8')
        a(f's_add_u32 s48, s48, {WS_DBG}')
        a(f'v_lshrrev_b32 v{V_T0}, 2, v{V_L16}')
        a(f'buffer_store_dword v{V_ST}, v{V_T0}, {SRD_WS}, s48 offen')
    if DUR:
        a('s_waitcnt vmcnt(0)')
        a('s_memrealtime s[94:95]')
        a('s_not_b32 s92, s92')
        a('s_waitcnt lgkmcnt(0)')
        a(f'v_mov_b32 v{V_T0}, s92')
        a(f'v_mov_b32 v{V_T1}, s94')
        a(f'v_mov_b32 v{V_PL}, 0')
        a('s_mov_b64 exec, 1')
        a(f'buffer_atomic_umax v{V_T0}, v{V_PL}, {SRD_DBG}, 0 offen offset:56 sc1')
        a(f'buffer_atomic_umax v{V_T1}, v{V_PL}, {SRD_DBG}, 0 offen offset:60 sc1')
    a.raw('k_end:')
    a('s_endpgm')
    slow()
    a.raw('code_end:')
    out = ['; generated by dev/gen9.py -- interleaved linear-attention / softmax-MHA layers, persistent kernel, gfx950',
           f'; @launch grid=(256,1,1) block=(256,1,1) lds={LDS_TOTAL}',
           '.amdgcn_target "amdgcn-amd-amdhsa--gfx950"', '.text', a.text(), '.section .rodata,"a"',
           kernel_desc(KNAME, 512, 102 if INSTR else 96, 256)]
    open(path, 'w').write('\n'.join(out) + '\n')
    if INSTR:
        names = {}
        for i, (n, lp) in enumerate(STAMPS):
            names[i] = n + ('0' if lp else '')
            if lp:
                names[i + 27] = n + '1'
        names[63] = 'end'
        assert len(STAMPS) <= 40
        open(path + '.stamps', 'w').write('\n'.join(f'{i} {n}' for i, n in sorted(names.items())))

if __name__ == '__main__':
    path = sys.argv[1] if len(sys.argv) > 1 else f'cdna_kernels/{NAME}.s'
    INSTR = 'instr' in sys.argv[2:]
    if 'cyc' in sys.argv[2:]: CLK = 's_memtime'
    FINE = 'fine' in sys.argv[2:]
    DUR = 'dur' in sys.argv[2:]
    WARM = 'warm' in sys.argv[2:]
    PRE = 'nopre' not in sys.argv[2:]
    FORCE_GLOBAL = 'noloc' in sys.argv[2:]
    if 'ldplain' in sys.argv[2:]: LD = ''
    if 'ldnt' in sys.argv[2:]: LD = 'nt'
    if 'ldsc0' in sys.argv[2:]: LD = 'sc0'
    DEBUGQ = 'debugq' in sys.argv[2:]
    FINE2 = 'fine2' in sys.argv[2:]
    TOUCH = 'notouch' not in sys.argv[2:]
    build(path)
    print('wrote', path, 'maxv', a.maxv, 'maxa', a.maxa, 'maxs', a.maxs)
```

```python
import sys, struct
sys.path.insert(0, 'dev')
from asmlib import *

NAME = 'interleave_layers__linear_attn_block__softmax_full_mha__prompt'
KNAME = NAME + '_kernel'

def f32(x):
    return '0x%08x' % struct.unpack('<I', struct.pack('<f', x))[0]

X_SIZE = 64 * 28 * 1024
ST_SIZE = 14 * 2048 * 8
_off = 0
def alloc(n, al=65536):
    global _off
    _off = (_off + al - 1) // al * al
    r = _off
    _off += n
    return r
REUSE = 'noreuse' not in sys.argv
if REUSE:
    WS_XA = WS_XB = alloc(X_SIZE)
    WS_STA = WS_STB = alloc(ST_SIZE, 4096)
    WS_O = WS_OA = alloc(64 * 16 * 2048)
    WS_KV = alloc(2 * 16 * 64 * 4096)
    WS_Q = 0
    BLK = 0
    KVB = 16 * 64 * 4096
else:
    WS_XA = alloc(X_SIZE); WS_XB = alloc(X_SIZE)
    WS_STA = alloc(ST_SIZE); WS_STB = alloc(ST_SIZE)
    WS_OA = alloc(64 * 16 * 2048)
    WS_Q = alloc(16 * 64 * 2048)
    WS_KV = alloc(16 * 64 * 4096)
    WS_O = alloc(64 * 16 * 2048)
    BLK = alloc(0)
    KVB = BLK
    _off = 2 * BLK
IMG_HEAD = 84 * 1024
WS_IMG = [alloc(16 * IMG_HEAD), alloc(16 * IMG_HEAD)]
WS_ZERO = alloc(0)
WS_KVACC = alloc(2 * 16 * 4096)
WS_FLAG = alloc(256 * 128, 4096)
WS_LFLAG = alloc(256 * 128, 4096)
WS_CS = alloc(16384, 4096)
ZERO_SIZE = _off - WS_ZERO
NZERO = ZERO_SIZE // 16384
assert ZERO_SIZE == NZERO * 16384 and NZERO == 13
WS_TOTAL = 1 << 28
WS_DBG = 64 << 20
OOB = 0x40000000

LOG2E = 1.4426950408889634
QSCALE = 28 ** -0.5 * LOG2E
ONES2 = 0x3f803f80
SC = 'sc1'
LD = 'sc1'

L_W = 0
L_S = 84 * 1024
L_KV = L_S + 57344
L_M = L_KV + 16384
L_RS = L_M
L_CS = L_M + 512
LDS_TOTAL = 163840
L_RED = L_S + 4096

INSTR = False
CLK = 's_memrealtime'
FINE = False
TLBW = False
PREW = 0
LOOK = 0
QBSIG = 24
DUR = False
WARM = False
PRE = True
RBX = 1
FORCE_GLOBAL = False
DEBUGQ = False
FINE2 = False
TOUCH = True
POLL_LIMIT = 400000

V_L16, V_N, V_HF, V_T0, V_T1, V_PL, V_ST = 1, 2, 3, 4, 5, 6, 7
V_CS = [8, 11]
V_H64, V_ONE = 14, 15
S_WAVE = 's4'
S_RB, S_HQ, S_RP, S_CP, S_HA, S_QB, S_FLAG, S_BLK = 's40', 's41', 's42', 's43', 's41', 's40', 's46', 's47'
S_PROG, S_IT = 's62', 's63'
S_KVB = 's90'
S_XT, S_STT, S_OT = 's84', 's85', 's86'
S_LOC, S_XCC = 's44', 's45'
SRD_WS, SRD_OUT, SRD_DBG = 's[8:11]', 's[32:35]', 's[36:39]'
SRD_X0, SRD_W, SRD_WO = 's[64:67]', ['s[68:71]', 's[72:75]'], ['s[76:79]', 's[80:83]']
WOA = [0, 128]

a = Asm()
_uid = [0]
def uid(p):
    _uid[0] += 1
    return f'{p}_{_uid[0]}'

STAMPS = []
def stamp(name, looped=False):
    if INSTR:
        i = len(STAMPS)
        STAMPS.append((name, looped))
        a(f'{CLK} s[96:97]')
        if looped:
            a(f's_mul_i32 s98, {S_IT}, 27')
            a(f's_add_u32 s98, s98, {i}')
            a('s_mov_b32 m0, s98')
            a('s_waitcnt lgkmcnt(0)')
            a(f'v_writelane_b32 v{V_ST}, s96, m0')
        else:
            a('s_waitcnt lgkmcnt(0)')
            a(f'v_writelane_b32 v{V_ST}, s96, {i}')

def poll(srd, mask, target):
    L = uid('poll')
    if mask != -1:
        a(f's_mov_b64 exec, {mask}')
    a(f's_mov_b32 s48, {POLL_LIMIT}')
    a('s_waitcnt lgkmcnt(0)')
    a.raw(L + ':')
    a(f'buffer_load_dword v{V_PL}, v{V_T0}, {srd}, 0 offen sc1')
    a('s_sub_u32 s48, s48, 1')
    a('s_cbranch_scc1 k_end')
    a('s_waitcnt vmcnt(0)')
    a(f'v_cmp_le_u32 vcc, {target}, v{V_PL}')
    a('s_cmp_eq_u64 vcc, exec')
    a(f's_cbranch_scc0 {L}')
    if mask != -1:
        a('s_mov_b64 exec, -1')

def signal(inc=1, lg=True, local=False, with_xcc=False, wait_tag=None, barrier=True):
    L = uid('sig')
    if barrier:
        if wait_tag:
            a.wait_tag(wait_tag)
        else:
            a('s_waitcnt vmcnt(0) lgkmcnt(0)' if lg else 's_waitcnt vmcnt(0)')
        a('s_barrier')
    a(f's_cmp_lg_u32 {S_WAVE}, 0')
    a(f's_cbranch_scc1 {L}')
    sv = list(a.st.hist)
    a(f's_add_u32 s48, {S_PROG}, {inc}')
    a(f'v_mov_b32 v{V_T0}, s48')
    a(f'v_mov_b32 v{V_PL}, 0')
    a('s_mov_b64 exec, 1')
    if with_xcc:
        a(f'v_mov_b32 v{V_T1}, {S_XCC}')
        a.raw(f'  buffer_store_dwordx2 v[{V_T0}:{V_T1}], v{V_PL}, {SRD_WS}, {S_FLAG} offen sc1')
    elif local:
        a(f's_add_u32 s48, {S_FLAG}, {WS_LFLAG - WS_FLAG}')
        lstore([f'buffer_store_dword v{V_T0}, v{V_PL}, {SRD_WS}, s48 offen'], track=False)
    else:
        a.raw(f'  buffer_store_dword v{V_T0}, v{V_PL}, {SRD_WS}, {S_FLAG} offen sc1')
    a('s_mov_b64 exec, -1')
    a('s_nop 1')
    a.st.hist = sv
    a.raw(L + ':')

def lstore(stores, track=True):
    L1, L2 = uid('ls'), uid('ls')
    a(f's_cmp_lg_u32 {S_LOC}, 0')
    a(f's_cbranch_scc1 {L1}')
    n0 = len(a.lines)
    sv = (list(a.st.hist), list(a.st.vm), list(a.st.lg))
    for x in stores:
        a(x + ' sc1')
    t1 = a.lines[n0:]
    a.raw(f'  s_branch {L2}')
    a.raw(L1 + ':')
    a.st.hist, a.st.vm, a.st.lg = list(sv[0]), list(sv[1]), list(sv[2])
    for x in stores:
        a(x)
    a.raw(L2 + ':')
    if not track:
        a.st.vm = list(sv[1])

def advance(n=1):
    a(f's_add_u32 {S_PROG}, {S_PROG}, {n}')

def flag_addr(local=False):
    a(f'v_lshlrev_b32 v{V_T0}, 7, v{V_T0}')
    a(f'v_add_u32 v{V_T0}, {WS_LFLAG if local else WS_FLAG}, v{V_T0}')

def ids16(sreg):
    a(f'v_lshrrev_b32 v{V_T1}, 4, v{V_L16}')
    a(f'v_lshrrev_b32 v{V_T0}, 1, v{V_T1}')
    a(f'v_and_b32 v{V_T1}, 1, v{V_T1}')
    a(f'v_lshl_add_u32 v{V_T0}, v{V_T1}, 3, v{V_T0}')
    a(f's_lshl_b32 s48, {sreg}, 4')
    a(f'v_add_u32 v{V_T0}, s48, v{V_T0}')
    flag_addr()

def ids_qkv_rows(hreg):
    if RBX == 1:
        return ids16(hreg)
    a(f'v_lshrrev_b32 v{V_T0}, 6, v{V_L16}')
    a(f'v_lshlrev_b32 v{V_T0}, 1, v{V_T0}')
    a(f'v_bfe_u32 v{V_T1}, v{V_L16}, 4, 2')
    a(f'v_lshl_add_u32 v{V_T0}, v{V_T1}, 3, v{V_T0}')
    a(f's_lshr_b32 s48, {hreg}, 3')
    a(f's_and_b32 s49, {hreg}, 7')
    a('s_lshl_b32 s49, s49, 5')
    a('s_add_u32 s48, s48, s49')
    a(f'v_add_u32 v{V_T0}, s48, v{V_T0}')
    flag_addr()

def ids_qkv_heads(rbreg):
    if RBX == 1:
        a(f's_lshr_b32 s48, {rbreg}, 1')
        a(f's_and_b32 s49, {rbreg}, 1')
        a('s_lshl_b32 s49, s49, 3')
        a('s_add_u32 s48, s48, s49')
        a(f'v_add_u32 v{V_T0}, s48, v{V_L16}')
        return flag_addr(True)
    a(f'v_lshrrev_b32 v{V_T0}, 7, v{V_L16}')
    a(f'v_bfe_u32 v{V_T1}, v{V_L16}, 4, 3')
    a(f'v_lshl_add_u32 v{V_T0}, v{V_T1}, 5, v{V_T0}')
    a(f's_lshr_b32 s48, {rbreg}, 2')
    a('s_lshl_b32 s48, s48, 1')
    a(f's_and_b32 s49, {rbreg}, 3')
    a('s_lshl_b32 s49, s49, 3')
    a('s_add_u32 s48, s48, s49')
    a(f'v_add_u32 v{V_T0}, s48, v{V_T0}')
    flag_addr()

V_DUM = 250
def pretouch_setup(isA, blk):
    o, x, st = (WS_OA, WS_XA, WS_STA) if isA else (WS_O, WS_XB, WS_STB)
    for r, base, off in (('s87', S_OT, o), ('s88', S_XT, x), ('s89', S_STT, st)):
        if isinstance(blk, int):
            a(f's_add_u32 {r}, {base}, {off + blk}')
        else:
            a(f's_add_u32 {r}, {base}, {off}')
            a(f's_add_u32 {r}, {r}, {blk}')
    a(f'v_lshlrev_b32 v{V_DUM}, 1, v{V_L16}')
def pretouch():
    if PRE:
        a(f'buffer_load_dword v255, v{V_DUM}, {SRD_WS}, s87 offen sc1')
        a(f'buffer_load_dword v255, v{V_DUM}, {SRD_WS}, s88 offen sc1')
        a('s_mov_b64 exec, 0xff')
        a(f'buffer_load_dword v255, v{V_DUM}, {SRD_WS}, s89 offen sc1')
        a('s_mov_b64 exec, -1')

def prewrite():
    if PREW == 0:
        return pretouch()
    if PREW == 2:
        return
    a(f's_cmp_ge_u32 {S_CP}, 7')
    a(f's_cselect_b32 s88, {OOB}, s88')
    a(f's_cselect_b32 s89, {OOB}, s89')
    for sr in ('s87', 's88'):
        a(f'buffer_store_dwordx4 v[0:3], v{V_L16}, {SRD_WS}, {sr} offen')
        a(f'buffer_store_dwordx4 v[0:3], v{V_L16}, {SRD_WS}, {sr} offen offset:1024')
    a('s_mov_b64 exec, 0xffff')
    a(f'buffer_store_dwordx4 v[0:3], v{V_L16}, {SRD_WS}, s89 offen')
    a('s_mov_b64 exec, -1')

def touch_img(which):
    a(f's_mul_i32 s48, {S_HQ}, {IMG_HEAD}')
    a(f's_and_b32 s49, {S_RB}, 1')
    a(f's_lshl_b32 s49, s49, 2')
    a(f's_add_u32 s49, s49, {S_WAVE}')
    a(f's_mul_i32 s49, s49, {IMG_HEAD // 8}')
    a('s_add_u32 s48, s48, s49')
    a(f's_add_u32 s48, s48, {WS_IMG[which]}')
    a(f'v_lshlrev_b32 v254, 2, v{V_L16}')
    for k in range(3):
        a(f'buffer_load_dword v255, v254, {SRD_WS}, s48 offen sc1')
        if k < 2:
            a('s_add_u32 s48, s48, 4096')

def prologue():
    a.raw(kernel_header(KNAME))
    a('s_cmp_ge_u32 s2, 256')
    a('s_cbranch_scc1 k_end')
    a('s_getpc_b64 s[54:55]')
    a.raw('pc_base:')
    a('s_lshr_b32 s6, s2, 3')
    a('s_and_b32 s6, s6, 1')
    a('s_lshl_b32 s6, s6, 14')
    a('v_lshl_add_u32 v254, v0, 6, s6')
    a('v_min_u32 v254, code_end-pc_base-4, v254')
    a('s_cmp_ge_u32 s2, 16')
    a('s_cbranch_scc1 no_code_touch')
    a.raw('  global_load_dword v255, v254, s[54:55]')
    a.raw('no_code_touch:')
    if DUR: a('s_memrealtime s[92:93]')
    a('s_load_dwordx2 s[64:65], s[0:1], 0')
    a('s_load_dwordx2 s[68:69], s[0:1], 8')
    a('s_load_dwordx2 s[8:9], s[0:1], 64')
    a('s_load_dwordx2 s[76:77], s[0:1], 16')
    a('s_load_dwordx2 s[72:73], s[0:1], 32')
    a('s_load_dwordx2 s[80:81], s[0:1], 40')
    a('s_load_dwordx2 s[32:33], s[0:1], 48')
    a('s_load_dwordx2 s[36:37], s[0:1], 56')
    a(f'v_and_b32 v13, 63, v0')
    a(f'v_lshrrev_b32 v{V_T0}, 6, v0')
    a(f'v_and_b32 v{V_N}, 31, v0')
    a(f'v_readfirstlane_b32 {S_WAVE}, v{V_T0}')
    a(f'v_bfe_u32 v{V_HF}, v0, 5, 1')
    a(f'v_lshlrev_b32 v{V_L16}, 4, v13')
    a(f'v_mov_b32 v{V_ST}, 0')
    a('s_and_b32 s5, s2, 7')
    a('s_lshr_b32 s6, s2, 3')
    if RBX == 2:
        a('s_lshl_b32 s7, s5, 1')
        a('s_and_b32 s7, s7, 12')
        a('s_and_b32 s12, s6, 3')
        a(f's_add_u32 {S_RB}, s7, s12')
        a('s_and_b32 s7, s5, 1')
        a('s_lshl_b32 s7, s7, 3')
        a('s_lshr_b32 s12, s6, 2')
        a(f's_add_u32 {S_HQ}, s7, s12')
    else:
        a('s_lshl_b32 s7, s5, 1')
        a('s_and_b32 s12, s6, 1')
        a(f's_add_u32 {S_RB}, s7, s12')
        a(f's_lshr_b32 {S_HQ}, s6, 1')
    a('s_lshl_b32 s7, s5, 2')
    a('s_and_b32 s12, s6, 3')
    a(f's_add_u32 {S_RP}, s7, s12')
    a(f's_lshr_b32 {S_CP}, s6, 2')
    a(f's_lshr_b32 s7, {S_WAVE}, 1')
    a(f's_lshl_b32 s12, {S_RP}, 1')
    a('s_add_u32 s7, s7, s12')
    a(f's_and_b32 s12, {S_WAVE}, 1')
    a(f's_min_u32 s13, {S_CP}, 6')
    a('s_lshl_b32 s13, s13, 1')
    a('s_add_u32 s12, s12, s13')
    a(f's_mul_i32 {S_XT}, s7, {28*1024}')
    a('s_lshl_b32 s13, s12, 11')
    a(f's_add_u32 {S_XT}, {S_XT}, s13')
    a(f's_lshl_b32 {S_STT}, s12, 14')
    a('s_lshl_b32 s13, s7, 8')
    a(f's_add_u32 {S_STT}, {S_STT}, s13')
    a(f's_lshl_b32 {S_OT}, {S_RB}, 2')
    a(f's_add_u32 {S_OT}, {S_OT}, {S_WAVE}')
    a(f's_lshl_b32 {S_OT}, {S_OT}, 15')
    a(f's_lshl_b32 s13, {S_HQ}, 11')
    a(f's_add_u32 {S_OT}, {S_OT}, s13')
    a(f's_lshl_b32 {S_FLAG}, s2, 7')
    a(f's_add_u32 {S_FLAG}, {S_FLAG}, {WS_FLAG}')
    a(f's_mov_b32 {S_BLK}, 0')
    a(f's_mov_b32 {S_KVB}, 0')
    a(f's_getreg_b32 {S_XCC}, hwreg(HW_REG_XCC_ID, 0, 4)')
    a(f's_add_u32 {S_XCC}, {S_XCC}, 1')
    a(f's_mov_b32 {S_LOC}, 0')
    a(f's_mov_b32 {S_PROG}, 0')
    a(f's_mov_b32 {S_IT}, 0')
    for r in (11, 35, 39, 67, 71, 75, 79, 83):
        a(f's_mov_b32 s{r}, 0x20000')
    a(f's_mov_b32 s10, {WS_TOTAL}')
    a(f's_mov_b32 s34, {2048*448*2}')
    a('s_mov_b32 s38, 256')
    a(f's_mov_b32 s66, {2048*448*2}')
    a(f's_mov_b32 s70, {448*1344*2}')
    a(f's_mov_b32 s74, {448*1344*2}')
    a(f's_mov_b32 s78, {448*448*2}')
    a(f's_mov_b32 s82, {448*448*2}')
    a(f'v_add_u32 v{V_H64}, 65536, v{V_L16}')
    a(f'v_cmp_eq_u32 vcc, 28, v{V_N}')
    a(f'v_mov_b32 v{V_ONE}, {ONES2}')
    a(f'v_cndmask_b32 v{V_ONE}, 0, v{V_ONE}, vcc')
    a('s_waitcnt lgkmcnt(0)')
    for r in (9, 33, 37, 65, 69, 73, 77, 81):
        a(f's_and_b32 s{r}, s{r}, 0xffff')
    if TLBW:
        a('s_lshr_b32 s12, s2, 3')
        a('s_lshl_b32 s12, s12, 2')
        a(f's_add_u32 s12, s12, {S_WAVE}')
        a(f'v_mov_b32 v254, 0')
        a('s_mov_b64 exec, 1')
        a('s_lshr_b32 s13, s12, 2')
        a('s_lshl_b32 s13, s13, 19')
        a('s_and_b32 s14, s12, 3')
        a('s_cmp_eq_u32 s14, 3')
        a(f's_cselect_b32 s13, s13, {OOB}')
        a.raw(f'  buffer_load_dword v255, v254, {SRD_WS}, s13 offen offset:3968 sc1')
        for k, srd in enumerate((SRD_WO[0], SRD_WO[1], SRD_W[1], SRD_OUT, SRD_DBG, SRD_W[0])):
            a(f's_cmp_eq_u32 s12, {4*(3*k+1) + 2}')
            a(f's_cselect_b32 s13, 128, {OOB}') if False else (a(f's_mov_b32 s13, {OOB}'), a('s_cselect_b32 s13, 64, s13'))
            a.raw(f'  buffer_load_dword v255, v254, {srd}, s13 offen sc1')
        a('s_mov_b64 exec, -1')
    stamp('start')

ZROLE0 = 243
def zero_role():
    L = uid('z')
    a(f's_cmp_lt_u32 s2, {ZROLE0}')
    a(f's_cbranch_scc1 {L}')
    a(f's_sub_u32 s3, s2, {ZROLE0}')
    a('s_lshl_b32 s53, s3, 14')
    a(f's_add_u32 s53, s53, {WS_ZERO}')
    a('v_lshlrev_b32 v16, 4, v0')
    for i in range(4):
        a(f'v_mov_b32 v{20+i}, 0')
    for i in range(4):
        a.raw(f'  buffer_store_dwordx4 v[20:23], v16, {SRD_WS}, s53 offen {SC}')
        if i < 3:
            a('s_add_u32 s53, s53, 4096')
    a('s_lshl_b32 s3, s3, 2')
    a.raw(L + ':')

def zero_publish():
    L = uid('z')
    a(f's_cmp_lt_u32 s2, {ZROLE0}')
    a(f's_cbranch_scc1 {L}')
    a(f's_cmp_lg_u32 {S_WAVE}, 0')
    a(f's_cbranch_scc1 {L}')
    sv = list(a.st.hist)
    a(f'v_mov_b32 v{V_T1}, 1')
    a(f'v_mov_b32 v{V_PL}, 0')
    a('s_mov_b64 exec, 1')
    a.raw(f'  buffer_store_dword v{V_T1}, v{V_PL}, {SRD_DBG}, s3 offen sc1')
    a('s_mov_b64 exec, -1')
    a.st.hist = sv
    a.raw(L + ':')

def img_base(which, sg, sl):
    a(f's_mul_i32 {sl}, {S_WAVE}, {21*1024}')
    a(f's_mul_i32 {sg}, {S_HQ}, {IMG_HEAD}')
    a(f's_add_u32 {sg}, {sg}, {sl}')
    a(f's_add_u32 {sg}, {sg}, {WS_IMG[which]}')

def img_dma(n, sg, sl):
    a(f's_mov_b32 m0, {sl}')
    a(f's_add_u32 {sl}, {sl}, {n*1024}')
    for i in range(n):
        a(f'buffer_load_dwordx4 v{V_L16}, {SRD_WS}, {sg} offen offset:{i*1024} {SC} lds')
    a(f's_add_u32 {sg}, {sg}, {n*1024}')

def w_prefetch(which, parts):
    for n in parts:
        img_dma(n, 's60', 's61')

def stage_wo_issue(which, lds, tmp, tag, defer=False):
    a(f'v_lshrrev_b32 v{tmp}, 7, v{V_L16}')
    a(f'v_mul_u32_u24 v{tmp}, 896, v{tmp}')
    a(f'v_lshrrev_b32 v{tmp+1}, 2, v{V_L16}')
    a(f'v_and_b32 v{tmp+1}, 64, v{tmp+1}')
    a(f'v_xor_b32 v{tmp+1}, v{tmp+1}, v{V_L16}')
    a(f'v_and_b32 v{tmp+1}, 0x70, v{tmp+1}')
    a(f's_min_u32 s48, {S_CP}, 6')
    a('s_lshl_b32 s48, s48, 7')
    a(f'v_add3_u32 v{tmp}, v{tmp}, v{tmp+1}, s48')
    a(f's_mul_i32 s26, {S_WAVE}, {112*896}')
    a(f's_mul_i32 s27, {S_WAVE}, {14*1024}')
    def one(i, wh=which, tg=tag):
        a(f's_add_u32 m0, s27, {lds + i*1024}')
        a(f's_add_u32 s25, s26, {i*7168}')
        a.inst(f'buffer_load_dwordx4 v{tmp}, {SRD_WO[wh]}, s25 offen lds', tag=tg)
    class TH(list): pass
    th = TH((lambda i=i: one(i)) for i in range(14))
    th.one = one
    return th

def stage_wo_addr(lds, tmp):
    a(f'v_bfe_u32 v{tmp}, v{V_L16}, 6, 2')
    a(f'v_lshl_add_u32 v{tmp}, v{V_HF}, 2, v{tmp}')
    a(f'v_lshlrev_b32 v{tmp}, 7, v{tmp}')
    a(f'v_bfe_u32 v{tmp+1}, v{V_L16}, 7, 1')
    a(f's_and_b32 s49, {S_WAVE}, 1')
    a(f'v_xor_b32 v{tmp+1}, s49, v{tmp+1}')
    a(f'v_lshl_add_u32 v{tmp}, v{tmp+1}, 6, v{tmp}')
    a(f'v_bfe_u32 v{tmp+1}, v{V_L16}, 8, 1')
    a(f'v_lshl_add_u32 v{tmp}, v{tmp+1}, 5, v{tmp}')
    a(f'v_bfe_u32 v{tmp+1}, v{V_L16}, 4, 2')
    a(f'v_lshl_add_u32 v{tmp}, v{tmp+1}, 3, v{tmp}')
    a(f'v_add_u32 v{tmp}, {lds}, v{tmp}')

def stage_wo_reads(which, tmp):
    B = WOA[which]
    return [f'ds_read_b64_tr_b16 a[{B + 4*(2*h+u) + 2*q}:{B + 4*(2*h+u) + 2*q + 1}], v{tmp} offset:{(28*h + 16*u + 8*q)*128}'
            for h in range(16) for u in range(2) for q in range(2)]

def stage_wo_pads(which):
    B = WOA[which]
    a('s_mov_b32 exec_lo, 0')
    for h in range(16):
        r = B + 4 * (2 * h + 1) + 2
        a(f'v_accvgpr_write_b32 a{r}, 0')
        a(f'v_accvgpr_write_b32 a{r+1}, 0')
    a('s_mov_b32 exec_lo, -1')

X, AK, AV, AQ, WR, RS, WE, XE, T, E = 16, 128, 144, 160, 176, 200, 216, 228, 232, 244
ST = AQ
NWR = 6

def ln_stats(isA):
    L = [f's_mov_b32 s16, {f32(1.0/448)}',
         f'v_mul_f32 v{ST}, s16, v{ST}',
         f'v_mul_f32 v{ST+1}, s16, v{ST+1}',
         f'v_fma_f32 v{ST+1}, -v{ST}, v{ST}, v{ST+1}',
         f'v_max_f32 v{ST+1}, 0, v{ST+1}',
         f'v_add_f32 v{ST+1}, {f32(1e-5)}, v{ST+1}',
         f'v_rsq_f32 v{T}, v{ST+1}',
         f'v_sub_f32 v{ST}, 0, v{ST}',
         f'ds_write_b32 v{T+8}, v{T}']
    L += [f'ds_read_b128 v[{RS+4*g}:{RS+4*g+3}], v{T+9} offset:{32*g}' for g in range(4)]
    L += [f'v_and_b32 v{T+4}, 0xffff0000, v{ST}',
          f'v_sub_f32 v{T+5}, v{ST}, v{T+4}',
          f'v_and_b32 v{T+6}, 0xffff0000, v{T+5}',
          f'v_sub_f32 v{T+7}, v{T+5}, v{T+6}',
          f'v_perm_b32 v{XE}, v{T+4}, v{T+4}, s17',
          f'v_perm_b32 v{XE+1}, v{T+6}, v{T+4}, s17',
          f'v_perm_b32 v{XE+2}, v{T+7}, v{T+6}, s17',
          f'v_mov_b32 v{XE+3}, 0',
          f'v_mul_f32 v{T+2}, {f32(LOG2E if isA else QSCALE)}, v{T}']
    return L

def rs_addr():
    a(f's_lshl_b32 s18, {S_WAVE}, 7')
    a(f's_add_u32 s18, s18, {L_RS}')
    a(f'v_lshl_add_u32 v{T+8}, v{V_N}, 2, s18')
    a(f'v_lshl_add_u32 v{T+9}, v{V_HF}, 4, s18')
    a('s_mov_b32 s17, 0x07060302')

def halves_add(r, n, tmp):
    return ([f'v_mov_b32 v{tmp+i}, v{r+i}' for i in range(n)] +
            [f'v_permlane32_swap_b32 v{r+i}, v{tmp+i}' for i in range(n)] +
            [f'v_add_f32 v{r+i}, v{r+i}, v{tmp+i}' for i in range(n)])

def we_build(which, c):
    L = [f'v_cmp_eq_u32 s[56:57], 0, v{V_HF}']
    for p in (1, 2, 0):
        L += [f'v_cndmask_b32 v{c}, 0, v{V_CS[which]+p}, s[56:57]',
              f'v_and_b32 v{c+1}, 0xffff0000, v{c}',
              f'v_sub_f32 v{c}, v{c}, v{c+1}',
              f'v_and_b32 v{c+2}, 0xffff0000, v{c}',
              f'v_sub_f32 v{c+3}, v{c}, v{c+2}',
              f'v_perm_b32 v{WE+4*p}, v{c+2}, v{c+1}, s17',
              f'v_perm_b32 v{WE+4*p+1}, v{c+1}, v{c+3}, s17',
              f'v_perm_b32 v{WE+4*p+2}, v{c+1}, v{c+2}, s17',
              f'v_mov_b32 v{WE+4*p+3}, 0']
    return L

AT_Q = 16

def phase_qkv(isA, first):
    lp = not isA
    nm = 'qa0' if first else ('qa1' if isA else 'qb')
    wsel = 0 if isA else 1
    trans = [True, not isA, False]
    accb = [AQ, AK, AV]
    started = [False] * 3
    fill = []
    def pop(n):
        for _ in range(n):
            if fill:
                x = fill.pop(0)
                if callable(x): x()
                else: a(x)
    def mm(p, w, x):
        d = f'v[{accb[p]}:{accb[p]+15}]'
        c = d if started[p] else '0'
        started[p] = True
        if trans[p]:
            a(f'v_mfma_f32_32x32x16_bf16 {d}, {w}, {x}, {c}')
        else:
            a(f'v_mfma_f32_32x32x16_bf16 {d}, {x}, {w}, {c}')
    seq = [(t, p) for t in range(28) for p in (1, 2)] + [(t, 0) for t in range(28)]
    AH = NWR - 1
    def wread(i):
        if i < len(seq):
            t, p = seq[i]
            r = WR + 4 * (i % NWR)
            o = L_W + (3 * t + p) * 1024
            if first:
                for q in range(2):
                    a(f'ds_read_b64_tr_b16 v[{r+2*q}:{r+2*q+1}], v{T+10 + (o >= 65536)} offset:{o % 65536 + q*512}')
            else:
                a(f'ds_read_b128 v[{r}:{r+3}], v{V_L16 if o < 65536 else V_H64} offset:{o % 65536}')
    def wmm(i):
        t, p = seq[i]
        r = WR + 4 * (i % NWR)
        mm(p, f'v[{r}:{r+3}]', f'v[{X+4*t}:{X+4*t+3}]')
    def extra(p):
        mm(p, f'v[{WE+4*p}:{WE+4*p+3}]', f'v[{XE}:{XE+3}]')
    a(f's_lshl_b32 s7, {S_RB}, 2')
    a(f's_add_u32 s7, s7, {S_WAVE}')
    a(f's_mul_i32 s20, s7, {28*1024}')
    if first:
        XD, XA, WDV, F, TM = AQ + 4, AQ + 6, AQ + 14, RS, WE
        zero_role()
        a(f'v_lshrrev_b32 v{WDV}, 6, v{V_L16}')
        a(f'v_mul_u32_u24 v{WDV}, 2688, v{WDV}')
        a(f'v_and_b32 v{TM}, 48, v{V_L16}')
        a(f's_mul_i32 s12, {S_HQ}, 56')
        a('s_and_b32 s14, s12, 8')
        a('s_sub_u32 s12, s12, s14')
        a(f'v_add3_u32 v{WDV}, v{WDV}, v{TM}, s12')
        a(f's_lshl_b32 s23, {S_RB}, 1')
        a(f's_add_u32 s23, s23, {S_HQ}')
        a('s_mul_i32 s24, s23, 37')
        a('s_lshr_b32 s24, s24, 8')
        a('s_mul_i32 s24, s24, 7')
        a('s_sub_u32 s23, s23, s24')
        a(f's_mul_i32 s15, {S_WAVE}, 3072')
        a(f's_mul_i32 s22, {S_WAVE}, 43008')
        def issue_w(g):
            a(f's_mul_i32 s24, s23, {4*43008}')
            a('s_add_u32 s24, s24, s22')
            for p in (1, 2):
                a(f's_add_u32 m0, s15, {g*12288 + p*1024}')
                a('s_add_u32 s24, s24, 896')
                a.inst(f'buffer_load_dwordx4 v{WDV}, {SRD_W[0]}, s24 offen lds', tag=f'w{g}')
        if FINE2: stamp('p_a')
        issue_w(0)
        a(f'v_lshrrev_b32 v{TM+2}, 7, v{V_L16}')
        a(f'v_mul_u32_u24 v{TM+2}, 896, v{TM+2}')
        a(f'v_bfe_u32 v{TM+3}, v{V_L16}, 4, 3')
        a(f'v_lshrrev_b32 v{TM+4}, 8, v{V_L16}')
        a(f'v_xor_b32 v{TM+3}, v{TM+3}, v{TM+4}')
        a(f'v_lshl_add_u32 v{XD}, v{TM+3}, 4, v{TM+2}')
        a(f'v_xor_b32 v{TM+3}, 4, v{TM+3}')
        a(f'v_lshl_add_u32 v{XD+1}, v{TM+3}, 4, v{TM+2}')
        a(f's_mul_i32 s21, {S_WAVE}, 12288')
        a(f's_add_u32 s21, s21, {L_S}')
        def rot_next():
            a('s_add_u32 s23, s23, 1')
            a('s_cmp_eq_u32 s23, 7')
            a('s_cselect_b32 s23, 0, s23')
        def issue_x(g):
            a(f's_add_u32 m0, s21, {(g%3)*4096}')
            a('s_lshl_b32 s24, s23, 7')
            a('s_add_u32 s24, s24, s20')
            for i in range(4):
                if i: a('s_add_u32 s24, s24, 6144')
                a.inst(f'buffer_load_dwordx4 v{XD+(i&1)}, {SRD_X0}, s24 offen offset:{i*1024} lds', tag=f'g{g}')
            rot_next()
        issue_x(0)
        if FINE2: stamp('p_x0')
        if WARM:
            a('s_lshr_b32 s24, s2, 3')
            a('s_lshl_b32 s24, s24, 2')
            a(f's_add_u32 s24, s24, {S_WAVE}')
            a(f'v_lshlrev_b32 v254, 3, v{V_L16}')
            a(f's_and_b32 s25, {S_RB}, 14')
            a(f's_mul_i32 s25, s25, {128*896}')
            a(f's_mul_i32 s26, s24, {14*128}')
            a('s_add_u32 s25, s25, s26')
            a('s_mov_b64 exec, 0x3fff')
            a(f'buffer_load_dword v255, v254, {SRD_X0}, s25 offen')
            a(f's_mul_i32 s26, s24, {74*128}')
            a('s_mov_b64 exec, 0x3ff')
            a(f'buffer_load_dword v255, v254, {SRD_W[0]}, s26 offen')
            a('s_mov_b64 exec, -1')
            a(f'buffer_load_dword v255, v254, {SRD_W[0]}, s26 offen offset:{10*128}')
        a(f's_lshl_b32 s13, {S_WAVE}, 12')
        a(f's_add_u32 s13, s13, {L_KV}')
        if FINE2: stamp('p_rp')
        a(f'v_bfe_u32 v{TM+2}, v{V_N}, 1, 3')
        a(f'v_lshl_add_u32 v{TM+3}, v{V_N}, 7, s21')
        a(f'v_lshl_add_u32 v{TM+3}, v{V_HF}, 3, v{TM+3}')
        for q in range(8):
            a(f'v_xor_b32 v{TM+4}, {q}, v{TM+2}')
            a(f'v_lshl_add_u32 v{XA+q}, v{TM+4}, 4, v{TM+3}')
        a(f'v_and_b32 v{TM+2}, 0xc0, v{V_L16}')
        a(f'v_lshl_add_u32 v{TM+2}, v{V_HF}, 8, v{TM+2}')
        a(f'v_bfe_u32 v{TM+3}, v{V_L16}, 8, 1')
        a(f'v_lshl_add_u32 v{TM+2}, v{TM+3}, 5, v{TM+2}')
        a(f'v_bfe_u32 v{TM+3}, v{V_L16}, 4, 2')
        a(f'v_lshl_add_u32 v{TM+2}, v{TM+3}, 3, v{TM+2}')
        a(f'v_add_u32 v{T+10}, s14, v{TM+2}')
        a(f'v_add_u32 v{T+11}, 65536, v{T+10}')
        a(f'v_add_u32 v{TM+2}, s13, v{T+10}')
        a(f'v_lshlrev_b32 v{E}, 2, v{V_N}')
        a(f'v_lshrrev_b32 v{V_T0}, 2, v{V_L16}')
        a(f's_mov_b32 s19, {ONES2}')
        a(f'v_mov_b32 v{ST}, 0')
        a(f'v_mov_b32 v{ST+1}, 0')
        rs_addr()
        CA, CS, CR = E + 1, E + 3, XE
        a(f'v_add_u32 v{CA}, s15, v{T+10}')
        a(f'v_add_u32 v{CA+1}, s15, v{T+11}')
        a(f'v_mov_b32 v{CS}, 0')
        a(f'v_mov_b32 v{CS+1}, 0')
        if FINE2: stamp('p_adr')
        issue_w(1); issue_x(1)
        if FINE2: stamp('p_g1')
        if FINE2:
            a.wait_tag('g0'); stamp('p_g0w')
        CRS = [[XE, T + 4], [V_CS[0], X + 108]]
        def cs_read(gg, slot):
            for k, p in enumerate((1, 2)):
                for q in range(2):
                    o = gg * 12288 + p * 1024 + q * 512
                    r = CRS[slot][k] + 2 * q
                    a(f'ds_read_b64_tr_b16 v[{r}:{r+1}], v{CA + (o >= 65536)} offset:{o % 65536}')
        def cs_dot(slot):
            for r in range(4):
                for k in range(2):
                    a(f'v_dot2_f32_bf16 v{CS+k}, v{CRS[slot][k]+r}, s19, v{CS+k}')
        def open_group(g):
            a.wait_tag(f'g{g}')
            if g == 5:
                a.wait_tag('pub')
            if g == 6:
                a.wait_tag('csw', 'lg')
            a('s_barrier')
            if g == 0:
                zero_publish()
            if g == 5:
                signal(1, with_xcc=True, barrier=False); advance()
                if FINE: stamp('i_sig')
            for q in range(8):
                r = X + 16 * g + 2 * q
                a(f'ds_read_b64 v[{r}:{r+1}], v{XA+q} offset:{(g%3)*4096}')
            if g < 6:
                cs_read(g, 0)
        def rp_issue():
            for k in range(2):
                a(f's_add_u32 s24, s7, {64*k}')
                a('s_mul_i32 s25, s24, 171')
                a('s_lshr_b32 s25, s25, 9')
                a('s_mul_i32 s26, s25, 45')
                a('s_add_u32 s26, s26, s24')
                a('s_mul_i32 s26, s26, 896')
                if k:
                    a('s_cmp_ge_u32 s24, 84')
                    a(f's_cselect_b32 s26, {OOB}, s26')
                for wh in range(2):
                    a(f's_add_u32 m0, s13, {(2*k+wh)*1024}')
                    a.inst(f'buffer_load_dwordx4 v{WDV}, {SRD_W[wh]}, s26 offen lds', tag='rp')
                a('s_mul_i32 s25, s25, 3')
                a('s_sub_u32 s25, s24, s25')
                a(f's_mul_i32 s{30+k}, {S_HQ}, 3')
                a(f's_add_u32 s{30+k}, s{30+k}, s25')
                a(f's_lshl_b32 s{30+k}, s{30+k}, 7')
                a(f's_add_u32 s{30+k}, s{30+k}, {WS_CS}')
                a('s_lshl_b32 s25, s24, 10')
                a(f's_mul_i32 s{28+k}, {S_HQ}, {IMG_HEAD}')
                a(f's_add_u32 s{28+k}, s{28+k}, s25')
                a(f's_add_u32 s{28+k}, s{28+k}, {WS_IMG[0]}')
                if k:
                    a('s_cmp_ge_u32 s24, 84')
                    a(f's_cselect_b32 s29, {OOB}, s29')
                    a(f's_cselect_b32 s31, {OOB}, s31')
        def rp_read():
            a.wait_tag('rp')
            for b in range(4):
                for q in range(2):
                    a(f'ds_read_b64_tr_b16 v[{F+4*b+2*q}:{F+4*b+2*q+1}], v{TM+2} offset:{b*1024 + q*512}')
        def rp_store():
            for k in range(2):
                a(f'buffer_store_dwordx4 v[{F+8*k}:{F+8*k+3}], v{V_L16}, {SRD_WS}, s{28+k} offen {SC}')
                a(f's_add_u32 s{28+k}, s{28+k}, {WS_IMG[1]-WS_IMG[0]}')
                a(f'buffer_store_dwordx4 v[{F+8*k+4}:{F+8*k+7}], v{V_L16}, {SRD_WS}, s{28+k} offen {SC}')
        def rp_dot():
            for r in range(4):
                for b in range(4):
                    a(f'v_dot2_f32_bf16 v{TM+4+b}, v{F+4*b+r}, s19, {"0" if r == 0 else f"v{TM+4+b}"}')
            fill.extend(halves_add(TM + 4, 4, TM + 8))
        def look(mask_lo, mask_hi, srd, target, pmask):
            Lk = uid('look')
            a(f'v_cmp_le_u32 vcc, {target}, v{V_PL}')
            a(f's_mov_b32 s58, {mask_lo}')
            a(f's_mov_b32 s59, {mask_hi}')
            a('s_and_b64 vcc, vcc, s[58:59]')
            a('s_cmp_eq_u64 vcc, s[58:59]')
            a(f's_cbranch_scc1 {Lk}')
            sv = (list(a.st.hist), list(a.st.vm), list(a.st.lg))
            poll(srd, 's[58:59]', target)
            a.st.hist, a.st.vm, a.st.lg = sv
            a.raw(Lk + ':')
        def rp_pub():
            assert not fill
            look((1 << NZERO) - 1, 0, SRD_DBG, 1, None)
            a('s_mov_b32 exec_hi, 0')
            for k in range(2):
                a(f'buffer_atomic_add_f32 v{TM+4+2*k}, v{E}, {SRD_WS}, s{30+k} offen sc1')
                a(f's_add_u32 s{30+k}, s{30+k}, {16*3*128}')
                a.inst(f'buffer_atomic_add_f32 v{TM+5+2*k}, v{E}, {SRD_WS}, s{30+k} offen sc1', tag='pub')
            a('s_mov_b32 exec_hi, -1')
        def warm_wo():
            a('s_lshr_b32 s24, s2, 3')
            a('s_lshl_b32 s24, s24, 2')
            a(f's_add_u32 s24, s24, {S_WAVE}')
            a(f'v_lshlrev_b32 v254, 3, v{V_L16}')
            a(f's_mul_i32 s26, s24, {25*128}')
            a('s_mov_b64 exec, 0x1ffffff')
            a(f'buffer_load_dword v255, v254, {SRD_WO[0]}, s26 offen')
            a(f'buffer_load_dword v255, v254, {SRD_WO[1]}, s26 offen')
            a('s_mov_b64 exec, -1')
        def flags_issue():
            ids_qkv_rows(S_HQ)
            a('s_and_b32 s48, s2, 7')
            a('s_lshl_b32 s48, s48, 7')
            a(f's_add_u32 s48, s48, {WS_FLAG + 4}')
            a(f'v_lshl_add_u32 v{V_T1}, v{V_N}, 10, s48')
            a(f'v_cmp_eq_u32 vcc, 1, v{V_HF}')
            a(f'v_cndmask_b32 v{V_T0}, v{V_T0}, v{V_T1}, vcc')
            a(f'buffer_load_dword v{V_PL}, v{V_T0}, {SRD_WS}, 0 offen sc1')
            a(f's_mul_i32 s28, {S_HQ}, {IMG_HEAD}')
            a('s_add_u32 s28, s28, s15')
            a(f's_add_u32 s28, s28, {WS_IMG[0]}')
            a(f's_mul_i32 s29, {S_HQ}, 384')
            a(f's_add_u32 s29, s29, {WS_CS}')
        def flags_check():
            look(0xffff, -1, SRD_WS, S_PROG, None)
            stamp(f'{nm}_go', lp)
            for wh in range(2):
                for p in (0, 1, 2):
                    a(f'buffer_load_dword v{V_CS[wh]+p}, v253, {SRD_WS}, s29 offen offset:{p*128} {SC}')
                if wh == 0:
                    a(f's_add_u32 s29, s29, {16*3*128}')
            a(f'v_cmp_eq_u32 vcc, {S_XCC}, v{V_PL}')
            a('s_cmp_eq_u32 vcc_hi, -1')
            a(f's_cselect_b32 {S_LOC}, {0 if FORCE_GLOBAL else 1}, 0')
        def issue_q(g):
            a(f's_mul_i32 s24, s23, {4*43008}')
            a('s_add_u32 s24, s24, s22')
            a(f's_add_u32 m0, s15, {g*12288}')
            rot_next()
            a.inst(f'buffer_load_dwordx4 v{WDV}, {SRD_W[0]}, s24 offen lds', tag='wq')
        AH0 = 4
        open_group(0)
        for i in range(AH0):
            wread(i)
        for g in range(7):
            if FINE: stamp(f'qa0_g{g}')
            if g == 5:
                a.wait_tag('w6')
                cs_read(6, 1)
            for r in range(X + 16 * g, X + 16 * g + 16):
                a(f'v_dot2_f32_bf16 v{ST}, v{r}, s19, v{ST}')
                a(f'v_dot2_f32_bf16 v{ST+1}, v{r}, v{r}, v{ST+1}')
            if g < 6:
                cs_dot(0)
            if g == 2:
                rp_dot()
            if g == 5:
                cs_dot(1)
                for x in halves_add(CS, 2, XE): a(x)
                a(f's_lshl_b32 s12, {S_WAVE}, 8')
                a(f's_add_u32 s12, s12, {L_CS}')
                a(f'v_add_u32 v{XE+2}, s12, v{E}')
                a.inst(f'ds_write2_b32 v{XE+2}, v{CS}, v{CS+1} offset0:0 offset1:32', tag='csw')
            if g == 6:
                c = TM
                L = [f'v_add_u32 v{CA}, {L_CS}, v{E}']
                for k in range(2):
                    L += [f'ds_read2_b32 v[{c+4*k}:{c+4*k+1}], v{CA} offset0:{32*k} offset1:{32*k+64}',
                          f'ds_read2_b32 v[{c+4*k+2}:{c+4*k+3}], v{CA} offset0:{32*k+128} offset1:{32*k+192}']
                L += halves_add(ST, 2, ST + 2) + ln_stats(True)
                for k in range(2):
                    L += [f'v_add_f32 v{c+4*k}, v{c+4*k}, v{c+4*k+1}', f'v_add_f32 v{c+4*k+2}, v{c+4*k+2}, v{c+4*k+3}',
                          f'v_add_f32 v{V_CS[0]+1+k}, v{c+4*k}, v{c+4*k+2}']
                L += we_build(0, T + 4)[:19]
                fill.extend(L)
            for fl in range(8):
                i = 8 * g + fl
                wmm(i)
                if g == 0:
                    if fl == 0: issue_w(2)
                    if fl == 1: issue_x(2)
                    if fl == 4: rp_issue()
                    if fl == 5: issue_w(3)
                    if fl == 7: issue_x(3)
                elif g + 3 < 7:
                    if fl == 5: issue_w(g + 3)
                    if fl == 6: issue_x(g + 3)
                if g == 1 and fl == 4: rp_read()
                if g == 1 and fl == 7: rp_store()
                if g == 2 and fl == 0: a(f'buffer_load_dword v{V_PL}, v{V_T0}, {SRD_DBG}, 0 offen sc1')
                if g == 3 and fl == 0: rp_pub()
                if g == 4 and fl != 3: issue_q(fl - (fl > 3))
                if g == 5 and fl == 0: warm_wo()
                if g == 5 and fl == 5:
                    pretouch_setup(True, 0); prewrite()
                if g == 6 and fl == 3:
                    a.wait_tag('wq')
                    a('s_barrier')
                if fl == 3 and g < 6:
                    open_group(g + 1)
                wread(i + AH0)
                pop(4)
        pop(99)
        extra(1); extra(2)
        wread(56 + AH0)
        a(f'v_mov_b32 v253, v{E}')
    else:
        xo, so = (WS_XB, WS_STB) if isA else (WS_XA, WS_STA)
        a(f's_add_u32 s20, s20, {xo}')
        a('s_lshl_b32 s21, s7, 8')
        a(f's_add_u32 s21, s21, {so}')
        if not isA:
            a(f's_add_u32 s20, s20, {S_BLK}')
            a(f's_add_u32 s21, s21, {S_BLK}')
        a(f'v_lshlrev_b32 v{T+11}, 3, v{V_N}')
        a(f'v_lshl_add_u32 v{T+11}, v{V_HF}, 14, v{T+11}')
        rs_addr()
        pretouch_setup(isA, BLK if isA else S_BLK)
        a(f'v_lshrrev_b32 v{V_T1}, 4, v{V_L16}')
        a('s_lshr_b32 s48, s7, 3')
        a('s_lshr_b32 s49, s7, 1')
        a('s_and_b32 s49, s49, 3')
        a('s_lshl_b32 s49, s49, 3')
        a('s_add_u32 s48, s48, s49')
        a(f'v_lshl_add_u32 v{V_T0}, v{V_T1}, 5, s48')
        flag_addr(True)
        for x in we_build(wsel, X):
            a(x)
        if not isA:
            wob = stage_wo_issue(1, L_S, 251, 'wob', defer=True)
            a(f's_cmp_lg_u32 {S_IT}, 0')
            a(f's_cselect_b32 s26, {OOB}, s26')
        for i in range(AH):
            wread(i)
        poll(SRD_WS, 0x7f, S_PROG)
        stamp(f'{nm}_go', lp)
        def xload(t):
            r = X + 4 * t
            a(f'buffer_load_dwordx4 v[{r}:{r+3}], v{V_L16}, {SRD_WS}, s20 offen offset:{(t%4)*1024} {LD}')
            if t % 4 == 3 and t != 27:
                a('s_add_u32 s20, s20, 4096')
        def stload(i):
            a(f'buffer_load_dwordx2 v[{ST+2*i}:{ST+2*i+1}], v{T+11}, {SRD_WS}, s21 offen {LD}')
            if i < 6:
                a('s_add_u32 s21, s21, 32768')
        for t in range(8):
            xload(t)
        nx = 8
        for i in range(56):
            t = i >> 1
            if i == 24:
                for k in range(1, 7):
                    fill.append(f'v_add_f32 v{ST}, v{ST}, v{ST+2*k}')
                    fill.append(f'v_add_f32 v{ST+1}, v{ST+1}, v{ST+2*k+1}')
                fill.extend(halves_add(ST, 2, ST + 2) + ln_stats(isA))
            if i == 48:
                assert not fill
                extra(1); extra(2)
            wmm(i)
            if i % 2 == 0:
                for _ in range(2 if i < 12 else 1):
                    if nx < 28:
                        xload(nx); nx += 1
            if i == 1:
                for k in range(7):
                    stload(k)
            if i == 31:
                assert nx == 28
                pretouch()
            wread(i + AH)
            pop(2)
            if False: stamp(f'qb_t{t}', True)
        assert nx == 28 and not fill
    stamp(f'{nm}_mm', lp)
    KF, VF, QF = AK, AK + 8, AT_Q
    def pkmul_lane(dst, src, sc):
        a(f'v_pk_mul_f32 v[{dst}:{dst+1}], v[{src}:{src+1}], v[{sc}:{sc+1}] op_sel_hi:[1,0]')
    def v_pads():
        a('s_mov_b32 exec_lo, 0xf0000000')
        a('s_mov_b32 exec_hi, 0xf0000000')
        for r in range(8):
            a(f'v_mov_b32 v{VF+r}, v{V_ONE}')
        a('s_mov_b64 exec, -1')
    def v_epi():
        for r in range(8):
            a(f'v_pk_mul_f32 v[{AV+2*r}:{AV+2*r+1}], v[{AV+2*r}:{AV+2*r+1}], v[{RS+2*r}:{RS+2*r+1}]')
            a(f'v_cvt_pk_bf16_f32 v{VF+r}, v{AV+2*r}, v{AV+2*r+1}')
        v_pads()
    def pass2(npop, hooks):
        if not first:
            extra(0)
        for i in range(56, 84):
            wmm(i)
            wread(i + AH)
            pop(npop)
            if i - 56 in hooks:
                hooks[i - 56]()
    if not isA:
        a(f's_mov_b32 s19, {ONES2}')
        a(f's_lshl_b32 s12, {S_HQ}, 18')
        a('s_lshl_b32 s13, s7, 12')
        a('s_add_u32 s12, s12, s13')
        a(f's_add_u32 s13, s12, {WS_KV}')
        a(f's_add_u32 s13, s13, {S_KVB}')
        for r in range(8):
            pkmul_lane(AK + 2 * r, AK + 2 * r, T)
            a(f'v_cvt_pk_bf16_f32 v{KF+r}, v{AK+2*r}, v{AK+2*r+1}')
            if r == 3:
                a(f'buffer_store_dwordx4 v[{KF}:{KF+3}], v{V_L16}, {SRD_WS}, s13 offen {SC}')
        a('s_mov_b32 exec_lo, 0')
        a(f'v_mov_b32 v{KF+6}, s19')
        a(f'v_mov_b32 v{KF+7}, 0')
        a('s_mov_b32 exec_lo, -1')
        a(f'buffer_store_dwordx4 v[{KF+4}:{KF+7}], v{V_L16}, {SRD_WS}, s13 offen offset:1024 {SC}')
        v_epi()
        a(f'buffer_store_dwordx4 v[{VF}:{VF+3}], v{V_L16}, {SRD_WS}, s13 offen offset:2048 {SC}')
        a.inst(f'buffer_store_dwordx4 v[{VF+4}:{VF+7}], v{V_L16}, {SRD_WS}, s13 offen offset:3072 {SC}', tag='kvs')
        stamp(f'{nm}_epi', lp)
        hk = {k: wob[k] for k in range(14)}
        def sg():
            signal(1, wait_tag='kvs'); advance()
            stamp(f'{nm}_sig', lp)
        hk[QBSIG] = sg
        pass2(0, hk)
        SD = AV
        for r in range(8):
            pkmul_lane(AQ + 2 * r, AQ + 2 * r, T + 2)
            a(f'v_cvt_pk_bf16_f32 v{QF+r}, v{AQ+2*r}, v{AQ+2*r+1}')
        a('s_mov_b32 exec_lo, 0')
        a(f'v_mov_b32 v{QF+6}, 0')
        a(f'v_mov_b32 v{QF+7}, 0')
        a('s_mov_b32 exec_lo, -1')
        a(f'v_mfma_f32_32x32x16_bf16 v[{SD}:{SD+15}], v[{KF}:{KF+3}], v[{QF}:{QF+3}], 0')
        a(f'v_mfma_f32_32x32x16_bf16 v[{SD}:{SD+15}], v[{KF+4}:{KF+7}], v[{QF+4}:{QF+7}], v[{SD}:{SD+15}]')
        a(f's_lshl_b32 s12, {S_WAVE}, 11')
        a(f's_add_u32 s13, s12, {L_KV}')
        a(f'v_add_u32 v{T+8}, s13, v{V_L16}')
        a(f'ds_write_b128 v{T+8}, v[{QF}:{QF+3}]')
        for i in range(1, 4):
            a(f's_xor_b32 s13, s12, {i*2048}')
            a(f's_add_u32 s13, s13, {L_KV}')
            a(f'v_add_u32 v{T+8+i}, s13, v{V_L16}')
        a(f'v_max3_f32 v{T+4}, v{SD}, v{SD+1}, v{SD+2}')
        a(f'v_max3_f32 v{T+5}, v{SD+3}, v{SD+4}, v{SD+5}')
        for r in range(6, 16, 4):
            a(f'v_max3_f32 v{T+4}, v{SD+r}, v{SD+r+1}, v{T+4}')
            if r + 3 < 16:
                a(f'v_max3_f32 v{T+5}, v{SD+r+2}, v{SD+r+3}, v{T+5}')
        a(f'v_max_f32 v{T+4}, v{T+4}, v{T+5}')
        a(f'v_mov_b32 v{T+5}, v{T+4}')
        a(f'v_permlane32_swap_b32 v{T+4}, v{T+5}')
        a(f'v_max_f32 v{T+4}, v{T+4}, v{T+5}')
        a(f'v_sub_f32 v{T+4}, 0, v{T+4}')
        a(f'v_and_b32 v{T+5}, 0xffff0000, v{T+4}')
        a(f'v_sub_f32 v{T+6}, v{T+4}, v{T+5}')
        a('s_mov_b32 exec_lo, 0')
        a(f'v_perm_b32 v{QF+6}, v{T+6}, v{T+5}, s17')
        a('s_mov_b32 exec_lo, -1')
        a(f'ds_write_b128 v{T+8}, v[{QF+4}:{QF+7}] offset:1024')
        a.wait_tag('wob')
        a('s_waitcnt lgkmcnt(0)')
        a('s_barrier')
        for i in range(1, 4):
            for u in range(2):
                r = QF + 8 * i + 4 * u
                a(f'ds_read_b128 v[{r}:{r+3}], v{T+8+i} offset:{u*1024}')
        if DEBUGQ:
            a(f's_lshl_b32 s12, {S_HQ}, 17')
            a('s_lshl_b32 s13, s7, 11')
            a('s_add_u32 s12, s12, s13')
            a(f's_add_u32 s12, s12, {WS_Q}')
            a(f's_add_u32 s12, s12, {S_BLK}')
            a(f'buffer_store_dwordx4 v[{QF}:{QF+3}], v{V_L16}, {SRD_WS}, s12 offen')
            a(f'buffer_store_dwordx4 v[{QF+4}:{QF+7}], v{V_L16}, {SRD_WS}, s12 offen offset:1024')
    else:
        it = 0 if first else 1
        a(f's_mov_b32 s16, {f32(1e-6)}')
        a(f's_mov_b32 s17, {f32(1e-6)}')
        a(f's_mov_b32 s18, {f32(LOG2E)}')
        a(f's_lshl_b32 s19, {S_WAVE}, 12')
        a(f's_add_u32 s19, s19, {L_KV}')
        a(f'v_add_u32 v{T+8}, s19, v{V_L16}')
        a(f'v_lshlrev_b32 v{T+7}, 2, v0')
        a(f'v_add_u32 v{T+9}, {L_KV}, v{T+7}')
        a(f'v_mov_b32 v{T+4}, 1.0')
        for r in range(8):
            e = E + 2 * (r % 3)
            k = AK + 2 * r
            a(f'v_pk_mul_f32 v[{k}:{k+1}], v[{k}:{k+1}], v[{RS+2*r}:{RS+2*r+1}]')
            a(f'v_pk_mul_f32 v[{e}:{e+1}], v[{k}:{k+1}], s[18:19] op_sel_hi:[1,0]')
            a(f'v_pk_add_f32 v[{k}:{k+1}], v[{k}:{k+1}], 1.0 op_sel_hi:[1,0]')
            a(f'v_exp_f32 v{e}, v{e}')
            a(f'v_exp_f32 v{e+1}, v{e+1}')
            a(f'v_med3_f32 v{k}, v{e}, v{k}, 1.0')
            a(f'v_med3_f32 v{k+1}, v{e+1}, v{k+1}, 1.0')
            a(f'v_pk_add_f32 v[{k}:{k+1}], v[{k}:{k+1}], s[16:17]')
            a(f'v_cvt_pk_bf16_f32 v{KF+r}, v{k}, v{k+1}')
        v_epi()
        KVD = AV
        a(f'v_mfma_f32_32x32x16_bf16 v[{KVD}:{KVD+15}], v[{KF}:{KF+3}], v[{VF}:{VF+3}], 0')
        a(f'v_mfma_f32_32x32x16_bf16 v[{KVD}:{KVD+15}], v[{KF+4}:{KF+7}], v[{VF+4}:{VF+7}], v[{KVD}:{KVD+15}]')
        a(f's_lshl_b32 s22, {S_HQ}, 12')
        a(f's_add_u32 s22, s22, {WS_KVACC + it*65536}')
        a(f's_cmp_ge_u32 {S_WAVE}, 2')
        a(f's_cselect_b32 s23, {OOB}, s22')
        a('s_lshl_b32 s12, s7, 15')
        a(f's_lshl_b32 s13, {S_HQ}, 11')
        a('s_add_u32 s12, s12, s13')
        a(f's_add_u32 s12, s12, {WS_OA + it*BLK}')
        E2 = RS
        def kvw(rg):
            return lambda: a.inst(f'ds_write_b128 v{T+8}, v[{KVD+4*rg}:{KVD+4*rg+3}] offset:{rg*1024}', tag='kvw')
        def kvbar():
            a.wait_tag('kvw', 'lg')
            a('s_barrier')
            for k in range(4):
                a(f'ds_read2st64_b32 v[{E2+4*k}:{E2+4*k+1}], v{T+9} offset0:{4*k} offset1:{4*k+16}')
                a(f'ds_read2st64_b32 v[{E2+4*k+2}:{E2+4*k+3}], v{T+9} offset0:{4*k+32} offset1:{4*k+48}')
        def kvat(k):
            def f():
                a(f'v_add_f32 v{E2+4*k}, v{E2+4*k}, v{E2+4*k+1}')
                a(f'v_add_f32 v{E2+4*k+2}, v{E2+4*k+2}, v{E2+4*k+3}')
                a(f'v_add_f32 v{E2+4*k}, v{E2+4*k}, v{E2+4*k+2}')
                a.inst(f'buffer_atomic_add_f32 v{E2+4*k}, v{T+7}, {SRD_WS}, {"s23" if k == 3 else "s22"} offen offset:{k*1024} sc1', tag='kva')
            return f
        both = lambda f, g: (lambda: (f(), g()))
        hooks = {0: kvw(0), 1: kvw(1), 2: kvw(2), 3: kvw(3), 5: kvbar, 8: both(kvat(0), kvat(1)), 9: both(kvat(2), kvat(3))}
        if first:
            hooks = {k + 1: f for k, f in hooks.items()}
            hooks[0] = flags_issue
            woa = []
            def chk():
                flags_check()
                woa.extend(stage_wo_issue(0, L_S, 251, 'woa', defer=True))
            hooks[11] = chk
            for k in range(14):
                hooks[12 + k] = (lambda k=k: woa[k]())
            hooks[26] = lambda: stage_wo_addr(L_S, 252)
        pass2(0, hooks)
        if first:
            a('s_mov_b32 s17, 0x07060302')
            w = we_build(0, E)
            for x in w[:1] + w[19:]: a(x)
            a(f's_mov_b32 s17, {f32(1e-6)}')
            extra(0)
        signal(1, wait_tag='kva'); advance()
        stamp(f'{nm}_sg1', lp)
        img_base(1, 's60', 's61')
        w_prefetch(1, (4, 4, 3))
        QF = X
        for r in range(8):
            e = E + 2 * (r % 3)
            q = AQ + 2 * r
            pkmul_lane(e, q, T + 2)
            a(f'v_pk_fma_f32 v[{q}:{q+1}], v[{q}:{q+1}], v[{T}:{T+1}], v[{T+4}:{T+5}] op_sel_hi:[1,0,0]')
            a(f'v_exp_f32 v{e}, v{e}')
            a(f'v_exp_f32 v{e+1}, v{e+1}')
            a(f'v_med3_f32 v{q}, v{e}, v{q}, 1.0')
            a(f'v_med3_f32 v{q+1}, v{e+1}, v{q+1}, 1.0')
            a(f'v_pk_add_f32 v[{q}:{q+1}], v[{q}:{q+1}], s[16:17]')
            a(f'v_cvt_pk_bf16_f32 v{QF+r}, v{q}, v{q+1}')
        a('s_mov_b32 exec_lo, 0')
        a(f'v_mov_b32 v{QF+6}, 0')
        a(f'v_mov_b32 v{QF+7}, 0')
        a('s_mov_b32 exec_lo, -1')
        stamp(f'{nm}_epi', lp)
        if DEBUGQ:
            a(f's_add_u32 s13, s12, {WS_DBG + (8 << 20)}')
            a(f'buffer_store_dwordx4 v[{QF}:{QF+3}], v{V_L16}, {SRD_WS}, s13 offen')
            a(f'buffer_store_dwordx4 v[{QF+4}:{QF+7}], v{V_L16}, {SRD_WS}, s13 offen offset:1024')
        if first:
            a.wait_tag('woa')
            a('s_barrier')
            for n, x in enumerate(stage_wo_reads(0, 252)):
                a(x)
                if n % 12 == 11: a('s_waitcnt lgkmcnt(4)')
            stage_wo_pads(0)
        ids_qkv_rows(S_HQ)
        poll(SRD_WS, 0xffff, S_PROG)
        stamp(f'{nm}_kv', lp)
        KV, D = 40, 56
        for rg in range(4):
            a(f'buffer_load_dwordx4 v[{KV+4*rg}:{KV+4*rg+3}], v{V_L16}, {SRD_WS}, s22 offen offset:{rg*1024} {SC}')
        for r in range(8):
            a(f'v_cvt_pk_bf16_f32 v{KV+r}, v{KV+2*r}, v{KV+2*r+1}')
            if r == 3:
                a(f'v_mfma_f32_32x32x16_bf16 v[{D}:{D+15}], v[{KV}:{KV+3}], v[{QF}:{QF+3}], 0')
        a(f'v_mfma_f32_32x32x16_bf16 v[{D}:{D+15}], v[{KV+4}:{KV+7}], v[{QF+4}:{QF+7}], v[{D}:{D+15}]')
        a(f'v_add_f32 v{T}, s16, v{D+12}')
        a(f'v_mov_b32 v{T+1}, v{T}')
        a(f'v_permlane32_swap_b32 v{T+1}, v{T}')
        a(f'v_rcp_f32 v{T}, v{T}')
        for r in range(8):
            pkmul_lane(D + 2 * r, D + 2 * r, T)
            a(f'v_cvt_pk_bf16_f32 v{QF+8+r}, v{D+2*r}, v{D+2*r+1}')
        lstore([f'buffer_store_dwordx4 v[{QF+8}:{QF+11}], v{V_L16}, {SRD_WS}, s12 offen',
                f'buffer_store_dwordx4 v[{QF+12}:{QF+15}], v{V_L16}, {SRD_WS}, s12 offen offset:1024'])
        signal(1, local=True); advance()
        stamp(f'{nm}_sig', lp)

OP_CH = [(0, 4), (4, 8), (12, 8), (20, 8), (28, 4)]
def phase_op(isA):
    nm = 'oa' if isA else 'ob'
    join = uid('op_join')
    ACC = 16
    OF = 32
    XF = 96
    T = 104
    WB = WOA[0 if isA else 1]
    skip = uid('op_skip')
    a(f's_cmp_ge_u32 {S_CP}, 7')
    a(f's_cbranch_scc1 {skip if isA else join}')
    a(f's_lshr_b32 s7, {S_WAVE}, 1')
    a(f's_and_b32 s12, {S_WAVE}, 1')
    a(f's_lshl_b32 s5, {S_RP}, 1')
    a('s_add_u32 s5, s5, s7')
    a(f's_lshl_b32 s6, {S_CP}, 1')
    a('s_add_u32 s6, s6, s12')
    a(f's_mul_i32 s18, s5, {28*1024}')
    a('s_lshl_b32 s21, s7, 15')
    a(f's_add_u32 s21, s21, {L_S}')
    a(f'v_add_u32 v{T+4}, s21, v{V_L16}')
    if isA:
        L1, L2 = uid('oa'), uid('oa')
        a(f's_cmp_lg_u32 {S_IT}, 0')
        a(f's_cbranch_scc1 {L1}')
        a(f'v_mul_u32_u24 v{T+6}, 896, v{V_N}')
        a(f'v_lshl_add_u32 v{T+6}, v{V_HF}, 3, v{T+6}')
        a('s_lshl_b32 s19, s6, 6')
        a('s_add_u32 s20, s18, s19')
        for k in range(4):
            a.raw(f'  buffer_load_dwordx2 v[{XF+2*k}:{XF+2*k+1}], v{T+6}, {SRD_X0}, s20 offen offset:{16*k}')
        a(f's_branch {L2}')
        a.raw(L1 + ':')
        a('s_lshl_b32 s19, s6, 11')
        a('s_add_u32 s20, s18, s19')
        a(f's_add_u32 s20, s20, {WS_XB}')
        a.raw(f'  buffer_load_dwordx4 v[{XF}:{XF+3}], v{V_L16}, {SRD_WS}, s20 offen {SC}')
        a.raw(f'  buffer_load_dwordx4 v[{XF+4}:{XF+7}], v{V_L16}, {SRD_WS}, s20 offen offset:1024 {SC}')
        a.raw(L2 + ':')
        a('s_lshl_b32 s19, s6, 11')
        a('s_add_u32 s18, s18, s19')
        a(f's_add_u32 s18, s18, {S_BLK}')
    else:
        a('s_lshl_b32 s19, s6, 11')
        a('s_add_u32 s18, s18, s19')
        a(f's_add_u32 s18, s18, {S_BLK}')
        a(f's_add_u32 s20, s18, {WS_XA}')
        a(f'buffer_load_dwordx4 v[{XF}:{XF+3}], v{V_L16}, {SRD_WS}, s20 offen {SC}')
        a(f'buffer_load_dwordx4 v[{XF+4}:{XF+7}], v{V_L16}, {SRD_WS}, s20 offen offset:1024 {SC}')
    acc = f'v[{ACC}:{ACC+15}]'
    xo, so = (WS_XA, WS_STA) if isA else (WS_XB, WS_STB)
    a(f's_add_u32 s51, s18, {xo}')
    a(f'v_lshlrev_b32 v{T+7}, 3, v{V_N}')
    a(f'v_lshl_add_u32 v{T+7}, v{V_HF}, 2, v{T+7}')
    a('s_lshl_b32 s19, s5, 8')
    a('s_lshl_b32 s52, s6, 14')
    a('s_add_u32 s52, s52, s19')
    a(f's_add_u32 s52, s52, {so}')
    a(f's_add_u32 s52, s52, {S_BLK}')
    a(f's_mov_b32 s19, {ONES2}')
    a('s_lshl_b32 s14, s5, 15')
    a(f's_add_u32 s14, s14, {WS_OA if isA else WS_O}')
    a(f's_add_u32 s14, s14, {S_BLK}')
    a('s_lshl_b32 s15, s12, 12')
    a('s_lshl_b32 s16, s12, 11')
    a('s_add_u32 s22, s15, s21'); a('s_add_u32 s23, s16, s21')
    a('s_add_u32 s15, s15, s14'); a('s_add_u32 s16, s16, s14')
    a(f's_lshr_b32 s50, {S_RP}, 1')
    ids_qkv_heads('s50')
    poll(SRD_WS, 0xffff, S_PROG)
    stamp(f'{nm}_go', True)
    for c, (k0, n) in enumerate(OP_CH):
        a(f's_add_u32 m0, {"s22" if n == 8 else "s23"}, {k0*1024}')
        a(f's_add_u32 s17, {"s15" if n == 8 else "s16"}, {k0*1024}')
        for i in range(n // 2):
            a.inst(f'buffer_load_dwordx4 v{V_L16}, {SRD_WS}, s17 offen offset:{i*1024} {LD} lds', tag=f'o{c}')
    for r in range(8):
        a(f'v_lshlrev_b32 v{ACC+2*r}, 16, v{XF+r}')
        a(f'v_and_b32 v{ACC+2*r+1}, 0xffff0000, v{XF+r}')
    def opn(c):
        k0, n = OP_CH[c]
        a.wait_tag(f'o{c}')
        a('s_barrier')
        for s in range(n):
            r = OF + 32 * (c & 1) + 4 * s
            a(f'ds_read_b128 v[{r}:{r+3}], v{T+4} offset:{(k0+s)*1024}')
    opn(0)
    for c, (k0, n) in enumerate(OP_CH):
        for s in range(n):
            r = OF + 32 * (c & 1) + 4 * s
            k = k0 + s
            a(f'v_mfma_f32_32x32x16_bf16 {acc}, a[{WB+4*k}:{WB+4*k+3}], v[{r}:{r+3}], {acc}')
            if isA and s == 0 and c < 3:
                w_prefetch(1, [(4, 4, 2)[c]])
            if s == n - 3 and c + 1 < len(OP_CH):
                opn(c + 1)
    stamp(f'{nm}_mm', True)
    for r in range(8):
        a(f'v_cvt_pk_bf16_f32 v{XF+r}, v{ACC+2*r}, v{ACC+2*r+1}')
    if not isA:
        a(f's_cmp_lg_u32 {S_IT}, 0')
        a('s_cbranch_scc1 op_final')
    lstore([f'buffer_store_dwordx4 v[{XF}:{XF+3}], v{V_L16}, {SRD_WS}, s51 offen',
            f'buffer_store_dwordx4 v[{XF+4}:{XF+7}], v{V_L16}, {SRD_WS}, s51 offen offset:1024'])
    a(f'v_dot2_f32_bf16 v{T}, v{XF}, s19, 0')
    a(f'v_dot2_f32_bf16 v{T+1}, v{XF}, v{XF}, 0')
    for r in range(1, 8):
        a(f'v_dot2_f32_bf16 v{T}, v{XF+r}, s19, v{T}')
        a(f'v_dot2_f32_bf16 v{T+1}, v{XF+r}, v{XF+r}, v{T+1}')
    a(f'v_permlane32_swap_b32 v{T}, v{T+1}')
    a(f'v_add_f32 v{T}, v{T}, v{T+1}')
    lstore([f'buffer_store_dword v{T}, v{T+7}, {SRD_WS}, s52 offen'])
    stamp(f'{nm}_epi', True)
    signal(local=True)
    if isA:
        a(f's_branch {join}')
        a.raw(skip + ':'); a.fresh()
        w_prefetch(1, (4, 4, 2))
        a('s_waitcnt vmcnt(0)')
        a('s_barrier')
    a.raw(join + ':')
    a.fresh()
    a('s_nop 4')
    advance()
    stamp(f'{nm}_sig', True)
    def final():
        a.raw('op_final:'); a.fresh()
        a('s_lshl_b32 s19, s5, 5')
        a(f'v_add_u32 v{T+6}, s19, v{V_N}')
        a(f'v_mul_u32_u24 v{T+6}, 896, v{T+6}')
        a(f'v_lshl_add_u32 v{T+6}, v{V_HF}, 4, v{T+6}')
        a('s_lshl_b32 s19, s6, 6')
        for u in range(2):
            b = XF + 4 * u
            a(f'v_permlane32_swap_b32 v{b}, v{b+2}')
            a(f'v_permlane32_swap_b32 v{b+1}, v{b+3}')
            a(f'buffer_store_dwordx4 v[{b}:{b+3}], v{T+6}, {SRD_OUT}, s19 offen offset:{32*u}')
    return final

def phase_attn(wob_reads):
    Q = 16
    O = 48
    R = AK
    S = 176
    P = 208
    T = 216
    ORD = [1, 2, 3, 0]
    def kreg(j, t): return f'v[{R+16*j+4*t}:{R+16*j+4*t+3}]'
    def vreg(j, u): return f'v[{R+16*j+8+4*u}:{R+16*j+8+4*u+3}]'
    def qreg(i, t): return f'v[{Q+8*i+4*t}:{Q+8*i+4*t+3}]'
    def sreg(n): return f'v[{S+16*(n&1)}:{S+16*(n&1)+15}]'
    def oreg(i): return f'v[{O+16*i}:{O+16*i+15}]'
    def loadk(j, sr):
        a(f'buffer_load_dwordx4 {kreg(j,0)}, v{V_L16}, {SRD_WS}, {sr} offen {SC}')
        a(f'buffer_load_dwordx4 {kreg(j,1)}, v{V_L16}, {SRD_WS}, {sr} offen offset:1024 {SC}')
    def loadv(j, sr):
        a(f'buffer_load_dwordx4 {vreg(j,0)}, v{V_L16}, {SRD_WS}, {sr} offen offset:2048 {SC}')
        a(f'buffer_load_dwordx4 {vreg(j,1)}, v{V_L16}, {SRD_WS}, {sr} offen offset:3072 {SC}')
    def loadkv(j):
        for k in range(4):
            r = R + 16 * j + 4 * k
            a(f'global_load_dwordx4 v[{r}:{r+3}], v{V_L16}, s[14:15] offset:{k*1024} {SC}')
    NEXT = ['s_add_u32 s13, s13, 1', 's_cmp_eq_u32 s13, s16', 's_cselect_b32 s18, s19, s24',
            's_add_u32 s14, s14, s18', 's_addc_u32 s15, s15, 0']
    def ji(n): return (n >> 2) % 3, ORD[n & 3]
    def M1(n, own=False):
        j, i = (0, 0) if own else ji(n)
        a(f'v_mfma_f32_32x32x16_bf16 {sreg(n)}, {kreg(j,0)}, {qreg(i,0)}, 0')
    def M2(n, own=False):
        j, i = (0, 0) if own else ji(n)
        a(f'v_mfma_f32_32x32x16_bf16 {sreg(n)}, {kreg(j,1)}, {qreg(i,1)}, {sreg(n)}')
    def PV(n, u, own=False, init=False):
        j, i = (0, 0) if own else ji(n)
        a(f'v_mfma_f32_32x32x16_bf16 {oreg(i)}, {vreg(j,u)}, v[{P+4*u}:{P+4*u+3}], {"0" if init else oreg(i)}')
    def e(n, k):
        r = S + 16 * (n & 1) + k
        a(f'v_exp_f32 v{r}, v{r}')
    def c(n, k):
        r = S + 16 * (n & 1) + 2 * k
        a(f'v_cvt_pk_bf16_f32 v{P+k}, v{r}, v{r+1}')
    def step(n, slots, last=99, init=False):
        e(n, 4); e(n, 5); c(n, 0); c(n, 1); e(n, 6); e(n, 7)
        if n + 1 <= last: M2(n + 1)
        for x in slots[0]: x()
        c(n, 2); c(n, 3); e(n, 8); e(n, 9); e(n, 10); e(n, 11)
        PV(n, 0, init=init)
        for x in slots[1]: x()
        e(n, 12); e(n, 13); c(n, 4); c(n, 5); e(n, 14); e(n, 15); c(n, 6); c(n, 7)
        if n + 2 <= last: M1(n + 2)
        for x in slots[2]: x()
        if n + 1 <= last:
            e(n + 1, 0); e(n + 1, 1); e(n + 1, 2); e(n + 1, 3)
        PV(n, 1)
        for x in slots[3]: x()
    I = lambda t: (lambda: a(t))
    M1(0); M2(0); M1(1)
    a(f's_lshl_b32 s12, {S_HA}, 18')
    a(f's_add_u32 s12, s12, {WS_KV}')
    a(f's_add_u32 s12, s12, {S_KVB}')
    a(f's_mul_i32 s13, {S_WAVE}, 15')
    a(f's_lshl_b32 s16, {S_QB}, 2')
    a('s_cmp_ge_u32 s13, s16')
    a('s_cselect_b32 s18, 4, 0')
    a('s_add_u32 s18, s18, s13')
    a('s_lshl_b32 s18, s18, 12')
    a('s_add_u32 s18, s18, s12')
    a('s_add_u32 s14, s8, s18')
    a('s_addc_u32 s15, s9, 0')
    ids_qkv_rows(S_HA)
    for k in range(4): e(0, k)
    pre = []
    sv_lines = a.lines
    pre_txt = [f's_mov_b32 s19, {5*4096}', 's_mov_b32 s24, 4096', 's_mov_b32 s17, 4',
               f's_mov_b32 s20, {f32(2.0**-64)}', f's_mov_b32 s21, {f32(2.0**64)}',
               f's_add_u32 s51, {S_OT}, {WS_O}', f's_add_u32 s51, s51, {S_BLK}']
    def first_look():
        a(f'buffer_load_dword v{V_PL}, v{V_T0}, {SRD_WS}, 0 offen sc1')
    def check_and_load():
        Lk = uid('look')
        a(f'v_cmp_le_u32 vcc, {S_PROG}, v{V_PL}')
        a('s_and_b32 s48, vcc_lo, 0xffff')
        a('s_cmp_eq_u32 s48, 0xffff')
        a(f's_cbranch_scc1 {Lk}')
        sv = (list(a.st.hist), list(a.st.vm), list(a.st.lg))
        poll(SRD_WS, 0xffff, S_PROG)
        a.st.hist, a.st.vm, a.st.lg = sv
        a.raw(Lk + ':')
        stamp('at_go', True)
        loadkv(1)
        for x in NEXT: a(x)
        loadkv(2)
    for n in range(4):
        sl = [[I(pre_txt.pop(0))] if pre_txt else [] for _ in range(4)]
        if n == LOOK: sl[1].append(first_look)
        if n == LOOK + 1: sl[3].append(check_and_load)
        step(n, sl, 3, init=True)
    for x in NEXT: a(x)
    img_base(0, 's60', 's61')
    a(f's_cmp_lg_u32 {S_IT}, 0')
    a(f's_cselect_b32 s60, {OOB}, s60')
    if FINE: stamp('at_own', True)
    for t in range(1, 4):
        a(f's_xor_b32 s22, {S_WAVE}, {t}')
        a('s_mul_i32 s22, s22, 12288')
        a(f's_add_u32 s22, s22, {L_RED + (t-1)*4096}')
        a(f'v_add_u32 v{T+3+t}, s22, v{V_L16}')
    a(f's_mul_i32 s22, {S_WAVE}, 12288')
    a(f's_add_u32 s22, s22, {L_RED}')
    a(f'v_add_u32 v{T+3}, s22, v{V_L16}')
    wob_reads()
    M1(4); M2(4); M1(5)
    for k in range(4): e(4, k)
    a('s_waitcnt vmcnt(4)')
    if FINE: stamp('at_pro', True)
    def dman(n):
        for p in range(n):
            a(f'buffer_load_dwordx4 v{V_L16}, {SRD_WS}, s60 offen offset:{p*1024} {SC} lds')
    def tile_slots(u, load, wait, extra=None):
        sl = [[[], [], [], []] for _ in range(4)]
        if load:
            sl[0][1] = [lambda: loadkv((u + 2) % 3)]
            sl[0][2] = [I(NEXT[0])]; sl[0][3] = [I(NEXT[1])]; sl[1][0] = [I(NEXT[2])]; sl[1][1] = [I(NEXT[3])]; sl[1][2] = [I(NEXT[4])]
        if wait is not None:
            sl[2][1] = [I(f's_waitcnt vmcnt({wait})')]
        for (i, k), f in (extra or {}).items():
            sl[i][k] = sl[i][k] + f
        return sl
    DM = lambda n: {(2, 2): [I('s_mov_b32 m0, s61')], (2, 3): [lambda: dman(n)], (3, 0): [I('s_add_u32 s60, s60, 4096')], (3, 1): [I('s_add_u32 s61, s61, 4096')]}
    def body():
        for u in (1, 2, 3):
            ex = DM(4) if u == 1 else ({(3, 1): [I('s_sub_u32 s17, s17, 1')], (3, 2): [I('s_cmp_lg_u32 s17, 0')]} if u == 3 else None)
            sl = tile_slots(u, True, 8 if u == 2 else 4, ex)
            for i in range(4):
                step(4 * u + i, sl[i])
    def tail():
        a('s_cbranch_scc1 attn_loop')
    a.raw('.p2align 3')
    a.loop('attn_loop', body, tail)
    sl = tile_slots(13, True, 4, DM(4))
    for i in range(4): step(52 + i, sl[i])
    ex = {(0, 0): [I('s_mov_b32 m0, s61')], (0, 1): [lambda: dman(1)]}
    if PRE: ex[(0, 3)] = [pretouch]
    sl = tile_slots(14, False, 5 + (3 if PRE else 0), ex)
    for i in range(4): step(56 + i, sl[i])
    def W(t, rg):
        r = O + 16 * t + 4 * rg
        return I(f'ds_write_b128 v{T+3+t}, v[{r}:{r+3}] offset:{rg*1024}')
    def gather():
        a('s_waitcnt lgkmcnt(0)')
        a('s_barrier')
        for t in range(1, 4):
            for rg in range(4):
                r = O + 16 * t + 4 * rg
                a(f'ds_read_b128 v[{r}:{r+3}], v{T+3} offset:{(t-1)*4096 + rg*1024}')
    step(60, [[], [], [], []], 63)
    step(61, [[], [W(1, 0)], [W(1, 1)], [W(1, 2)]], 63)
    step(62, [[W(1, 3)], [W(2, 0), W(2, 1)], [W(2, 2)], [W(2, 3)]], 63)
    step(63, [[], [W(3, 0), W(3, 1), W(3, 2), W(3, 3)], [], [gather]], 63)
    stamp('at_mm', True)
    for t in range(1, 4):
        for r in range(8):
            a(f'v_pk_add_f32 v[{O+2*r}:{O+2*r+1}], v[{O+2*r}:{O+2*r+1}], v[{O+16*t+2*r}:{O+16*t+2*r+1}]')
    a(f'v_mov_b32 v{T}, v{O+12}')
    a(f'v_mov_b32 v{T+1}, v{O+12}')
    a(f'v_permlane32_swap_b32 v{T+1}, v{T}')
    a(f'v_cmp_le_f32 vcc, s20, v{T}')
    a(f'v_cmp_ge_f32 s[22:23], s21, v{T}')
    a('s_and_b64 vcc, vcc, s[22:23]')
    a('s_cmp_eq_u64 vcc, exec')
    a('s_cbranch_scc0 attn_slow')
    a.raw('attn_fin:')
    a(f'v_rcp_f32 v{T}, v{T}')
    for r in range(8):
        a(f'v_pk_mul_f32 v[{O+2*r}:{O+2*r+1}], v[{O+2*r}:{O+2*r+1}], v[{T}:{T+1}] op_sel_hi:[1,0]')
        a(f'v_cvt_pk_bf16_f32 v{P+r}, v{O+2*r}, v{O+2*r+1}')
    lstore([f'buffer_store_dwordx4 v[{P}:{P+3}], v{V_L16}, {SRD_WS}, s51 offen',
            f'buffer_store_dwordx4 v[{P+4}:{P+7}], v{V_L16}, {SRD_WS}, s51 offen offset:1024'])
    stamp('at_epi', True)
    signal(local=True); advance()
    stamp('at_sig', True)

    def slow():
        a.raw('attn_slow:'); a.fresh()
        a('s_waitcnt vmcnt(0) lgkmcnt(0)')
        a('s_nop 15')
        a('s_mov_b32 exec_lo, 0')
        a(f'v_mov_b32 v{Q+6}, 0')
        a(f'v_mov_b32 v{Q+7}, 0')
        a('s_mov_b32 exec_lo, -1')
        a(f'v_mov_b32 v{T+2}, {f32(-3.0e38)}')
        a('s_mov_b32 s13, s12')
        a('s_mov_b32 s17, 64')
        a('s_nop 4')
        def body1():
            loadk(0, 's13')
            M1(0, True); M2(0, True)
            for r in range(0, 16, 2):
                a(f'v_max3_f32 v{T+2}, v{S+r}, v{S+r+1}, v{T+2}')
            a('s_add_u32 s13, s13, 4096')
            a('s_nop 4')
        def tail1():
            a('s_sub_u32 s17, s17, 1')
            a('s_cmp_lg_u32 s17, 0')
            a('s_cbranch_scc1 attn_slow1')
        a.loop('attn_slow1', body1, tail1)
        a(f'v_mov_b32 v{T+3}, v{T+2}')
        a(f'v_permlane32_swap_b32 v{T+2}, v{T+3}')
        a(f'v_max_f32 v{T+2}, v{T+2}, v{T+3}')
        for r in range(16):
            a(f'v_mov_b32 v{O+r}, 0')
        a('s_mov_b32 s13, s12')
        a('s_mov_b32 s17, 64')
        a('s_nop 15')
        def body2():
            loadk(0, 's13'); loadv(0, 's13')
            M1(0, True); M2(0, True)
            for r in range(16):
                a(f'v_sub_f32 v{S+r}, v{S+r}, v{T+2}')
            for r in range(16):
                e(0, r)
            for r in range(8):
                c(0, r)
            PV(0, 0, True); PV(0, 1, True)
            a('s_add_u32 s13, s13, 4096')
            a('s_nop 15')
        def tail2():
            a('s_sub_u32 s17, s17, 1')
            a('s_cmp_lg_u32 s17, 0')
            a('s_cbranch_scc1 attn_slow2')
        a.loop('attn_slow2', body2, tail2)
        a(f'v_mov_b32 v{T}, v{O+12}')
        a(f'v_mov_b32 v{T+1}, v{O+12}')
        a(f'v_permlane32_swap_b32 v{T+1}, v{T}')
        a('s_nop 4')
        a('s_branch attn_fin')
    return slow

def wob_reads():
    Lw = uid('wob')
    a(f's_cmp_lg_u32 {S_IT}, 0')
    a(f's_cbranch_scc1 {Lw}')
    sv = (list(a.st.hist), list(a.st.lg))
    stage_wo_addr(L_S, 252)
    for n, x in enumerate(stage_wo_reads(1, 252)):
        a(x)
        if n % 12 == 11: a('s_waitcnt lgkmcnt(4)')
    stage_wo_pads(1)
    a('s_waitcnt lgkmcnt(0)')
    a('s_barrier')
    a.st.hist, a.st.lg = sv
    a.raw(Lw + ':')

def build(path):
    prologue()
    phase_qkv(True, True)
    a.raw('layer_loop:'); a.fresh()
    phase_op(True)
    phase_qkv(False, False)
    slow = phase_attn(wob_reads)
    final = phase_op(False)
    a(f's_cmp_lg_u32 {S_IT}, 0')
    a('s_cbranch_scc1 k_fin')
    phase_qkv(True, False)
    a(f's_mov_b32 {S_IT}, 1')
    a(f's_mov_b32 {S_BLK}, {BLK}')
    a(f's_mov_b32 {S_KVB}, {KVB}')
    a('s_branch layer_loop')
    final()
    a.raw('k_fin:')
    if INSTR:
        a('s_waitcnt vmcnt(0)')
        a(f'{CLK} s[96:97]')
        a('s_waitcnt lgkmcnt(0)')
        a(f'v_writelane_b32 v{V_ST}, s96, 63')
        a('s_lshl_b32 s48, s2, 2')
        a(f's_add_u32 s48, s48, {S_WAVE}')
        a('s_lshl_b32 s48, s48, 8')
        a(f's_add_u32 s48, s48, {WS_DBG}')
        a(f'v_lshrrev_b32 v{V_T0}, 2, v{V_L16}')
        a(f'buffer_store_dword v{V_ST}, v{V_T0}, {SRD_WS}, s48 offen')
    if DUR:
        a('s_waitcnt vmcnt(0)')
        a('s_memrealtime s[94:95]')
        a('s_not_b32 s92, s92')
        a('s_waitcnt lgkmcnt(0)')
        a(f'v_mov_b32 v{V_T0}, s92')
        a(f'v_mov_b32 v{V_T1}, s94')
        a(f'v_mov_b32 v{V_PL}, 0')
        a('s_mov_b64 exec, 1')
        a(f'buffer_atomic_umax v{V_T0}, v{V_PL}, {SRD_DBG}, 0 offen offset:56 sc1')
        a(f'buffer_atomic_umax v{V_T1}, v{V_PL}, {SRD_DBG}, 0 offen offset:60 sc1')
    a.raw('k_end:')
    a('s_endpgm')
    slow()
    a.raw('code_end:')
    out = ['; generated by dev/gen11.py -- interleaved linear-attention / softmax-MHA layers, persistent kernel, gfx950',
           f'; @launch grid=(256,1,1) block=(256,1,1) lds={LDS_TOTAL}',
           '.amdgcn_target "amdgcn-amd-amdhsa--gfx950"', '.text', a.text(), '.section .rodata,"a"',
           kernel_desc(KNAME, 512, 102 if INSTR else 96, 256)]
    open(path, 'w').write('\n'.join(out) + '\n')
    if INSTR:
        names = {}
        for i, (n, lp) in enumerate(STAMPS):
            names[i] = n + ('0' if lp else '')
            if lp:
                names[i + 27] = n + '1'
        names[63] = 'end'
        assert len(STAMPS) <= 40
        open(path + '.stamps', 'w').write('\n'.join(f'{i} {n}' for i, n in sorted(names.items())))

if __name__ == '__main__':
    path = sys.argv[1] if len(sys.argv) > 1 else f'cdna_kernels/{NAME}.s'
    INSTR = 'instr' in sys.argv[2:]
    if 'cyc' in sys.argv[2:]: CLK = 's_memtime'
    FINE = 'fine' in sys.argv[2:]
    TLBW = 'tlb' in sys.argv[2:]
    for x in sys.argv[2:]:
        if x.startswith('look='): LOOK = int(x[5:])
        if x.startswith('prew='): PREW = int(x[5:])
        if x.startswith('qbsig='): QBSIG = int(x[6:])
    DUR = 'dur' in sys.argv[2:]
    WARM = 'warm' in sys.argv[2:]
    PRE = 'nopre' not in sys.argv[2:]
    FORCE_GLOBAL = 'noloc' in sys.argv[2:]
    if 'ldplain' in sys.argv[2:]: LD = ''
    if 'ldnt' in sys.argv[2:]: LD = 'nt'
    if 'ldsc0' in sys.argv[2:]: LD = 'sc0'
    DEBUGQ = 'debugq' in sys.argv[2:]
    FINE2 = 'fine2' in sys.argv[2:]
    TOUCH = 'notouch' not in sys.argv[2:]
    build(path)
    print('wrote', path, 'maxv', a.maxv, 'maxa', a.maxa, 'maxs', a.maxs)
```

```python
import sys, struct
sys.path.insert(0, 'dev')
from asmlib import *

NAME = 'interleave_layers__linear_attn_block__softmax_full_mha__prompt'
KNAME = NAME + '_kernel'

def f32(x):
    return '0x%08x' % struct.unpack('<I', struct.pack('<f', x))[0]

X_SIZE = 64 * 28 * 1024
ST_SIZE = 14 * 2048 * 8
_off = 0
def alloc(n, al=65536):
    global _off
    _off = (_off + al - 1) // al * al
    r = _off
    _off += n
    return r
REUSE = 'noreuse' not in sys.argv
if REUSE:
    WS_XA = WS_XB = alloc(X_SIZE)
    WS_STA = WS_STB = alloc(ST_SIZE, 4096)
    WS_O = WS_OA = alloc(64 * 16 * 2048)
    WS_KV = alloc(2 * 16 * 64 * 4096)
    WS_Q = 0
    BLK = 0
    KVB = 16 * 64 * 4096
else:
    WS_XA = alloc(X_SIZE); WS_XB = alloc(X_SIZE)
    WS_STA = alloc(ST_SIZE); WS_STB = alloc(ST_SIZE)
    WS_OA = alloc(64 * 16 * 2048)
    WS_Q = alloc(16 * 64 * 2048)
    WS_KV = alloc(16 * 64 * 4096)
    WS_O = alloc(64 * 16 * 2048)
    BLK = alloc(0)
    KVB = BLK
    _off = 2 * BLK
IMG_HEAD = 84 * 1024
WS_IMG = [alloc(16 * IMG_HEAD), alloc(16 * IMG_HEAD)]
WS_ZERO = alloc(0)
WS_KVACC = alloc(2 * 16 * 4096)
WS_FLAG = alloc(256 * 128, 4096)
WS_LFLAG = alloc(256 * 128, 4096)
WS_CS = alloc(16384, 4096)
ZERO_SIZE = _off - WS_ZERO
NZERO = ZERO_SIZE // 16384
assert ZERO_SIZE == NZERO * 16384 and NZERO == 13
WS_TOTAL = 1 << 28
WS_DBG = 64 << 20
OOB = 0x40000000

LOG2E = 1.4426950408889634
QSCALE = 28 ** -0.5 * LOG2E
ONES2 = 0x3f803f80
SC = 'sc1'
LD = 'sc1'

L_W = 0
L_S = 84 * 1024
L_KV = L_S + 57344
L_M = L_KV + 16384
L_RS = L_M
L_CS = L_M + 512
LDS_TOTAL = 163840
L_RED = L_S + 4096

INSTR = False
CLK = 's_memrealtime'
FINE = False
TIMG = False
NPB = 5
NKV0 = 4
XS = 0
OPD = 3
OPE = 3
FINE3 = False
TLBW = False
PREW = 0
LOOK = 0
QBSIG = 24
DUR = False
WARM = False
PRE = True
RBX = 1
FORCE_GLOBAL = False
DEBUGQ = False
FINE2 = False
TOUCH = True
POLL_LIMIT = 400000

V_L16, V_N, V_HF, V_T0, V_T1, V_PL, V_ST = 1, 2, 3, 4, 5, 6, 7
V_CS = [8, 11]
V_H64, V_ONE = 14, 15
S_WAVE = 's4'
S_RB, S_HQ, S_RP, S_CP, S_HA, S_QB, S_FLAG, S_BLK = 's40', 's41', 's42', 's43', 's41', 's40', 's46', 's47'
S_PROG, S_IT = 's62', 's63'
S_KVB = 's90'
S_OL8, S_OL4, S_OG8, S_OG4, S_ORT, S_OCT = 's91', 's92', 's93', 's94', 's95', 's3'
S_XT, S_STT, S_OT = 's84', 's85', 's86'
S_LOC, S_XCC = 's44', 's45'
SRD_WS, SRD_OUT, SRD_DBG = 's[8:11]', 's[32:35]', 's[36:39]'
SRD_X0, SRD_W, SRD_WO = 's[64:67]', ['s[68:71]', 's[72:75]'], ['s[76:79]', 's[80:83]']
WOA = [0, 128]

a = Asm()
_uid = [0]
def uid(p):
    _uid[0] += 1
    return f'{p}_{_uid[0]}'

STAMPS = []
def stamp(name, looped=False):
    if INSTR:
        i = len(STAMPS)
        STAMPS.append((name, looped))
        a(f'{CLK} s[96:97]')
        if looped:
            a(f's_mul_i32 s98, {S_IT}, 27')
            a(f's_add_u32 s98, s98, {i}')
            a('s_mov_b32 m0, s98')
            a('s_waitcnt lgkmcnt(0)')
            a(f'v_writelane_b32 v{V_ST}, s96, m0')
        else:
            a('s_waitcnt lgkmcnt(0)')
            a(f'v_writelane_b32 v{V_ST}, s96, {i}')

def poll(srd, mask, target):
    L = uid('poll')
    if mask != -1:
        a(f's_mov_b64 exec, {mask}')
    a(f's_mov_b32 s48, {POLL_LIMIT}')
    a('s_waitcnt lgkmcnt(0)')
    a.raw(L + ':')
    a(f'buffer_load_dword v{V_PL}, v{V_T0}, {srd}, 0 offen sc1')
    a('s_sub_u32 s48, s48, 1')
    a('s_cbranch_scc1 k_end')
    a('s_waitcnt vmcnt(0)')
    a(f'v_cmp_le_u32 vcc, {target}, v{V_PL}')
    a('s_cmp_eq_u64 vcc, exec')
    a(f's_cbranch_scc0 {L}')
    if mask != -1:
        a('s_mov_b64 exec, -1')

def signal(inc=1, lg=True, local=False, with_xcc=False, wait_tag=None, barrier=True, pre=None, post=None):
    L = uid('sig')
    V_T0, V_T1, V_PL = (4, 5, 6) if pre is None else (244, 245, 246)
    if pre: pre()
    if barrier:
        if wait_tag:
            a.wait_tag(wait_tag)
        else:
            a('s_waitcnt vmcnt(0) lgkmcnt(0)' if lg else 's_waitcnt vmcnt(0)')
        a('s_barrier')
    a(f's_cmp_lg_u32 {S_WAVE}, 0')
    a(f's_cbranch_scc1 {L}')
    sv = list(a.st.hist)
    a(f's_add_u32 s48, {S_PROG}, {inc}')
    a(f'v_mov_b32 v{V_T0}, s48')
    a(f'v_mov_b32 v{V_PL}, 0')
    a('s_mov_b64 exec, 1')
    if with_xcc:
        a(f'v_mov_b32 v{V_T1}, {S_XCC}')
        a.raw(f'  buffer_store_dwordx2 v[{V_T0}:{V_T1}], v{V_PL}, {SRD_WS}, {S_FLAG} offen sc1')
    elif local:
        a(f's_add_u32 s48, {S_FLAG}, {WS_LFLAG - WS_FLAG}')
        lstore([f'buffer_store_dword v{V_T0}, v{V_PL}, {SRD_WS}, s48 offen'], track=False)
    else:
        a.raw(f'  buffer_store_dword v{V_T0}, v{V_PL}, {SRD_WS}, {S_FLAG} offen sc1')
    a('s_mov_b64 exec, -1')
    a('s_nop 1')
    a.st.hist = sv
    a.raw(L + ':')
    if post: post()

def lstore(stores, track=True):
    L1, L2 = uid('ls'), uid('ls')
    a(f's_cmp_lg_u32 {S_LOC}, 0')
    a(f's_cbranch_scc1 {L1}')
    n0 = len(a.lines)
    sv = (list(a.st.hist), list(a.st.vm), list(a.st.lg))
    for x in stores:
        a(x + ' sc1')
    t1 = a.lines[n0:]
    a.raw(f'  s_branch {L2}')
    a.raw(L1 + ':')
    a.st.hist, a.st.vm, a.st.lg = list(sv[0]), list(sv[1]), list(sv[2])
    for x in stores:
        a(x)
    a.raw(L2 + ':')
    if not track:
        a.st.vm = list(sv[1])

def advance(n=1):
    a(f's_add_u32 {S_PROG}, {S_PROG}, {n}')

def flag_addr(local=False):
    a(f'v_lshlrev_b32 v{V_T0}, 7, v{V_T0}')
    a(f'v_add_u32 v{V_T0}, {WS_LFLAG if local else WS_FLAG}, v{V_T0}')

def ids16(sreg):
    a(f'v_lshrrev_b32 v{V_T1}, 4, v{V_L16}')
    a(f'v_lshrrev_b32 v{V_T0}, 1, v{V_T1}')
    a(f'v_and_b32 v{V_T1}, 1, v{V_T1}')
    a(f'v_lshl_add_u32 v{V_T0}, v{V_T1}, 3, v{V_T0}')
    a(f's_lshl_b32 s48, {sreg}, 4')
    a(f'v_add_u32 v{V_T0}, s48, v{V_T0}')
    flag_addr()

def ids_qkv_rows(hreg):
    if RBX == 1:
        return ids16(hreg)
    a(f'v_lshrrev_b32 v{V_T0}, 6, v{V_L16}')
    a(f'v_lshlrev_b32 v{V_T0}, 1, v{V_T0}')
    a(f'v_bfe_u32 v{V_T1}, v{V_L16}, 4, 2')
    a(f'v_lshl_add_u32 v{V_T0}, v{V_T1}, 3, v{V_T0}')
    a(f's_lshr_b32 s48, {hreg}, 3')
    a(f's_and_b32 s49, {hreg}, 7')
    a('s_lshl_b32 s49, s49, 5')
    a('s_add_u32 s48, s48, s49')
    a(f'v_add_u32 v{V_T0}, s48, v{V_T0}')
    flag_addr()

def ids_qkv_heads(rbreg):
    if RBX == 1:
        a(f's_lshr_b32 s48, {rbreg}, 1')
        a(f's_and_b32 s49, {rbreg}, 1')
        a('s_lshl_b32 s49, s49, 3')
        a('s_add_u32 s48, s48, s49')
        a(f'v_add_u32 v{V_T0}, s48, v{V_L16}')
        return flag_addr(True)
    a(f'v_lshrrev_b32 v{V_T0}, 7, v{V_L16}')
    a(f'v_bfe_u32 v{V_T1}, v{V_L16}, 4, 3')
    a(f'v_lshl_add_u32 v{V_T0}, v{V_T1}, 5, v{V_T0}')
    a(f's_lshr_b32 s48, {rbreg}, 2')
    a('s_lshl_b32 s48, s48, 1')
    a(f's_and_b32 s49, {rbreg}, 3')
    a('s_lshl_b32 s49, s49, 3')
    a('s_add_u32 s48, s48, s49')
    a(f'v_add_u32 v{V_T0}, s48, v{V_T0}')
    flag_addr()

V_DUM = 250
def pretouch_setup(isA, blk):
    o, x, st = (WS_OA, WS_XA, WS_STA) if isA else (WS_O, WS_XB, WS_STB)
    for r, base, off in (('s87', S_OT, o), ('s88', S_XT, x), ('s89', S_STT, st)):
        if isinstance(blk, int):
            a(f's_add_u32 {r}, {base}, {off + blk}')
        else:
            a(f's_add_u32 {r}, {base}, {off}')
            a(f's_add_u32 {r}, {r}, {blk}')
    a(f'v_lshlrev_b32 v{V_DUM}, 1, v{V_L16}')
def pretouch():
    if PRE:
        a(f'buffer_load_dword v255, v{V_DUM}, {SRD_WS}, s87 offen sc1')
        a(f'buffer_load_dword v255, v{V_DUM}, {SRD_WS}, s88 offen sc1')
        a('s_mov_b64 exec, 0xff')
        a(f'buffer_load_dword v255, v{V_DUM}, {SRD_WS}, s89 offen sc1')
        a('s_mov_b64 exec, -1')

def prewrite():
    if PREW == 0:
        return pretouch()
    if PREW == 2:
        return
    a(f's_cmp_ge_u32 {S_CP}, 7')
    a(f's_cselect_b32 s88, {OOB}, s88')
    a(f's_cselect_b32 s89, {OOB}, s89')
    for sr in ('s87', 's88'):
        a(f'buffer_store_dwordx4 v[0:3], v{V_L16}, {SRD_WS}, {sr} offen')
        a(f'buffer_store_dwordx4 v[0:3], v{V_L16}, {SRD_WS}, {sr} offen offset:1024')
    a('s_mov_b64 exec, 0xffff')
    a(f'buffer_store_dwordx4 v[0:3], v{V_L16}, {SRD_WS}, s89 offen')
    a('s_mov_b64 exec, -1')

def touch_img_setup(which):
    a(f's_mul_i32 s25, {S_HQ}, {IMG_HEAD}')
    a(f's_and_b32 s49, {S_RB}, 1')
    a(f's_lshl_b32 s49, s49, 2')
    a(f's_add_u32 s49, s49, {S_WAVE}')
    a(f's_mul_i32 s49, s49, {IMG_HEAD // 8}')
    a('s_add_u32 s25, s25, s49')
    a(f's_add_u32 s25, s25, {WS_IMG[which]}')
    a(f's_cmp_lg_u32 {S_IT}, 0')
    a(f's_cselect_b32 s25, {OOB}, s25')
    a('s_add_u32 s26, s25, 8192')
    a(f'v_lshlrev_b32 v254, 3, v{V_L16}')
def touch_img(k):
    if k == 0:
        a(f'buffer_load_dword v255, v254, {SRD_WS}, s25 offen sc1')
    else:
        a('s_mov_b64 exec, 0xfffff')
        a(f'buffer_load_dword v255, v254, {SRD_WS}, s26 offen sc1')
        a('s_mov_b64 exec, -1')

def prologue():
    a.raw(kernel_header(KNAME))
    a('s_cmp_ge_u32 s2, 256')
    a('s_cbranch_scc1 k_end')
    a('s_getpc_b64 s[54:55]')
    a.raw('pc_base:')
    a('s_lshr_b32 s6, s2, 3')
    a('s_and_b32 s6, s6, 1')
    a('s_lshl_b32 s6, s6, 14')
    a('v_lshl_add_u32 v254, v0, 6, s6')
    a('v_min_u32 v254, code_end-pc_base-4, v254')
    a('s_cmp_ge_u32 s2, 16')
    a('s_cbranch_scc1 no_code_touch')
    a.raw('  global_load_dword v255, v254, s[54:55]')
    a.raw('no_code_touch:')
    if DUR: a('s_memrealtime s[92:93]')
    a('s_load_dwordx2 s[64:65], s[0:1], 0')
    a('s_load_dwordx2 s[68:69], s[0:1], 8')
    a('s_load_dwordx2 s[8:9], s[0:1], 64')
    a('s_load_dwordx2 s[76:77], s[0:1], 16')
    a('s_load_dwordx2 s[72:73], s[0:1], 32')
    a('s_load_dwordx2 s[80:81], s[0:1], 40')
    a('s_load_dwordx2 s[32:33], s[0:1], 48')
    a('s_load_dwordx2 s[36:37], s[0:1], 56')
    a(f'v_and_b32 v13, 63, v0')
    a(f'v_lshrrev_b32 v{V_T0}, 6, v0')
    a(f'v_and_b32 v{V_N}, 31, v0')
    a(f'v_readfirstlane_b32 {S_WAVE}, v{V_T0}')
    a(f'v_bfe_u32 v{V_HF}, v0, 5, 1')
    a(f'v_lshlrev_b32 v{V_L16}, 4, v13')
    a(f'v_mov_b32 v{V_ST}, 0')
    a('s_and_b32 s5, s2, 7')
    a('s_lshr_b32 s6, s2, 3')
    if RBX == 2:
        a('s_lshl_b32 s7, s5, 1')
        a('s_and_b32 s7, s7, 12')
        a('s_and_b32 s12, s6, 3')
        a(f's_add_u32 {S_RB}, s7, s12')
        a('s_and_b32 s7, s5, 1')
        a('s_lshl_b32 s7, s7, 3')
        a('s_lshr_b32 s12, s6, 2')
        a(f's_add_u32 {S_HQ}, s7, s12')
    else:
        a('s_lshl_b32 s7, s5, 1')
        a('s_and_b32 s12, s6, 1')
        a(f's_add_u32 {S_RB}, s7, s12')
        a(f's_lshr_b32 {S_HQ}, s6, 1')
    a('s_lshl_b32 s7, s5, 2')
    a('s_and_b32 s12, s6, 3')
    a(f's_add_u32 {S_RP}, s7, s12')
    a(f's_lshr_b32 {S_CP}, s6, 2')
    a(f's_lshr_b32 s7, {S_WAVE}, 1')
    a(f's_lshl_b32 s12, {S_RP}, 1')
    a('s_add_u32 s7, s7, s12')
    a(f's_and_b32 s12, {S_WAVE}, 1')
    a(f's_min_u32 s13, {S_CP}, 6')
    a('s_lshl_b32 s13, s13, 1')
    a('s_add_u32 s12, s12, s13')
    a(f's_mov_b32 {S_ORT}, s7')
    a(f's_lshl_b32 s13, {S_WAVE}, 12')
    a('s_and_b32 s13, s13, 0x1000')
    a(f's_lshl_b32 s14, {S_WAVE}, 14')
    a('s_and_b32 s14, s14, 0x8000')
    a(f's_add_u32 s14, s14, {L_S}')
    a(f's_add_u32 {S_OL8}, s14, s13')
    a('s_lshl_b32 s15, s7, 15')
    a(f's_add_u32 {S_OG8}, s15, s13')
    a('s_lshr_b32 s13, s13, 1')
    a(f's_add_u32 {S_OL4}, s14, s13')
    a(f's_add_u32 {S_OG4}, s15, s13')
    a(f's_mul_i32 {S_XT}, s7, {28*1024}')
    a('s_lshl_b32 s13, s12, 11')
    a(f's_add_u32 {S_XT}, {S_XT}, s13')
    a(f's_lshl_b32 {S_STT}, s12, 14')
    a('s_lshl_b32 s13, s7, 8')
    a(f's_add_u32 {S_STT}, {S_STT}, s13')
    a(f's_lshl_b32 {S_OT}, {S_RB}, 2')
    a(f's_add_u32 {S_OT}, {S_OT}, {S_WAVE}')
    a(f's_lshl_b32 {S_OT}, {S_OT}, 15')
    a(f's_lshl_b32 s13, {S_HQ}, 11')
    a(f's_add_u32 {S_OT}, {S_OT}, s13')
    a(f's_lshl_b32 {S_FLAG}, s2, 7')
    a(f's_add_u32 {S_FLAG}, {S_FLAG}, {WS_FLAG}')
    a(f's_mov_b32 {S_BLK}, 0')
    a(f's_mov_b32 {S_KVB}, 0')
    a(f's_getreg_b32 {S_XCC}, hwreg(HW_REG_XCC_ID, 0, 4)')
    a(f's_add_u32 {S_XCC}, {S_XCC}, 1')
    a(f's_mov_b32 {S_LOC}, 0')
    a(f's_mov_b32 {S_PROG}, 0')
    a(f's_mov_b32 {S_IT}, 0')
    for r in (11, 35, 39, 67, 71, 75, 79, 83):
        a(f's_mov_b32 s{r}, 0x20000')
    a(f's_mov_b32 s10, {WS_TOTAL}')
    a(f's_mov_b32 s34, {2048*448*2}')
    a('s_mov_b32 s38, 256')
    a(f's_mov_b32 s66, {2048*448*2}')
    a(f's_mov_b32 s70, {448*1344*2}')
    a(f's_mov_b32 s74, {448*1344*2}')
    a(f's_mov_b32 s78, {448*448*2}')
    a(f's_mov_b32 s82, {448*448*2}')
    a(f'v_add_u32 v{V_H64}, 65536, v{V_L16}')
    a(f'v_cmp_eq_u32 vcc, 28, v{V_N}')
    a(f'v_mov_b32 v{V_ONE}, {ONES2}')
    a(f'v_cndmask_b32 v{V_ONE}, 0, v{V_ONE}, vcc')
    a('s_waitcnt lgkmcnt(0)')
    for r in (9, 33, 37, 65, 69, 73, 77, 81):
        a(f's_and_b32 s{r}, s{r}, 0xffff')
    if TLBW:
        a('s_lshr_b32 s12, s2, 3')
        a('s_lshl_b32 s12, s12, 2')
        a(f's_add_u32 s12, s12, {S_WAVE}')
        a(f'v_mov_b32 v254, 0')
        a('s_mov_b64 exec, 1')
        a('s_lshr_b32 s13, s12, 2')
        a('s_lshl_b32 s13, s13, 19')
        a('s_and_b32 s14, s12, 3')
        a('s_cmp_eq_u32 s14, 3')
        a(f's_cselect_b32 s13, s13, {OOB}')
        a.raw(f'  buffer_load_dword v255, v254, {SRD_WS}, s13 offen offset:3968 sc1')
        for k, srd in enumerate((SRD_WO[0], SRD_WO[1], SRD_W[1], SRD_OUT, SRD_DBG, SRD_W[0])):
            a(f's_cmp_eq_u32 s12, {4*(3*k+1) + 2}')
            a(f's_cselect_b32 s13, 128, {OOB}') if False else (a(f's_mov_b32 s13, {OOB}'), a('s_cselect_b32 s13, 64, s13'))
            a.raw(f'  buffer_load_dword v255, v254, {srd}, s13 offen sc1')
        a('s_mov_b64 exec, -1')
    stamp('start')

ZROLE0 = 243
def zero_role():
    L = uid('z')
    a(f's_cmp_lt_u32 s2, {ZROLE0}')
    a(f's_cbranch_scc1 {L}')
    a(f's_sub_u32 s3, s2, {ZROLE0}')
    a('s_lshl_b32 s53, s3, 14')
    a(f's_add_u32 s53, s53, {WS_ZERO}')
    a('v_lshlrev_b32 v16, 4, v0')
    for i in range(4):
        a(f'v_mov_b32 v{20+i}, 0')
    for i in range(4):
        a.raw(f'  buffer_store_dwordx4 v[20:23], v16, {SRD_WS}, s53 offen {SC}')
        if i < 3:
            a('s_add_u32 s53, s53, 4096')
    a('s_lshl_b32 s3, s3, 2')
    a.raw(L + ':')

def zero_publish():
    L = uid('z')
    a(f's_cmp_lt_u32 s2, {ZROLE0}')
    a(f's_cbranch_scc1 {L}')
    a(f's_cmp_lg_u32 {S_WAVE}, 0')
    a(f's_cbranch_scc1 {L}')
    sv = list(a.st.hist)
    a(f'v_mov_b32 v{V_T1}, 1')
    a(f'v_mov_b32 v{V_PL}, 0')
    a('s_mov_b64 exec, 1')
    a.raw(f'  buffer_store_dword v{V_T1}, v{V_PL}, {SRD_DBG}, s3 offen sc1')
    a('s_mov_b64 exec, -1')
    a.st.hist = sv
    a.raw(L + ':')

def img_base(which, sg, sl):
    a(f's_mul_i32 {sl}, {S_WAVE}, {21*1024}')
    a(f's_mul_i32 {sg}, {S_HQ}, {IMG_HEAD}')
    a(f's_add_u32 {sg}, {sg}, {sl}')
    a(f's_add_u32 {sg}, {sg}, {WS_IMG[which]}')

def img_dma(n, sg, sl):
    a(f's_mov_b32 m0, {sl}')
    a(f's_add_u32 {sl}, {sl}, {n*1024}')
    for i in range(n):
        a(f'buffer_load_dwordx4 v{V_L16}, {SRD_WS}, {sg} offen offset:{i*1024} {SC} lds')
    a(f's_add_u32 {sg}, {sg}, {n*1024}')

def wb_kv(i):
    a(f's_add_u32 m0, s61, {i*3072}')
    a(f's_add_u32 s59, s60, {i*3072}')
    for p in (1, 2):
        a(f'buffer_load_dwordx4 v{V_L16}, {SRD_WS}, s59 offen offset:{p*1024} {SC} lds')
def wb_q(i):
    a(f's_add_u32 m0, s61, {i*3072}')
    a(f's_add_u32 s59, s60, {i*3072}')
    a(f'buffer_load_dwordx4 v{V_L16}, {SRD_WS}, s59 offen {SC} lds')

def w_prefetch(which, parts):
    for n in parts:
        img_dma(n, 's60', 's61')

def stage_wo_issue(which, lds, tmp, tag, defer=False):
    a(f'v_lshrrev_b32 v{tmp}, 7, v{V_L16}')
    a(f'v_mul_u32_u24 v{tmp}, 896, v{tmp}')
    a(f'v_lshrrev_b32 v{tmp+1}, 2, v{V_L16}')
    a(f'v_and_b32 v{tmp+1}, 64, v{tmp+1}')
    a(f'v_xor_b32 v{tmp+1}, v{tmp+1}, v{V_L16}')
    a(f'v_and_b32 v{tmp+1}, 0x70, v{tmp+1}')
    a(f's_min_u32 s48, {S_CP}, 6')
    a('s_lshl_b32 s48, s48, 7')
    a(f'v_add3_u32 v{tmp}, v{tmp}, v{tmp+1}, s48')
    a(f's_mul_i32 s26, {S_WAVE}, {112*896}')
    a(f's_mul_i32 s27, {S_WAVE}, {14*1024}')
    def one(i, wh=which, tg=tag):
        a(f's_add_u32 m0, s27, {lds + i*1024}')
        a(f's_add_u32 s25, s26, {i*7168}')
        a.inst(f'buffer_load_dwordx4 v{tmp}, {SRD_WO[wh]}, s25 offen lds', tag=tg)
    class TH(list): pass
    th = TH((lambda i=i: one(i)) for i in range(14))
    th.one = one
    return th

def stage_wo_addr(lds, tmp):
    a(f'v_bfe_u32 v{tmp}, v{V_L16}, 6, 2')
    a(f'v_lshl_add_u32 v{tmp}, v{V_HF}, 2, v{tmp}')
    a(f'v_lshlrev_b32 v{tmp}, 7, v{tmp}')
    a(f'v_bfe_u32 v{tmp+1}, v{V_L16}, 7, 1')
    a(f's_and_b32 s49, {S_WAVE}, 1')
    a(f'v_xor_b32 v{tmp+1}, s49, v{tmp+1}')
    a(f'v_lshl_add_u32 v{tmp}, v{tmp+1}, 6, v{tmp}')
    a(f'v_bfe_u32 v{tmp+1}, v{V_L16}, 8, 1')
    a(f'v_lshl_add_u32 v{tmp}, v{tmp+1}, 5, v{tmp}')
    a(f'v_bfe_u32 v{tmp+1}, v{V_L16}, 4, 2')
    a(f'v_lshl_add_u32 v{tmp}, v{tmp+1}, 3, v{tmp}')
    a(f'v_add_u32 v{tmp}, {lds}, v{tmp}')

def stage_wo_reads(which, tmp):
    B = WOA[which]
    return [f'ds_read_b64_tr_b16 a[{B + 4*(2*h+u) + 2*q}:{B + 4*(2*h+u) + 2*q + 1}], v{tmp} offset:{(28*h + 16*u + 8*q)*128}'
            for h in range(16) for u in range(2) for q in range(2)]

def stage_wo_pads(which):
    B = WOA[which]
    a('s_mov_b32 exec_lo, 0')
    for h in range(16):
        r = B + 4 * (2 * h + 1) + 2
        a(f'v_accvgpr_write_b32 a{r}, 0')
        a(f'v_accvgpr_write_b32 a{r+1}, 0')
    a('s_mov_b32 exec_lo, -1')

X, AK, AV, AQ, WR, RS, WE, XE, T, E = 16, 128, 144, 160, 176, 200, 216, 228, 232, 244
ST = AQ
NWR = 6

def ln_stats(isA):
    L = [f's_mov_b32 s16, {f32(1.0/448)}',
         f'v_mul_f32 v{ST}, s16, v{ST}',
         f'v_mul_f32 v{ST+1}, s16, v{ST+1}',
         f'v_fma_f32 v{ST+1}, -v{ST}, v{ST}, v{ST+1}',
         f'v_max_f32 v{ST+1}, 0, v{ST+1}',
         f'v_add_f32 v{ST+1}, {f32(1e-5)}, v{ST+1}',
         f'v_rsq_f32 v{T}, v{ST+1}',
         f'v_sub_f32 v{ST}, 0, v{ST}',
         f'ds_write_b32 v{T+8}, v{T}']
    L += [f'ds_read_b128 v[{RS+4*g}:{RS+4*g+3}], v{T+9} offset:{32*g}' for g in range(4)]
    L += [f'v_and_b32 v{T+4}, 0xffff0000, v{ST}',
          f'v_sub_f32 v{T+5}, v{ST}, v{T+4}',
          f'v_and_b32 v{T+6}, 0xffff0000, v{T+5}',
          f'v_sub_f32 v{T+7}, v{T+5}, v{T+6}',
          f'v_perm_b32 v{XE}, v{T+4}, v{T+4}, s17',
          f'v_perm_b32 v{XE+1}, v{T+6}, v{T+4}, s17',
          f'v_perm_b32 v{XE+2}, v{T+7}, v{T+6}, s17',
          f'v_mov_b32 v{XE+3}, 0',
          f'v_mul_f32 v{T+2}, {f32(LOG2E if isA else QSCALE)}, v{T}']
    return L

def rs_addr():
    a(f's_lshl_b32 s18, {S_WAVE}, 7')
    a(f's_add_u32 s18, s18, {L_RS}')
    a(f'v_lshl_add_u32 v{T+8}, v{V_N}, 2, s18')
    a(f'v_lshl_add_u32 v{T+9}, v{V_HF}, 4, s18')
    a('s_mov_b32 s17, 0x07060302')

def halves_add(r, n, tmp):
    return ([f'v_mov_b32 v{tmp+i}, v{r+i}' for i in range(n)] +
            [f'v_permlane32_swap_b32 v{r+i}, v{tmp+i}' for i in range(n)] +
            [f'v_add_f32 v{r+i}, v{r+i}, v{tmp+i}' for i in range(n)])

def we_build(which, c):
    L = [f'v_cmp_eq_u32 s[56:57], 0, v{V_HF}']
    for p in (1, 2, 0):
        L += [f'v_cndmask_b32 v{c}, 0, v{V_CS[which]+p}, s[56:57]',
              f'v_and_b32 v{c+1}, 0xffff0000, v{c}',
              f'v_sub_f32 v{c}, v{c}, v{c+1}',
              f'v_and_b32 v{c+2}, 0xffff0000, v{c}',
              f'v_sub_f32 v{c+3}, v{c}, v{c+2}',
              f'v_perm_b32 v{WE+4*p}, v{c+2}, v{c+1}, s17',
              f'v_perm_b32 v{WE+4*p+1}, v{c+1}, v{c+3}, s17',
              f'v_perm_b32 v{WE+4*p+2}, v{c+1}, v{c+2}, s17',
              f'v_mov_b32 v{WE+4*p+3}, 0']
    return L

AT_Q = 16

def phase_qkv(isA, first, mode='all'):
    lp = not isA
    nm = 'qa0' if first else ('qa1' if isA else 'qb')
    wsel = 0 if isA else 1
    trans = [True, not isA, False]
    accb = [AQ, AK, AV]
    started = [False] * 3
    fill = []
    def pop(n):
        for _ in range(n):
            if fill:
                x = fill.pop(0)
                if callable(x): x()
                else: a(x)
    def mm(p, w, x):
        d = f'v[{accb[p]}:{accb[p]+15}]'
        c = d if started[p] else '0'
        started[p] = True
        if trans[p]:
            a(f'v_mfma_f32_32x32x16_bf16 {d}, {w}, {x}, {c}')
        else:
            a(f'v_mfma_f32_32x32x16_bf16 {d}, {x}, {w}, {c}')
    seq = [(t, p) for t in range(28) for p in (1, 2)] + [(t, 0) for t in range(28)]
    AH = NWR - 1
    def wread(i):
        if i < len(seq):
            t, p = seq[i]
            r = WR + 4 * (i % NWR)
            o = L_W + (3 * t + p) * 1024
            if first:
                for q in range(2):
                    a(f'ds_read_b64_tr_b16 v[{r+2*q}:{r+2*q+1}], v{T+10 + (o >= 65536)} offset:{o % 65536 + q*512}')
            else:
                a(f'ds_read_b128 v[{r}:{r+3}], v{V_L16 if o < 65536 else V_H64} offset:{o % 65536}')
    def wmm(i):
        t, p = seq[i]
        r = WR + 4 * (i % NWR)
        mm(p, f'v[{r}:{r+3}]', f'v[{X+4*t}:{X+4*t+3}]')
    def extra(p):
        mm(p, f'v[{WE+4*p}:{WE+4*p+3}]', f'v[{XE}:{XE+3}]')
    if mode != 'pre': a.raw(f'; ======== QKV projection ({nm}) ========')
    n_keep = len(a.lines)
    a(f's_lshl_b32 s7, {S_RB}, 2')
    a(f's_add_u32 s7, s7, {S_WAVE}')
    a(f's_mul_i32 s20, s7, {28*1024}')
    if first:
        XD, XA, WDV, F, TM = AQ + 4, AQ + 6, AQ + 14, RS, WE
        zero_role()
        a(f'v_lshrrev_b32 v{WDV}, 6, v{V_L16}')
        a(f'v_mul_u32_u24 v{WDV}, 2688, v{WDV}')
        a(f'v_and_b32 v{TM}, 48, v{V_L16}')
        a(f's_mul_i32 s12, {S_HQ}, 56')
        a('s_and_b32 s14, s12, 8')
        a('s_sub_u32 s12, s12, s14')
        a(f'v_add3_u32 v{WDV}, v{WDV}, v{TM}, s12')
        a(f's_lshl_b32 s23, {S_RB}, 1')
        a(f's_add_u32 s23, s23, {S_HQ}')
        a('s_mul_i32 s24, s23, 37')
        a('s_lshr_b32 s24, s24, 8')
        a('s_mul_i32 s24, s24, 7')
        a('s_sub_u32 s23, s23, s24')
        a(f's_mul_i32 s15, {S_WAVE}, 3072')
        a(f's_mul_i32 s22, {S_WAVE}, 43008')
        def issue_w(g):
            a(f's_mul_i32 s24, s23, {4*43008}')
            a('s_add_u32 s24, s24, s22')
            for p in (1, 2):
                a(f's_add_u32 m0, s15, {g*12288 + p*1024}')
                a('s_add_u32 s24, s24, 896')
                a.inst(f'buffer_load_dwordx4 v{WDV}, {SRD_W[0]}, s24 offen lds', tag=f'w{g}')
        if FINE2: stamp('p_a')
        issue_w(0)
        a(f'v_lshrrev_b32 v{TM+2}, 7, v{V_L16}')
        a(f'v_mul_u32_u24 v{TM+2}, 896, v{TM+2}')
        a(f'v_bfe_u32 v{TM+3}, v{V_L16}, 4, 3')
        a(f'v_lshrrev_b32 v{TM+4}, 8, v{V_L16}')
        a(f'v_xor_b32 v{TM+3}, v{TM+3}, v{TM+4}')
        a(f'v_lshl_add_u32 v{XD}, v{TM+3}, 4, v{TM+2}')
        a(f'v_xor_b32 v{TM+3}, 4, v{TM+3}')
        a(f'v_lshl_add_u32 v{XD+1}, v{TM+3}, 4, v{TM+2}')
        a(f's_mul_i32 s21, {S_WAVE}, 12288')
        a(f's_add_u32 s21, s21, {L_S}')
        def rot_next():
            a('s_add_u32 s23, s23, 1')
            a('s_cmp_eq_u32 s23, 7')
            a('s_cselect_b32 s23, 0, s23')
        def issue_x(g):
            a(f's_add_u32 m0, s21, {(g%3)*4096}')
            a('s_lshl_b32 s24, s23, 7')
            a('s_add_u32 s24, s24, s20')
            for i in range(4):
                if i: a('s_add_u32 s24, s24, 6144')
                a.inst(f'buffer_load_dwordx4 v{XD+(i&1)}, {SRD_X0}, s24 offen offset:{i*1024} lds', tag=f'g{g}')
            rot_next()
        issue_x(0)
        if FINE2: stamp('p_x0')
        if WARM:
            a('s_lshr_b32 s24, s2, 3')
            a('s_lshl_b32 s24, s24, 2')
            a(f's_add_u32 s24, s24, {S_WAVE}')
            a(f'v_lshlrev_b32 v254, 3, v{V_L16}')
            a(f's_and_b32 s25, {S_RB}, 14')
            a(f's_mul_i32 s25, s25, {128*896}')
            a(f's_mul_i32 s26, s24, {14*128}')
            a('s_add_u32 s25, s25, s26')
            a('s_mov_b64 exec, 0x3fff')
            a(f'buffer_load_dword v255, v254, {SRD_X0}, s25 offen')
            a(f's_mul_i32 s26, s24, {74*128}')
            a('s_mov_b64 exec, 0x3ff')
            a(f'buffer_load_dword v255, v254, {SRD_W[0]}, s26 offen')
            a('s_mov_b64 exec, -1')
            a(f'buffer_load_dword v255, v254, {SRD_W[0]}, s26 offen offset:{10*128}')
        a(f's_lshl_b32 s13, {S_WAVE}, 12')
        a(f's_add_u32 s13, s13, {L_KV}')
        if FINE2: stamp('p_rp')
        a(f'v_bfe_u32 v{TM+2}, v{V_N}, 1, 3')
        a(f'v_lshl_add_u32 v{TM+3}, v{V_N}, 7, s21')
        a(f'v_lshl_add_u32 v{TM+3}, v{V_HF}, 3, v{TM+3}')
        for q in range(8):
            a(f'v_xor_b32 v{TM+4}, {q}, v{TM+2}')
            a(f'v_lshl_add_u32 v{XA+q}, v{TM+4}, 4, v{TM+3}')
        a(f'v_and_b32 v{TM+2}, 0xc0, v{V_L16}')
        a(f'v_lshl_add_u32 v{TM+2}, v{V_HF}, 8, v{TM+2}')
        a(f'v_bfe_u32 v{TM+3}, v{V_L16}, 8, 1')
        a(f'v_lshl_add_u32 v{TM+2}, v{TM+3}, 5, v{TM+2}')
        a(f'v_bfe_u32 v{TM+3}, v{V_L16}, 4, 2')
        a(f'v_lshl_add_u32 v{TM+2}, v{TM+3}, 3, v{TM+2}')
        a(f'v_add_u32 v{T+10}, s14, v{TM+2}')
        a(f'v_add_u32 v{T+11}, 65536, v{T+10}')
        a(f'v_add_u32 v{TM+2}, s13, v{T+10}')
        a(f'v_lshlrev_b32 v{E}, 2, v{V_N}')
        a(f'v_lshrrev_b32 v{V_T0}, 2, v{V_L16}')
        a(f's_mov_b32 s19, {ONES2}')
        a(f'v_mov_b32 v{ST}, 0')
        a(f'v_mov_b32 v{ST+1}, 0')
        rs_addr()
        CA, CS, CR = E + 1, E + 3, XE
        a(f'v_add_u32 v{CA}, s15, v{T+10}')
        a(f'v_add_u32 v{CA+1}, s15, v{T+11}')
        a(f'v_mov_b32 v{CS}, 0')
        a(f'v_mov_b32 v{CS+1}, 0')
        if FINE2: stamp('p_adr')
        issue_w(1); issue_x(1)
        if FINE2: stamp('p_g1')
        if FINE2:
            a.wait_tag('g0'); stamp('p_g0w')
        CRS = [[XE, T + 4], [V_CS[0], X + 108]]
        def cs_read(gg, slot):
            for k, p in enumerate((1, 2)):
                for q in range(2):
                    o = gg * 12288 + p * 1024 + q * 512
                    r = CRS[slot][k] + 2 * q
                    a(f'ds_read_b64_tr_b16 v[{r}:{r+1}], v{CA + (o >= 65536)} offset:{o % 65536}')
        def cs_dot(slot):
            for r in range(4):
                for k in range(2):
                    a(f'v_dot2_f32_bf16 v{CS+k}, v{CRS[slot][k]+r}, s19, v{CS+k}')
        def open_group(g):
            a.wait_tag(f'g{g}')
            if g == 5:
                a.wait_tag('pub')
            if g == 6:
                a.wait_tag('csw', 'lg')
            a('s_barrier')
            if g == 0:
                zero_publish()
            if g == 5:
                signal(1, with_xcc=True, barrier=False); advance()
                if FINE: stamp('i_sig')
            for q in range(8):
                r = X + 16 * g + 2 * q
                a(f'ds_read_b64 v[{r}:{r+1}], v{XA+q} offset:{(g%3)*4096}')
            if g < 6:
                cs_read(g, 0)
        def rp_issue():
            for k in range(2):
                a(f's_add_u32 s24, s7, {64*k}')
                a('s_mul_i32 s25, s24, 171')
                a('s_lshr_b32 s25, s25, 9')
                a('s_mul_i32 s26, s25, 45')
                a('s_add_u32 s26, s26, s24')
                a('s_mul_i32 s26, s26, 896')
                if k:
                    a('s_cmp_ge_u32 s24, 84')
                    a(f's_cselect_b32 s26, {OOB}, s26')
                for wh in range(2):
                    a(f's_add_u32 m0, s13, {(2*k+wh)*1024}')
                    a.inst(f'buffer_load_dwordx4 v{WDV}, {SRD_W[wh]}, s26 offen lds', tag='rp')
                a('s_mul_i32 s25, s25, 3')
                a('s_sub_u32 s25, s24, s25')
                a(f's_mul_i32 s{30+k}, {S_HQ}, 3')
                a(f's_add_u32 s{30+k}, s{30+k}, s25')
                a(f's_lshl_b32 s{30+k}, s{30+k}, 7')
                a(f's_add_u32 s{30+k}, s{30+k}, {WS_CS}')
                a('s_lshl_b32 s25, s24, 10')
                a(f's_mul_i32 s{28+k}, {S_HQ}, {IMG_HEAD}')
                a(f's_add_u32 s{28+k}, s{28+k}, s25')
                a(f's_add_u32 s{28+k}, s{28+k}, {WS_IMG[0]}')
                if k:
                    a('s_cmp_ge_u32 s24, 84')
                    a(f's_cselect_b32 s29, {OOB}, s29')
                    a(f's_cselect_b32 s31, {OOB}, s31')
        def rp_read():
            a.wait_tag('rp')
            for b in range(4):
                for q in range(2):
                    a(f'ds_read_b64_tr_b16 v[{F+4*b+2*q}:{F+4*b+2*q+1}], v{TM+2} offset:{b*1024 + q*512}')
        def rp_store():
            for k in range(2):
                a(f'buffer_store_dwordx4 v[{F+8*k}:{F+8*k+3}], v{V_L16}, {SRD_WS}, s{28+k} offen {SC}')
                a(f's_add_u32 s{28+k}, s{28+k}, {WS_IMG[1]-WS_IMG[0]}')
                a(f'buffer_store_dwordx4 v[{F+8*k+4}:{F+8*k+7}], v{V_L16}, {SRD_WS}, s{28+k} offen {SC}')
        def rp_dot():
            for r in range(4):
                for b in range(4):
                    a(f'v_dot2_f32_bf16 v{TM+4+b}, v{F+4*b+r}, s19, {"0" if r == 0 else f"v{TM+4+b}"}')
            fill.extend(halves_add(TM + 4, 4, TM + 8))
        def look(mask_lo, mask_hi, srd, target, pmask):
            Lk = uid('look')
            a(f'v_cmp_le_u32 vcc, {target}, v{V_PL}')
            a(f's_mov_b32 s58, {mask_lo}')
            a(f's_mov_b32 s59, {mask_hi}')
            a('s_and_b64 vcc, vcc, s[58:59]')
            a('s_cmp_eq_u64 vcc, s[58:59]')
            a(f's_cbranch_scc1 {Lk}')
            sv = (list(a.st.hist), list(a.st.vm), list(a.st.lg))
            poll(srd, 's[58:59]', target)
            a.st.hist, a.st.vm, a.st.lg = sv
            a.raw(Lk + ':')
        def rp_pub():
            assert not fill
            look((1 << NZERO) - 1, 0, SRD_DBG, 1, None)
            a('s_mov_b32 exec_hi, 0')
            for k in range(2):
                a(f'buffer_atomic_add_f32 v{TM+4+2*k}, v{E}, {SRD_WS}, s{30+k} offen sc1')
                a(f's_add_u32 s{30+k}, s{30+k}, {16*3*128}')
                a.inst(f'buffer_atomic_add_f32 v{TM+5+2*k}, v{E}, {SRD_WS}, s{30+k} offen sc1', tag='pub')
            a('s_mov_b32 exec_hi, -1')
        def warm_wo():
            a('s_lshr_b32 s24, s2, 3')
            a('s_lshl_b32 s24, s24, 2')
            a(f's_add_u32 s24, s24, {S_WAVE}')
            a(f'v_lshlrev_b32 v254, 3, v{V_L16}')
            a(f's_mul_i32 s26, s24, {25*128}')
            a('s_mov_b64 exec, 0x1ffffff')
            a(f'buffer_load_dword v255, v254, {SRD_WO[0]}, s26 offen')
            a(f'buffer_load_dword v255, v254, {SRD_WO[1]}, s26 offen')
            a('s_mov_b64 exec, -1')
        def flags_issue():
            ids_qkv_rows(S_HQ)
            a('s_and_b32 s48, s2, 7')
            a('s_lshl_b32 s48, s48, 7')
            a(f's_add_u32 s48, s48, {WS_FLAG + 4}')
            a(f'v_lshl_add_u32 v{V_T1}, v{V_N}, 10, s48')
            a(f'v_cmp_eq_u32 vcc, 1, v{V_HF}')
            a(f'v_cndmask_b32 v{V_T0}, v{V_T0}, v{V_T1}, vcc')
            a(f'buffer_load_dword v{V_PL}, v{V_T0}, {SRD_WS}, 0 offen sc1')
            a(f's_mul_i32 s28, {S_HQ}, {IMG_HEAD}')
            a('s_add_u32 s28, s28, s15')
            a(f's_add_u32 s28, s28, {WS_IMG[0]}')
            a(f's_mul_i32 s29, {S_HQ}, 384')
            a(f's_add_u32 s29, s29, {WS_CS}')
        def flags_check():
            look(0xffff, -1, SRD_WS, S_PROG, None)
            stamp(f'{nm}_go', lp)
            for wh in range(2):
                for p in (0, 1, 2):
                    a(f'buffer_load_dword v{V_CS[wh]+p}, v253, {SRD_WS}, s29 offen offset:{p*128} {SC}')
                if wh == 0:
                    a(f's_add_u32 s29, s29, {16*3*128}')
            a(f'v_cmp_eq_u32 vcc, {S_XCC}, v{V_PL}')
            a('s_cmp_eq_u32 vcc_hi, -1')
            a(f's_cselect_b32 {S_LOC}, {0 if FORCE_GLOBAL else 1}, 0')
        def issue_q(g):
            a(f's_mul_i32 s24, s23, {4*43008}')
            a('s_add_u32 s24, s24, s22')
            a(f's_add_u32 m0, s15, {g*12288}')
            rot_next()
            a.inst(f'buffer_load_dwordx4 v{WDV}, {SRD_W[0]}, s24 offen lds', tag='wq')
        AH0 = 4
        open_group(0)
        for i in range(AH0):
            wread(i)
        for g in range(7):
            if FINE: stamp(f'qa0_g{g}')
            if g == 5:
                a.wait_tag('w6')
                cs_read(6, 1)
            for r in range(X + 16 * g, X + 16 * g + 16):
                a(f'v_dot2_f32_bf16 v{ST}, v{r}, s19, v{ST}')
                a(f'v_dot2_f32_bf16 v{ST+1}, v{r}, v{r}, v{ST+1}')
            if g < 6:
                cs_dot(0)
            if g == 2:
                rp_dot()
            if g == 5:
                cs_dot(1)
                for x in halves_add(CS, 2, XE): a(x)
                a(f's_lshl_b32 s12, {S_WAVE}, 8')
                a(f's_add_u32 s12, s12, {L_CS}')
                a(f'v_add_u32 v{XE+2}, s12, v{E}')
                a.inst(f'ds_write2_b32 v{XE+2}, v{CS}, v{CS+1} offset0:0 offset1:32', tag='csw')
            if g == 6:
                c = TM
                L = [f'v_add_u32 v{CA}, {L_CS}, v{E}']
                for k in range(2):
                    L += [f'ds_read2_b32 v[{c+4*k}:{c+4*k+1}], v{CA} offset0:{32*k} offset1:{32*k+64}',
                          f'ds_read2_b32 v[{c+4*k+2}:{c+4*k+3}], v{CA} offset0:{32*k+128} offset1:{32*k+192}']
                L += halves_add(ST, 2, ST + 2) + ln_stats(True)
                for k in range(2):
                    L += [f'v_add_f32 v{c+4*k}, v{c+4*k}, v{c+4*k+1}', f'v_add_f32 v{c+4*k+2}, v{c+4*k+2}, v{c+4*k+3}',
                          f'v_add_f32 v{V_CS[0]+1+k}, v{c+4*k}, v{c+4*k+2}']
                L += we_build(0, T + 4)[:19]
                fill.extend(L)
            for fl in range(8):
                i = 8 * g + fl
                wmm(i)
                if g == 0:
                    if fl == 0: issue_w(2)
                    if fl == 1: issue_x(2)
                    if fl == 4: rp_issue()
                    if fl == 5: issue_w(3)
                    if fl == 7: issue_x(3)
                elif g + 3 < 7:
                    if fl == 5: issue_w(g + 3)
                    if fl == 6: issue_x(g + 3)
                if g == 1 and fl == 4: rp_read()
                if g == 1 and fl == 7: rp_store()
                if g == 2 and fl == 0: a(f'buffer_load_dword v{V_PL}, v{V_T0}, {SRD_DBG}, 0 offen sc1')
                if g == 3 and fl == 0: rp_pub()
                if g == 4 and fl != 3: issue_q(fl - (fl > 3))
                if g == 5 and fl == 0: warm_wo()
                if g == 5 and fl == 5:
                    pretouch_setup(True, 0); prewrite()
                if g == 6 and fl == 3:
                    a.wait_tag('wq')
                    a('s_barrier')
                if fl == 3 and g < 6:
                    open_group(g + 1)
                wread(i + AH0)
                pop(4)
        pop(99)
        extra(1); extra(2)
        wread(56 + AH0)
        a(f'v_mov_b32 v253, v{E}')
    else:
        xo, so = (WS_XB, WS_STB) if isA else (WS_XA, WS_STA)
        a(f's_add_u32 s20, s20, {xo}')
        a('s_lshl_b32 s21, s7, 8')
        a(f's_add_u32 s21, s21, {so}')
        if not isA:
            a(f's_add_u32 s20, s20, {S_BLK}')
            a(f's_add_u32 s21, s21, {S_BLK}')
        a(f'v_lshlrev_b32 v{T+11}, 3, v{V_N}')
        a(f'v_lshl_add_u32 v{T+11}, v{V_HF}, 14, v{T+11}')
        rs_addr()
        pretouch_setup(isA, BLK if isA else S_BLK)
        a(f'v_lshrrev_b32 v{V_T1}, 4, v{V_L16}')
        a('s_lshr_b32 s48, s7, 3')
        a('s_lshr_b32 s49, s7, 1')
        a('s_and_b32 s49, s49, 3')
        a('s_lshl_b32 s49, s49, 3')
        a('s_add_u32 s48, s48, s49')
        a(f'v_lshl_add_u32 v{V_T0}, v{V_T1}, 5, s48')
        flag_addr(True)
        for x in we_build(wsel, X):
            a(x)
        if not isA:
            wob = stage_wo_issue(1, L_S, 251, 'wob', defer=True)
            a(f's_cmp_lg_u32 {S_IT}, 0')
            a(f's_cselect_b32 s26, {OOB}, s26')
        early = isA or NPB >= 3
        if early:
            for i in range(AH):
                wread(i)
        if mode == 'pre':
            return
        if mode == 'main':
            del a.lines[n_keep:]
            a.fresh()
        if not early:
            for i in range(AH):
                wread(i)
        poll(SRD_WS, 0x7f, S_PROG)
        stamp(f'{nm}_go', lp)
        def xload(t):
            r = X + 4 * t
            a(f'buffer_load_dwordx4 v[{r}:{r+3}], v{V_L16}, {SRD_WS}, s20 offen offset:{(t%4)*1024} {LD}')
            if t % 4 == 3 and t != 27:
                a('s_add_u32 s20, s20, 4096')
        def stload(i):
            a(f'buffer_load_dwordx2 v[{ST+2*i}:{ST+2*i+1}], v{T+11}, {SRD_WS}, s21 offen {LD}')
            if i < 6:
                a('s_add_u32 s21, s21, 32768')
        N0 = [8, 4, 6, 12][XS]
        for t in range(N0):
            xload(t)
        nx = N0
        for i in range(56):
            t = i >> 1
            if i == 24:
                for k in range(1, 7):
                    fill.append(f'v_add_f32 v{ST}, v{ST}, v{ST+2*k}')
                    fill.append(f'v_add_f32 v{ST+1}, v{ST+1}, v{ST+2*k+1}')
                fill.extend(halves_add(ST, 2, ST + 2) + ln_stats(isA))
            if i == 48:
                assert not fill
                extra(1); extra(2)
            wmm(i)
            if XS == 0:
                if i % 2 == 0:
                    for _ in range(2 if i < 12 else 1):
                        if nx < 28:
                            xload(nx); nx += 1
                if i == 1:
                    for k in range(7):
                        stload(k)
            else:
                if nx < 28 and (i < 2 * (28 - N0) - 30 or i % 2 == 0 or True if XS in (1, 2) and i < 16 else i % 2 == 0):
                    xload(nx); nx += 1
                if 5 <= i < 19 and i % 2 == 1:
                    stload((i - 5) // 2)
            if i == 35:
                assert nx == 28
                pretouch()
            wread(i + AH)
            pop(2)
            if False: stamp(f'qb_t{t}', True)
        assert nx == 28 and not fill
    stamp(f'{nm}_mm', lp)
    KF, VF, QF = AK, AK + 8, AT_Q
    def pkmul_lane(dst, src, sc):
        a(f'v_pk_mul_f32 v[{dst}:{dst+1}], v[{src}:{src+1}], v[{sc}:{sc+1}] op_sel_hi:[1,0]')
    def v_pads():
        a('s_mov_b32 exec_lo, 0xf0000000')
        a('s_mov_b32 exec_hi, 0xf0000000')
        for r in range(8):
            a(f'v_mov_b32 v{VF+r}, v{V_ONE}')
        a('s_mov_b64 exec, -1')
    def v_epi():
        for r in range(8):
            a(f'v_pk_mul_f32 v[{AV+2*r}:{AV+2*r+1}], v[{AV+2*r}:{AV+2*r+1}], v[{RS+2*r}:{RS+2*r+1}]')
            a(f'v_cvt_pk_bf16_f32 v{VF+r}, v{AV+2*r}, v{AV+2*r+1}')
        v_pads()
    def pass2(npop, hooks):
        if not first:
            extra(0)
        for i in range(56, 84):
            wmm(i)
            wread(i + AH)
            pop(npop)
            if i - 56 in hooks:
                hooks[i - 56]()
    if not isA:
        a(f's_mov_b32 s19, {ONES2}')
        a(f's_lshl_b32 s12, {S_HQ}, 18')
        a('s_lshl_b32 s13, s7, 12')
        a('s_add_u32 s12, s12, s13')
        a(f's_add_u32 s13, s12, {WS_KV}')
        a(f's_add_u32 s13, s13, {S_KVB}')
        for r in range(8):
            pkmul_lane(AK + 2 * r, AK + 2 * r, T)
            a(f'v_cvt_pk_bf16_f32 v{KF+r}, v{AK+2*r}, v{AK+2*r+1}')
            if r == 3:
                a(f'buffer_store_dwordx4 v[{KF}:{KF+3}], v{V_L16}, {SRD_WS}, s13 offen {SC}')
        a('s_mov_b32 exec_lo, 0')
        a(f'v_mov_b32 v{KF+6}, s19')
        a(f'v_mov_b32 v{KF+7}, 0')
        a('s_mov_b32 exec_lo, -1')
        a(f'buffer_store_dwordx4 v[{KF+4}:{KF+7}], v{V_L16}, {SRD_WS}, s13 offen offset:1024 {SC}')
        v_epi()
        a(f'buffer_store_dwordx4 v[{VF}:{VF+3}], v{V_L16}, {SRD_WS}, s13 offen offset:2048 {SC}')
        a.inst(f'buffer_store_dwordx4 v[{VF+4}:{VF+7}], v{V_L16}, {SRD_WS}, s13 offen offset:3072 {SC}', tag='kvs')
        stamp(f'{nm}_epi', lp)
        hk = {k: wob[k] for k in range(14)}
        def sg():
            signal(1, wait_tag='kvs'); advance()
            stamp(f'{nm}_sig', lp)
        hk[QBSIG] = sg
        pass2(0, hk)
        SD = AV
        for r in range(8):
            pkmul_lane(AQ + 2 * r, AQ + 2 * r, T + 2)
            a(f'v_cvt_pk_bf16_f32 v{QF+r}, v{AQ+2*r}, v{AQ+2*r+1}')
        a('s_mov_b32 exec_lo, 0')
        a(f'v_mov_b32 v{QF+6}, 0')
        a(f'v_mov_b32 v{QF+7}, 0')
        a('s_mov_b32 exec_lo, -1')
        a(f'v_mfma_f32_32x32x16_bf16 v[{SD}:{SD+15}], v[{KF}:{KF+3}], v[{QF}:{QF+3}], 0')
        a(f'v_mfma_f32_32x32x16_bf16 v[{SD}:{SD+15}], v[{KF+4}:{KF+7}], v[{QF+4}:{QF+7}], v[{SD}:{SD+15}]')
        a(f's_lshl_b32 s12, {S_WAVE}, 11')
        a(f's_add_u32 s13, s12, {L_KV}')
        a(f'v_add_u32 v{T+8}, s13, v{V_L16}')
        a(f'ds_write_b128 v{T+8}, v[{QF}:{QF+3}]')
        for i in range(1, 4):
            a(f's_xor_b32 s13, s12, {i*2048}')
            a(f's_add_u32 s13, s13, {L_KV}')
            a(f'v_add_u32 v{T+8+i}, s13, v{V_L16}')
        a(f'v_max3_f32 v{T+4}, v{SD}, v{SD+1}, v{SD+2}')
        a(f'v_max3_f32 v{T+5}, v{SD+3}, v{SD+4}, v{SD+5}')
        for r in range(6, 16, 4):
            a(f'v_max3_f32 v{T+4}, v{SD+r}, v{SD+r+1}, v{T+4}')
            if r + 3 < 16:
                a(f'v_max3_f32 v{T+5}, v{SD+r+2}, v{SD+r+3}, v{T+5}')
        a(f'v_max_f32 v{T+4}, v{T+4}, v{T+5}')
        a(f'v_mov_b32 v{T+5}, v{T+4}')
        a(f'v_permlane32_swap_b32 v{T+4}, v{T+5}')
        a(f'v_max_f32 v{T+4}, v{T+4}, v{T+5}')
        a(f'v_sub_f32 v{T+4}, 0, v{T+4}')
        a(f'v_and_b32 v{T+5}, 0xffff0000, v{T+4}')
        a(f'v_sub_f32 v{T+6}, v{T+4}, v{T+5}')
        a('s_mov_b32 exec_lo, 0')
        a(f'v_perm_b32 v{QF+6}, v{T+6}, v{T+5}, s17')
        a('s_mov_b32 exec_lo, -1')
        a(f'ds_write_b128 v{T+8}, v[{QF+4}:{QF+7}] offset:1024')
        a.wait_tag('wob')
        a('s_waitcnt lgkmcnt(0)')
        a('s_barrier')
        for i in range(1, 4):
            for u in range(2):
                r = QF + 8 * i + 4 * u
                a(f'ds_read_b128 v[{r}:{r+3}], v{T+8+i} offset:{u*1024}')
        if DEBUGQ:
            a(f's_lshl_b32 s12, {S_HQ}, 17')
            a('s_lshl_b32 s13, s7, 11')
            a('s_add_u32 s12, s12, s13')
            a(f's_add_u32 s12, s12, {WS_Q}')
            a(f's_add_u32 s12, s12, {S_BLK}')
            a(f'buffer_store_dwordx4 v[{QF}:{QF+3}], v{V_L16}, {SRD_WS}, s12 offen')
            a(f'buffer_store_dwordx4 v[{QF+4}:{QF+7}], v{V_L16}, {SRD_WS}, s12 offen offset:1024')
    else:
        it = 0 if first else 1
        a(f's_mov_b32 s16, {f32(1e-6)}')
        a(f's_mov_b32 s17, {f32(1e-6)}')
        a(f's_mov_b32 s18, {f32(LOG2E)}')
        a(f's_lshl_b32 s19, {S_WAVE}, 12')
        a(f's_add_u32 s19, s19, {L_KV}')
        a(f'v_add_u32 v{T+8}, s19, v{V_L16}')
        a(f'v_lshlrev_b32 v{T+7}, 2, v0')
        a(f'v_add_u32 v{T+9}, {L_KV}, v{T+7}')
        a(f'v_mov_b32 v{T+4}, 1.0')
        for r in range(8):
            e = E + 2 * (r % 3)
            k = AK + 2 * r
            a(f'v_pk_mul_f32 v[{k}:{k+1}], v[{k}:{k+1}], v[{RS+2*r}:{RS+2*r+1}]')
            a(f'v_pk_mul_f32 v[{e}:{e+1}], v[{k}:{k+1}], s[18:19] op_sel_hi:[1,0]')
            a(f'v_pk_add_f32 v[{k}:{k+1}], v[{k}:{k+1}], 1.0 op_sel_hi:[1,0]')
            a(f'v_exp_f32 v{e}, v{e}')
            a(f'v_exp_f32 v{e+1}, v{e+1}')
            a(f'v_med3_f32 v{k}, v{e}, v{k}, 1.0')
            a(f'v_med3_f32 v{k+1}, v{e+1}, v{k+1}, 1.0')
            a(f'v_pk_add_f32 v[{k}:{k+1}], v[{k}:{k+1}], s[16:17]')
            a(f'v_cvt_pk_bf16_f32 v{KF+r}, v{k}, v{k+1}')
        v_epi()
        KVD = AV
        a(f'v_mfma_f32_32x32x16_bf16 v[{KVD}:{KVD+15}], v[{KF}:{KF+3}], v[{VF}:{VF+3}], 0')
        a(f'v_mfma_f32_32x32x16_bf16 v[{KVD}:{KVD+15}], v[{KF+4}:{KF+7}], v[{VF+4}:{VF+7}], v[{KVD}:{KVD+15}]')
        a(f's_lshl_b32 s22, {S_HQ}, 12')
        a(f's_add_u32 s22, s22, {WS_KVACC + it*65536}')
        a(f's_cmp_ge_u32 {S_WAVE}, 2')
        a(f's_cselect_b32 s23, {OOB}, s22')
        a('s_lshl_b32 s12, s7, 15')
        a(f's_lshl_b32 s13, {S_HQ}, 11')
        a('s_add_u32 s12, s12, s13')
        a(f's_add_u32 s12, s12, {WS_OA + it*BLK}')
        E2 = RS
        def kvw(rg):
            return lambda: a.inst(f'ds_write_b128 v{T+8}, v[{KVD+4*rg}:{KVD+4*rg+3}] offset:{rg*1024}', tag='kvw')
        def kvbar():
            a.wait_tag('kvw', 'lg')
            a('s_barrier')
            for k in range(4):
                a(f'ds_read2st64_b32 v[{E2+4*k}:{E2+4*k+1}], v{T+9} offset0:{4*k} offset1:{4*k+16}')
                a(f'ds_read2st64_b32 v[{E2+4*k+2}:{E2+4*k+3}], v{T+9} offset0:{4*k+32} offset1:{4*k+48}')
        def kvat(k):
            def f():
                a(f'v_add_f32 v{E2+4*k}, v{E2+4*k}, v{E2+4*k+1}')
                a(f'v_add_f32 v{E2+4*k+2}, v{E2+4*k+2}, v{E2+4*k+3}')
                a(f'v_add_f32 v{E2+4*k}, v{E2+4*k}, v{E2+4*k+2}')
                a.inst(f'buffer_atomic_add_f32 v{E2+4*k}, v{T+7}, {SRD_WS}, {"s23" if k == 3 else "s22"} offen offset:{k*1024} sc1', tag='kva')
            return f
        both = lambda f, g: (lambda: (f(), g()))
        hooks = {0: kvw(0), 1: kvw(1), 2: kvw(2), 3: kvw(3), 5: kvbar, 8: both(kvat(0), kvat(1)), 9: both(kvat(2), kvat(3))}
        img_base(1, 's60', 's61')
        if first:
            hooks = {k + 1: f for k, f in hooks.items()}
            hooks[0] = flags_issue
            woa = []
            def chk():
                flags_check()
                woa.extend(stage_wo_issue(0, L_S, 251, 'woa', defer=True))
            hooks[11] = chk
            for k in range(7):
                hooks[12 + k] = (lambda k=k: (woa[2*k](), woa[2*k+1]()))
            hooks[19] = lambda: stage_wo_addr(L_S, 252)
        pass2(0, hooks)
        if first:
            a('s_mov_b32 s17, 0x07060302')
            w = we_build(0, E)
            for x in w[:1] + w[19:]: a(x)
            a(f's_mov_b32 s17, {f32(1e-6)}')
            extra(0)
        signal(1, wait_tag='kva'); advance()
        stamp(f'{nm}_sg1', lp)
        for k in range(NPB):
            wb_kv(k)
        QF = X
        for r in range(8):
            e = E + 2 * (r % 3)
            q = AQ + 2 * r
            pkmul_lane(e, q, T + 2)
            a(f'v_pk_fma_f32 v[{q}:{q+1}], v[{q}:{q+1}], v[{T}:{T+1}], v[{T+4}:{T+5}] op_sel_hi:[1,0,0]')
            a(f'v_exp_f32 v{e}, v{e}')
            a(f'v_exp_f32 v{e+1}, v{e+1}')
            a(f'v_med3_f32 v{q}, v{e}, v{q}, 1.0')
            a(f'v_med3_f32 v{q+1}, v{e+1}, v{q+1}, 1.0')
            a(f'v_pk_add_f32 v[{q}:{q+1}], v[{q}:{q+1}], s[16:17]')
            a(f'v_cvt_pk_bf16_f32 v{QF+r}, v{q}, v{q+1}')
        a('s_mov_b32 exec_lo, 0')
        a(f'v_mov_b32 v{QF+6}, 0')
        a(f'v_mov_b32 v{QF+7}, 0')
        a('s_mov_b32 exec_lo, -1')
        stamp(f'{nm}_epi', lp)
        if DEBUGQ:
            a(f's_add_u32 s13, s12, {WS_DBG + (8 << 20)}')
            a(f'buffer_store_dwordx4 v[{QF}:{QF+3}], v{V_L16}, {SRD_WS}, s13 offen')
            a(f'buffer_store_dwordx4 v[{QF+4}:{QF+7}], v{V_L16}, {SRD_WS}, s13 offen offset:1024')
        if first:
            a.wait_tag('woa')
            a('s_barrier')
            for n, x in enumerate(stage_wo_reads(0, 252)):
                a(x)
                if n % 12 == 11: a('s_waitcnt lgkmcnt(4)')
            stage_wo_pads(0)
        op_resid_load('raw' if first else 'xb')
        ids_qkv_rows(S_HQ)
        poll(SRD_WS, 0xffff, S_PROG)
        stamp(f'{nm}_kv', lp)
        KV, D = 40, 56
        for rg in range(4):
            a(f'buffer_load_dwordx4 v[{KV+4*rg}:{KV+4*rg+3}], v{V_L16}, {SRD_WS}, s22 offen offset:{rg*1024} {SC}')
        op_unpack(); op_addr()
        for r in range(8):
            a(f'v_cvt_pk_bf16_f32 v{KV+r}, v{KV+2*r}, v{KV+2*r+1}')
            if r == 3:
                a(f'v_mfma_f32_32x32x16_bf16 v[{D}:{D+15}], v[{KV}:{KV+3}], v[{QF}:{QF+3}], 0')
        a(f'v_mfma_f32_32x32x16_bf16 v[{D}:{D+15}], v[{KV+4}:{KV+7}], v[{QF+4}:{QF+7}], v[{D}:{D+15}]')
        a(f'v_add_f32 v{T}, s16, v{D+12}')
        a(f'v_mov_b32 v{T+1}, v{T}')
        a(f'v_permlane32_swap_b32 v{T+1}, v{T}')
        a(f'v_rcp_f32 v{T}, v{T}')
        for r in range(8):
            pkmul_lane(D + 2 * r, D + 2 * r, T)
            a(f'v_cvt_pk_bf16_f32 v{QF+8+r}, v{D+2*r}, v{D+2*r+1}')
        lstore([f'buffer_store_dwordx4 v[{QF+8}:{QF+11}], v{V_L16}, {SRD_WS}, s12 offen',
                f'buffer_store_dwordx4 v[{QF+12}:{QF+15}], v{V_L16}, {SRD_WS}, s12 offen offset:1024'])
        signal(1, local=True, pre=lambda: None); advance()
        stamp(f'{nm}_sig', lp)

OP_CH = [(0, 4), (4, 8), (12, 8), (20, 8), (28, 4)]
OP_ACC, OP_OF, OP_XF, OP_T = 112, 32, 224, 232
def op_resid_load(kind):
    XF, T = OP_XF, OP_T
    if kind == 'raw':
        a(f'v_mul_u32_u24 v{T+6}, 896, v{V_N}')
        a(f'v_lshl_add_u32 v{T+6}, v{V_HF}, 3, v{T+6}')
        a(f's_mul_i32 s48, {S_ORT}, {28*1024}')
        a(f's_sub_u32 s49, {S_XT}, s48')
        a('s_lshr_b32 s49, s49, 5')
        a('s_add_u32 s48, s48, s49')
        for k in range(4):
            a(f'buffer_load_dwordx2 v[{XF+2*k}:{XF+2*k+1}], v{T+6}, {SRD_X0}, s48 offen offset:{16*k}')
    else:
        a(f's_add_u32 s48, {S_XT}, {WS_XA if kind == "xa" else WS_XB}')
        if kind == 'xa' and BLK:
            a(f's_add_u32 s48, s48, {S_BLK}')
        a(f'buffer_load_dwordx4 v[{XF}:{XF+3}], v{V_L16}, {SRD_WS}, s48 offen {SC}')
        a(f'buffer_load_dwordx4 v[{XF+4}:{XF+7}], v{V_L16}, {SRD_WS}, s48 offen offset:1024 {SC}')
def op_unpack():
    for r in range(8):
        a(f'v_lshlrev_b32 v{OP_ACC+2*r}, 16, v{OP_XF+r}')
        a(f'v_and_b32 v{OP_ACC+2*r+1}, 0xffff0000, v{OP_XF+r}')
def op_addr():
    T = OP_T
    a(f's_and_b32 s48, {S_OL8}, 0xffffefff') if False else None
    a(f's_lshl_b32 s48, {S_WAVE}, 14')
    a('s_and_b32 s48, s48, 0x8000')
    a(f's_add_u32 s48, s48, {L_S}')
    a(f'v_add_u32 v{T+4}, s48, v{V_L16}')
    a(f'v_lshlrev_b32 v{T+7}, 3, v{V_N}')
    a(f'v_lshl_add_u32 v{T+7}, v{V_HF}, 2, v{T+7}')
    a(f's_lshr_b32 s50, {S_RP}, 1')
    ids_qkv_heads('s50')

def phase_op(isA, nxt_pre):
    nm = 'oa' if isA else 'ob'
    join = uid('op_join')
    ACC, OF, XF, T = OP_ACC, OP_OF, OP_XF, OP_T
    WB = WOA[0 if isA else 1]
    skip = uid('op_skip')
    a(f's_cmp_ge_u32 {S_CP}, 7')
    a(f's_cbranch_scc1 {skip}')
    acc = f'v[{ACC}:{ACC+15}]'
    xo, so = (WS_XA, WS_STA) if isA else (WS_XB, WS_STB)
    ob = WS_OA if isA else WS_O
    poll(SRD_WS, 0xffff, S_PROG)
    stamp(f'{nm}_go', True)
    def iss(c):
        k0, n = OP_CH[c]
        a(f's_add_u32 m0, {S_OL8 if n == 8 else S_OL4}, {k0*1024}')
        a(f's_add_u32 s17, {S_OG8 if n == 8 else S_OG4}, {k0*1024 + ob}')
        if BLK: a(f's_add_u32 s17, s17, {S_BLK}')
        for i in range(n // 2):
            a.inst(f'buffer_load_dwordx4 v{V_L16}, {SRD_WS}, s17 offen offset:{i*1024} {LD} lds', tag=f'o{c}')
    def opn(c):
        k0, n = OP_CH[c]
        a.wait_tag(f'o{c}')
        a('s_barrier')
        if FINE3 and not isA: stamp(f'ob_c{c}', True)
        for s in range(n):
            r = OF + 32 * (c & 1) + 4 * s
            a(f'ds_read_b128 v[{r}:{r+3}], v{T+4} offset:{(k0+s)*1024}')
    for c in range(OPD):
        iss(c)
    a(f's_add_u32 s51, {S_XT}, {xo}')
    a(f's_add_u32 s52, {S_STT}, {so}')
    if BLK:
        a(f's_add_u32 s51, s51, {S_BLK}')
        a(f's_add_u32 s52, s52, {S_BLK}')
    a(f's_mov_b32 s19, {ONES2}')
    opn(0)
    nxt = OPD
    pf = ([(lambda k=k: wb_kv(k)) for k in range(NPB, 7)] + [(lambda k=k: (wb_q(k), wb_q(k + 1) if k < 6 else None)) for k in (0, 2, 4, 6)]) if isA else []
    pf_all = list(pf)
    for c, (k0, n) in enumerate(OP_CH):
        if c == 0 and nxt < len(OP_CH):
            iss(nxt); nxt += 1
        for s in range(n):
            r = OF + 32 * (c & 1) + 4 * s
            k = k0 + s
            a(f'v_mfma_f32_32x32x16_bf16 {acc}, a[{WB+4*k}:{WB+4*k+3}], v[{r}:{r+3}], {acc}')
            if c > 0 and s in (0, 2) and nxt < len(OP_CH):
                iss(nxt); nxt += 1
            elif c > 0 and nxt == len(OP_CH) and pf and s % 2 == 0:
                pf.pop(0)()
            if s == n - OPE and c + 1 < len(OP_CH):
                opn(c + 1)
    assert not pf and nxt == len(OP_CH)
    stamp(f'{nm}_mm', True)
    for r in range(8):
        a(f'v_cvt_pk_bf16_f32 v{XF+r}, v{ACC+2*r}, v{ACC+2*r+1}')
    if not isA:
        a(f's_cmp_lg_u32 {S_IT}, 0')
        a('s_cbranch_scc1 op_final')
    lstore([f'buffer_store_dwordx4 v[{XF}:{XF+3}], v{V_L16}, {SRD_WS}, s51 offen',
            f'buffer_store_dwordx4 v[{XF+4}:{XF+7}], v{V_L16}, {SRD_WS}, s51 offen offset:1024'])
    a(f'v_dot2_f32_bf16 v{T}, v{XF}, s19, 0')
    a(f'v_dot2_f32_bf16 v{T+1}, v{XF}, v{XF}, 0')
    for r in range(1, 8):
        a(f'v_dot2_f32_bf16 v{T}, v{XF+r}, s19, v{T}')
        a(f'v_dot2_f32_bf16 v{T+1}, v{XF+r}, v{XF+r}, v{T+1}')
    a(f'v_permlane32_swap_b32 v{T}, v{T+1}')
    a(f'v_add_f32 v{T}, v{T}, v{T+1}')
    lstore([f'buffer_store_dword v{T}, v{T+7}, {SRD_WS}, s52 offen'])
    stamp(f'{nm}_epi', True)
    signal(local=True, pre=nxt_pre)
    a(f's_branch {join}')
    a.raw(skip + ':'); a.fresh()
    if isA:
        for f in pf_all: f()
        a('s_waitcnt vmcnt(0)')
        a('s_barrier')
    nxt_pre()
    a('s_waitcnt vmcnt(0) lgkmcnt(0)')
    a('s_barrier')
    a.raw(join + ':')
    a.fresh()
    advance()
    stamp(f'{nm}_sig', True)
    def final():
        a.raw('op_final:'); a.fresh()
        a(f'v_mul_u32_u24 v{T+6}, 896, v{V_N}')
        a(f'v_lshl_add_u32 v{T+6}, v{V_HF}, 4, v{T+6}')
        a(f's_mul_i32 s19, {S_ORT}, {28*1024}')
        a(f's_sub_u32 s49, {S_XT}, s19')
        a('s_lshr_b32 s49, s49, 5')
        a('s_add_u32 s19, s19, s49')
        for u in range(2):
            b = XF + 4 * u
            a(f'v_permlane32_swap_b32 v{b}, v{b+2}')
            a(f'v_permlane32_swap_b32 v{b+1}, v{b+3}')
            a(f'buffer_store_dwordx4 v[{b}:{b+3}], v{T+6}, {SRD_OUT}, s19 offen offset:{32*u}')
    return final

def phase_attn(wob_reads):
    Q = 16
    O = 48
    R = AK
    S = 176
    P = 208
    T = 216
    ORD = [1, 2, 3, 0]
    def kreg(j, t): return f'v[{R+16*j+4*t}:{R+16*j+4*t+3}]'
    def vreg(j, u): return f'v[{R+16*j+8+4*u}:{R+16*j+8+4*u+3}]'
    def qreg(i, t): return f'v[{Q+8*i+4*t}:{Q+8*i+4*t+3}]'
    def sreg(n): return f'v[{S+16*(n&1)}:{S+16*(n&1)+15}]'
    def oreg(i): return f'v[{O+16*i}:{O+16*i+15}]'
    def loadk(j, sr):
        a(f'buffer_load_dwordx4 {kreg(j,0)}, v{V_L16}, {SRD_WS}, {sr} offen {SC}')
        a(f'buffer_load_dwordx4 {kreg(j,1)}, v{V_L16}, {SRD_WS}, {sr} offen offset:1024 {SC}')
    def loadv(j, sr):
        a(f'buffer_load_dwordx4 {vreg(j,0)}, v{V_L16}, {SRD_WS}, {sr} offen offset:2048 {SC}')
        a(f'buffer_load_dwordx4 {vreg(j,1)}, v{V_L16}, {SRD_WS}, {sr} offen offset:3072 {SC}')
    def loadkv(j):
        for k in range(4):
            r = R + 16 * j + 4 * k
            a(f'global_load_dwordx4 v[{r}:{r+3}], v{V_L16}, s[14:15] offset:{k*1024} {SC}')
    NEXT = ['s_add_u32 s13, s13, 1', 's_cmp_eq_u32 s13, s16', 's_cselect_b32 s18, s19, s24',
            's_add_u32 s14, s14, s18', 's_addc_u32 s15, s15, 0']
    def ji(n): return (n >> 2) % 3, ORD[n & 3]
    def M1(n, own=False):
        j, i = (0, 0) if own else ji(n)
        a(f'v_mfma_f32_32x32x16_bf16 {sreg(n)}, {kreg(j,0)}, {qreg(i,0)}, 0')
    def M2(n, own=False):
        j, i = (0, 0) if own else ji(n)
        a(f'v_mfma_f32_32x32x16_bf16 {sreg(n)}, {kreg(j,1)}, {qreg(i,1)}, {sreg(n)}')
    def PV(n, u, own=False, init=False):
        j, i = (0, 0) if own else ji(n)
        a(f'v_mfma_f32_32x32x16_bf16 {oreg(i)}, {vreg(j,u)}, v[{P+4*u}:{P+4*u+3}], {"0" if init else oreg(i)}')
    def e(n, k):
        r = S + 16 * (n & 1) + k
        a(f'v_exp_f32 v{r}, v{r}')
    def c(n, k):
        r = S + 16 * (n & 1) + 2 * k
        a(f'v_cvt_pk_bf16_f32 v{P+k}, v{r}, v{r+1}')
    def step(n, slots, last=99, init=False):
        e(n, 4); e(n, 5); c(n, 0); c(n, 1); e(n, 6); e(n, 7)
        if n + 1 <= last: M2(n + 1)
        for x in slots[0]: x()
        c(n, 2); c(n, 3); e(n, 8); e(n, 9); e(n, 10); e(n, 11)
        PV(n, 0, init=init)
        for x in slots[1]: x()
        e(n, 12); e(n, 13); c(n, 4); c(n, 5); e(n, 14); e(n, 15); c(n, 6); c(n, 7)
        if n + 2 <= last: M1(n + 2)
        for x in slots[2]: x()
        if n + 1 <= last:
            e(n + 1, 0); e(n + 1, 1); e(n + 1, 2); e(n + 1, 3)
        PV(n, 1)
        for x in slots[3]: x()
    I = lambda t: (lambda: a(t))
    M1(0); M2(0); M1(1)
    a(f's_lshl_b32 s12, {S_HA}, 18')
    a(f's_add_u32 s12, s12, {WS_KV}')
    a(f's_add_u32 s12, s12, {S_KVB}')
    a(f's_mul_i32 s13, {S_WAVE}, 15')
    a(f's_lshl_b32 s16, {S_QB}, 2')
    a('s_cmp_ge_u32 s13, s16')
    a('s_cselect_b32 s18, 4, 0')
    a('s_add_u32 s18, s18, s13')
    a('s_lshl_b32 s18, s18, 12')
    a('s_add_u32 s18, s18, s12')
    a('s_add_u32 s14, s8, s18')
    a('s_addc_u32 s15, s9, 0')
    ids_qkv_rows(S_HA)
    for k in range(4): e(0, k)
    pre = []
    sv_lines = a.lines
    pre_txt = [f's_mov_b32 s19, {5*4096}', 's_mov_b32 s24, 4096', 's_mov_b32 s17, 4',
               f's_mov_b32 s20, {f32(2.0**-64)}', f's_mov_b32 s21, {f32(2.0**64)}',
               f's_add_u32 s51, {S_OT}, {WS_O}', f's_add_u32 s51, s51, {S_BLK}']
    def first_look():
        a(f'buffer_load_dword v{V_PL}, v{V_T0}, {SRD_WS}, 0 offen sc1')
    def check_and_load():
        Lk = uid('look')
        a(f'v_cmp_le_u32 vcc, {S_PROG}, v{V_PL}')
        a('s_and_b32 s48, vcc_lo, 0xffff')
        a('s_cmp_eq_u32 s48, 0xffff')
        a(f's_cbranch_scc1 {Lk}')
        sv = (list(a.st.hist), list(a.st.vm), list(a.st.lg))
        poll(SRD_WS, 0xffff, S_PROG)
        a.st.hist, a.st.vm, a.st.lg = sv
        a.raw(Lk + ':')
        stamp('at_go', True)
        loadkv(1)
        for x in NEXT: a(x)
        loadkv(2)
    for n in range(4):
        sl = [[I(pre_txt.pop(0))] if pre_txt else [] for _ in range(4)]
        if n == LOOK: sl[1].append(first_look)
        if n == LOOK + 1: sl[3].append(check_and_load)
        step(n, sl, 3, init=True)
    for x in NEXT: a(x)
    img_base(0, 's60', 's61')
    a(f's_cmp_lg_u32 {S_IT}, 0')
    a(f's_cselect_b32 s60, {OOB}, s60')
    if FINE: stamp('at_own', True)
    for t in range(1, 4):
        a(f's_xor_b32 s22, {S_WAVE}, {t}')
        a('s_mul_i32 s22, s22, 12288')
        a(f's_add_u32 s22, s22, {L_RED + (t-1)*4096}')
        a(f'v_add_u32 v{T+3+t}, s22, v{V_L16}')
    a(f's_mul_i32 s22, {S_WAVE}, 12288')
    a(f's_add_u32 s22, s22, {L_RED}')
    a(f'v_add_u32 v{T+3}, s22, v{V_L16}')
    if TIMG: touch_img_setup(1)
    wob_reads()
    M1(4); M2(4); M1(5)
    for k in range(4): e(4, k)
    a('s_waitcnt vmcnt(4)')
    if FINE: stamp('at_pro', True)
    def dman(n):
        for p in range(n):
            a(f'buffer_load_dwordx4 v{V_L16}, {SRD_WS}, s60 offen offset:{p*1024} {SC} lds')
    def tile_slots(u, load, wait, extra=None):
        sl = [[[], [], [], []] for _ in range(4)]
        if load:
            sl[0][1] = [lambda: loadkv((u + 2) % 3)]
            sl[0][2] = [I(NEXT[0])]; sl[0][3] = [I(NEXT[1])]; sl[1][0] = [I(NEXT[2])]; sl[1][1] = [I(NEXT[3])]; sl[1][2] = [I(NEXT[4])]
        if wait is not None:
            sl[2][1] = [I(f's_waitcnt vmcnt({wait})')]
        for (i, k), f in (extra or {}).items():
            sl[i][k] = sl[i][k] + f
        return sl
    DM = lambda n: {(2, 2): [I('s_mov_b32 m0, s61')], (2, 3): [lambda: dman(n)], (3, 0): [I('s_add_u32 s60, s60, 4096')], (3, 1): [I('s_add_u32 s61, s61, 4096')]}
    def body():
        for u in (1, 2, 3):
            ex = DM(4) if u == 1 else ({(3, 1): [I('s_sub_u32 s17, s17, 1')], (3, 2): [I('s_cmp_lg_u32 s17, 0')]} if u == 3 else None)
            sl = tile_slots(u, True, 8 if u == 2 else 4, ex)
            for i in range(4):
                step(4 * u + i, sl[i])
    def tail():
        a('s_cbranch_scc1 attn_loop')
    a.raw('.p2align 3')
    a.loop('attn_loop', body, tail)
    ex = DM(4)
    if TIMG:
        ex[(1, 3)] = [lambda: touch_img(0)]
        ex[(2, 0)] = [lambda: touch_img(1)]
    sl = tile_slots(13, True, 4 + (2 if TIMG else 0), ex)
    for i in range(4): step(52 + i, sl[i])
    ex = {(0, 0): [I('s_mov_b32 m0, s61')], (0, 1): [lambda: dman(1)]}
    if PRE: ex[(0, 3)] = [pretouch]
    ex[(1, 1)] = [lambda: op_resid_load('xa')]
    sl = tile_slots(14, False, 7 + (3 if PRE else 0) + (2 if TIMG else 0), ex)
    for i in range(4): step(56 + i, sl[i])
    def W(t, rg):
        r = O + 16 * t + 4 * rg
        return I(f'ds_write_b128 v{T+3+t}, v[{r}:{r+3}] offset:{rg*1024}')
    def gather():
        a('s_waitcnt lgkmcnt(0)')
        a('s_barrier')
        for t in range(1, 4):
            for rg in range(4):
                r = O + 16 * t + 4 * rg
                a(f'ds_read_b128 v[{r}:{r+3}], v{T+3} offset:{(t-1)*4096 + rg*1024}')
    step(60, [[], [], [], []], 63)
    step(61, [[], [W(1, 0)], [W(1, 1)], [W(1, 2)]], 63)
    step(62, [[W(1, 3)], [W(2, 0), W(2, 1)], [W(2, 2)], [W(2, 3)]], 63)
    step(63, [[], [W(3, 0), W(3, 1), W(3, 2), W(3, 3)], [], [gather]], 63)
    stamp('at_mm', True)
    for t in range(1, 4):
        for r in range(8):
            a(f'v_pk_add_f32 v[{O+2*r}:{O+2*r+1}], v[{O+2*r}:{O+2*r+1}], v[{O+16*t+2*r}:{O+16*t+2*r+1}]')
    a(f'v_mov_b32 v{T}, v{O+12}')
    a(f'v_mov_b32 v{T+1}, v{O+12}')
    a(f'v_permlane32_swap_b32 v{T+1}, v{T}')
    a(f'v_cmp_le_f32 vcc, s20, v{T}')
    a(f'v_cmp_ge_f32 s[22:23], s21, v{T}')
    a('s_and_b64 vcc, vcc, s[22:23]')
    a('s_cmp_eq_u64 vcc, exec')
    a('s_cbranch_scc0 attn_slow')
    a.raw('attn_fin:')
    a(f'v_rcp_f32 v{T}, v{T}')
    for r in range(8):
        a(f'v_pk_mul_f32 v[{O+2*r}:{O+2*r+1}], v[{O+2*r}:{O+2*r+1}], v[{T}:{T+1}] op_sel_hi:[1,0]')
        a(f'v_cvt_pk_bf16_f32 v{P+r}, v{O+2*r}, v{O+2*r+1}')
    lstore([f'buffer_store_dwordx4 v[{P}:{P+3}], v{V_L16}, {SRD_WS}, s51 offen',
            f'buffer_store_dwordx4 v[{P+4}:{P+7}], v{V_L16}, {SRD_WS}, s51 offen offset:1024'])
    stamp('at_epi', True)
    signal(local=True, pre=lambda: (op_unpack(), op_addr())); advance()
    stamp('at_sig', True)

    def slow():
        a.raw('attn_slow:'); a.fresh()
        a('s_waitcnt vmcnt(0) lgkmcnt(0)')
        a('s_nop 15')
        a('s_mov_b32 exec_lo, 0')
        a(f'v_mov_b32 v{Q+6}, 0')
        a(f'v_mov_b32 v{Q+7}, 0')
        a('s_mov_b32 exec_lo, -1')
        a(f'v_mov_b32 v{T+2}, {f32(-3.0e38)}')
        a('s_mov_b32 s13, s12')
        a('s_mov_b32 s17, 64')
        a('s_nop 4')
        def body1():
            loadk(0, 's13')
            M1(0, True); M2(0, True)
            for r in range(0, 16, 2):
                a(f'v_max3_f32 v{T+2}, v{S+r}, v{S+r+1}, v{T+2}')
            a('s_add_u32 s13, s13, 4096')
            a('s_nop 4')
        def tail1():
            a('s_sub_u32 s17, s17, 1')
            a('s_cmp_lg_u32 s17, 0')
            a('s_cbranch_scc1 attn_slow1')
        a.loop('attn_slow1', body1, tail1)
        a(f'v_mov_b32 v{T+3}, v{T+2}')
        a(f'v_permlane32_swap_b32 v{T+2}, v{T+3}')
        a(f'v_max_f32 v{T+2}, v{T+2}, v{T+3}')
        for r in range(16):
            a(f'v_mov_b32 v{O+r}, 0')
        a('s_mov_b32 s13, s12')
        a('s_mov_b32 s17, 64')
        a('s_nop 15')
        def body2():
            loadk(0, 's13'); loadv(0, 's13')
            M1(0, True); M2(0, True)
            for r in range(16):
                a(f'v_sub_f32 v{S+r}, v{S+r}, v{T+2}')
            for r in range(16):
                e(0, r)
            for r in range(8):
                c(0, r)
            PV(0, 0, True); PV(0, 1, True)
            a('s_add_u32 s13, s13, 4096')
            a('s_nop 15')
        def tail2():
            a('s_sub_u32 s17, s17, 1')
            a('s_cmp_lg_u32 s17, 0')
            a('s_cbranch_scc1 attn_slow2')
        a.loop('attn_slow2', body2, tail2)
        a(f'v_mov_b32 v{T}, v{O+12}')
        a(f'v_mov_b32 v{T+1}, v{O+12}')
        a(f'v_permlane32_swap_b32 v{T+1}, v{T}')
        a('s_nop 4')
        a('s_branch attn_fin')
    return slow

def wob_reads():
    Lw = uid('wob')
    a(f's_cmp_lg_u32 {S_IT}, 0')
    a(f's_cbranch_scc1 {Lw}')
    sv = (list(a.st.hist), list(a.st.lg))
    stage_wo_addr(L_S, 252)
    for n, x in enumerate(stage_wo_reads(1, 252)):
        a(x)
        if n % 12 == 11: a('s_waitcnt lgkmcnt(4)')
    stage_wo_pads(1)
    a('s_waitcnt lgkmcnt(0)')
    a('s_barrier')
    a.st.hist, a.st.lg = sv
    a.raw(Lw + ':')

def build(path):
    prologue()
    phase_qkv(True, True)
    a.raw('layer_loop:'); a.fresh()
    phase_op(True, lambda: phase_qkv(False, False, 'pre'))
    phase_qkv(False, False, 'main')
    slow = phase_attn(wob_reads)
    final = phase_op(False, lambda: phase_qkv(True, False, 'pre'))
    a(f's_cmp_lg_u32 {S_IT}, 0')
    a('s_cbranch_scc1 k_fin')
    phase_qkv(True, False, 'main')
    a(f's_mov_b32 {S_IT}, 1')
    a(f's_mov_b32 {S_BLK}, {BLK}')
    a(f's_mov_b32 {S_KVB}, {KVB}')
    a('s_branch layer_loop')
    final()
    a.raw('k_fin:')
    if INSTR:
        a('s_waitcnt vmcnt(0)')
        a(f'{CLK} s[96:97]')
        a('s_waitcnt lgkmcnt(0)')
        a(f'v_writelane_b32 v{V_ST}, s96, 63')
        a('s_lshl_b32 s48, s2, 2')
        a(f's_add_u32 s48, s48, {S_WAVE}')
        a('s_lshl_b32 s48, s48, 8')
        a(f's_add_u32 s48, s48, {WS_DBG}')
        a(f'v_lshrrev_b32 v{V_T0}, 2, v{V_L16}')
        a(f'buffer_store_dword v{V_ST}, v{V_T0}, {SRD_WS}, s48 offen')
    if DUR:
        a('s_waitcnt vmcnt(0)')
        a('s_memrealtime s[94:95]')
        a('s_not_b32 s92, s92')
        a('s_waitcnt lgkmcnt(0)')
        a(f'v_mov_b32 v{V_T0}, s92')
        a(f'v_mov_b32 v{V_T1}, s94')
        a(f'v_mov_b32 v{V_PL}, 0')
        a('s_mov_b64 exec, 1')
        a(f'buffer_atomic_umax v{V_T0}, v{V_PL}, {SRD_DBG}, 0 offen offset:56 sc1')
        a(f'buffer_atomic_umax v{V_T1}, v{V_PL}, {SRD_DBG}, 0 offen offset:60 sc1')
    a.raw('k_end:')
    a('s_endpgm')
    slow()
    a.raw('code_end:')
    doc = """; Interleaved linear-attention (A) / softmax-MHA (B) layers, S=2048 D=448 H=16 Dh=28 -- one persistent kernel, gfx950.
;
; its queries with the exact two-pass true-row-maximum softmax (attn_slow)."""
    out = [doc,
           f'; @launch grid=(256,1,1) block=(256,1,1) lds={LDS_TOTAL}',
           '.amdgcn_target "amdgcn-amd-amdhsa--gfx950"', '.text', a.text(), '.section .rodata,"a"',
           kernel_desc(KNAME, 512, 102, 256)]
    open(path, 'w').write('\n'.join(out) + '\n')
    if INSTR:
        names = {}
        for i, (n, lp) in enumerate(STAMPS):
            names[i] = n + ('0' if lp else '')
            if lp:
                names[i + 27] = n + '1'
        names[63] = 'end'
        assert len(STAMPS) <= 40
        open(path + '.stamps', 'w').write('\n'.join(f'{i} {n}' for i, n in sorted(names.items())))

if __name__ == '__main__':
    path = sys.argv[1] if len(sys.argv) > 1 else f'cdna_kernels/{NAME}.s'
    INSTR = 'instr' in sys.argv[2:]
    if 'cyc' in sys.argv[2:]: CLK = 's_memtime'
    FINE = 'fine' in sys.argv[2:]
    TIMG = 'timg' in sys.argv[2:]
    FINE3 = 'fine3' in sys.argv[2:]
    TLBW = 'tlb' in sys.argv[2:]
    for x in sys.argv[2:]:
        if x.startswith('look='): LOOK = int(x[5:])
        if x.startswith('npb='): NPB = int(x[4:])
        if x.startswith('nkv0='): NKV0 = int(x[5:])
        if x.startswith('xs='): XS = int(x[3:])
        if x.startswith('opd='): OPD = int(x[4:])
        if x.startswith('ope='): OPE = int(x[4:])
        if x.startswith('prew='): PREW = int(x[5:])
        if x.startswith('qbsig='): QBSIG = int(x[6:])
    DUR = 'dur' in sys.argv[2:]
    WARM = 'warm' in sys.argv[2:]
    PRE = 'nopre' not in sys.argv[2:]
    FORCE_GLOBAL = 'noloc' in sys.argv[2:]
    if 'ldplain' in sys.argv[2:]: LD = ''
    if 'ldnt' in sys.argv[2:]: LD = 'nt'
    if 'ldsc0' in sys.argv[2:]: LD = 'sc0'
    DEBUGQ = 'debugq' in sys.argv[2:]
    FINE2 = 'fine2' in sys.argv[2:]
    TOUCH = 'notouch' not in sys.argv[2:]
    build(path)
    print('wrote', path, 'maxv', a.maxv, 'maxa', a.maxa, 'maxs', a.maxs)
```

```python
import sys, struct
sys.path.insert(0, 'dev')
from asmlib import *

NAME = 'interleave_layers__linear_attn_block__softmax_full_mha__prompt'
KNAME = NAME + '_kernel'

def f32(x):
    return '0x%08x' % struct.unpack('<I', struct.pack('<f', x))[0]

X_SIZE = 64 * 28 * 1024
ST_SIZE = 14 * 2048 * 8
_off = 0
def alloc(n, al=65536):
    global _off
    _off = (_off + al - 1) // al * al
    r = _off
    _off += n
    return r
REUSE = 'noreuse' not in sys.argv
if REUSE:
    WS_XA = WS_XB = alloc(X_SIZE)
    WS_STA = WS_STB = alloc(ST_SIZE, 4096)
    WS_O = WS_OA = alloc(64 * 16 * 2048)
    WS_KV = alloc(2 * 16 * 64 * 4096)
    WS_Q = 0
    BLK = 0
    KVB = 16 * 64 * 4096
else:
    WS_XA = alloc(X_SIZE); WS_XB = alloc(X_SIZE)
    WS_STA = alloc(ST_SIZE); WS_STB = alloc(ST_SIZE)
    WS_OA = alloc(64 * 16 * 2048)
    WS_Q = alloc(16 * 64 * 2048)
    WS_KV = alloc(16 * 64 * 4096)
    WS_O = alloc(64 * 16 * 2048)
    BLK = alloc(0)
    KVB = BLK
    _off = 2 * BLK
IMG_HEAD = 84 * 1024
WS_IMG = [alloc(16 * IMG_HEAD), alloc(16 * IMG_HEAD)]
WS_ZERO = alloc(0)
WS_KVACC = alloc(2 * 16 * 4096)
WS_FLAG = alloc(256 * 128, 4096)
WS_LFLAG = alloc(256 * 128, 4096)
WS_CS = alloc(16384, 4096)
ZERO_SIZE = _off - WS_ZERO
NZERO = ZERO_SIZE // 16384
assert ZERO_SIZE == NZERO * 16384 and NZERO == 13
WS_TOTAL = 1 << 28
WS_DBG = 64 << 20
OOB = 0x40000000

LOG2E = 1.4426950408889634
QSCALE = 28 ** -0.5 * LOG2E
ONES2 = 0x3f803f80
SC = 'sc1'
LD = 'sc1'

L_W = 0
L_S = 84 * 1024
L_KV = L_S + 57344
L_M = L_KV + 16384
L_RS = L_M
L_CS = L_M + 512
LDS_TOTAL = 163840
L_RED = L_S + 4096

INSTR = False
CLK = 's_memrealtime'
FINE = False
PADT = 0
TIMG = False
NPB = 5
NKV0 = 4
XS = 0
OPD = 3
OPE = 3
FINE3 = False
TLBW = False
PREW = 0
LOOK = 0
QBSIG = 24
DUR = False
WARM = False
PRE = True
RBX = 1
FORCE_GLOBAL = False
DEBUGQ = False
FINE2 = False
TOUCH = True
POLL_LIMIT = 400000

V_L16, V_N, V_HF, V_T0, V_T1, V_PL, V_ST = 1, 2, 3, 4, 5, 6, 7
V_CS = [8, 11]
V_H64, V_ONE = 14, 15
S_WAVE = 's4'
S_RB, S_HQ, S_RP, S_CP, S_HA, S_QB, S_FLAG, S_BLK = 's40', 's41', 's42', 's43', 's41', 's40', 's46', 's47'
S_PROG, S_IT = 's62', 's63'
S_KVB = 's90'
S_OL8, S_OL4, S_OG8, S_OG4, S_ORT, S_OCT = 's91', 's92', 's93', 's94', 's95', 's3'
S_XT, S_STT, S_OT = 's84', 's85', 's86'
S_LOC, S_XCC = 's44', 's45'
SRD_WS, SRD_OUT, SRD_DBG = 's[8:11]', 's[32:35]', 's[36:39]'
SRD_X0, SRD_W, SRD_WO = 's[64:67]', ['s[68:71]', 's[72:75]'], ['s[76:79]', 's[80:83]']
WOA = [0, 128]

a = Asm()
_uid = [0]
def uid(p):
    _uid[0] += 1
    return f'{p}_{_uid[0]}'

STAMPS = []
def stamp(name, looped=False):
    if INSTR:
        i = len(STAMPS)
        STAMPS.append((name, looped))
        a(f'{CLK} s[96:97]')
        if looped:
            a(f's_mul_i32 s98, {S_IT}, 27')
            a(f's_add_u32 s98, s98, {i}')
            a('s_mov_b32 m0, s98')
            a('s_waitcnt lgkmcnt(0)')
            a(f'v_writelane_b32 v{V_ST}, s96, m0')
        else:
            a('s_waitcnt lgkmcnt(0)')
            a(f'v_writelane_b32 v{V_ST}, s96, {i}')

def poll(srd, mask, target):
    L = uid('poll')
    if mask != -1:
        a(f's_mov_b64 exec, {mask}')
    a(f's_mov_b32 s48, {POLL_LIMIT}')
    a('s_waitcnt lgkmcnt(0)')
    a.raw(L + ':')
    a(f'buffer_load_dword v{V_PL}, v{V_T0}, {srd}, 0 offen sc1')
    a('s_sub_u32 s48, s48, 1')
    a('s_cbranch_scc1 k_end')
    a('s_waitcnt vmcnt(0)')
    a(f'v_cmp_le_u32 vcc, {target}, v{V_PL}')
    a('s_cmp_eq_u64 vcc, exec')
    a(f's_cbranch_scc0 {L}')
    if mask != -1:
        a('s_mov_b64 exec, -1')

def signal(inc=1, lg=True, local=False, with_xcc=False, wait_tag=None, barrier=True, pre=None, post=None):
    L = uid('sig')
    V_T0, V_T1, V_PL = (4, 5, 6) if pre is None else (244, 245, 246)
    if pre: pre()
    if barrier:
        if wait_tag:
            a.wait_tag(wait_tag)
        else:
            a('s_waitcnt vmcnt(0) lgkmcnt(0)' if lg else 's_waitcnt vmcnt(0)')
        a('s_barrier')
    a(f's_cmp_lg_u32 {S_WAVE}, 0')
    a(f's_cbranch_scc1 {L}')
    sv = list(a.st.hist)
    a(f's_add_u32 s48, {S_PROG}, {inc}')
    a(f'v_mov_b32 v{V_T0}, s48')
    a(f'v_mov_b32 v{V_PL}, 0')
    a('s_mov_b64 exec, 1')
    if with_xcc:
        a(f'v_mov_b32 v{V_T1}, {S_XCC}')
        a.raw(f'  buffer_store_dwordx2 v[{V_T0}:{V_T1}], v{V_PL}, {SRD_WS}, {S_FLAG} offen sc1')
    elif local:
        a(f's_add_u32 s48, {S_FLAG}, {WS_LFLAG - WS_FLAG}')
        lstore([f'buffer_store_dword v{V_T0}, v{V_PL}, {SRD_WS}, s48 offen'], track=False)
    else:
        a.raw(f'  buffer_store_dword v{V_T0}, v{V_PL}, {SRD_WS}, {S_FLAG} offen sc1')
    a('s_mov_b64 exec, -1')
    a('s_nop 1')
    a.st.hist = sv
    a.raw(L + ':')
    if post: post()

def lstore(stores, track=True):
    L1, L2 = uid('ls'), uid('ls')
    a(f's_cmp_lg_u32 {S_LOC}, 0')
    a(f's_cbranch_scc1 {L1}')
    n0 = len(a.lines)
    sv = (list(a.st.hist), list(a.st.vm), list(a.st.lg))
    for x in stores:
        a(x + ' sc1')
    t1 = a.lines[n0:]
    a.raw(f'  s_branch {L2}')
    a.raw(L1 + ':')
    a.st.hist, a.st.vm, a.st.lg = list(sv[0]), list(sv[1]), list(sv[2])
    for x in stores:
        a(x)
    a.raw(L2 + ':')
    if not track:
        a.st.vm = list(sv[1])

def advance(n=1):
    a(f's_add_u32 {S_PROG}, {S_PROG}, {n}')

def flag_addr(local=False):
    a(f'v_lshlrev_b32 v{V_T0}, 7, v{V_T0}')
    a(f'v_add_u32 v{V_T0}, {WS_LFLAG if local else WS_FLAG}, v{V_T0}')

def ids16(sreg):
    a(f'v_lshrrev_b32 v{V_T1}, 4, v{V_L16}')
    a(f'v_lshrrev_b32 v{V_T0}, 1, v{V_T1}')
    a(f'v_and_b32 v{V_T1}, 1, v{V_T1}')
    a(f'v_lshl_add_u32 v{V_T0}, v{V_T1}, 3, v{V_T0}')
    a(f's_lshl_b32 s48, {sreg}, 4')
    a(f'v_add_u32 v{V_T0}, s48, v{V_T0}')
    flag_addr()

def ids_qkv_rows(hreg):
    if RBX == 1:
        return ids16(hreg)
    a(f'v_lshrrev_b32 v{V_T0}, 6, v{V_L16}')
    a(f'v_lshlrev_b32 v{V_T0}, 1, v{V_T0}')
    a(f'v_bfe_u32 v{V_T1}, v{V_L16}, 4, 2')
    a(f'v_lshl_add_u32 v{V_T0}, v{V_T1}, 3, v{V_T0}')
    a(f's_lshr_b32 s48, {hreg}, 3')
    a(f's_and_b32 s49, {hreg}, 7')
    a('s_lshl_b32 s49, s49, 5')
    a('s_add_u32 s48, s48, s49')
    a(f'v_add_u32 v{V_T0}, s48, v{V_T0}')
    flag_addr()

def ids_qkv_heads(rbreg):
    if RBX == 1:
        a(f's_lshr_b32 s48, {rbreg}, 1')
        a(f's_and_b32 s49, {rbreg}, 1')
        a('s_lshl_b32 s49, s49, 3')
        a('s_add_u32 s48, s48, s49')
        a(f'v_add_u32 v{V_T0}, s48, v{V_L16}')
        return flag_addr(True)
    a(f'v_lshrrev_b32 v{V_T0}, 7, v{V_L16}')
    a(f'v_bfe_u32 v{V_T1}, v{V_L16}, 4, 3')
    a(f'v_lshl_add_u32 v{V_T0}, v{V_T1}, 5, v{V_T0}')
    a(f's_lshr_b32 s48, {rbreg}, 2')
    a('s_lshl_b32 s48, s48, 1')
    a(f's_and_b32 s49, {rbreg}, 3')
    a('s_lshl_b32 s49, s49, 3')
    a('s_add_u32 s48, s48, s49')
    a(f'v_add_u32 v{V_T0}, s48, v{V_T0}')
    flag_addr()

V_DUM = 250
def pretouch_setup(isA, blk):
    o, x, st = (WS_OA, WS_XA, WS_STA) if isA else (WS_O, WS_XB, WS_STB)
    for r, base, off in (('s87', S_OT, o), ('s88', S_XT, x), ('s89', S_STT, st)):
        if isinstance(blk, int):
            a(f's_add_u32 {r}, {base}, {off + blk}')
        else:
            a(f's_add_u32 {r}, {base}, {off}')
            a(f's_add_u32 {r}, {r}, {blk}')
    a(f'v_lshlrev_b32 v{V_DUM}, 1, v{V_L16}')
def pretouch():
    if PRE:
        a(f'buffer_load_dword v255, v{V_DUM}, {SRD_WS}, s87 offen sc1')
        a(f'buffer_load_dword v255, v{V_DUM}, {SRD_WS}, s88 offen sc1')
        a('s_mov_b64 exec, 0xff')
        a(f'buffer_load_dword v255, v{V_DUM}, {SRD_WS}, s89 offen sc1')
        a('s_mov_b64 exec, -1')

def prewrite():
    if PREW == 0:
        return pretouch()
    if PREW == 2:
        return
    a(f's_cmp_ge_u32 {S_CP}, 7')
    a(f's_cselect_b32 s88, {OOB}, s88')
    a(f's_cselect_b32 s89, {OOB}, s89')
    for sr in ('s87', 's88'):
        a(f'buffer_store_dwordx4 v[0:3], v{V_L16}, {SRD_WS}, {sr} offen')
        a(f'buffer_store_dwordx4 v[0:3], v{V_L16}, {SRD_WS}, {sr} offen offset:1024')
    a('s_mov_b64 exec, 0xffff')
    a(f'buffer_store_dwordx4 v[0:3], v{V_L16}, {SRD_WS}, s89 offen')
    a('s_mov_b64 exec, -1')

def touch_img_setup(which):
    a(f's_mul_i32 s25, {S_HQ}, {IMG_HEAD}')
    a(f's_and_b32 s49, {S_RB}, 1')
    a(f's_lshl_b32 s49, s49, 2')
    a(f's_add_u32 s49, s49, {S_WAVE}')
    a(f's_mul_i32 s49, s49, {IMG_HEAD // 8}')
    a('s_add_u32 s25, s25, s49')
    a(f's_add_u32 s25, s25, {WS_IMG[which]}')
    a(f's_cmp_lg_u32 {S_IT}, 0')
    a(f's_cselect_b32 s25, {OOB}, s25')
    a('s_add_u32 s26, s25, 8192')
    a(f'v_lshlrev_b32 v254, 3, v{V_L16}')
def touch_img(k):
    if k == 0:
        a(f'buffer_load_dword v255, v254, {SRD_WS}, s25 offen sc1')
    else:
        a('s_mov_b64 exec, 0xfffff')
        a(f'buffer_load_dword v255, v254, {SRD_WS}, s26 offen sc1')
        a('s_mov_b64 exec, -1')

def prologue():
    a.raw(kernel_header(KNAME))
    a('s_cmp_ge_u32 s2, 256')
    a('s_cbranch_scc1 k_end')
    a('s_getpc_b64 s[54:55]')
    a.raw('pc_base:')
    a('s_lshr_b32 s6, s2, 3')
    a('s_and_b32 s6, s6, 1')
    a('s_lshl_b32 s6, s6, 14')
    a('v_lshl_add_u32 v254, v0, 6, s6')
    a('v_min_u32 v254, code_end-pc_base-4, v254')
    a('s_cmp_ge_u32 s2, 16')
    a('s_cbranch_scc1 no_code_touch')
    a.raw('  global_load_dword v255, v254, s[54:55]')
    a.raw('no_code_touch:')
    if DUR: a('s_memrealtime s[92:93]')
    if PADT: a('s_memrealtime s[96:97]')
    a('s_load_dwordx2 s[64:65], s[0:1], 0')
    a('s_load_dwordx2 s[68:69], s[0:1], 8')
    a('s_load_dwordx2 s[8:9], s[0:1], 64')
    a('s_load_dwordx2 s[76:77], s[0:1], 16')
    a('s_load_dwordx2 s[72:73], s[0:1], 32')
    a('s_load_dwordx2 s[80:81], s[0:1], 40')
    a('s_load_dwordx2 s[32:33], s[0:1], 48')
    a('s_load_dwordx2 s[36:37], s[0:1], 56')
    a(f'v_and_b32 v13, 63, v0')
    a(f'v_lshrrev_b32 v{V_T0}, 6, v0')
    a(f'v_and_b32 v{V_N}, 31, v0')
    a(f'v_readfirstlane_b32 {S_WAVE}, v{V_T0}')
    a(f'v_bfe_u32 v{V_HF}, v0, 5, 1')
    a(f'v_lshlrev_b32 v{V_L16}, 4, v13')
    a(f'v_mov_b32 v{V_ST}, 0')
    a('s_and_b32 s5, s2, 7')
    a('s_lshr_b32 s6, s2, 3')
    if RBX == 2:
        a('s_lshl_b32 s7, s5, 1')
        a('s_and_b32 s7, s7, 12')
        a('s_and_b32 s12, s6, 3')
        a(f's_add_u32 {S_RB}, s7, s12')
        a('s_and_b32 s7, s5, 1')
        a('s_lshl_b32 s7, s7, 3')
        a('s_lshr_b32 s12, s6, 2')
        a(f's_add_u32 {S_HQ}, s7, s12')
    else:
        a('s_lshl_b32 s7, s5, 1')
        a('s_and_b32 s12, s6, 1')
        a(f's_add_u32 {S_RB}, s7, s12')
        a(f's_lshr_b32 {S_HQ}, s6, 1')
    a('s_lshl_b32 s7, s5, 2')
    a('s_and_b32 s12, s6, 3')
    a(f's_add_u32 {S_RP}, s7, s12')
    a(f's_lshr_b32 {S_CP}, s6, 2')
    a(f's_lshr_b32 s7, {S_WAVE}, 1')
    a(f's_lshl_b32 s12, {S_RP}, 1')
    a('s_add_u32 s7, s7, s12')
    a(f's_and_b32 s12, {S_WAVE}, 1')
    a(f's_min_u32 s13, {S_CP}, 6')
    a('s_lshl_b32 s13, s13, 1')
    a('s_add_u32 s12, s12, s13')
    a(f's_mov_b32 {S_ORT}, s7')
    a(f's_lshl_b32 s13, {S_WAVE}, 12')
    a('s_and_b32 s13, s13, 0x1000')
    a(f's_lshl_b32 s14, {S_WAVE}, 14')
    a('s_and_b32 s14, s14, 0x8000')
    a(f's_add_u32 s14, s14, {L_S}')
    a(f's_add_u32 {S_OL8}, s14, s13')
    a('s_lshl_b32 s15, s7, 15')
    a(f's_add_u32 {S_OG8}, s15, s13')
    a('s_lshr_b32 s13, s13, 1')
    a(f's_add_u32 {S_OL4}, s14, s13')
    a(f's_add_u32 {S_OG4}, s15, s13')
    a(f's_mul_i32 {S_XT}, s7, {28*1024}')
    a('s_lshl_b32 s13, s12, 11')
    a(f's_add_u32 {S_XT}, {S_XT}, s13')
    a(f's_lshl_b32 {S_STT}, s12, 14')
    a('s_lshl_b32 s13, s7, 8')
    a(f's_add_u32 {S_STT}, {S_STT}, s13')
    a(f's_lshl_b32 {S_OT}, {S_RB}, 2')
    a(f's_add_u32 {S_OT}, {S_OT}, {S_WAVE}')
    a(f's_lshl_b32 {S_OT}, {S_OT}, 15')
    a(f's_lshl_b32 s13, {S_HQ}, 11')
    a(f's_add_u32 {S_OT}, {S_OT}, s13')
    a(f's_lshl_b32 {S_FLAG}, s2, 7')
    a(f's_add_u32 {S_FLAG}, {S_FLAG}, {WS_FLAG}')
    a(f's_mov_b32 {S_BLK}, 0')
    a(f's_mov_b32 {S_KVB}, 0')
    a(f's_getreg_b32 {S_XCC}, hwreg(HW_REG_XCC_ID, 0, 4)')
    a(f's_add_u32 {S_XCC}, {S_XCC}, 1')
    a(f's_mov_b32 {S_LOC}, 0')
    a(f's_mov_b32 {S_PROG}, 0')
    a(f's_mov_b32 {S_IT}, 0')
    for r in (11, 35, 39, 67, 71, 75, 79, 83):
        a(f's_mov_b32 s{r}, 0x20000')
    a(f's_mov_b32 s10, {WS_TOTAL}')
    a(f's_mov_b32 s34, {2048*448*2}')
    a('s_mov_b32 s38, 256')
    a(f's_mov_b32 s66, {2048*448*2}')
    a(f's_mov_b32 s70, {448*1344*2}')
    a(f's_mov_b32 s74, {448*1344*2}')
    a(f's_mov_b32 s78, {448*448*2}')
    a(f's_mov_b32 s82, {448*448*2}')
    a(f'v_add_u32 v{V_H64}, 65536, v{V_L16}')
    a(f'v_cmp_eq_u32 vcc, 28, v{V_N}')
    a(f'v_mov_b32 v{V_ONE}, {ONES2}')
    a(f'v_cndmask_b32 v{V_ONE}, 0, v{V_ONE}, vcc')
    a('s_waitcnt lgkmcnt(0)')
    for r in (9, 33, 37, 65, 69, 73, 77, 81):
        a(f's_and_b32 s{r}, s{r}, 0xffff')
    if TLBW:
        a('s_lshr_b32 s12, s2, 3')
        a('s_lshl_b32 s12, s12, 2')
        a(f's_add_u32 s12, s12, {S_WAVE}')
        a(f'v_mov_b32 v254, 0')
        a('s_mov_b64 exec, 1')
        a('s_lshr_b32 s13, s12, 2')
        a('s_lshl_b32 s13, s13, 19')
        a('s_and_b32 s14, s12, 3')
        a('s_cmp_eq_u32 s14, 3')
        a(f's_cselect_b32 s13, s13, {OOB}')
        a.raw(f'  buffer_load_dword v255, v254, {SRD_WS}, s13 offen offset:3968 sc1')
        for k, srd in enumerate((SRD_WO[0], SRD_WO[1], SRD_W[1], SRD_OUT, SRD_DBG, SRD_W[0])):
            a(f's_cmp_eq_u32 s12, {4*(3*k+1) + 2}')
            a(f's_cselect_b32 s13, 128, {OOB}') if False else (a(f's_mov_b32 s13, {OOB}'), a('s_cselect_b32 s13, 64, s13'))
            a.raw(f'  buffer_load_dword v255, v254, {srd}, s13 offen sc1')
        a('s_mov_b64 exec, -1')
    stamp('start')

ZROLE0 = 243
def zero_role():
    L = uid('z')
    a(f's_cmp_lt_u32 s2, {ZROLE0}')
    a(f's_cbranch_scc1 {L}')
    a(f's_sub_u32 s3, s2, {ZROLE0}')
    a('s_lshl_b32 s53, s3, 14')
    a(f's_add_u32 s53, s53, {WS_ZERO}')
    a('v_lshlrev_b32 v16, 4, v0')
    for i in range(4):
        a(f'v_mov_b32 v{20+i}, 0')
    for i in range(4):
        a.raw(f'  buffer_store_dwordx4 v[20:23], v16, {SRD_WS}, s53 offen {SC}')
        if i < 3:
            a('s_add_u32 s53, s53, 4096')
    a('s_lshl_b32 s3, s3, 2')
    a.raw(L + ':')

def zero_publish():
    L = uid('z')
    a(f's_cmp_lt_u32 s2, {ZROLE0}')
    a(f's_cbranch_scc1 {L}')
    a(f's_cmp_lg_u32 {S_WAVE}, 0')
    a(f's_cbranch_scc1 {L}')
    sv = list(a.st.hist)
    a(f'v_mov_b32 v{V_T1}, 1')
    a(f'v_mov_b32 v{V_PL}, 0')
    a('s_mov_b64 exec, 1')
    a.raw(f'  buffer_store_dword v{V_T1}, v{V_PL}, {SRD_DBG}, s3 offen sc1')
    a('s_mov_b64 exec, -1')
    a.st.hist = sv
    a.raw(L + ':')

def img_base(which, sg, sl):
    a(f's_mul_i32 {sl}, {S_WAVE}, {21*1024}')
    a(f's_mul_i32 {sg}, {S_HQ}, {IMG_HEAD}')
    a(f's_add_u32 {sg}, {sg}, {sl}')
    a(f's_add_u32 {sg}, {sg}, {WS_IMG[which]}')

def img_dma(n, sg, sl):
    a(f's_mov_b32 m0, {sl}')
    a(f's_add_u32 {sl}, {sl}, {n*1024}')
    for i in range(n):
        a(f'buffer_load_dwordx4 v{V_L16}, {SRD_WS}, {sg} offen offset:{i*1024} {SC} lds')
    a(f's_add_u32 {sg}, {sg}, {n*1024}')

def wb_kv(i):
    a(f's_add_u32 m0, s61, {i*3072}')
    a(f's_add_u32 s59, s60, {i*3072}')
    for p in (1, 2):
        a(f'buffer_load_dwordx4 v{V_L16}, {SRD_WS}, s59 offen offset:{p*1024} {SC} lds')
def wb_q(i):
    a(f's_add_u32 m0, s61, {i*3072}')
    a(f's_add_u32 s59, s60, {i*3072}')
    a(f'buffer_load_dwordx4 v{V_L16}, {SRD_WS}, s59 offen {SC} lds')

def w_prefetch(which, parts):
    for n in parts:
        img_dma(n, 's60', 's61')

def stage_wo_issue(which, lds, tmp, tag, defer=False):
    a(f'v_lshrrev_b32 v{tmp}, 7, v{V_L16}')
    a(f'v_mul_u32_u24 v{tmp}, 896, v{tmp}')
    a(f'v_lshrrev_b32 v{tmp+1}, 2, v{V_L16}')
    a(f'v_and_b32 v{tmp+1}, 64, v{tmp+1}')
    a(f'v_xor_b32 v{tmp+1}, v{tmp+1}, v{V_L16}')
    a(f'v_and_b32 v{tmp+1}, 0x70, v{tmp+1}')
    a(f's_min_u32 s48, {S_CP}, 6')
    a('s_lshl_b32 s48, s48, 7')
    a(f'v_add3_u32 v{tmp}, v{tmp}, v{tmp+1}, s48')
    a(f's_mul_i32 s26, {S_WAVE}, {112*896}')
    a(f's_mul_i32 s27, {S_WAVE}, {14*1024}')
    def one(i, wh=which, tg=tag):
        a(f's_add_u32 m0, s27, {lds + i*1024}')
        a(f's_add_u32 s25, s26, {i*7168}')
        a.inst(f'buffer_load_dwordx4 v{tmp}, {SRD_WO[wh]}, s25 offen lds', tag=tg)
    class TH(list): pass
    th = TH((lambda i=i: one(i)) for i in range(14))
    th.one = one
    return th

def stage_wo_addr(lds, tmp):
    a(f'v_bfe_u32 v{tmp}, v{V_L16}, 6, 2')
    a(f'v_lshl_add_u32 v{tmp}, v{V_HF}, 2, v{tmp}')
    a(f'v_lshlrev_b32 v{tmp}, 7, v{tmp}')
    a(f'v_bfe_u32 v{tmp+1}, v{V_L16}, 7, 1')
    a(f's_and_b32 s49, {S_WAVE}, 1')
    a(f'v_xor_b32 v{tmp+1}, s49, v{tmp+1}')
    a(f'v_lshl_add_u32 v{tmp}, v{tmp+1}, 6, v{tmp}')
    a(f'v_bfe_u32 v{tmp+1}, v{V_L16}, 8, 1')
    a(f'v_lshl_add_u32 v{tmp}, v{tmp+1}, 5, v{tmp}')
    a(f'v_bfe_u32 v{tmp+1}, v{V_L16}, 4, 2')
    a(f'v_lshl_add_u32 v{tmp}, v{tmp+1}, 3, v{tmp}')
    a(f'v_add_u32 v{tmp}, {lds}, v{tmp}')

def stage_wo_reads(which, tmp):
    B = WOA[which]
    return [f'ds_read_b64_tr_b16 a[{B + 4*(2*h+u) + 2*q}:{B + 4*(2*h+u) + 2*q + 1}], v{tmp} offset:{(28*h + 16*u + 8*q)*128}'
            for h in range(16) for u in range(2) for q in range(2)]

def stage_wo_pads(which):
    B = WOA[which]
    a('s_mov_b32 exec_lo, 0')
    for h in range(16):
        r = B + 4 * (2 * h + 1) + 2
        a(f'v_accvgpr_write_b32 a{r}, 0')
        a(f'v_accvgpr_write_b32 a{r+1}, 0')
    a('s_mov_b32 exec_lo, -1')

X, AK, AV, AQ, WR, RS, WE, XE, T, E = 16, 128, 144, 160, 176, 200, 216, 228, 232, 244
ST = AQ
NWR = 6

def ln_stats(isA):
    L = [f's_mov_b32 s16, {f32(1.0/448)}',
         f'v_mul_f32 v{ST}, s16, v{ST}',
         f'v_mul_f32 v{ST+1}, s16, v{ST+1}',
         f'v_fma_f32 v{ST+1}, -v{ST}, v{ST}, v{ST+1}',
         f'v_max_f32 v{ST+1}, 0, v{ST+1}',
         f'v_add_f32 v{ST+1}, {f32(1e-5)}, v{ST+1}',
         f'v_rsq_f32 v{T}, v{ST+1}',
         f'v_sub_f32 v{ST}, 0, v{ST}',
         f'ds_write_b32 v{T+8}, v{T}']
    L += [f'ds_read_b128 v[{RS+4*g}:{RS+4*g+3}], v{T+9} offset:{32*g}' for g in range(4)]
    L += [f'v_and_b32 v{T+4}, 0xffff0000, v{ST}',
          f'v_sub_f32 v{T+5}, v{ST}, v{T+4}',
          f'v_and_b32 v{T+6}, 0xffff0000, v{T+5}',
          f'v_sub_f32 v{T+7}, v{T+5}, v{T+6}',
          f'v_perm_b32 v{XE}, v{T+4}, v{T+4}, s17',
          f'v_perm_b32 v{XE+1}, v{T+6}, v{T+4}, s17',
          f'v_perm_b32 v{XE+2}, v{T+7}, v{T+6}, s17',
          f'v_mov_b32 v{XE+3}, 0',
          f'v_mul_f32 v{T+2}, {f32(LOG2E if isA else QSCALE)}, v{T}']
    return L

def rs_addr():
    a(f's_lshl_b32 s18, {S_WAVE}, 7')
    a(f's_add_u32 s18, s18, {L_RS}')
    a(f'v_lshl_add_u32 v{T+8}, v{V_N}, 2, s18')
    a(f'v_lshl_add_u32 v{T+9}, v{V_HF}, 4, s18')
    a('s_mov_b32 s17, 0x07060302')

def halves_add(r, n, tmp):
    return ([f'v_mov_b32 v{tmp+i}, v{r+i}' for i in range(n)] +
            [f'v_permlane32_swap_b32 v{r+i}, v{tmp+i}' for i in range(n)] +
            [f'v_add_f32 v{r+i}, v{r+i}, v{tmp+i}' for i in range(n)])

def we_build(which, c):
    L = [f'v_cmp_eq_u32 s[56:57], 0, v{V_HF}']
    for p in (1, 2, 0):
        L += [f'v_cndmask_b32 v{c}, 0, v{V_CS[which]+p}, s[56:57]',
              f'v_and_b32 v{c+1}, 0xffff0000, v{c}',
              f'v_sub_f32 v{c}, v{c}, v{c+1}',
              f'v_and_b32 v{c+2}, 0xffff0000, v{c}',
              f'v_sub_f32 v{c+3}, v{c}, v{c+2}',
              f'v_perm_b32 v{WE+4*p}, v{c+2}, v{c+1}, s17',
              f'v_perm_b32 v{WE+4*p+1}, v{c+1}, v{c+3}, s17',
              f'v_perm_b32 v{WE+4*p+2}, v{c+1}, v{c+2}, s17',
              f'v_mov_b32 v{WE+4*p+3}, 0']
    return L

AT_Q = 16

def phase_qkv(isA, first, mode='all'):
    lp = not isA
    nm = 'qa0' if first else ('qa1' if isA else 'qb')
    wsel = 0 if isA else 1
    trans = [True, not isA, False]
    accb = [AQ, AK, AV]
    started = [False] * 3
    fill = []
    def pop(n):
        for _ in range(n):
            if fill:
                x = fill.pop(0)
                if callable(x): x()
                else: a(x)
    def mm(p, w, x):
        d = f'v[{accb[p]}:{accb[p]+15}]'
        c = d if started[p] else '0'
        started[p] = True
        if trans[p]:
            a(f'v_mfma_f32_32x32x16_bf16 {d}, {w}, {x}, {c}')
        else:
            a(f'v_mfma_f32_32x32x16_bf16 {d}, {x}, {w}, {c}')
    seq = [(t, p) for t in range(28) for p in (1, 2)] + [(t, 0) for t in range(28)]
    AH = NWR - 1
    def wread(i):
        if i < len(seq):
            t, p = seq[i]
            r = WR + 4 * (i % NWR)
            o = L_W + (3 * t + p) * 1024
            if first:
                for q in range(2):
                    a(f'ds_read_b64_tr_b16 v[{r+2*q}:{r+2*q+1}], v{T+10 + (o >= 65536)} offset:{o % 65536 + q*512}')
            else:
                a(f'ds_read_b128 v[{r}:{r+3}], v{V_L16 if o < 65536 else V_H64} offset:{o % 65536}')
    def wmm(i):
        t, p = seq[i]
        r = WR + 4 * (i % NWR)
        mm(p, f'v[{r}:{r+3}]', f'v[{X+4*t}:{X+4*t+3}]')
    def extra(p):
        mm(p, f'v[{WE+4*p}:{WE+4*p+3}]', f'v[{XE}:{XE+3}]')
    if mode != 'pre': a.raw(f'; ======== QKV projection ({nm}) ========')
    n_keep = len(a.lines)
    a(f's_lshl_b32 s7, {S_RB}, 2')
    a(f's_add_u32 s7, s7, {S_WAVE}')
    a(f's_mul_i32 s20, s7, {28*1024}')
    if first:
        XD, XA, WDV, F, TM = AQ + 4, AQ + 6, AQ + 14, RS, WE
        zero_role()
        a(f'v_lshrrev_b32 v{WDV}, 6, v{V_L16}')
        a(f'v_mul_u32_u24 v{WDV}, 2688, v{WDV}')
        a(f'v_and_b32 v{TM}, 48, v{V_L16}')
        a(f's_mul_i32 s12, {S_HQ}, 56')
        a('s_and_b32 s14, s12, 8')
        a('s_sub_u32 s12, s12, s14')
        a(f'v_add3_u32 v{WDV}, v{WDV}, v{TM}, s12')
        a(f's_lshl_b32 s23, {S_RB}, 1')
        a(f's_add_u32 s23, s23, {S_HQ}')
        a('s_mul_i32 s24, s23, 37')
        a('s_lshr_b32 s24, s24, 8')
        a('s_mul_i32 s24, s24, 7')
        a('s_sub_u32 s23, s23, s24')
        a(f's_mul_i32 s15, {S_WAVE}, 3072')
        a(f's_mul_i32 s22, {S_WAVE}, 43008')
        def issue_w(g):
            a(f's_mul_i32 s24, s23, {4*43008}')
            a('s_add_u32 s24, s24, s22')
            for p in (1, 2):
                a(f's_add_u32 m0, s15, {g*12288 + p*1024}')
                a('s_add_u32 s24, s24, 896')
                a.inst(f'buffer_load_dwordx4 v{WDV}, {SRD_W[0]}, s24 offen lds', tag=f'w{g}')
        if FINE2: stamp('p_a')
        issue_w(0)
        a(f'v_lshrrev_b32 v{TM+2}, 7, v{V_L16}')
        a(f'v_mul_u32_u24 v{TM+2}, 896, v{TM+2}')
        a(f'v_bfe_u32 v{TM+3}, v{V_L16}, 4, 3')
        a(f'v_lshrrev_b32 v{TM+4}, 8, v{V_L16}')
        a(f'v_xor_b32 v{TM+3}, v{TM+3}, v{TM+4}')
        a(f'v_lshl_add_u32 v{XD}, v{TM+3}, 4, v{TM+2}')
        a(f'v_xor_b32 v{TM+3}, 4, v{TM+3}')
        a(f'v_lshl_add_u32 v{XD+1}, v{TM+3}, 4, v{TM+2}')
        a(f's_mul_i32 s21, {S_WAVE}, 12288')
        a(f's_add_u32 s21, s21, {L_S}')
        def rot_next():
            a('s_add_u32 s23, s23, 1')
            a('s_cmp_eq_u32 s23, 7')
            a('s_cselect_b32 s23, 0, s23')
        def issue_x(g):
            a(f's_add_u32 m0, s21, {(g%3)*4096}')
            a('s_lshl_b32 s24, s23, 7')
            a('s_add_u32 s24, s24, s20')
            for i in range(4):
                if i: a('s_add_u32 s24, s24, 6144')
                a.inst(f'buffer_load_dwordx4 v{XD+(i&1)}, {SRD_X0}, s24 offen offset:{i*1024} lds', tag=f'g{g}')
            rot_next()
        issue_x(0)
        if FINE2: stamp('p_x0')
        if WARM:
            a('s_lshr_b32 s24, s2, 3')
            a('s_lshl_b32 s24, s24, 2')
            a(f's_add_u32 s24, s24, {S_WAVE}')
            a(f'v_lshlrev_b32 v254, 3, v{V_L16}')
            a(f's_and_b32 s25, {S_RB}, 14')
            a(f's_mul_i32 s25, s25, {128*896}')
            a(f's_mul_i32 s26, s24, {14*128}')
            a('s_add_u32 s25, s25, s26')
            a('s_mov_b64 exec, 0x3fff')
            a(f'buffer_load_dword v255, v254, {SRD_X0}, s25 offen')
            a(f's_mul_i32 s26, s24, {74*128}')
            a('s_mov_b64 exec, 0x3ff')
            a(f'buffer_load_dword v255, v254, {SRD_W[0]}, s26 offen')
            a('s_mov_b64 exec, -1')
            a(f'buffer_load_dword v255, v254, {SRD_W[0]}, s26 offen offset:{10*128}')
        a(f's_lshl_b32 s13, {S_WAVE}, 12')
        a(f's_add_u32 s13, s13, {L_KV}')
        if FINE2: stamp('p_rp')
        a(f'v_bfe_u32 v{TM+2}, v{V_N}, 1, 3')
        a(f'v_lshl_add_u32 v{TM+3}, v{V_N}, 7, s21')
        a(f'v_lshl_add_u32 v{TM+3}, v{V_HF}, 3, v{TM+3}')
        for q in range(8):
            a(f'v_xor_b32 v{TM+4}, {q}, v{TM+2}')
            a(f'v_lshl_add_u32 v{XA+q}, v{TM+4}, 4, v{TM+3}')
        a(f'v_and_b32 v{TM+2}, 0xc0, v{V_L16}')
        a(f'v_lshl_add_u32 v{TM+2}, v{V_HF}, 8, v{TM+2}')
        a(f'v_bfe_u32 v{TM+3}, v{V_L16}, 8, 1')
        a(f'v_lshl_add_u32 v{TM+2}, v{TM+3}, 5, v{TM+2}')
        a(f'v_bfe_u32 v{TM+3}, v{V_L16}, 4, 2')
        a(f'v_lshl_add_u32 v{TM+2}, v{TM+3}, 3, v{TM+2}')
        a(f'v_add_u32 v{T+10}, s14, v{TM+2}')
        a(f'v_add_u32 v{T+11}, 65536, v{T+10}')
        a(f'v_add_u32 v{TM+2}, s13, v{T+10}')
        a(f'v_lshlrev_b32 v{E}, 2, v{V_N}')
        a(f'v_lshrrev_b32 v{V_T0}, 2, v{V_L16}')
        a(f's_mov_b32 s19, {ONES2}')
        a(f'v_mov_b32 v{ST}, 0')
        a(f'v_mov_b32 v{ST+1}, 0')
        rs_addr()
        CA, CS, CR = E + 1, E + 3, XE
        a(f'v_add_u32 v{CA}, s15, v{T+10}')
        a(f'v_add_u32 v{CA+1}, s15, v{T+11}')
        a(f'v_mov_b32 v{CS}, 0')
        a(f'v_mov_b32 v{CS+1}, 0')
        if FINE2: stamp('p_adr')
        issue_w(1); issue_x(1)
        if FINE2: stamp('p_g1')
        if FINE2:
            a.wait_tag('g0'); stamp('p_g0w')
        CRS = [[XE, T + 4], [V_CS[0], X + 108]]
        def cs_read(gg, slot):
            for k, p in enumerate((1, 2)):
                for q in range(2):
                    o = gg * 12288 + p * 1024 + q * 512
                    r = CRS[slot][k] + 2 * q
                    a(f'ds_read_b64_tr_b16 v[{r}:{r+1}], v{CA + (o >= 65536)} offset:{o % 65536}')
        def cs_dot(slot):
            for r in range(4):
                for k in range(2):
                    a(f'v_dot2_f32_bf16 v{CS+k}, v{CRS[slot][k]+r}, s19, v{CS+k}')
        def open_group(g):
            a.wait_tag(f'g{g}')
            if g == 5:
                a.wait_tag('pub')
            if g == 6:
                a.wait_tag('csw', 'lg')
            a('s_barrier')
            if g == 0:
                zero_publish()
            if g == 5:
                signal(1, with_xcc=True, barrier=False); advance()
                if FINE: stamp('i_sig')
            for q in range(8):
                r = X + 16 * g + 2 * q
                a(f'ds_read_b64 v[{r}:{r+1}], v{XA+q} offset:{(g%3)*4096}')
            if g < 6:
                cs_read(g, 0)
        def rp_issue():
            for k in range(2):
                a(f's_add_u32 s24, s7, {64*k}')
                a('s_mul_i32 s25, s24, 171')
                a('s_lshr_b32 s25, s25, 9')
                a('s_mul_i32 s26, s25, 45')
                a('s_add_u32 s26, s26, s24')
                a('s_mul_i32 s26, s26, 896')
                if k:
                    a('s_cmp_ge_u32 s24, 84')
                    a(f's_cselect_b32 s26, {OOB}, s26')
                for wh in range(2):
                    a(f's_add_u32 m0, s13, {(2*k+wh)*1024}')
                    a.inst(f'buffer_load_dwordx4 v{WDV}, {SRD_W[wh]}, s26 offen lds', tag='rp')
                a('s_mul_i32 s25, s25, 3')
                a('s_sub_u32 s25, s24, s25')
                a(f's_mul_i32 s{30+k}, {S_HQ}, 3')
                a(f's_add_u32 s{30+k}, s{30+k}, s25')
                a(f's_lshl_b32 s{30+k}, s{30+k}, 7')
                a(f's_add_u32 s{30+k}, s{30+k}, {WS_CS}')
                a('s_lshl_b32 s25, s24, 10')
                a(f's_mul_i32 s{28+k}, {S_HQ}, {IMG_HEAD}')
                a(f's_add_u32 s{28+k}, s{28+k}, s25')
                a(f's_add_u32 s{28+k}, s{28+k}, {WS_IMG[0]}')
                if k:
                    a('s_cmp_ge_u32 s24, 84')
                    a(f's_cselect_b32 s29, {OOB}, s29')
                    a(f's_cselect_b32 s31, {OOB}, s31')
        def rp_read():
            a.wait_tag('rp')
            for b in range(4):
                for q in range(2):
                    a(f'ds_read_b64_tr_b16 v[{F+4*b+2*q}:{F+4*b+2*q+1}], v{TM+2} offset:{b*1024 + q*512}')
        def rp_store():
            for k in range(2):
                a(f'buffer_store_dwordx4 v[{F+8*k}:{F+8*k+3}], v{V_L16}, {SRD_WS}, s{28+k} offen {SC}')
                a(f's_add_u32 s{28+k}, s{28+k}, {WS_IMG[1]-WS_IMG[0]}')
                a(f'buffer_store_dwordx4 v[{F+8*k+4}:{F+8*k+7}], v{V_L16}, {SRD_WS}, s{28+k} offen {SC}')
        def rp_dot():
            for r in range(4):
                for b in range(4):
                    a(f'v_dot2_f32_bf16 v{TM+4+b}, v{F+4*b+r}, s19, {"0" if r == 0 else f"v{TM+4+b}"}')
            fill.extend(halves_add(TM + 4, 4, TM + 8))
        def look(mask_lo, mask_hi, srd, target, pmask):
            Lk = uid('look')
            a(f'v_cmp_le_u32 vcc, {target}, v{V_PL}')
            a(f's_mov_b32 s58, {mask_lo}')
            a(f's_mov_b32 s59, {mask_hi}')
            a('s_and_b64 vcc, vcc, s[58:59]')
            a('s_cmp_eq_u64 vcc, s[58:59]')
            a(f's_cbranch_scc1 {Lk}')
            sv = (list(a.st.hist), list(a.st.vm), list(a.st.lg))
            poll(srd, 's[58:59]', target)
            a.st.hist, a.st.vm, a.st.lg = sv
            a.raw(Lk + ':')
        def rp_pub():
            assert not fill
            look((1 << NZERO) - 1, 0, SRD_DBG, 1, None)
            a('s_mov_b32 exec_hi, 0')
            for k in range(2):
                a(f'buffer_atomic_add_f32 v{TM+4+2*k}, v{E}, {SRD_WS}, s{30+k} offen sc1')
                a(f's_add_u32 s{30+k}, s{30+k}, {16*3*128}')
                a.inst(f'buffer_atomic_add_f32 v{TM+5+2*k}, v{E}, {SRD_WS}, s{30+k} offen sc1', tag='pub')
            a('s_mov_b32 exec_hi, -1')
        def warm_wo():
            a('s_lshr_b32 s24, s2, 3')
            a('s_lshl_b32 s24, s24, 2')
            a(f's_add_u32 s24, s24, {S_WAVE}')
            a(f'v_lshlrev_b32 v254, 3, v{V_L16}')
            a(f's_mul_i32 s26, s24, {25*128}')
            a('s_mov_b64 exec, 0x1ffffff')
            a(f'buffer_load_dword v255, v254, {SRD_WO[0]}, s26 offen')
            a(f'buffer_load_dword v255, v254, {SRD_WO[1]}, s26 offen')
            a('s_mov_b64 exec, -1')
        def flags_issue():
            ids_qkv_rows(S_HQ)
            a('s_and_b32 s48, s2, 7')
            a('s_lshl_b32 s48, s48, 7')
            a(f's_add_u32 s48, s48, {WS_FLAG + 4}')
            a(f'v_lshl_add_u32 v{V_T1}, v{V_N}, 10, s48')
            a(f'v_cmp_eq_u32 vcc, 1, v{V_HF}')
            a(f'v_cndmask_b32 v{V_T0}, v{V_T0}, v{V_T1}, vcc')
            a(f'buffer_load_dword v{V_PL}, v{V_T0}, {SRD_WS}, 0 offen sc1')
            a(f's_mul_i32 s28, {S_HQ}, {IMG_HEAD}')
            a('s_add_u32 s28, s28, s15')
            a(f's_add_u32 s28, s28, {WS_IMG[0]}')
            a(f's_mul_i32 s29, {S_HQ}, 384')
            a(f's_add_u32 s29, s29, {WS_CS}')
        def flags_check():
            look(0xffff, -1, SRD_WS, S_PROG, None)
            stamp(f'{nm}_go', lp)
            for wh in range(2):
                for p in (0, 1, 2):
                    a(f'buffer_load_dword v{V_CS[wh]+p}, v253, {SRD_WS}, s29 offen offset:{p*128} {SC}')
                if wh == 0:
                    a(f's_add_u32 s29, s29, {16*3*128}')
            a(f'v_cmp_eq_u32 vcc, {S_XCC}, v{V_PL}')
            a('s_cmp_eq_u32 vcc_hi, -1')
            a(f's_cselect_b32 {S_LOC}, {0 if FORCE_GLOBAL else 1}, 0')
        def issue_q(g):
            a(f's_mul_i32 s24, s23, {4*43008}')
            a('s_add_u32 s24, s24, s22')
            a(f's_add_u32 m0, s15, {g*12288}')
            rot_next()
            a.inst(f'buffer_load_dwordx4 v{WDV}, {SRD_W[0]}, s24 offen lds', tag='wq')
        AH0 = 4
        open_group(0)
        for i in range(AH0):
            wread(i)
        for g in range(7):
            if FINE: stamp(f'qa0_g{g}')
            if g == 5:
                a.wait_tag('w6')
                cs_read(6, 1)
            for r in range(X + 16 * g, X + 16 * g + 16):
                a(f'v_dot2_f32_bf16 v{ST}, v{r}, s19, v{ST}')
                a(f'v_dot2_f32_bf16 v{ST+1}, v{r}, v{r}, v{ST+1}')
            if g < 6:
                cs_dot(0)
            if g == 2:
                rp_dot()
            if g == 5:
                cs_dot(1)
                for x in halves_add(CS, 2, XE): a(x)
                a(f's_lshl_b32 s12, {S_WAVE}, 8')
                a(f's_add_u32 s12, s12, {L_CS}')
                a(f'v_add_u32 v{XE+2}, s12, v{E}')
                a.inst(f'ds_write2_b32 v{XE+2}, v{CS}, v{CS+1} offset0:0 offset1:32', tag='csw')
            if g == 6:
                c = TM
                L = [f'v_add_u32 v{CA}, {L_CS}, v{E}']
                for k in range(2):
                    L += [f'ds_read2_b32 v[{c+4*k}:{c+4*k+1}], v{CA} offset0:{32*k} offset1:{32*k+64}',
                          f'ds_read2_b32 v[{c+4*k+2}:{c+4*k+3}], v{CA} offset0:{32*k+128} offset1:{32*k+192}']
                L += halves_add(ST, 2, ST + 2) + ln_stats(True)
                for k in range(2):
                    L += [f'v_add_f32 v{c+4*k}, v{c+4*k}, v{c+4*k+1}', f'v_add_f32 v{c+4*k+2}, v{c+4*k+2}, v{c+4*k+3}',
                          f'v_add_f32 v{V_CS[0]+1+k}, v{c+4*k}, v{c+4*k+2}']
                L += we_build(0, T + 4)[:19]
                fill.extend(L)
            for fl in range(8):
                i = 8 * g + fl
                wmm(i)
                if g == 0:
                    if fl == 0: issue_w(2)
                    if fl == 1: issue_x(2)
                    if fl == 4: rp_issue()
                    if fl == 5: issue_w(3)
                    if fl == 7: issue_x(3)
                elif g + 3 < 7:
                    if fl == 5: issue_w(g + 3)
                    if fl == 6: issue_x(g + 3)
                if g == 1 and fl == 4: rp_read()
                if g == 1 and fl == 7: rp_store()
                if g == 2 and fl == 0: a(f'buffer_load_dword v{V_PL}, v{V_T0}, {SRD_DBG}, 0 offen sc1')
                if g == 3 and fl == 0: rp_pub()
                if g == 4 and fl != 3: issue_q(fl - (fl > 3))
                if g == 5 and fl == 0: warm_wo()
                if g == 5 and fl == 5:
                    pretouch_setup(True, 0); prewrite()
                if g == 6 and fl == 3:
                    a.wait_tag('wq')
                    a('s_barrier')
                if fl == 3 and g < 6:
                    open_group(g + 1)
                wread(i + AH0)
                pop(4)
        pop(99)
        extra(1); extra(2)
        wread(56 + AH0)
        a(f'v_mov_b32 v253, v{E}')
    else:
        xo, so = (WS_XB, WS_STB) if isA else (WS_XA, WS_STA)
        a(f's_add_u32 s20, s20, {xo}')
        a('s_lshl_b32 s21, s7, 8')
        a(f's_add_u32 s21, s21, {so}')
        if not isA:
            a(f's_add_u32 s20, s20, {S_BLK}')
            a(f's_add_u32 s21, s21, {S_BLK}')
        a(f'v_lshlrev_b32 v{T+11}, 3, v{V_N}')
        a(f'v_lshl_add_u32 v{T+11}, v{V_HF}, 14, v{T+11}')
        rs_addr()
        pretouch_setup(isA, BLK if isA else S_BLK)
        a(f'v_lshrrev_b32 v{V_T1}, 4, v{V_L16}')
        a('s_lshr_b32 s48, s7, 3')
        a('s_lshr_b32 s49, s7, 1')
        a('s_and_b32 s49, s49, 3')
        a('s_lshl_b32 s49, s49, 3')
        a('s_add_u32 s48, s48, s49')
        a(f'v_lshl_add_u32 v{V_T0}, v{V_T1}, 5, s48')
        flag_addr(True)
        for x in we_build(wsel, X):
            a(x)
        if not isA:
            wob = stage_wo_issue(1, L_S, 251, 'wob', defer=True)
            a(f's_cmp_lg_u32 {S_IT}, 0')
            a(f's_cselect_b32 s26, {OOB}, s26')
        early = isA or NPB >= 3
        if early:
            for i in range(AH):
                wread(i)
        if mode == 'pre':
            return
        if mode == 'main':
            del a.lines[n_keep:]
            a.fresh()
        if not early:
            for i in range(AH):
                wread(i)
        poll(SRD_WS, 0x7f, S_PROG)
        stamp(f'{nm}_go', lp)
        def xload(t):
            r = X + 4 * t
            a(f'buffer_load_dwordx4 v[{r}:{r+3}], v{V_L16}, {SRD_WS}, s20 offen offset:{(t%4)*1024} {LD}')
            if t % 4 == 3 and t != 27:
                a('s_add_u32 s20, s20, 4096')
        def stload(i):
            a(f'buffer_load_dwordx2 v[{ST+2*i}:{ST+2*i+1}], v{T+11}, {SRD_WS}, s21 offen {LD}')
            if i < 6:
                a('s_add_u32 s21, s21, 32768')
        N0 = [8, 4, 6, 12][XS]
        for t in range(N0):
            xload(t)
        nx = N0
        for i in range(56):
            t = i >> 1
            if i == 24:
                for k in range(1, 7):
                    fill.append(f'v_add_f32 v{ST}, v{ST}, v{ST+2*k}')
                    fill.append(f'v_add_f32 v{ST+1}, v{ST+1}, v{ST+2*k+1}')
                fill.extend(halves_add(ST, 2, ST + 2) + ln_stats(isA))
            if i == 48:
                assert not fill
                extra(1); extra(2)
            wmm(i)
            if XS == 0:
                if i % 2 == 0:
                    for _ in range(2 if i < 12 else 1):
                        if nx < 28:
                            xload(nx); nx += 1
                if i == 1:
                    for k in range(7):
                        stload(k)
            else:
                if nx < 28 and (i < 2 * (28 - N0) - 30 or i % 2 == 0 or True if XS in (1, 2) and i < 16 else i % 2 == 0):
                    xload(nx); nx += 1
                if 5 <= i < 19 and i % 2 == 1:
                    stload((i - 5) // 2)
            if i == 35:
                assert nx == 28
                pretouch()
            wread(i + AH)
            pop(2)
            if False: stamp(f'qb_t{t}', True)
        assert nx == 28 and not fill
    stamp(f'{nm}_mm', lp)
    KF, VF, QF = AK, AK + 8, AT_Q
    def pkmul_lane(dst, src, sc):
        a(f'v_pk_mul_f32 v[{dst}:{dst+1}], v[{src}:{src+1}], v[{sc}:{sc+1}] op_sel_hi:[1,0]')
    def v_pads():
        a('s_mov_b32 exec_lo, 0xf0000000')
        a('s_mov_b32 exec_hi, 0xf0000000')
        for r in range(8):
            a(f'v_mov_b32 v{VF+r}, v{V_ONE}')
        a('s_mov_b64 exec, -1')
    def v_epi():
        for r in range(8):
            a(f'v_pk_mul_f32 v[{AV+2*r}:{AV+2*r+1}], v[{AV+2*r}:{AV+2*r+1}], v[{RS+2*r}:{RS+2*r+1}]')
            a(f'v_cvt_pk_bf16_f32 v{VF+r}, v{AV+2*r}, v{AV+2*r+1}')
        v_pads()
    def pass2(npop, hooks):
        if not first:
            extra(0)
        for i in range(56, 84):
            wmm(i)
            wread(i + AH)
            pop(npop)
            if i - 56 in hooks:
                hooks[i - 56]()
    if not isA:
        a(f's_mov_b32 s19, {ONES2}')
        a(f's_lshl_b32 s12, {S_HQ}, 18')
        a('s_lshl_b32 s13, s7, 12')
        a('s_add_u32 s12, s12, s13')
        a(f's_add_u32 s13, s12, {WS_KV}')
        a(f's_add_u32 s13, s13, {S_KVB}')
        for r in range(8):
            pkmul_lane(AK + 2 * r, AK + 2 * r, T)
            a(f'v_cvt_pk_bf16_f32 v{KF+r}, v{AK+2*r}, v{AK+2*r+1}')
            if r == 3:
                a(f'buffer_store_dwordx4 v[{KF}:{KF+3}], v{V_L16}, {SRD_WS}, s13 offen {SC}')
        a('s_mov_b32 exec_lo, 0')
        a(f'v_mov_b32 v{KF+6}, s19')
        a(f'v_mov_b32 v{KF+7}, 0')
        a('s_mov_b32 exec_lo, -1')
        a(f'buffer_store_dwordx4 v[{KF+4}:{KF+7}], v{V_L16}, {SRD_WS}, s13 offen offset:1024 {SC}')
        v_epi()
        a(f'buffer_store_dwordx4 v[{VF}:{VF+3}], v{V_L16}, {SRD_WS}, s13 offen offset:2048 {SC}')
        a.inst(f'buffer_store_dwordx4 v[{VF+4}:{VF+7}], v{V_L16}, {SRD_WS}, s13 offen offset:3072 {SC}', tag='kvs')
        stamp(f'{nm}_epi', lp)
        hk = {k: wob[k] for k in range(14)}
        def sg():
            signal(1, wait_tag='kvs'); advance()
            stamp(f'{nm}_sig', lp)
        hk[QBSIG] = sg
        pass2(0, hk)
        SD = AV
        for r in range(8):
            pkmul_lane(AQ + 2 * r, AQ + 2 * r, T + 2)
            a(f'v_cvt_pk_bf16_f32 v{QF+r}, v{AQ+2*r}, v{AQ+2*r+1}')
        a('s_mov_b32 exec_lo, 0')
        a(f'v_mov_b32 v{QF+6}, 0')
        a(f'v_mov_b32 v{QF+7}, 0')
        a('s_mov_b32 exec_lo, -1')
        a(f'v_mfma_f32_32x32x16_bf16 v[{SD}:{SD+15}], v[{KF}:{KF+3}], v[{QF}:{QF+3}], 0')
        a(f'v_mfma_f32_32x32x16_bf16 v[{SD}:{SD+15}], v[{KF+4}:{KF+7}], v[{QF+4}:{QF+7}], v[{SD}:{SD+15}]')
        a(f's_lshl_b32 s12, {S_WAVE}, 11')
        a(f's_add_u32 s13, s12, {L_KV}')
        a(f'v_add_u32 v{T+8}, s13, v{V_L16}')
        a(f'ds_write_b128 v{T+8}, v[{QF}:{QF+3}]')
        for i in range(1, 4):
            a(f's_xor_b32 s13, s12, {i*2048}')
            a(f's_add_u32 s13, s13, {L_KV}')
            a(f'v_add_u32 v{T+8+i}, s13, v{V_L16}')
        a(f'v_max3_f32 v{T+4}, v{SD}, v{SD+1}, v{SD+2}')
        a(f'v_max3_f32 v{T+5}, v{SD+3}, v{SD+4}, v{SD+5}')
        for r in range(6, 16, 4):
            a(f'v_max3_f32 v{T+4}, v{SD+r}, v{SD+r+1}, v{T+4}')
            if r + 3 < 16:
                a(f'v_max3_f32 v{T+5}, v{SD+r+2}, v{SD+r+3}, v{T+5}')
        a(f'v_max_f32 v{T+4}, v{T+4}, v{T+5}')
        a(f'v_mov_b32 v{T+5}, v{T+4}')
        a(f'v_permlane32_swap_b32 v{T+4}, v{T+5}')
        a(f'v_max_f32 v{T+4}, v{T+4}, v{T+5}')
        a(f'v_sub_f32 v{T+4}, 0, v{T+4}')
        a(f'v_and_b32 v{T+5}, 0xffff0000, v{T+4}')
        a(f'v_sub_f32 v{T+6}, v{T+4}, v{T+5}')
        a('s_mov_b32 exec_lo, 0')
        a(f'v_perm_b32 v{QF+6}, v{T+6}, v{T+5}, s17')
        a('s_mov_b32 exec_lo, -1')
        a(f'ds_write_b128 v{T+8}, v[{QF+4}:{QF+7}] offset:1024')
        a.wait_tag('wob')
        a('s_waitcnt lgkmcnt(0)')
        a('s_barrier')
        for i in range(1, 4):
            for u in range(2):
                r = QF + 8 * i + 4 * u
                a(f'ds_read_b128 v[{r}:{r+3}], v{T+8+i} offset:{u*1024}')
        if DEBUGQ:
            a(f's_lshl_b32 s12, {S_HQ}, 17')
            a('s_lshl_b32 s13, s7, 11')
            a('s_add_u32 s12, s12, s13')
            a(f's_add_u32 s12, s12, {WS_Q}')
            a(f's_add_u32 s12, s12, {S_BLK}')
            a(f'buffer_store_dwordx4 v[{QF}:{QF+3}], v{V_L16}, {SRD_WS}, s12 offen')
            a(f'buffer_store_dwordx4 v[{QF+4}:{QF+7}], v{V_L16}, {SRD_WS}, s12 offen offset:1024')
    else:
        it = 0 if first else 1
        a(f's_mov_b32 s16, {f32(1e-6)}')
        a(f's_mov_b32 s17, {f32(1e-6)}')
        a(f's_mov_b32 s18, {f32(LOG2E)}')
        a(f's_lshl_b32 s19, {S_WAVE}, 12')
        a(f's_add_u32 s19, s19, {L_KV}')
        a(f'v_add_u32 v{T+8}, s19, v{V_L16}')
        a(f'v_lshlrev_b32 v{T+7}, 2, v0')
        a(f'v_add_u32 v{T+9}, {L_KV}, v{T+7}')
        a(f'v_mov_b32 v{T+4}, 1.0')
        for r in range(8):
            e = E + 2 * (r % 3)
            k = AK + 2 * r
            a(f'v_pk_mul_f32 v[{k}:{k+1}], v[{k}:{k+1}], v[{RS+2*r}:{RS+2*r+1}]')
            a(f'v_pk_mul_f32 v[{e}:{e+1}], v[{k}:{k+1}], s[18:19] op_sel_hi:[1,0]')
            a(f'v_pk_add_f32 v[{k}:{k+1}], v[{k}:{k+1}], 1.0 op_sel_hi:[1,0]')
            a(f'v_exp_f32 v{e}, v{e}')
            a(f'v_exp_f32 v{e+1}, v{e+1}')
            a(f'v_med3_f32 v{k}, v{e}, v{k}, 1.0')
            a(f'v_med3_f32 v{k+1}, v{e+1}, v{k+1}, 1.0')
            a(f'v_pk_add_f32 v[{k}:{k+1}], v[{k}:{k+1}], s[16:17]')
            a(f'v_cvt_pk_bf16_f32 v{KF+r}, v{k}, v{k+1}')
        v_epi()
        KVD = AV
        a(f'v_mfma_f32_32x32x16_bf16 v[{KVD}:{KVD+15}], v[{KF}:{KF+3}], v[{VF}:{VF+3}], 0')
        a(f'v_mfma_f32_32x32x16_bf16 v[{KVD}:{KVD+15}], v[{KF+4}:{KF+7}], v[{VF+4}:{VF+7}], v[{KVD}:{KVD+15}]')
        a(f's_lshl_b32 s22, {S_HQ}, 12')
        a(f's_add_u32 s22, s22, {WS_KVACC + it*65536}')
        a(f's_cmp_ge_u32 {S_WAVE}, 2')
        a(f's_cselect_b32 s23, {OOB}, s22')
        a('s_lshl_b32 s12, s7, 15')
        a(f's_lshl_b32 s13, {S_HQ}, 11')
        a('s_add_u32 s12, s12, s13')
        a(f's_add_u32 s12, s12, {WS_OA + it*BLK}')
        E2 = RS
        def kvw(rg):
            return lambda: a.inst(f'ds_write_b128 v{T+8}, v[{KVD+4*rg}:{KVD+4*rg+3}] offset:{rg*1024}', tag='kvw')
        def kvbar():
            a.wait_tag('kvw', 'lg')
            a('s_barrier')
            for k in range(4):
                a(f'ds_read2st64_b32 v[{E2+4*k}:{E2+4*k+1}], v{T+9} offset0:{4*k} offset1:{4*k+16}')
                a(f'ds_read2st64_b32 v[{E2+4*k+2}:{E2+4*k+3}], v{T+9} offset0:{4*k+32} offset1:{4*k+48}')
        def kvat(k):
            def f():
                a(f'v_add_f32 v{E2+4*k}, v{E2+4*k}, v{E2+4*k+1}')
                a(f'v_add_f32 v{E2+4*k+2}, v{E2+4*k+2}, v{E2+4*k+3}')
                a(f'v_add_f32 v{E2+4*k}, v{E2+4*k}, v{E2+4*k+2}')
                a.inst(f'buffer_atomic_add_f32 v{E2+4*k}, v{T+7}, {SRD_WS}, {"s23" if k == 3 else "s22"} offen offset:{k*1024} sc1', tag='kva')
            return f
        both = lambda f, g: (lambda: (f(), g()))
        hooks = {0: kvw(0), 1: kvw(1), 2: kvw(2), 3: kvw(3), 5: kvbar, 8: both(kvat(0), kvat(1)), 9: both(kvat(2), kvat(3))}
        img_base(1, 's60', 's61')
        if first:
            hooks = {k + 1: f for k, f in hooks.items()}
            hooks[0] = flags_issue
            woa = []
            def chk():
                flags_check()
                woa.extend(stage_wo_issue(0, L_S, 251, 'woa', defer=True))
            hooks[11] = chk
            for k in range(7):
                hooks[12 + k] = (lambda k=k: (woa[2*k](), woa[2*k+1]()))
            hooks[19] = lambda: stage_wo_addr(L_S, 252)
        pass2(0, hooks)
        if first:
            a('s_mov_b32 s17, 0x07060302')
            w = we_build(0, E)
            for x in w[:1] + w[19:]: a(x)
            a(f's_mov_b32 s17, {f32(1e-6)}')
            extra(0)
        signal(1, wait_tag='kva'); advance()
        stamp(f'{nm}_sg1', lp)
        for k in range(NPB):
            wb_kv(k)
        QF = X
        for r in range(8):
            e = E + 2 * (r % 3)
            q = AQ + 2 * r
            pkmul_lane(e, q, T + 2)
            a(f'v_pk_fma_f32 v[{q}:{q+1}], v[{q}:{q+1}], v[{T}:{T+1}], v[{T+4}:{T+5}] op_sel_hi:[1,0,0]')
            a(f'v_exp_f32 v{e}, v{e}')
            a(f'v_exp_f32 v{e+1}, v{e+1}')
            a(f'v_med3_f32 v{q}, v{e}, v{q}, 1.0')
            a(f'v_med3_f32 v{q+1}, v{e+1}, v{q+1}, 1.0')
            a(f'v_pk_add_f32 v[{q}:{q+1}], v[{q}:{q+1}], s[16:17]')
            a(f'v_cvt_pk_bf16_f32 v{QF+r}, v{q}, v{q+1}')
        a('s_mov_b32 exec_lo, 0')
        a(f'v_mov_b32 v{QF+6}, 0')
        a(f'v_mov_b32 v{QF+7}, 0')
        a('s_mov_b32 exec_lo, -1')
        stamp(f'{nm}_epi', lp)
        if DEBUGQ:
            a(f's_add_u32 s13, s12, {WS_DBG + (8 << 20)}')
            a(f'buffer_store_dwordx4 v[{QF}:{QF+3}], v{V_L16}, {SRD_WS}, s13 offen')
            a(f'buffer_store_dwordx4 v[{QF+4}:{QF+7}], v{V_L16}, {SRD_WS}, s13 offen offset:1024')
        if first:
            a.wait_tag('woa')
            a('s_barrier')
            for n, x in enumerate(stage_wo_reads(0, 252)):
                a(x)
                if n % 12 == 11: a('s_waitcnt lgkmcnt(4)')
            stage_wo_pads(0)
        op_resid_load('raw' if first else 'xb')
        ids_qkv_rows(S_HQ)
        poll(SRD_WS, 0xffff, S_PROG)
        stamp(f'{nm}_kv', lp)
        KV, D = 40, 56
        for rg in range(4):
            a(f'buffer_load_dwordx4 v[{KV+4*rg}:{KV+4*rg+3}], v{V_L16}, {SRD_WS}, s22 offen offset:{rg*1024} {SC}')
        op_unpack(); op_addr()
        for r in range(8):
            a(f'v_cvt_pk_bf16_f32 v{KV+r}, v{KV+2*r}, v{KV+2*r+1}')
            if r == 3:
                a(f'v_mfma_f32_32x32x16_bf16 v[{D}:{D+15}], v[{KV}:{KV+3}], v[{QF}:{QF+3}], 0')
        a(f'v_mfma_f32_32x32x16_bf16 v[{D}:{D+15}], v[{KV+4}:{KV+7}], v[{QF+4}:{QF+7}], v[{D}:{D+15}]')
        a(f'v_add_f32 v{T}, s16, v{D+12}')
        a(f'v_mov_b32 v{T+1}, v{T}')
        a(f'v_permlane32_swap_b32 v{T+1}, v{T}')
        a(f'v_rcp_f32 v{T}, v{T}')
        for r in range(8):
            pkmul_lane(D + 2 * r, D + 2 * r, T)
            a(f'v_cvt_pk_bf16_f32 v{QF+8+r}, v{D+2*r}, v{D+2*r+1}')
        lstore([f'buffer_store_dwordx4 v[{QF+8}:{QF+11}], v{V_L16}, {SRD_WS}, s12 offen',
                f'buffer_store_dwordx4 v[{QF+12}:{QF+15}], v{V_L16}, {SRD_WS}, s12 offen offset:1024'])
        signal(1, local=True, pre=lambda: None); advance()
        stamp(f'{nm}_sig', lp)

OP_CH = [(0, 4), (4, 8), (12, 8), (20, 8), (28, 4)]
OP_ACC, OP_OF, OP_XF, OP_T = 112, 32, 224, 232
def op_resid_load(kind):
    XF, T = OP_XF, OP_T
    if kind == 'raw':
        a(f'v_mul_u32_u24 v{T+6}, 896, v{V_N}')
        a(f'v_lshl_add_u32 v{T+6}, v{V_HF}, 3, v{T+6}')
        a(f's_mul_i32 s48, {S_ORT}, {28*1024}')
        a(f's_sub_u32 s49, {S_XT}, s48')
        a('s_lshr_b32 s49, s49, 5')
        a('s_add_u32 s48, s48, s49')
        for k in range(4):
            a(f'buffer_load_dwordx2 v[{XF+2*k}:{XF+2*k+1}], v{T+6}, {SRD_X0}, s48 offen offset:{16*k}')
    else:
        a(f's_add_u32 s48, {S_XT}, {WS_XA if kind == "xa" else WS_XB}')
        if kind == 'xa' and BLK:
            a(f's_add_u32 s48, s48, {S_BLK}')
        a(f'buffer_load_dwordx4 v[{XF}:{XF+3}], v{V_L16}, {SRD_WS}, s48 offen {SC}')
        a(f'buffer_load_dwordx4 v[{XF+4}:{XF+7}], v{V_L16}, {SRD_WS}, s48 offen offset:1024 {SC}')
def op_unpack():
    for r in range(8):
        a(f'v_lshlrev_b32 v{OP_ACC+2*r}, 16, v{OP_XF+r}')
        a(f'v_and_b32 v{OP_ACC+2*r+1}, 0xffff0000, v{OP_XF+r}')
def op_addr():
    T = OP_T
    a(f's_and_b32 s48, {S_OL8}, 0xffffefff') if False else None
    a(f's_lshl_b32 s48, {S_WAVE}, 14')
    a('s_and_b32 s48, s48, 0x8000')
    a(f's_add_u32 s48, s48, {L_S}')
    a(f'v_add_u32 v{T+4}, s48, v{V_L16}')
    a(f'v_lshlrev_b32 v{T+7}, 3, v{V_N}')
    a(f'v_lshl_add_u32 v{T+7}, v{V_HF}, 2, v{T+7}')
    a(f's_lshr_b32 s50, {S_RP}, 1')
    ids_qkv_heads('s50')

def phase_op(isA, nxt_pre):
    nm = 'oa' if isA else 'ob'
    join = uid('op_join')
    ACC, OF, XF, T = OP_ACC, OP_OF, OP_XF, OP_T
    WB = WOA[0 if isA else 1]
    skip = uid('op_skip')
    a(f's_cmp_ge_u32 {S_CP}, 7')
    a(f's_cbranch_scc1 {skip}')
    acc = f'v[{ACC}:{ACC+15}]'
    xo, so = (WS_XA, WS_STA) if isA else (WS_XB, WS_STB)
    ob = WS_OA if isA else WS_O
    poll(SRD_WS, 0xffff, S_PROG)
    stamp(f'{nm}_go', True)
    def iss(c):
        k0, n = OP_CH[c]
        a(f's_add_u32 m0, {S_OL8 if n == 8 else S_OL4}, {k0*1024}')
        a(f's_add_u32 s17, {S_OG8 if n == 8 else S_OG4}, {k0*1024 + ob}')
        if BLK: a(f's_add_u32 s17, s17, {S_BLK}')
        for i in range(n // 2):
            a.inst(f'buffer_load_dwordx4 v{V_L16}, {SRD_WS}, s17 offen offset:{i*1024} {LD} lds', tag=f'o{c}')
    def opn(c):
        k0, n = OP_CH[c]
        a.wait_tag(f'o{c}')
        a('s_barrier')
        if FINE3 and not isA: stamp(f'ob_c{c}', True)
        for s in range(n):
            r = OF + 32 * (c & 1) + 4 * s
            a(f'ds_read_b128 v[{r}:{r+3}], v{T+4} offset:{(k0+s)*1024}')
    for c in range(OPD):
        iss(c)
    a(f's_add_u32 s51, {S_XT}, {xo}')
    a(f's_add_u32 s52, {S_STT}, {so}')
    if BLK:
        a(f's_add_u32 s51, s51, {S_BLK}')
        a(f's_add_u32 s52, s52, {S_BLK}')
    a(f's_mov_b32 s19, {ONES2}')
    opn(0)
    nxt = OPD
    pf = ([(lambda k=k: wb_kv(k)) for k in range(NPB, 7)] + [(lambda k=k: (wb_q(k), wb_q(k + 1) if k < 6 else None)) for k in (0, 2, 4, 6)]) if isA else []
    pf_all = list(pf)
    for c, (k0, n) in enumerate(OP_CH):
        if c == 0 and nxt < len(OP_CH):
            iss(nxt); nxt += 1
        for s in range(n):
            r = OF + 32 * (c & 1) + 4 * s
            k = k0 + s
            a(f'v_mfma_f32_32x32x16_bf16 {acc}, a[{WB+4*k}:{WB+4*k+3}], v[{r}:{r+3}], {acc}')
            if c > 0 and s in (0, 2) and nxt < len(OP_CH):
                iss(nxt); nxt += 1
            elif c > 0 and nxt == len(OP_CH) and pf and s % 2 == 0:
                pf.pop(0)()
            if s == n - OPE and c + 1 < len(OP_CH):
                opn(c + 1)
    assert not pf and nxt == len(OP_CH)
    stamp(f'{nm}_mm', True)
    for r in range(8):
        a(f'v_cvt_pk_bf16_f32 v{XF+r}, v{ACC+2*r}, v{ACC+2*r+1}')
    if not isA:
        a(f's_cmp_lg_u32 {S_IT}, 0')
        a('s_cbranch_scc1 op_final')
    lstore([f'buffer_store_dwordx4 v[{XF}:{XF+3}], v{V_L16}, {SRD_WS}, s51 offen',
            f'buffer_store_dwordx4 v[{XF+4}:{XF+7}], v{V_L16}, {SRD_WS}, s51 offen offset:1024'])
    a(f'v_dot2_f32_bf16 v{T}, v{XF}, s19, 0')
    a(f'v_dot2_f32_bf16 v{T+1}, v{XF}, v{XF}, 0')
    for r in range(1, 8):
        a(f'v_dot2_f32_bf16 v{T}, v{XF+r}, s19, v{T}')
        a(f'v_dot2_f32_bf16 v{T+1}, v{XF+r}, v{XF+r}, v{T+1}')
    a(f'v_permlane32_swap_b32 v{T}, v{T+1}')
    a(f'v_add_f32 v{T}, v{T}, v{T+1}')
    lstore([f'buffer_store_dword v{T}, v{T+7}, {SRD_WS}, s52 offen'])
    stamp(f'{nm}_epi', True)
    signal(local=True, pre=nxt_pre)
    a(f's_branch {join}')
    a.raw(skip + ':'); a.fresh()
    if isA:
        for f in pf_all: f()
        a('s_waitcnt vmcnt(0)')
        a('s_barrier')
    nxt_pre()
    a('s_waitcnt vmcnt(0) lgkmcnt(0)')
    a('s_barrier')
    a.raw(join + ':')
    a.fresh()
    advance()
    stamp(f'{nm}_sig', True)
    def final():
        a.raw('op_final:'); a.fresh()
        a(f'v_mul_u32_u24 v{T+6}, 896, v{V_N}')
        a(f'v_lshl_add_u32 v{T+6}, v{V_HF}, 4, v{T+6}')
        a(f's_mul_i32 s19, {S_ORT}, {28*1024}')
        a(f's_sub_u32 s49, {S_XT}, s19')
        a('s_lshr_b32 s49, s49, 5')
        a('s_add_u32 s19, s19, s49')
        for u in range(2):
            b = XF + 4 * u
            a(f'v_permlane32_swap_b32 v{b}, v{b+2}')
            a(f'v_permlane32_swap_b32 v{b+1}, v{b+3}')
            a(f'buffer_store_dwordx4 v[{b}:{b+3}], v{T+6}, {SRD_OUT}, s19 offen offset:{32*u}')
    return final

def phase_attn(wob_reads):
    Q = 16
    O = 48
    R = AK
    S = 176
    P = 208
    T = 216
    ORD = [1, 2, 3, 0]
    def kreg(j, t): return f'v[{R+16*j+4*t}:{R+16*j+4*t+3}]'
    def vreg(j, u): return f'v[{R+16*j+8+4*u}:{R+16*j+8+4*u+3}]'
    def qreg(i, t): return f'v[{Q+8*i+4*t}:{Q+8*i+4*t+3}]'
    def sreg(n): return f'v[{S+16*(n&1)}:{S+16*(n&1)+15}]'
    def oreg(i): return f'v[{O+16*i}:{O+16*i+15}]'
    def loadk(j, sr):
        a(f'buffer_load_dwordx4 {kreg(j,0)}, v{V_L16}, {SRD_WS}, {sr} offen {SC}')
        a(f'buffer_load_dwordx4 {kreg(j,1)}, v{V_L16}, {SRD_WS}, {sr} offen offset:1024 {SC}')
    def loadv(j, sr):
        a(f'buffer_load_dwordx4 {vreg(j,0)}, v{V_L16}, {SRD_WS}, {sr} offen offset:2048 {SC}')
        a(f'buffer_load_dwordx4 {vreg(j,1)}, v{V_L16}, {SRD_WS}, {sr} offen offset:3072 {SC}')
    def loadkv(j):
        for k in range(4):
            r = R + 16 * j + 4 * k
            a(f'global_load_dwordx4 v[{r}:{r+3}], v{V_L16}, s[14:15] offset:{k*1024} {SC}')
    NEXT = ['s_add_u32 s13, s13, 1', 's_cmp_eq_u32 s13, s16', 's_cselect_b32 s18, s19, s24',
            's_add_u32 s14, s14, s18', 's_addc_u32 s15, s15, 0']
    def ji(n): return (n >> 2) % 3, ORD[n & 3]
    def M1(n, own=False):
        j, i = (0, 0) if own else ji(n)
        a(f'v_mfma_f32_32x32x16_bf16 {sreg(n)}, {kreg(j,0)}, {qreg(i,0)}, 0')
    def M2(n, own=False):
        j, i = (0, 0) if own else ji(n)
        a(f'v_mfma_f32_32x32x16_bf16 {sreg(n)}, {kreg(j,1)}, {qreg(i,1)}, {sreg(n)}')
    def PV(n, u, own=False, init=False):
        j, i = (0, 0) if own else ji(n)
        a(f'v_mfma_f32_32x32x16_bf16 {oreg(i)}, {vreg(j,u)}, v[{P+4*u}:{P+4*u+3}], {"0" if init else oreg(i)}')
    def e(n, k):
        r = S + 16 * (n & 1) + k
        a(f'v_exp_f32 v{r}, v{r}')
    def c(n, k):
        r = S + 16 * (n & 1) + 2 * k
        a(f'v_cvt_pk_bf16_f32 v{P+k}, v{r}, v{r+1}')
    def step(n, slots, last=99, init=False):
        e(n, 4); e(n, 5); c(n, 0); c(n, 1); e(n, 6); e(n, 7)
        if n + 1 <= last: M2(n + 1)
        for x in slots[0]: x()
        c(n, 2); c(n, 3); e(n, 8); e(n, 9); e(n, 10); e(n, 11)
        PV(n, 0, init=init)
        for x in slots[1]: x()
        e(n, 12); e(n, 13); c(n, 4); c(n, 5); e(n, 14); e(n, 15); c(n, 6); c(n, 7)
        if n + 2 <= last: M1(n + 2)
        for x in slots[2]: x()
        if n + 1 <= last:
            e(n + 1, 0); e(n + 1, 1); e(n + 1, 2); e(n + 1, 3)
        PV(n, 1)
        for x in slots[3]: x()
    I = lambda t: (lambda: a(t))
    M1(0); M2(0); M1(1)
    a(f's_lshl_b32 s12, {S_HA}, 18')
    a(f's_add_u32 s12, s12, {WS_KV}')
    a(f's_add_u32 s12, s12, {S_KVB}')
    a(f's_mul_i32 s13, {S_WAVE}, 15')
    a(f's_lshl_b32 s16, {S_QB}, 2')
    a('s_cmp_ge_u32 s13, s16')
    a('s_cselect_b32 s18, 4, 0')
    a('s_add_u32 s18, s18, s13')
    a('s_lshl_b32 s18, s18, 12')
    a('s_add_u32 s18, s18, s12')
    a('s_add_u32 s14, s8, s18')
    a('s_addc_u32 s15, s9, 0')
    ids_qkv_rows(S_HA)
    for k in range(4): e(0, k)
    pre = []
    sv_lines = a.lines
    pre_txt = [f's_mov_b32 s19, {5*4096}', 's_mov_b32 s24, 4096', 's_mov_b32 s17, 4',
               f's_mov_b32 s20, {f32(2.0**-64)}', f's_mov_b32 s21, {f32(2.0**64)}',
               f's_add_u32 s51, {S_OT}, {WS_O}', f's_add_u32 s51, s51, {S_BLK}']
    def first_look():
        a(f'buffer_load_dword v{V_PL}, v{V_T0}, {SRD_WS}, 0 offen sc1')
    def check_and_load():
        Lk = uid('look')
        a(f'v_cmp_le_u32 vcc, {S_PROG}, v{V_PL}')
        a('s_and_b32 s48, vcc_lo, 0xffff')
        a('s_cmp_eq_u32 s48, 0xffff')
        a(f's_cbranch_scc1 {Lk}')
        sv = (list(a.st.hist), list(a.st.vm), list(a.st.lg))
        poll(SRD_WS, 0xffff, S_PROG)
        a.st.hist, a.st.vm, a.st.lg = sv
        a.raw(Lk + ':')
        stamp('at_go', True)
        loadkv(1)
        for x in NEXT: a(x)
        loadkv(2)
    for n in range(4):
        sl = [[I(pre_txt.pop(0))] if pre_txt else [] for _ in range(4)]
        if n == LOOK: sl[1].append(first_look)
        if n == LOOK + 1: sl[3].append(check_and_load)
        step(n, sl, 3, init=True)
    for x in NEXT: a(x)
    img_base(0, 's60', 's61')
    a(f's_cmp_lg_u32 {S_IT}, 0')
    a(f's_cselect_b32 s60, {OOB}, s60')
    if FINE: stamp('at_own', True)
    for t in range(1, 4):
        a(f's_xor_b32 s22, {S_WAVE}, {t}')
        a('s_mul_i32 s22, s22, 12288')
        a(f's_add_u32 s22, s22, {L_RED + (t-1)*4096}')
        a(f'v_add_u32 v{T+3+t}, s22, v{V_L16}')
    a(f's_mul_i32 s22, {S_WAVE}, 12288')
    a(f's_add_u32 s22, s22, {L_RED}')
    a(f'v_add_u32 v{T+3}, s22, v{V_L16}')
    if TIMG: touch_img_setup(1)
    wob_reads()
    M1(4); M2(4); M1(5)
    for k in range(4): e(4, k)
    a('s_waitcnt vmcnt(4)')
    if FINE: stamp('at_pro', True)
    def dman(n):
        for p in range(n):
            a(f'buffer_load_dwordx4 v{V_L16}, {SRD_WS}, s60 offen offset:{p*1024} {SC} lds')
    def tile_slots(u, load, wait, extra=None):
        sl = [[[], [], [], []] for _ in range(4)]
        if load:
            sl[0][1] = [lambda: loadkv((u + 2) % 3)]
            sl[0][2] = [I(NEXT[0])]; sl[0][3] = [I(NEXT[1])]; sl[1][0] = [I(NEXT[2])]; sl[1][1] = [I(NEXT[3])]; sl[1][2] = [I(NEXT[4])]
        if wait is not None:
            sl[2][1] = [I(f's_waitcnt vmcnt({wait})')]
        for (i, k), f in (extra or {}).items():
            sl[i][k] = sl[i][k] + f
        return sl
    DM = lambda n: {(2, 2): [I('s_mov_b32 m0, s61')], (2, 3): [lambda: dman(n)], (3, 0): [I('s_add_u32 s60, s60, 4096')], (3, 1): [I('s_add_u32 s61, s61, 4096')]}
    def body():
        for u in (1, 2, 3):
            ex = DM(4) if u == 1 else ({(3, 1): [I('s_sub_u32 s17, s17, 1')], (3, 2): [I('s_cmp_lg_u32 s17, 0')]} if u == 3 else None)
            sl = tile_slots(u, True, 8 if u == 2 else 4, ex)
            for i in range(4):
                step(4 * u + i, sl[i])
    def tail():
        a('s_cbranch_scc1 attn_loop')
    a.raw('.p2align 3')
    a.loop('attn_loop', body, tail)
    ex = DM(4)
    if TIMG:
        ex[(1, 3)] = [lambda: touch_img(0)]
        ex[(2, 0)] = [lambda: touch_img(1)]
    sl = tile_slots(13, True, 4 + (2 if TIMG else 0), ex)
    for i in range(4): step(52 + i, sl[i])
    ex = {(0, 0): [I('s_mov_b32 m0, s61')], (0, 1): [lambda: dman(1)]}
    if PRE: ex[(0, 3)] = [pretouch]
    ex[(1, 1)] = [lambda: op_resid_load('xa')]
    sl = tile_slots(14, False, 7 + (3 if PRE else 0) + (2 if TIMG else 0), ex)
    for i in range(4): step(56 + i, sl[i])
    def W(t, rg):
        r = O + 16 * t + 4 * rg
        return I(f'ds_write_b128 v{T+3+t}, v[{r}:{r+3}] offset:{rg*1024}')
    def gather():
        a('s_waitcnt lgkmcnt(0)')
        a('s_barrier')
        for t in range(1, 4):
            for rg in range(4):
                r = O + 16 * t + 4 * rg
                a(f'ds_read_b128 v[{r}:{r+3}], v{T+3} offset:{(t-1)*4096 + rg*1024}')
    step(60, [[], [], [], []], 63)
    step(61, [[], [W(1, 0)], [W(1, 1)], [W(1, 2)]], 63)
    step(62, [[W(1, 3)], [W(2, 0), W(2, 1)], [W(2, 2)], [W(2, 3)]], 63)
    step(63, [[], [W(3, 0), W(3, 1), W(3, 2), W(3, 3)], [], [gather]], 63)
    stamp('at_mm', True)
    for t in range(1, 4):
        for r in range(8):
            a(f'v_pk_add_f32 v[{O+2*r}:{O+2*r+1}], v[{O+2*r}:{O+2*r+1}], v[{O+16*t+2*r}:{O+16*t+2*r+1}]')
    a(f'v_mov_b32 v{T}, v{O+12}')
    a(f'v_mov_b32 v{T+1}, v{O+12}')
    a(f'v_permlane32_swap_b32 v{T+1}, v{T}')
    a(f'v_cmp_le_f32 vcc, s20, v{T}')
    a(f'v_cmp_ge_f32 s[22:23], s21, v{T}')
    a('s_and_b64 vcc, vcc, s[22:23]')
    a('s_cmp_eq_u64 vcc, exec')
    a('s_cbranch_scc0 attn_slow')
    a.raw('attn_fin:')
    a(f'v_rcp_f32 v{T}, v{T}')
    for r in range(8):
        a(f'v_pk_mul_f32 v[{O+2*r}:{O+2*r+1}], v[{O+2*r}:{O+2*r+1}], v[{T}:{T+1}] op_sel_hi:[1,0]')
        a(f'v_cvt_pk_bf16_f32 v{P+r}, v{O+2*r}, v{O+2*r+1}')
    lstore([f'buffer_store_dwordx4 v[{P}:{P+3}], v{V_L16}, {SRD_WS}, s51 offen',
            f'buffer_store_dwordx4 v[{P+4}:{P+7}], v{V_L16}, {SRD_WS}, s51 offen offset:1024'])
    stamp('at_epi', True)
    signal(local=True, pre=lambda: (op_unpack(), op_addr())); advance()
    stamp('at_sig', True)

    def slow():
        a.raw('attn_slow:'); a.fresh()
        a('s_waitcnt vmcnt(0) lgkmcnt(0)')
        a('s_nop 15')
        a('s_mov_b32 exec_lo, 0')
        a(f'v_mov_b32 v{Q+6}, 0')
        a(f'v_mov_b32 v{Q+7}, 0')
        a('s_mov_b32 exec_lo, -1')
        a(f'v_mov_b32 v{T+2}, {f32(-3.0e38)}')
        a('s_mov_b32 s13, s12')
        a('s_mov_b32 s17, 64')
        a('s_nop 4')
        def body1():
            loadk(0, 's13')
            M1(0, True); M2(0, True)
            for r in range(0, 16, 2):
                a(f'v_max3_f32 v{T+2}, v{S+r}, v{S+r+1}, v{T+2}')
            a('s_add_u32 s13, s13, 4096')
            a('s_nop 4')
        def tail1():
            a('s_sub_u32 s17, s17, 1')
            a('s_cmp_lg_u32 s17, 0')
            a('s_cbranch_scc1 attn_slow1')
        a.loop('attn_slow1', body1, tail1)
        a(f'v_mov_b32 v{T+3}, v{T+2}')
        a(f'v_permlane32_swap_b32 v{T+2}, v{T+3}')
        a(f'v_max_f32 v{T+2}, v{T+2}, v{T+3}')
        for r in range(16):
            a(f'v_mov_b32 v{O+r}, 0')
        a('s_mov_b32 s13, s12')
        a('s_mov_b32 s17, 64')
        a('s_nop 15')
        def body2():
            loadk(0, 's13'); loadv(0, 's13')
            M1(0, True); M2(0, True)
            for r in range(16):
                a(f'v_sub_f32 v{S+r}, v{S+r}, v{T+2}')
            for r in range(16):
                e(0, r)
            for r in range(8):
                c(0, r)
            PV(0, 0, True); PV(0, 1, True)
            a('s_add_u32 s13, s13, 4096')
            a('s_nop 15')
        def tail2():
            a('s_sub_u32 s17, s17, 1')
            a('s_cmp_lg_u32 s17, 0')
            a('s_cbranch_scc1 attn_slow2')
        a.loop('attn_slow2', body2, tail2)
        a(f'v_mov_b32 v{T}, v{O+12}')
        a(f'v_mov_b32 v{T+1}, v{O+12}')
        a(f'v_permlane32_swap_b32 v{T+1}, v{T}')
        a('s_nop 4')
        a('s_branch attn_fin')
    return slow

def wob_reads():
    Lw = uid('wob')
    a(f's_cmp_lg_u32 {S_IT}, 0')
    a(f's_cbranch_scc1 {Lw}')
    sv = (list(a.st.hist), list(a.st.lg))
    stage_wo_addr(L_S, 252)
    for n, x in enumerate(stage_wo_reads(1, 252)):
        a(x)
        if n % 12 == 11: a('s_waitcnt lgkmcnt(4)')
    stage_wo_pads(1)
    a('s_waitcnt lgkmcnt(0)')
    a('s_barrier')
    a.st.hist, a.st.lg = sv
    a.raw(Lw + ':')

def build(path):
    prologue()
    phase_qkv(True, True)
    a.raw('layer_loop:'); a.fresh()
    phase_op(True, lambda: phase_qkv(False, False, 'pre'))
    phase_qkv(False, False, 'main')
    slow = phase_attn(wob_reads)
    final = phase_op(False, lambda: phase_qkv(True, False, 'pre'))
    a(f's_cmp_lg_u32 {S_IT}, 0')
    a('s_cbranch_scc1 k_fin')
    phase_qkv(True, False, 'main')
    a(f's_mov_b32 {S_IT}, 1')
    a(f's_mov_b32 {S_BLK}, {BLK}')
    a(f's_mov_b32 {S_KVB}, {KVB}')
    a('s_branch layer_loop')
    final()
    a.raw('k_fin:')
    if INSTR:
        a('s_waitcnt vmcnt(0)')
        a(f'{CLK} s[96:97]')
        a('s_waitcnt lgkmcnt(0)')
        a(f'v_writelane_b32 v{V_ST}, s96, 63')
        a('s_lshl_b32 s48, s2, 2')
        a(f's_add_u32 s48, s48, {S_WAVE}')
        a('s_lshl_b32 s48, s48, 8')
        a(f's_add_u32 s48, s48, {WS_DBG}')
        a(f'v_lshrrev_b32 v{V_T0}, 2, v{V_L16}')
        a(f'buffer_store_dword v{V_ST}, v{V_T0}, {SRD_WS}, s48 offen')
    if DUR:
        a('s_waitcnt vmcnt(0)')
        a('s_memrealtime s[94:95]')
        a('s_not_b32 s92, s92')
        a('s_waitcnt lgkmcnt(0)')
        a(f'v_mov_b32 v{V_T0}, s92')
        a(f'v_mov_b32 v{V_T1}, s94')
        a(f'v_mov_b32 v{V_PL}, 0')
        a('s_mov_b64 exec, 1')
        a(f'buffer_atomic_umax v{V_T0}, v{V_PL}, {SRD_DBG}, 0 offen offset:56 sc1')
        a(f'buffer_atomic_umax v{V_T1}, v{V_PL}, {SRD_DBG}, 0 offen offset:60 sc1')
    if PADT:
        a('s_waitcnt vmcnt(0)')
        a.raw('pad_loop:')
        a('s_memrealtime s[98:99]')
        a('s_waitcnt lgkmcnt(0)')
        a('s_sub_u32 s98, s98, s96')
        a(f's_cmp_lt_u32 s98, {PADT}')
        a('s_cbranch_scc1 pad_loop')
    a.raw('k_end:')
    a('s_endpgm')
    slow()
    a.raw('code_end:')
    doc = """; Interleaved linear-attention (A) / softmax-MHA (B) layers, S=2048 D=448 H=16 Dh=28 -- one persistent kernel, gfx950.
;
; its queries with the exact two-pass true-row-maximum softmax (attn_slow)."""
    out = [doc,
           f'; @launch grid=(256,1,1) block=(256,1,1) lds={LDS_TOTAL}',
           '.amdgcn_target "amdgcn-amd-amdhsa--gfx950"', '.text', a.text(), '.section .rodata,"a"',
           kernel_desc(KNAME, 512, 102, 256)]
    open(path, 'w').write('\n'.join(out) + '\n')
    if INSTR:
        names = {}
        for i, (n, lp) in enumerate(STAMPS):
            names[i] = n + ('0' if lp else '')
            if lp:
                names[i + 27] = n + '1'
        names[63] = 'end'
        assert len(STAMPS) <= 40
        open(path + '.stamps', 'w').write('\n'.join(f'{i} {n}' for i, n in sorted(names.items())))

if __name__ == '__main__':
    path = sys.argv[1] if len(sys.argv) > 1 else f'cdna_kernels/{NAME}.s'
    INSTR = 'instr' in sys.argv[2:]
    if 'cyc' in sys.argv[2:]: CLK = 's_memtime'
    FINE = 'fine' in sys.argv[2:]
    TIMG = 'timg' in sys.argv[2:]
    FINE3 = 'fine3' in sys.argv[2:]
    TLBW = 'tlb' in sys.argv[2:]
    for x in sys.argv[2:]:
        if x.startswith('look='): LOOK = int(x[5:])
        if x.startswith('padt='): PADT = int(x[5:])
        if x.startswith('npb='): NPB = int(x[4:])
        if x.startswith('nkv0='): NKV0 = int(x[5:])
        if x.startswith('xs='): XS = int(x[3:])
        if x.startswith('opd='): OPD = int(x[4:])
        if x.startswith('ope='): OPE = int(x[4:])
        if x.startswith('prew='): PREW = int(x[5:])
        if x.startswith('qbsig='): QBSIG = int(x[6:])
    DUR = 'dur' in sys.argv[2:]
    WARM = 'warm' in sys.argv[2:]
    PRE = 'nopre' not in sys.argv[2:]
    FORCE_GLOBAL = 'noloc' in sys.argv[2:]
    if 'ldplain' in sys.argv[2:]: LD = ''
    if 'ldnt' in sys.argv[2:]: LD = 'nt'
    if 'ldsc0' in sys.argv[2:]: LD = 'sc0'
    DEBUGQ = 'debugq' in sys.argv[2:]
    FINE2 = 'fine2' in sys.argv[2:]
    TOUCH = 'notouch' not in sys.argv[2:]
    build(path)
    print('wrote', path, 'maxv', a.maxv, 'maxa', a.maxa, 'maxs', a.maxs)
```

```python
import re, copy

_REG = re.compile(r'^(-?\|?)(abs\()?([vsa])(\d+)\)?\|?$')
_RNG = re.compile(r'^(-?)([vsa])\[(\d+):(\d+)\]$')

def regs_of(op):
    op = op.strip()
    m = _RNG.match(op)
    if m:
        return {(m.group(2), i) for i in range(int(m.group(3)), int(m.group(4)) + 1)}
    m = _REG.match(op)
    if m:
        return {(m.group(3), int(m.group(4)))}
    if op in ('vcc', 'vcc_lo', 'vcc_hi'):
        return {('vcc', 0)}
    if op in ('exec', 'exec_lo', 'exec_hi'):
        return {('exec', 0)}
    if op == 'm0':
        return {('m0', 0)}
    return set()

TRANS = ('v_exp_f32', 'v_log_f32', 'v_rcp_f32', 'v_rsq_f32', 'v_sqrt_f32', 'v_sin_f32', 'v_cos_f32', 'v_rcp_iflag_f32',
         'v_exp_f16', 'v_rcp_f16')
NO_DST_S = ('s_cmp', 's_cbranch', 's_waitcnt', 's_barrier', 's_nop', 's_setprio', 's_endpgm', 's_branch', 's_sleep',
            's_bitcmp', 's_setreg', 's_sendmsg', 's_setpc')

class Inst:
    __slots__ = ('text', 'mn', 'kind', 'defs', 'uses', 'srcc', 'srca', 'passes', 'wide_store', 'lds_dma', 'dpp', 'ops')

def split_ops(s):
    out, depth, cur = [], 0, ''
    for ch in s:
        if ch in '[(':
            depth += 1
        if ch in '])':
            depth -= 1
        if ch == ',' and depth == 0:
            out.append(cur.strip()); cur = ''
        else:
            cur += ch
    if cur.strip():
        out.append(cur.strip())
    return out

def parse(text):
    t = text.split(';')[0].strip()
    parts = t.split(None, 1)
    mn = parts[0]
    rest = parts[1] if len(parts) > 1 else ''
    ops = split_ops(rest)
    mods = []
    if ops:
        last = ops[-1].split()
        ops[-1] = last[0]
        mods = last[1:]
    I = Inst()
    I.text = text; I.mn = mn; I.defs = set(); I.uses = set(); I.srcc = set(); I.srca = set(); I.passes = 0
    I.wide_store = False; I.lds_dma = False; I.dpp = ('_dpp' in mn) or any(m.startswith(('row_', 'quad_perm', 'wave_')) for m in mods)
    I.ops = ops
    R = [regs_of(o) for o in ops]
    base = mn.replace('_e32', '').replace('_e64', '')
    if mn.startswith('v_smfmac'):
        I.kind = 'mfma'
        I.defs = R[0]; I.srca = R[1] | R[2] | R[3]; I.srcc = R[0]; I.uses = R[0] | R[1] | R[2] | R[3]
        I.passes = 8 if '32x32x32' in mn else 4
    elif mn.startswith('v_mfma'):
        I.kind = 'mfma'
        I.defs = R[0]; I.srca = R[1] | R[2]; I.srcc = R[3]; I.uses = R[1] | R[2] | R[3]
        I.passes = 8 if '32x32x16' in mn else (4 if '16x16x32' in mn else 16)
    elif mn.startswith('v_'):
        I.kind = 'trans' if base in TRANS else ('dot' if mn.startswith('v_dot') else 'valu')
        if mn.startswith('v_permlane') and 'swap' in mn:
            I.defs = R[0] | R[1]; I.uses = R[0] | R[1]
        elif mn.startswith('v_cmp'):
            I.defs = set(R[0]); I.uses = set().union(*R[1:])
            if mn.startswith('v_cmpx'):
                I.defs |= {('exec', 0)}
        elif base in ('v_add_co_u32', 'v_sub_co_u32', 'v_addc_co_u32', 'v_subb_co_u32', 'v_mad_u64_u32'):
            I.defs = R[0] | R[1]; I.uses = set().union(*R[2:])
        elif base == 'v_nop':
            pass
        else:
            I.defs = set(R[0]); I.uses = set().union(*R[1:]) if len(R) > 1 else set()
            if base.startswith(('v_fmac', 'v_dot2c', 'v_pk_fmac', 'v_writelane')) or 'UNUSED_PRESERVE' in text or I.dpp:
                I.uses |= R[0]
            if base == 'v_cndmask_b32' and len(ops) == 3:
                I.uses |= {('vcc', 0)}
    elif mn.startswith(('s_load', 's_buffer_load', 's_memtime', 's_memrealtime', 's_atomic')):
        I.kind = 'smem'
        I.defs = set(R[0]); I.uses = set().union(*R[1:]) if len(R) > 1 else set()
    elif mn.startswith('s_'):
        I.kind = 'salu'
        if mn.startswith(NO_DST_S):
            I.uses = set().union(*R) if R else set()
        else:
            I.defs = set(R[0]); I.uses = set().union(*R[1:]) if len(R) > 1 else set()
            if 'saveexec' in mn:
                I.defs |= {('exec', 0)}
            if mn in ('s_addk_i32', 's_mulk_i32'):
                I.uses |= R[0]
    elif mn.startswith(('buffer_', 'global_')):
        I.kind = 'vmem'
        if mn in ('buffer_inv', 'buffer_wbl2'):
            pass
        elif 'lds' in mods or '_lds_' in mn:
            I.lds_dma = True
            I.uses = set().union(*R) | {('m0', 0)}
        elif '_load_' in mn:
            I.defs = set(R[0]); I.uses = set().union(*R[1:])
            if 'd16' in mn:
                I.uses |= R[0]
        elif '_atomic_' in mn and 'sc0' in mods:
            if mn.startswith('buffer_'):
                I.defs = set(R[0]); I.uses = set().union(*R)
            else:
                I.defs = set(R[0]); I.uses = set().union(*R[1:])
        else:
            I.uses = set().union(*R)
            if 'dwordx3' in mn or 'dwordx4' in mn:
                I.wide_store = True
                I.srca = R[0] if mn.startswith('buffer_') else R[1]
    elif mn.startswith('ds_'):
        I.kind = 'ds'
        if mn.startswith(('ds_read', 'ds_bpermute', 'ds_permute', 'ds_swizzle')) or '_rtn' in mn:
            I.defs = set(R[0]); I.uses = set().union(*R[1:])
        else:
            I.uses = set().union(*R)
    else:
        raise ValueError('unknown instruction: ' + text)
    return I

def isv(rs):
    return {r for r in rs if r[0] in 'va'}
def iss(rs):
    return {r for r in rs if r[0] == 's' or r[0] == 'vcc'}

class State:
    def __init__(self):
        self.hist = []
        self.vm = []
        self.lg = []
    def key(self):
        return ([(i.text, d) for i, d in self.hist if d < 24], [sorted(x) for x in self.vm], [(k, sorted(x)) for k, x in self.lg])

class Asm:
    def __init__(self):
        self.lines = []
        self.st = State()
        self.auto = True
        self.tags = {}
        self.dummy = ('v', 255)
        self.maxv = -1; self.maxs = -1; self.maxa = -1

    def raw(self, s):
        self.lines.append(s)
    def comment(self, s):
        self.lines.append('  ; ' + s)
    def label(self, name, reset=True):
        self.lines.append(name + ':')
    def fresh(self):
        self.st = State()

    def _advance(self, n):
        self.st.hist = [(i, d + n) for i, d in self.st.hist if d + n < 24]

    def _need(self, P, d, C):
        need = 0
        pv = isv(P.defs)
        if P.kind in ('valu', 'trans', 'dot'):
            if C.kind == 'mfma' and pv & C.uses:
                need = max(need, 2)
            if C.mn.startswith(('v_readfirstlane', 'v_readlane')) and pv & C.uses:
                need = max(need, 1)
            if C.mn.startswith('v_permlane') and pv & C.uses:
                need = max(need, 2)
            if C.dpp and pv & C.uses:
                need = max(need, 2)
            ps = iss(P.defs)
            if ps:
                if C.kind in ('valu', 'trans', 'dot', 'mfma') and ps & C.uses:
                    need = max(need, 4 if C.mn.startswith(('v_readlane', 'v_writelane')) else 2)
                if C.kind == 'vmem' and ps & C.uses:
                    need = max(need, 5)
                if C.kind in ('salu', 'smem') and ps & C.uses:
                    need = max(need, 1)
            if ('exec', 0) in P.defs:
                if C.kind in ('mfma',) or C.mn.startswith(('v_permlane', 'v_readlane', 'v_readfirstlane', 'v_writelane')):
                    need = max(need, 4)
                if C.dpp:
                    need = max(need, 5)
            if P.kind == 'trans' and C.kind in ('valu', 'dot') and pv & C.uses:
                need = max(need, 1)
            if P.kind == 'dot' and C.kind in ('valu', 'trans', 'dot', 'mfma', 'vmem', 'ds') and pv & (C.uses | C.defs):
                same = (C.kind == 'dot' and C.mn == P.mn)
                if same:
                    ab = set().union(*[regs_of(o) for o in C.ops[1:3]])
                    if pv & ab:
                        need = max(need, 3)
                else:
                    need = max(need, 3)
            if 'sdwa' in P.mn and C.kind in ('valu', 'trans', 'dot') and pv & (C.uses | C.defs):
                need = max(need, 1)
        if P.kind == 'mfma':
            n = P.passes
            if C.kind == 'mfma':
                if pv & C.srca:
                    need = max(need, {4: 8, 8: 12, 16: 20}[n])
                if pv & C.srcc:
                    if not (C.srcc == P.defs and C.passes == P.passes):
                        need = max(need, {4: 6, 8: 10, 16: 18}[n])
                if pv & C.defs and not (pv & C.srcc):
                    need = max(need, {4: 6, 8: 10, 16: 18}[n])
            elif C.kind in ('valu', 'trans', 'dot', 'vmem', 'ds'):
                if pv & (C.uses | C.defs):
                    need = max(need, {4: 8, 8: 12, 16: 20}[n])
            if C.kind in ('valu', 'trans', 'dot') and isv(P.srcc) & C.defs:
                need = max(need, {4: 3, 8: 7, 16: 15}[n])
        if P.kind == 'salu' and ('m0', 0) in P.defs and C.lds_dma:
            need = max(need, 1)
        if P.kind == 'vmem' and P.wide_store and P.srca & C.defs:
            need = max(need, 2 if C.kind in ('valu', 'trans', 'dot', 'mfma') else 1)
        if P.kind == 'ds' and P.mn.startswith('ds_write') and False:
            pass
        return max(0, need - d)

    def _wait(self, C):
        st = self.st
        touch = C.uses | C.defs
        vmn = None
        for i, dst in enumerate(st.vm):
            if dst & touch:
                vmn = len(st.vm) - 1 - i
        lgn = None
        for i, (k, dst) in enumerate(st.lg):
            if dst & touch:
                n = len(st.lg) - 1 - i
                if any(kk == 'smem' for kk, _ in st.lg):
                    n = 0
                lgn = n
        if vmn is not None or lgn is not None:
            s = 's_waitcnt'
            if vmn is not None:
                s += f' vmcnt({min(vmn, 63)})'
            if lgn is not None:
                s += f' lgkmcnt({min(lgn, 15)})'
            self._emit_plain(s)

    def _apply_wait(self, text):
        m = re.search(r'vmcnt\((\d+)\)', text)
        if m:
            n = int(m.group(1))
            if len(self.st.vm) > n:
                self.st.vm = self.st.vm[len(self.st.vm) - n:] if n else []
        m = re.search(r'lgkmcnt\((\d+)\)', text)
        if m:
            n = int(m.group(1))
            if n == 0:
                self.st.lg = []
            elif not any(k == 'smem' for k, _ in self.st.lg):
                if len(self.st.lg) > n:
                    self.st.lg = self.st.lg[len(self.st.lg) - n:]

    def _emit_plain(self, text):
        I = parse(text)
        self.lines.append('  ' + text)
        if I.mn == 's_waitcnt':
            self._apply_wait(text)
        n = 1
        if I.mn == 's_nop':
            n = int(I.ops[0], 0) + 1
        self._advance(n)
        return I

    def __call__(self, text):
        for t in text.strip().split('\n'):
            t = t.strip()
            if t and not t.startswith(';'):
                self.inst(t)

    def wait_tag(self, tag, kind='vm'):
        q = self.st.vm if kind == 'vm' else [d for _, d in self.st.lg]
        n = None
        for i, dst in enumerate(q):
            if ('tag', tag) in dst:
                n = len(q) - 1 - i
        if n is not None:
            if kind == 'vm':
                self._emit_plain(f's_waitcnt vmcnt({n})')
            else:
                if any(k == 'smem' for k, _ in self.st.lg): n = 0
                self._emit_plain(f's_waitcnt lgkmcnt({min(n,15)})')

    def inst(self, text, tag=None):
        C = parse(text)
        if tag: self.tags[text] = tag
        if C.kind == 'vmem' and self.dummy in C.defs:
            C.defs = set()
        for r in C.defs | C.uses:
            if r[0] == 'v': self.maxv = max(self.maxv, r[1])
            if r[0] == 's': self.maxs = max(self.maxs, r[1])
            if r[0] == 'a': self.maxa = max(self.maxa, r[1])
        if C.mn in ('s_waitcnt', 's_nop'):
            self._emit_plain(text)
            return
        if self.auto:
            self._wait(C)
            need = 0
            for P, d in self.st.hist:
                need = max(need, self._need(P, d, C))
            while need > 0:
                k = min(need, 16)
                self._emit_plain(f's_nop {k-1}')
                need -= k
        self.lines.append('  ' + text)
        self._advance(1)
        self.st.hist.append((C, 0))
        if C.kind == 'vmem' and C.mn not in ('buffer_inv', 'buffer_wbl2'):
            self.st.vm.append(set(C.defs) | ({('tag', tag)} if tag else set()))
            assert len(self.st.vm) <= 63, 'vmcnt overflow'
        elif C.kind == 'vmem':
            self.st.vm.append(set())
        elif C.kind == 'ds':
            self.st.lg.append(('ds', set(C.defs) | ({('tag', tag)} if tag else set())))
        elif C.kind == 'smem':
            self.st.lg.append(('smem', set(C.defs)))

    def loop(self, label, body, tail):
        self.lines.append(label + ':')
        start = len(self.lines)
        body(); tail()
        text1 = self.lines[start:]
        saved = self.lines
        for rep in range(2):
            self.lines = []
            for ln in text1:
                t = ln.strip()
                if not t or t.startswith((';', '.')) or t.endswith(':'):
                    self.lines.append(ln); continue
                self.inst(t, tag=self.tags.get(t))
            text2 = self.lines
            if text1 != text2:
                import difflib
                d = '\n'.join(difflib.unified_diff(text1, text2, lineterm='', n=2))
                self.lines = saved
                raise RuntimeError(f'loop {label}: waits of the first iteration do not cover the steady state\n' + d)
        self.lines = saved

    def text(self):
        return '\n'.join(self.lines) + '\n'


def kernel_header(name):
    return f'.globl {name}\n.p2align 8\n.type {name},@function\n{name}:'

def kernel_desc(name, vgpr, sgpr, accum=None):
    if accum is None:
        accum = (vgpr + 3) // 4 * 4
    return f'''.p2align 6
.amdhsa_kernel {name}
  .amdhsa_next_free_vgpr {vgpr}
  .amdhsa_next_free_sgpr {sgpr}
  .amdhsa_accum_offset {accum}
  .amdhsa_group_segment_fixed_size 0
  .amdhsa_kernarg_size 72
  .amdhsa_user_sgpr_count 2
  .amdhsa_user_sgpr_kernarg_segment_ptr 1
  .amdhsa_system_sgpr_workgroup_id_x 1
.end_amdhsa_kernel'''
```

```python
import sys, struct
sys.path.insert(0, 'dev')
from asmlib import *

NAME = 'interleave_layers__linear_attn_block__softmax_full_mha__prompt'
KNAME = NAME + '_kernel'

def f32(x):
    return '0x%08x' % struct.unpack('<I', struct.pack('<f', x))[0]

X_SIZE = 64 * 28 * 1024
ST_SIZE = 14 * 2048 * 8
_off = 0
def alloc(n, al=65536):
    global _off
    _off = (_off + al - 1) // al * al
    r = _off
    _off += n
    return r
REUSE = 'noreuse' not in sys.argv
if REUSE:
    WS_XA = WS_XB = alloc(X_SIZE)
    WS_STA = WS_STB = alloc(ST_SIZE, 4096)
    WS_O = WS_OA = alloc(64 * 16 * 2048)
    WS_KV = alloc(2 * 16 * 64 * 4096)
    WS_Q = 0
    BLK = 0
    KVB = 16 * 64 * 4096
else:
    WS_XA = alloc(X_SIZE); WS_XB = alloc(X_SIZE)
    WS_STA = alloc(ST_SIZE); WS_STB = alloc(ST_SIZE)
    WS_OA = alloc(64 * 16 * 2048)
    WS_Q = alloc(16 * 64 * 2048)
    WS_KV = alloc(16 * 64 * 4096)
    WS_O = alloc(64 * 16 * 2048)
    BLK = alloc(0)
    KVB = BLK
    _off = 2 * BLK
IMG_HEAD = 84 * 1024
WS_IMG = [alloc(16 * IMG_HEAD), alloc(16 * IMG_HEAD)]
WS_ZERO = alloc(0)
WS_KVACC = alloc(2 * 16 * 4096)
WS_FLAG = alloc(256 * 128, 4096)
WS_LFLAG = alloc(256 * 128, 4096)
WS_CS = alloc(16384, 4096)
ZERO_SIZE = _off - WS_ZERO
NZERO = ZERO_SIZE // 16384
assert ZERO_SIZE == NZERO * 16384 and NZERO == 13
WS_TOTAL = 1 << 28
WS_DBG = 64 << 20
OOB = 0x40000000

LOG2E = 1.4426950408889634
QSCALE = 28 ** -0.5 * LOG2E
ONES2 = 0x3f803f80
SC = 'sc1'
LD = 'sc1'

L_W = 0
L_S = 84 * 1024
L_KV = L_S + 57344
L_M = L_KV + 16384
L_RS = L_M
L_CS = L_M + 512
LDS_TOTAL = 163840
L_RED = L_S + 4096

INSTR = False
CLK = 's_memrealtime'
FINE = False
PADT = 0
TIMG = False
NPB = 5
NKV0 = 4
XS = 0
OPD = 3
OPE = 3
FINE3 = False
TLBW = False
PREW = 0
LOOK = 0
QBSIG = 24
DUR = False
WARM = False
PRE = True
RBX = 1
FORCE_GLOBAL = False
DEBUGQ = False
FINE2 = False
TOUCH = True
POLL_LIMIT = 400000

V_L16, V_N, V_HF, V_T0, V_T1, V_PL, V_ST = 1, 2, 3, 4, 5, 6, 7
V_CS = [8, 11]
V_H64, V_ONE = 14, 15
S_WAVE = 's4'
S_RB, S_HQ, S_RP, S_CP, S_HA, S_QB, S_FLAG, S_BLK = 's40', 's41', 's42', 's43', 's41', 's40', 's46', 's47'
S_PROG, S_IT = 's62', 's63'
S_KVB = 's90'
S_OL8, S_OL4, S_OG8, S_OG4, S_ORT, S_OCT = 's91', 's92', 's93', 's94', 's95', 's3'
S_XT, S_STT, S_OT = 's84', 's85', 's86'
S_LOC, S_XCC = 's44', 's45'
SRD_WS, SRD_OUT, SRD_DBG = 's[8:11]', 's[32:35]', 's[36:39]'
SRD_X0, SRD_W, SRD_WO = 's[64:67]', ['s[68:71]', 's[72:75]'], ['s[76:79]', 's[80:83]']
WOA = [0, 128]

a = Asm()
_uid = [0]
def uid(p):
    _uid[0] += 1
    return f'{p}_{_uid[0]}'

STAMPS = []
def stamp(name, looped=False):
    if INSTR:
        i = len(STAMPS)
        STAMPS.append((name, looped))
        a(f'{CLK} s[96:97]')
        if looped:
            a(f's_mul_i32 s98, {S_IT}, 27')
            a(f's_add_u32 s98, s98, {i}')
            a('s_mov_b32 m0, s98')
            a('s_waitcnt lgkmcnt(0)')
            a(f'v_writelane_b32 v{V_ST}, s96, m0')
        else:
            a('s_waitcnt lgkmcnt(0)')
            a(f'v_writelane_b32 v{V_ST}, s96, {i}')

def poll(srd, mask, target):
    L = uid('poll')
    if mask != -1:
        a(f's_mov_b64 exec, {mask}')
    a(f's_mov_b32 s48, {POLL_LIMIT}')
    a('s_waitcnt lgkmcnt(0)')
    a.raw(L + ':')
    a(f'buffer_load_dword v{V_PL}, v{V_T0}, {srd}, 0 offen sc1')
    a('s_sub_u32 s48, s48, 1')
    a('s_cbranch_scc1 k_end')
    a('s_waitcnt vmcnt(0)')
    a(f'v_cmp_le_u32 vcc, {target}, v{V_PL}')
    a('s_cmp_eq_u64 vcc, exec')
    a(f's_cbranch_scc0 {L}')
    if mask != -1:
        a('s_mov_b64 exec, -1')

def signal(inc=1, lg=True, local=False, with_xcc=False, wait_tag=None, barrier=True, pre=None, post=None):
    L = uid('sig')
    V_T0, V_T1, V_PL = (4, 5, 6) if pre is None else (244, 245, 246)
    if pre: pre()
    if barrier:
        if wait_tag:
            a.wait_tag(wait_tag)
        else:
            a('s_waitcnt vmcnt(0) lgkmcnt(0)' if lg else 's_waitcnt vmcnt(0)')
        a('s_barrier')
    a(f's_cmp_lg_u32 {S_WAVE}, 0')
    a(f's_cbranch_scc1 {L}')
    sv = list(a.st.hist)
    a(f's_add_u32 s48, {S_PROG}, {inc}')
    a(f'v_mov_b32 v{V_T0}, s48')
    a(f'v_mov_b32 v{V_PL}, 0')
    a('s_mov_b64 exec, 1')
    if with_xcc:
        a(f'v_mov_b32 v{V_T1}, {S_XCC}')
        a.raw(f'  buffer_store_dwordx2 v[{V_T0}:{V_T1}], v{V_PL}, {SRD_WS}, {S_FLAG} offen sc1')
    elif local:
        a(f's_add_u32 s48, {S_FLAG}, {WS_LFLAG - WS_FLAG}')
        lstore([f'buffer_store_dword v{V_T0}, v{V_PL}, {SRD_WS}, s48 offen'], track=False)
    else:
        a.raw(f'  buffer_store_dword v{V_T0}, v{V_PL}, {SRD_WS}, {S_FLAG} offen sc1')
    a('s_mov_b64 exec, -1')
    a('s_nop 1')
    a.st.hist = sv
    a.raw(L + ':')
    if post: post()

def lstore(stores, track=True):
    L1, L2 = uid('ls'), uid('ls')
    a(f's_cmp_lg_u32 {S_LOC}, 0')
    a(f's_cbranch_scc1 {L1}')
    n0 = len(a.lines)
    sv = (list(a.st.hist), list(a.st.vm), list(a.st.lg))
    for x in stores:
        a(x + ' sc1')
    t1 = a.lines[n0:]
    a.raw(f'  s_branch {L2}')
    a.raw(L1 + ':')
    a.st.hist, a.st.vm, a.st.lg = list(sv[0]), list(sv[1]), list(sv[2])
    for x in stores:
        a(x)
    a.raw(L2 + ':')
    if not track:
        a.st.vm = list(sv[1])

def advance(n=1):
    a(f's_add_u32 {S_PROG}, {S_PROG}, {n}')

def flag_addr(local=False):
    a(f'v_lshlrev_b32 v{V_T0}, 7, v{V_T0}')
    a(f'v_add_u32 v{V_T0}, {WS_LFLAG if local else WS_FLAG}, v{V_T0}')

def ids16(sreg):
    a(f'v_lshrrev_b32 v{V_T1}, 4, v{V_L16}')
    a(f'v_lshrrev_b32 v{V_T0}, 1, v{V_T1}')
    a(f'v_and_b32 v{V_T1}, 1, v{V_T1}')
    a(f'v_lshl_add_u32 v{V_T0}, v{V_T1}, 3, v{V_T0}')
    a(f's_lshl_b32 s48, {sreg}, 4')
    a(f'v_add_u32 v{V_T0}, s48, v{V_T0}')
    flag_addr()

def ids_qkv_rows(hreg):
    if RBX == 1:
        return ids16(hreg)
    a(f'v_lshrrev_b32 v{V_T0}, 6, v{V_L16}')
    a(f'v_lshlrev_b32 v{V_T0}, 1, v{V_T0}')
    a(f'v_bfe_u32 v{V_T1}, v{V_L16}, 4, 2')
    a(f'v_lshl_add_u32 v{V_T0}, v{V_T1}, 3, v{V_T0}')
    a(f's_lshr_b32 s48, {hreg}, 3')
    a(f's_and_b32 s49, {hreg}, 7')
    a('s_lshl_b32 s49, s49, 5')
    a('s_add_u32 s48, s48, s49')
    a(f'v_add_u32 v{V_T0}, s48, v{V_T0}')
    flag_addr()

def ids_qkv_heads(rbreg):
    if RBX == 1:
        a(f's_lshr_b32 s48, {rbreg}, 1')
        a(f's_and_b32 s49, {rbreg}, 1')
        a('s_lshl_b32 s49, s49, 3')
        a('s_add_u32 s48, s48, s49')
        a(f'v_add_u32 v{V_T0}, s48, v{V_L16}')
        return flag_addr(True)
    a(f'v_lshrrev_b32 v{V_T0}, 7, v{V_L16}')
    a(f'v_bfe_u32 v{V_T1}, v{V_L16}, 4, 3')
    a(f'v_lshl_add_u32 v{V_T0}, v{V_T1}, 5, v{V_T0}')
    a(f's_lshr_b32 s48, {rbreg}, 2')
    a('s_lshl_b32 s48, s48, 1')
    a(f's_and_b32 s49, {rbreg}, 3')
    a('s_lshl_b32 s49, s49, 3')
    a('s_add_u32 s48, s48, s49')
    a(f'v_add_u32 v{V_T0}, s48, v{V_T0}')
    flag_addr()

V_DUM = 250
def pretouch_setup(isA, blk):
    o, x, st = (WS_OA, WS_XA, WS_STA) if isA else (WS_O, WS_XB, WS_STB)
    for r, base, off in (('s87', S_OT, o), ('s88', S_XT, x), ('s89', S_STT, st)):
        if isinstance(blk, int):
            a(f's_add_u32 {r}, {base}, {off + blk}')
        else:
            a(f's_add_u32 {r}, {base}, {off}')
            a(f's_add_u32 {r}, {r}, {blk}')
    a(f'v_lshlrev_b32 v{V_DUM}, 1, v{V_L16}')
def pretouch():
    if PRE:
        a(f'buffer_load_dword v255, v{V_DUM}, {SRD_WS}, s87 offen sc1')
        a(f'buffer_load_dword v255, v{V_DUM}, {SRD_WS}, s88 offen sc1')
        a('s_mov_b64 exec, 0xff')
        a(f'buffer_load_dword v255, v{V_DUM}, {SRD_WS}, s89 offen sc1')
        a('s_mov_b64 exec, -1')

def prewrite():
    if PREW == 0:
        return pretouch()
    if PREW == 2:
        return
    a(f's_cmp_ge_u32 {S_CP}, 7')
    a(f's_cselect_b32 s88, {OOB}, s88')
    a(f's_cselect_b32 s89, {OOB}, s89')
    for sr in ('s87', 's88'):
        a(f'buffer_store_dwordx4 v[0:3], v{V_L16}, {SRD_WS}, {sr} offen')
        a(f'buffer_store_dwordx4 v[0:3], v{V_L16}, {SRD_WS}, {sr} offen offset:1024')
    a('s_mov_b64 exec, 0xffff')
    a(f'buffer_store_dwordx4 v[0:3], v{V_L16}, {SRD_WS}, s89 offen')
    a('s_mov_b64 exec, -1')

def touch_img_setup(which):
    a(f's_mul_i32 s25, {S_HQ}, {IMG_HEAD}')
    a(f's_and_b32 s49, {S_RB}, 1')
    a(f's_lshl_b32 s49, s49, 2')
    a(f's_add_u32 s49, s49, {S_WAVE}')
    a(f's_mul_i32 s49, s49, {IMG_HEAD // 8}')
    a('s_add_u32 s25, s25, s49')
    a(f's_add_u32 s25, s25, {WS_IMG[which]}')
    a(f's_cmp_lg_u32 {S_IT}, 0')
    a(f's_cselect_b32 s25, {OOB}, s25')
    a('s_add_u32 s26, s25, 8192')
    a(f'v_lshlrev_b32 v254, 3, v{V_L16}')
def touch_img(k):
    if k == 0:
        a(f'buffer_load_dword v255, v254, {SRD_WS}, s25 offen sc1')
    else:
        a('s_mov_b64 exec, 0xfffff')
        a(f'buffer_load_dword v255, v254, {SRD_WS}, s26 offen sc1')
        a('s_mov_b64 exec, -1')

def prologue():
    a.raw(kernel_header(KNAME))
    a('s_cmp_ge_u32 s2, 256')
    a('s_cbranch_scc1 k_end')
    a('s_getpc_b64 s[54:55]')
    a.raw('pc_base:')
    a('s_lshr_b32 s6, s2, 3')
    a('s_and_b32 s6, s6, 1')
    a('s_lshl_b32 s6, s6, 14')
    a('v_lshl_add_u32 v254, v0, 6, s6')
    a('v_min_u32 v254, code_end-pc_base-4, v254')
    a('s_cmp_ge_u32 s2, 16')
    a('s_cbranch_scc1 no_code_touch')
    a.raw('  global_load_dword v255, v254, s[54:55]')
    a.raw('no_code_touch:')
    if DUR: a('s_memrealtime s[92:93]')
    if PADT: a('s_memrealtime s[96:97]')
    a('s_load_dwordx2 s[64:65], s[0:1], 0')
    a('s_load_dwordx2 s[68:69], s[0:1], 8')
    a('s_load_dwordx2 s[8:9], s[0:1], 64')
    a('s_load_dwordx2 s[76:77], s[0:1], 16')
    a('s_load_dwordx2 s[72:73], s[0:1], 32')
    a('s_load_dwordx2 s[80:81], s[0:1], 40')
    a('s_load_dwordx2 s[32:33], s[0:1], 48')
    a('s_load_dwordx2 s[36:37], s[0:1], 56')
    a(f'v_and_b32 v13, 63, v0')
    a(f'v_lshrrev_b32 v{V_T0}, 6, v0')
    a(f'v_and_b32 v{V_N}, 31, v0')
    a(f'v_readfirstlane_b32 {S_WAVE}, v{V_T0}')
    a(f'v_bfe_u32 v{V_HF}, v0, 5, 1')
    a(f'v_lshlrev_b32 v{V_L16}, 4, v13')
    a(f'v_mov_b32 v{V_ST}, 0')
    a('s_and_b32 s5, s2, 7')
    a('s_lshr_b32 s6, s2, 3')
    if RBX == 2:
        a('s_lshl_b32 s7, s5, 1')
        a('s_and_b32 s7, s7, 12')
        a('s_and_b32 s12, s6, 3')
        a(f's_add_u32 {S_RB}, s7, s12')
        a('s_and_b32 s7, s5, 1')
        a('s_lshl_b32 s7, s7, 3')
        a('s_lshr_b32 s12, s6, 2')
        a(f's_add_u32 {S_HQ}, s7, s12')
    else:
        a('s_lshl_b32 s7, s5, 1')
        a('s_and_b32 s12, s6, 1')
        a(f's_add_u32 {S_RB}, s7, s12')
        a(f's_lshr_b32 {S_HQ}, s6, 1')
    a('s_lshl_b32 s7, s5, 2')
    a('s_and_b32 s12, s6, 3')
    a(f's_add_u32 {S_RP}, s7, s12')
    a(f's_lshr_b32 {S_CP}, s6, 2')
    a(f's_lshr_b32 s7, {S_WAVE}, 1')
    a(f's_lshl_b32 s12, {S_RP}, 1')
    a('s_add_u32 s7, s7, s12')
    a(f's_and_b32 s12, {S_WAVE}, 1')
    a(f's_min_u32 s13, {S_CP}, 6')
    a('s_lshl_b32 s13, s13, 1')
    a('s_add_u32 s12, s12, s13')
    a(f's_mov_b32 {S_ORT}, s7')
    a(f's_lshl_b32 s13, {S_WAVE}, 12')
    a('s_and_b32 s13, s13, 0x1000')
    a(f's_lshl_b32 s14, {S_WAVE}, 14')
    a('s_and_b32 s14, s14, 0x8000')
    a(f's_add_u32 s14, s14, {L_S}')
    a(f's_add_u32 {S_OL8}, s14, s13')
    a('s_lshl_b32 s15, s7, 15')
    a(f's_add_u32 {S_OG8}, s15, s13')
    a('s_lshr_b32 s13, s13, 1')
    a(f's_add_u32 {S_OL4}, s14, s13')
    a(f's_add_u32 {S_OG4}, s15, s13')
    a(f's_mul_i32 {S_XT}, s7, {28*1024}')
    a('s_lshl_b32 s13, s12, 11')
    a(f's_add_u32 {S_XT}, {S_XT}, s13')
    a(f's_lshl_b32 {S_STT}, s12, 14')
    a('s_lshl_b32 s13, s7, 8')
    a(f's_add_u32 {S_STT}, {S_STT}, s13')
    a(f's_lshl_b32 {S_OT}, {S_RB}, 2')
    a(f's_add_u32 {S_OT}, {S_OT}, {S_WAVE}')
    a(f's_lshl_b32 {S_OT}, {S_OT}, 15')
    a(f's_lshl_b32 s13, {S_HQ}, 11')
    a(f's_add_u32 {S_OT}, {S_OT}, s13')
    a(f's_lshl_b32 {S_FLAG}, s2, 7')
    a(f's_add_u32 {S_FLAG}, {S_FLAG}, {WS_FLAG}')
    a(f's_mov_b32 {S_BLK}, 0')
    a(f's_mov_b32 {S_KVB}, 0')
    a(f's_getreg_b32 {S_XCC}, hwreg(HW_REG_XCC_ID, 0, 4)')
    a(f's_add_u32 {S_XCC}, {S_XCC}, 1')
    a(f's_mov_b32 {S_LOC}, 0')
    a(f's_mov_b32 {S_PROG}, 0')
    a(f's_mov_b32 {S_IT}, 0')
    for r in (11, 35, 39, 67, 71, 75, 79, 83):
        a(f's_mov_b32 s{r}, 0x20000')
    a(f's_mov_b32 s10, {WS_TOTAL}')
    a(f's_mov_b32 s34, {2048*448*2}')
    a('s_mov_b32 s38, 256')
    a(f's_mov_b32 s66, {2048*448*2}')
    a(f's_mov_b32 s70, {448*1344*2}')
    a(f's_mov_b32 s74, {448*1344*2}')
    a(f's_mov_b32 s78, {448*448*2}')
    a(f's_mov_b32 s82, {448*448*2}')
    a(f'v_add_u32 v{V_H64}, 65536, v{V_L16}')
    a(f'v_cmp_eq_u32 vcc, 28, v{V_N}')
    a(f'v_mov_b32 v{V_ONE}, {ONES2}')
    a(f'v_cndmask_b32 v{V_ONE}, 0, v{V_ONE}, vcc')
    a('s_waitcnt lgkmcnt(0)')
    for r in (9, 33, 37, 65, 69, 73, 77, 81):
        a(f's_and_b32 s{r}, s{r}, 0xffff')
    if TLBW:
        a('s_lshr_b32 s12, s2, 3')
        a('s_lshl_b32 s12, s12, 2')
        a(f's_add_u32 s12, s12, {S_WAVE}')
        a(f'v_mov_b32 v254, 0')
        a('s_mov_b64 exec, 1')
        a('s_lshr_b32 s13, s12, 2')
        a('s_lshl_b32 s13, s13, 19')
        a('s_and_b32 s14, s12, 3')
        a('s_cmp_eq_u32 s14, 3')
        a(f's_cselect_b32 s13, s13, {OOB}')
        a.raw(f'  buffer_load_dword v255, v254, {SRD_WS}, s13 offen offset:3968 sc1')
        for k, srd in enumerate((SRD_WO[0], SRD_WO[1], SRD_W[1], SRD_OUT, SRD_DBG, SRD_W[0])):
            a(f's_cmp_eq_u32 s12, {4*(3*k+1) + 2}')
            a(f's_cselect_b32 s13, 128, {OOB}') if False else (a(f's_mov_b32 s13, {OOB}'), a('s_cselect_b32 s13, 64, s13'))
            a.raw(f'  buffer_load_dword v255, v254, {srd}, s13 offen sc1')
        a('s_mov_b64 exec, -1')
    stamp('start')

ZROLE0 = 243
def zero_role():
    L = uid('z')
    a(f's_cmp_lt_u32 s2, {ZROLE0}')
    a(f's_cbranch_scc1 {L}')
    a(f's_sub_u32 s3, s2, {ZROLE0}')
    a('s_lshl_b32 s53, s3, 14')
    a(f's_add_u32 s53, s53, {WS_ZERO}')
    a('v_lshlrev_b32 v16, 4, v0')
    for i in range(4):
        a(f'v_mov_b32 v{20+i}, 0')
    for i in range(4):
        a.raw(f'  buffer_store_dwordx4 v[20:23], v16, {SRD_WS}, s53 offen {SC}')
        if i < 3:
            a('s_add_u32 s53, s53, 4096')
    a('s_lshl_b32 s3, s3, 2')
    a.raw(L + ':')

def zero_publish():
    L = uid('z')
    a(f's_cmp_lt_u32 s2, {ZROLE0}')
    a(f's_cbranch_scc1 {L}')
    a(f's_cmp_lg_u32 {S_WAVE}, 0')
    a(f's_cbranch_scc1 {L}')
    sv = list(a.st.hist)
    a(f'v_mov_b32 v{V_T1}, 1')
    a(f'v_mov_b32 v{V_PL}, 0')
    a('s_mov_b64 exec, 1')
    a.raw(f'  buffer_store_dword v{V_T1}, v{V_PL}, {SRD_DBG}, s3 offen sc1')
    a('s_mov_b64 exec, -1')
    a.st.hist = sv
    a.raw(L + ':')

def img_base(which, sg, sl):
    a(f's_mul_i32 {sl}, {S_WAVE}, {21*1024}')
    a(f's_mul_i32 {sg}, {S_HQ}, {IMG_HEAD}')
    a(f's_add_u32 {sg}, {sg}, {sl}')
    a(f's_add_u32 {sg}, {sg}, {WS_IMG[which]}')

def img_dma(n, sg, sl):
    a(f's_mov_b32 m0, {sl}')
    a(f's_add_u32 {sl}, {sl}, {n*1024}')
    for i in range(n):
        a(f'buffer_load_dwordx4 v{V_L16}, {SRD_WS}, {sg} offen offset:{i*1024} {SC} lds')
    a(f's_add_u32 {sg}, {sg}, {n*1024}')

def wb_kv(i):
    a(f's_add_u32 m0, s61, {i*3072}')
    a(f's_add_u32 s59, s60, {i*3072}')
    for p in (1, 2):
        a(f'buffer_load_dwordx4 v{V_L16}, {SRD_WS}, s59 offen offset:{p*1024} {SC} lds')
def wb_q(i):
    a(f's_add_u32 m0, s61, {i*3072}')
    a(f's_add_u32 s59, s60, {i*3072}')
    a(f'buffer_load_dwordx4 v{V_L16}, {SRD_WS}, s59 offen {SC} lds')

def w_prefetch(which, parts):
    for n in parts:
        img_dma(n, 's60', 's61')

def stage_wo_issue(which, lds, tmp, tag, defer=False):
    a(f'v_lshrrev_b32 v{tmp}, 7, v{V_L16}')
    a(f'v_mul_u32_u24 v{tmp}, 896, v{tmp}')
    a(f'v_lshrrev_b32 v{tmp+1}, 2, v{V_L16}')
    a(f'v_and_b32 v{tmp+1}, 64, v{tmp+1}')
    a(f'v_xor_b32 v{tmp+1}, v{tmp+1}, v{V_L16}')
    a(f'v_and_b32 v{tmp+1}, 0x70, v{tmp+1}')
    a(f's_min_u32 s48, {S_CP}, 6')
    a('s_lshl_b32 s48, s48, 7')
    a(f'v_add3_u32 v{tmp}, v{tmp}, v{tmp+1}, s48')
    a(f's_mul_i32 s26, {S_WAVE}, {112*896}')
    a(f's_mul_i32 s27, {S_WAVE}, {14*1024}')
    def one(i, wh=which, tg=tag):
        a(f's_add_u32 m0, s27, {lds + i*1024}')
        a(f's_add_u32 s25, s26, {i*7168}')
        a.inst(f'buffer_load_dwordx4 v{tmp}, {SRD_WO[wh]}, s25 offen lds', tag=tg)
    class TH(list): pass
    th = TH((lambda i=i: one(i)) for i in range(14))
    th.one = one
    return th

def stage_wo_addr(lds, tmp):
    a(f'v_bfe_u32 v{tmp}, v{V_L16}, 6, 2')
    a(f'v_lshl_add_u32 v{tmp}, v{V_HF}, 2, v{tmp}')
    a(f'v_lshlrev_b32 v{tmp}, 7, v{tmp}')
    a(f'v_bfe_u32 v{tmp+1}, v{V_L16}, 7, 1')
    a(f's_and_b32 s49, {S_WAVE}, 1')
    a(f'v_xor_b32 v{tmp+1}, s49, v{tmp+1}')
    a(f'v_lshl_add_u32 v{tmp}, v{tmp+1}, 6, v{tmp}')
    a(f'v_bfe_u32 v{tmp+1}, v{V_L16}, 8, 1')
    a(f'v_lshl_add_u32 v{tmp}, v{tmp+1}, 5, v{tmp}')
    a(f'v_bfe_u32 v{tmp+1}, v{V_L16}, 4, 2')
    a(f'v_lshl_add_u32 v{tmp}, v{tmp+1}, 3, v{tmp}')
    a(f'v_add_u32 v{tmp}, {lds}, v{tmp}')

def stage_wo_reads(which, tmp):
    B = WOA[which]
    return [f'ds_read_b64_tr_b16 a[{B + 4*(2*h+u) + 2*q}:{B + 4*(2*h+u) + 2*q + 1}], v{tmp} offset:{(28*h + 16*u + 8*q)*128}'
            for h in range(16) for u in range(2) for q in range(2)]

def stage_wo_pads(which):
    B = WOA[which]
    a('s_mov_b32 exec_lo, 0')
    for h in range(16):
        r = B + 4 * (2 * h + 1) + 2
        a(f'v_accvgpr_write_b32 a{r}, 0')
        a(f'v_accvgpr_write_b32 a{r+1}, 0')
    a('s_mov_b32 exec_lo, -1')

X, AK, AV, AQ, WR, RS, WE, XE, T, E = 16, 128, 144, 160, 176, 200, 216, 228, 232, 244
ST = AQ
NWR = 6

def ln_stats(isA):
    L = [f's_mov_b32 s16, {f32(1.0/448)}',
         f'v_mul_f32 v{ST}, s16, v{ST}',
         f'v_mul_f32 v{ST+1}, s16, v{ST+1}',
         f'v_fma_f32 v{ST+1}, -v{ST}, v{ST}, v{ST+1}',
         f'v_max_f32 v{ST+1}, 0, v{ST+1}',
         f'v_add_f32 v{ST+1}, {f32(1e-5)}, v{ST+1}',
         f'v_rsq_f32 v{T}, v{ST+1}',
         f'v_sub_f32 v{ST}, 0, v{ST}',
         f'ds_write_b32 v{T+8}, v{T}']
    L += [f'ds_read_b128 v[{RS+4*g}:{RS+4*g+3}], v{T+9} offset:{32*g}' for g in range(4)]
    L += [f'v_and_b32 v{T+4}, 0xffff0000, v{ST}',
          f'v_sub_f32 v{T+5}, v{ST}, v{T+4}',
          f'v_and_b32 v{T+6}, 0xffff0000, v{T+5}',
          f'v_sub_f32 v{T+7}, v{T+5}, v{T+6}',
          f'v_perm_b32 v{XE}, v{T+4}, v{T+4}, s17',
          f'v_perm_b32 v{XE+1}, v{T+6}, v{T+4}, s17',
          f'v_perm_b32 v{XE+2}, v{T+7}, v{T+6}, s17',
          f'v_mov_b32 v{XE+3}, 0',
          f'v_mul_f32 v{T+2}, {f32(LOG2E if isA else QSCALE)}, v{T}']
    return L

def rs_addr():
    a(f's_lshl_b32 s18, {S_WAVE}, 7')
    a(f's_add_u32 s18, s18, {L_RS}')
    a(f'v_lshl_add_u32 v{T+8}, v{V_N}, 2, s18')
    a(f'v_lshl_add_u32 v{T+9}, v{V_HF}, 4, s18')
    a('s_mov_b32 s17, 0x07060302')

def halves_add(r, n, tmp):
    return ([f'v_mov_b32 v{tmp+i}, v{r+i}' for i in range(n)] +
            [f'v_permlane32_swap_b32 v{r+i}, v{tmp+i}' for i in range(n)] +
            [f'v_add_f32 v{r+i}, v{r+i}, v{tmp+i}' for i in range(n)])

def we_build(which, c):
    L = [f'v_cmp_eq_u32 s[56:57], 0, v{V_HF}']
    for p in (1, 2, 0):
        L += [f'v_cndmask_b32 v{c}, 0, v{V_CS[which]+p}, s[56:57]',
              f'v_and_b32 v{c+1}, 0xffff0000, v{c}',
              f'v_sub_f32 v{c}, v{c}, v{c+1}',
              f'v_and_b32 v{c+2}, 0xffff0000, v{c}',
              f'v_sub_f32 v{c+3}, v{c}, v{c+2}',
              f'v_perm_b32 v{WE+4*p}, v{c+2}, v{c+1}, s17',
              f'v_perm_b32 v{WE+4*p+1}, v{c+1}, v{c+3}, s17',
              f'v_perm_b32 v{WE+4*p+2}, v{c+1}, v{c+2}, s17',
              f'v_mov_b32 v{WE+4*p+3}, 0']
    return L

AT_Q = 16

def phase_qkv(isA, first, mode='all'):
    lp = not isA
    nm = 'qa0' if first else ('qa1' if isA else 'qb')
    wsel = 0 if isA else 1
    trans = [True, not isA, False]
    accb = [AQ, AK, AV]
    started = [False] * 3
    fill = []
    def pop(n):
        for _ in range(n):
            if fill:
                x = fill.pop(0)
                if callable(x): x()
                else: a(x)
    def mm(p, w, x):
        d = f'v[{accb[p]}:{accb[p]+15}]'
        c = d if started[p] else '0'
        started[p] = True
        if trans[p]:
            a(f'v_mfma_f32_32x32x16_bf16 {d}, {w}, {x}, {c}')
        else:
            a(f'v_mfma_f32_32x32x16_bf16 {d}, {x}, {w}, {c}')
    seq = [(t, p) for t in range(28) for p in (1, 2)] + [(t, 0) for t in range(28)]
    AH = NWR - 1
    def wread(i):
        if i < len(seq):
            t, p = seq[i]
            r = WR + 4 * (i % NWR)
            o = L_W + (3 * t + p) * 1024
            if first:
                for q in range(2):
                    a(f'ds_read_b64_tr_b16 v[{r+2*q}:{r+2*q+1}], v{T+10 + (o >= 65536)} offset:{o % 65536 + q*512}')
            else:
                a(f'ds_read_b128 v[{r}:{r+3}], v{V_L16 if o < 65536 else V_H64} offset:{o % 65536}')
    def wmm(i):
        t, p = seq[i]
        r = WR + 4 * (i % NWR)
        mm(p, f'v[{r}:{r+3}]', f'v[{X+4*t}:{X+4*t+3}]')
    def extra(p):
        mm(p, f'v[{WE+4*p}:{WE+4*p+3}]', f'v[{XE}:{XE+3}]')
    if mode != 'pre': a.raw(f'; ======== QKV projection ({nm}) ========')
    n_keep = len(a.lines)
    a(f's_lshl_b32 s7, {S_RB}, 2')
    a(f's_add_u32 s7, s7, {S_WAVE}')
    a(f's_mul_i32 s20, s7, {28*1024}')
    if first:
        XD, XA, WDV, F, TM = AQ + 4, AQ + 6, AQ + 14, RS, WE
        zero_role()
        a(f'v_lshrrev_b32 v{WDV}, 6, v{V_L16}')
        a(f'v_mul_u32_u24 v{WDV}, 2688, v{WDV}')
        a(f'v_and_b32 v{TM}, 48, v{V_L16}')
        a(f's_mul_i32 s12, {S_HQ}, 56')
        a('s_and_b32 s14, s12, 8')
        a('s_sub_u32 s12, s12, s14')
        a(f'v_add3_u32 v{WDV}, v{WDV}, v{TM}, s12')
        a(f's_lshl_b32 s23, {S_RB}, 1')
        a(f's_add_u32 s23, s23, {S_HQ}')
        a('s_mul_i32 s24, s23, 37')
        a('s_lshr_b32 s24, s24, 8')
        a('s_mul_i32 s24, s24, 7')
        a('s_sub_u32 s23, s23, s24')
        a(f's_mul_i32 s15, {S_WAVE}, 3072')
        a(f's_mul_i32 s22, {S_WAVE}, 43008')
        def issue_w(g):
            a(f's_mul_i32 s24, s23, {4*43008}')
            a('s_add_u32 s24, s24, s22')
            for p in (1, 2):
                a(f's_add_u32 m0, s15, {g*12288 + p*1024}')
                a('s_add_u32 s24, s24, 896')
                a.inst(f'buffer_load_dwordx4 v{WDV}, {SRD_W[0]}, s24 offen lds', tag=f'w{g}')
        if FINE2: stamp('p_a')
        issue_w(0)
        a(f'v_lshrrev_b32 v{TM+2}, 7, v{V_L16}')
        a(f'v_mul_u32_u24 v{TM+2}, 896, v{TM+2}')
        a(f'v_bfe_u32 v{TM+3}, v{V_L16}, 4, 3')
        a(f'v_lshrrev_b32 v{TM+4}, 8, v{V_L16}')
        a(f'v_xor_b32 v{TM+3}, v{TM+3}, v{TM+4}')
        a(f'v_lshl_add_u32 v{XD}, v{TM+3}, 4, v{TM+2}')
        a(f'v_xor_b32 v{TM+3}, 4, v{TM+3}')
        a(f'v_lshl_add_u32 v{XD+1}, v{TM+3}, 4, v{TM+2}')
        a(f's_mul_i32 s21, {S_WAVE}, 12288')
        a(f's_add_u32 s21, s21, {L_S}')
        def rot_next():
            a('s_add_u32 s23, s23, 1')
            a('s_cmp_eq_u32 s23, 7')
            a('s_cselect_b32 s23, 0, s23')
        def issue_x(g):
            a(f's_add_u32 m0, s21, {(g%3)*4096}')
            a('s_lshl_b32 s24, s23, 7')
            a('s_add_u32 s24, s24, s20')
            for i in range(4):
                if i: a('s_add_u32 s24, s24, 6144')
                a.inst(f'buffer_load_dwordx4 v{XD+(i&1)}, {SRD_X0}, s24 offen offset:{i*1024} lds', tag=f'g{g}')
            rot_next()
        issue_x(0)
        if FINE2: stamp('p_x0')
        if WARM:
            a('s_lshr_b32 s24, s2, 3')
            a('s_lshl_b32 s24, s24, 2')
            a(f's_add_u32 s24, s24, {S_WAVE}')
            a(f'v_lshlrev_b32 v254, 3, v{V_L16}')
            a(f's_and_b32 s25, {S_RB}, 14')
            a(f's_mul_i32 s25, s25, {128*896}')
            a(f's_mul_i32 s26, s24, {14*128}')
            a('s_add_u32 s25, s25, s26')
            a('s_mov_b64 exec, 0x3fff')
            a(f'buffer_load_dword v255, v254, {SRD_X0}, s25 offen')
            a(f's_mul_i32 s26, s24, {74*128}')
            a('s_mov_b64 exec, 0x3ff')
            a(f'buffer_load_dword v255, v254, {SRD_W[0]}, s26 offen')
            a('s_mov_b64 exec, -1')
            a(f'buffer_load_dword v255, v254, {SRD_W[0]}, s26 offen offset:{10*128}')
        a(f's_lshl_b32 s13, {S_WAVE}, 12')
        a(f's_add_u32 s13, s13, {L_KV}')
        if FINE2: stamp('p_rp')
        a(f'v_bfe_u32 v{TM+2}, v{V_N}, 1, 3')
        a(f'v_lshl_add_u32 v{TM+3}, v{V_N}, 7, s21')
        a(f'v_lshl_add_u32 v{TM+3}, v{V_HF}, 3, v{TM+3}')
        for q in range(8):
            a(f'v_xor_b32 v{TM+4}, {q}, v{TM+2}')
            a(f'v_lshl_add_u32 v{XA+q}, v{TM+4}, 4, v{TM+3}')
        a(f'v_and_b32 v{TM+2}, 0xc0, v{V_L16}')
        a(f'v_lshl_add_u32 v{TM+2}, v{V_HF}, 8, v{TM+2}')
        a(f'v_bfe_u32 v{TM+3}, v{V_L16}, 8, 1')
        a(f'v_lshl_add_u32 v{TM+2}, v{TM+3}, 5, v{TM+2}')
        a(f'v_bfe_u32 v{TM+3}, v{V_L16}, 4, 2')
        a(f'v_lshl_add_u32 v{TM+2}, v{TM+3}, 3, v{TM+2}')
        a(f'v_add_u32 v{T+10}, s14, v{TM+2}')
        a(f'v_add_u32 v{T+11}, 65536, v{T+10}')
        a(f'v_add_u32 v{TM+2}, s13, v{T+10}')
        a(f'v_lshlrev_b32 v{E}, 2, v{V_N}')
        a(f'v_lshrrev_b32 v{V_T0}, 2, v{V_L16}')
        a(f's_mov_b32 s19, {ONES2}')
        a(f'v_mov_b32 v{ST}, 0')
        a(f'v_mov_b32 v{ST+1}, 0')
        rs_addr()
        CA, CS, CR = E + 1, E + 3, XE
        a(f'v_add_u32 v{CA}, s15, v{T+10}')
        a(f'v_add_u32 v{CA+1}, s15, v{T+11}')
        a(f'v_mov_b32 v{CS}, 0')
        a(f'v_mov_b32 v{CS+1}, 0')
        if FINE2: stamp('p_adr')
        issue_w(1); issue_x(1)
        if FINE2: stamp('p_g1')
        if FINE2:
            a.wait_tag('g0'); stamp('p_g0w')
        CRS = [[XE, T + 4], [V_CS[0], X + 108]]
        def cs_read(gg, slot):
            for k, p in enumerate((1, 2)):
                for q in range(2):
                    o = gg * 12288 + p * 1024 + q * 512
                    r = CRS[slot][k] + 2 * q
                    a(f'ds_read_b64_tr_b16 v[{r}:{r+1}], v{CA + (o >= 65536)} offset:{o % 65536}')
        def cs_dot(slot):
            for r in range(4):
                for k in range(2):
                    a(f'v_dot2_f32_bf16 v{CS+k}, v{CRS[slot][k]+r}, s19, v{CS+k}')
        def open_group(g):
            a.wait_tag(f'g{g}')
            if g == 5:
                a.wait_tag('pub')
            if g == 6:
                a.wait_tag('csw', 'lg')
            a('s_barrier')
            if g == 0:
                zero_publish()
            if g == 5:
                signal(1, with_xcc=True, barrier=False); advance()
                if FINE: stamp('i_sig')
            for q in range(8):
                r = X + 16 * g + 2 * q
                a(f'ds_read_b64 v[{r}:{r+1}], v{XA+q} offset:{(g%3)*4096}')
            if g < 6:
                cs_read(g, 0)
        def rp_issue():
            for k in range(2):
                a(f's_add_u32 s24, s7, {64*k}')
                a('s_mul_i32 s25, s24, 171')
                a('s_lshr_b32 s25, s25, 9')
                a('s_mul_i32 s26, s25, 45')
                a('s_add_u32 s26, s26, s24')
                a('s_mul_i32 s26, s26, 896')
                if k:
                    a('s_cmp_ge_u32 s24, 84')
                    a(f's_cselect_b32 s26, {OOB}, s26')
                for wh in range(2):
                    a(f's_add_u32 m0, s13, {(2*k+wh)*1024}')
                    a.inst(f'buffer_load_dwordx4 v{WDV}, {SRD_W[wh]}, s26 offen lds', tag='rp')
                a('s_mul_i32 s25, s25, 3')
                a('s_sub_u32 s25, s24, s25')
                a(f's_mul_i32 s{30+k}, {S_HQ}, 3')
                a(f's_add_u32 s{30+k}, s{30+k}, s25')
                a(f's_lshl_b32 s{30+k}, s{30+k}, 7')
                a(f's_add_u32 s{30+k}, s{30+k}, {WS_CS}')
                a('s_lshl_b32 s25, s24, 10')
                a(f's_mul_i32 s{28+k}, {S_HQ}, {IMG_HEAD}')
                a(f's_add_u32 s{28+k}, s{28+k}, s25')
                a(f's_add_u32 s{28+k}, s{28+k}, {WS_IMG[0]}')
                if k:
                    a('s_cmp_ge_u32 s24, 84')
                    a(f's_cselect_b32 s29, {OOB}, s29')
                    a(f's_cselect_b32 s31, {OOB}, s31')
        def rp_read():
            a.wait_tag('rp')
            for b in range(4):
                for q in range(2):
                    a(f'ds_read_b64_tr_b16 v[{F+4*b+2*q}:{F+4*b+2*q+1}], v{TM+2} offset:{b*1024 + q*512}')
        def rp_store():
            for k in range(2):
                a(f'buffer_store_dwordx4 v[{F+8*k}:{F+8*k+3}], v{V_L16}, {SRD_WS}, s{28+k} offen {SC}')
                a(f's_add_u32 s{28+k}, s{28+k}, {WS_IMG[1]-WS_IMG[0]}')
                a(f'buffer_store_dwordx4 v[{F+8*k+4}:{F+8*k+7}], v{V_L16}, {SRD_WS}, s{28+k} offen {SC}')
        def rp_dot():
            for r in range(4):
                for b in range(4):
                    a(f'v_dot2_f32_bf16 v{TM+4+b}, v{F+4*b+r}, s19, {"0" if r == 0 else f"v{TM+4+b}"}')
            fill.extend(halves_add(TM + 4, 4, TM + 8))
        def look(mask_lo, mask_hi, srd, target, pmask):
            Lk = uid('look')
            a(f'v_cmp_le_u32 vcc, {target}, v{V_PL}')
            a(f's_mov_b32 s58, {mask_lo}')
            a(f's_mov_b32 s59, {mask_hi}')
            a('s_and_b64 vcc, vcc, s[58:59]')
            a('s_cmp_eq_u64 vcc, s[58:59]')
            a(f's_cbranch_scc1 {Lk}')
            sv = (list(a.st.hist), list(a.st.vm), list(a.st.lg))
            poll(srd, 's[58:59]', target)
            a.st.hist, a.st.vm, a.st.lg = sv
            a.raw(Lk + ':')
        def rp_pub():
            assert not fill
            look((1 << NZERO) - 1, 0, SRD_DBG, 1, None)
            a('s_mov_b32 exec_hi, 0')
            for k in range(2):
                a(f'buffer_atomic_add_f32 v{TM+4+2*k}, v{E}, {SRD_WS}, s{30+k} offen sc1')
                a(f's_add_u32 s{30+k}, s{30+k}, {16*3*128}')
                a.inst(f'buffer_atomic_add_f32 v{TM+5+2*k}, v{E}, {SRD_WS}, s{30+k} offen sc1', tag='pub')
            a('s_mov_b32 exec_hi, -1')
        def warm_wo():
            a('s_lshr_b32 s24, s2, 3')
            a('s_lshl_b32 s24, s24, 2')
            a(f's_add_u32 s24, s24, {S_WAVE}')
            a(f'v_lshlrev_b32 v254, 3, v{V_L16}')
            a(f's_mul_i32 s26, s24, {25*128}')
            a('s_mov_b64 exec, 0x1ffffff')
            a(f'buffer_load_dword v255, v254, {SRD_WO[0]}, s26 offen')
            a(f'buffer_load_dword v255, v254, {SRD_WO[1]}, s26 offen')
            a('s_mov_b64 exec, -1')
        def flags_issue():
            ids_qkv_rows(S_HQ)
            a('s_and_b32 s48, s2, 7')
            a('s_lshl_b32 s48, s48, 7')
            a(f's_add_u32 s48, s48, {WS_FLAG + 4}')
            a(f'v_lshl_add_u32 v{V_T1}, v{V_N}, 10, s48')
            a(f'v_cmp_eq_u32 vcc, 1, v{V_HF}')
            a(f'v_cndmask_b32 v{V_T0}, v{V_T0}, v{V_T1}, vcc')
            a(f'buffer_load_dword v{V_PL}, v{V_T0}, {SRD_WS}, 0 offen sc1')
            a(f's_mul_i32 s28, {S_HQ}, {IMG_HEAD}')
            a('s_add_u32 s28, s28, s15')
            a(f's_add_u32 s28, s28, {WS_IMG[0]}')
            a(f's_mul_i32 s29, {S_HQ}, 384')
            a(f's_add_u32 s29, s29, {WS_CS}')
        def flags_check():
            look(0xffff, -1, SRD_WS, S_PROG, None)
            stamp(f'{nm}_go', lp)
            for wh in range(2):
                for p in (0, 1, 2):
                    a(f'buffer_load_dword v{V_CS[wh]+p}, v253, {SRD_WS}, s29 offen offset:{p*128} {SC}')
                if wh == 0:
                    a(f's_add_u32 s29, s29, {16*3*128}')
            a(f'v_cmp_eq_u32 vcc, {S_XCC}, v{V_PL}')
            a('s_cmp_eq_u32 vcc_hi, -1')
            a(f's_cselect_b32 {S_LOC}, {0 if FORCE_GLOBAL else 1}, 0')
        def issue_q(g):
            a(f's_mul_i32 s24, s23, {4*43008}')
            a('s_add_u32 s24, s24, s22')
            a(f's_add_u32 m0, s15, {g*12288}')
            rot_next()
            a.inst(f'buffer_load_dwordx4 v{WDV}, {SRD_W[0]}, s24 offen lds', tag='wq')
        AH0 = 4
        open_group(0)
        for i in range(AH0):
            wread(i)
        for g in range(7):
            if FINE: stamp(f'qa0_g{g}')
            if g == 5:
                a.wait_tag('w6')
                cs_read(6, 1)
            for r in range(X + 16 * g, X + 16 * g + 16):
                a(f'v_dot2_f32_bf16 v{ST}, v{r}, s19, v{ST}')
                a(f'v_dot2_f32_bf16 v{ST+1}, v{r}, v{r}, v{ST+1}')
            if g < 6:
                cs_dot(0)
            if g == 2:
                rp_dot()
            if g == 5:
                cs_dot(1)
                for x in halves_add(CS, 2, XE): a(x)
                a(f's_lshl_b32 s12, {S_WAVE}, 8')
                a(f's_add_u32 s12, s12, {L_CS}')
                a(f'v_add_u32 v{XE+2}, s12, v{E}')
                a.inst(f'ds_write2_b32 v{XE+2}, v{CS}, v{CS+1} offset0:0 offset1:32', tag='csw')
            if g == 6:
                c = TM
                L = [f'v_add_u32 v{CA}, {L_CS}, v{E}']
                for k in range(2):
                    L += [f'ds_read2_b32 v[{c+4*k}:{c+4*k+1}], v{CA} offset0:{32*k} offset1:{32*k+64}',
                          f'ds_read2_b32 v[{c+4*k+2}:{c+4*k+3}], v{CA} offset0:{32*k+128} offset1:{32*k+192}']
                L += halves_add(ST, 2, ST + 2) + ln_stats(True)
                for k in range(2):
                    L += [f'v_add_f32 v{c+4*k}, v{c+4*k}, v{c+4*k+1}', f'v_add_f32 v{c+4*k+2}, v{c+4*k+2}, v{c+4*k+3}',
                          f'v_add_f32 v{V_CS[0]+1+k}, v{c+4*k}, v{c+4*k+2}']
                L += we_build(0, T + 4)[:19]
                fill.extend(L)
            for fl in range(8):
                i = 8 * g + fl
                wmm(i)
                if g == 0:
                    if fl == 0: issue_w(2)
                    if fl == 1: issue_x(2)
                    if fl == 4: rp_issue()
                    if fl == 5: issue_w(3)
                    if fl == 7: issue_x(3)
                elif g + 3 < 7:
                    if fl == 5: issue_w(g + 3)
                    if fl == 6: issue_x(g + 3)
                if g == 1 and fl == 4: rp_read()
                if g == 1 and fl == 7: rp_store()
                if g == 2 and fl == 0: a(f'buffer_load_dword v{V_PL}, v{V_T0}, {SRD_DBG}, 0 offen sc1')
                if g == 3 and fl == 0: rp_pub()
                if g == 4 and fl != 3: issue_q(fl - (fl > 3))
                if g == 5 and fl == 0: warm_wo()
                if g == 5 and fl == 5:
                    pretouch_setup(True, 0); prewrite()
                if g == 6 and fl == 3:
                    a.wait_tag('wq')
                    a('s_barrier')
                if fl == 3 and g < 6:
                    open_group(g + 1)
                wread(i + AH0)
                pop(4)
        pop(99)
        extra(1); extra(2)
        wread(56 + AH0)
        a(f'v_mov_b32 v253, v{E}')
    else:
        xo, so = (WS_XB, WS_STB) if isA else (WS_XA, WS_STA)
        a(f's_add_u32 s20, s20, {xo}')
        a('s_lshl_b32 s21, s7, 8')
        a(f's_add_u32 s21, s21, {so}')
        if not isA:
            a(f's_add_u32 s20, s20, {S_BLK}')
            a(f's_add_u32 s21, s21, {S_BLK}')
        a(f'v_lshlrev_b32 v{T+11}, 3, v{V_N}')
        a(f'v_lshl_add_u32 v{T+11}, v{V_HF}, 14, v{T+11}')
        rs_addr()
        pretouch_setup(isA, BLK if isA else S_BLK)
        a(f'v_lshrrev_b32 v{V_T1}, 4, v{V_L16}')
        a('s_lshr_b32 s48, s7, 3')
        a('s_lshr_b32 s49, s7, 1')
        a('s_and_b32 s49, s49, 3')
        a('s_lshl_b32 s49, s49, 3')
        a('s_add_u32 s48, s48, s49')
        a(f'v_lshl_add_u32 v{V_T0}, v{V_T1}, 5, s48')
        flag_addr(True)
        for x in we_build(wsel, X):
            a(x)
        if not isA:
            wob = stage_wo_issue(1, L_S, 251, 'wob', defer=True)
            a(f's_cmp_lg_u32 {S_IT}, 0')
            a(f's_cselect_b32 s26, {OOB}, s26')
        early = isA or NPB >= 3
        if early:
            for i in range(AH):
                wread(i)
        if mode == 'pre':
            return
        if mode == 'main':
            del a.lines[n_keep:]
            a.fresh()
        if not early:
            for i in range(AH):
                wread(i)
        poll(SRD_WS, 0x7f, S_PROG)
        stamp(f'{nm}_go', lp)
        def xload(t):
            r = X + 4 * t
            a(f'buffer_load_dwordx4 v[{r}:{r+3}], v{V_L16}, {SRD_WS}, s20 offen offset:{(t%4)*1024} {LD}')
            if t % 4 == 3 and t != 27:
                a('s_add_u32 s20, s20, 4096')
        def stload(i):
            a(f'buffer_load_dwordx2 v[{ST+2*i}:{ST+2*i+1}], v{T+11}, {SRD_WS}, s21 offen {LD}')
            if i < 6:
                a('s_add_u32 s21, s21, 32768')
        N0 = [8, 4, 6, 12][XS]
        for t in range(N0):
            xload(t)
        nx = N0
        for i in range(56):
            t = i >> 1
            if i == 24:
                for k in range(1, 7):
                    fill.append(f'v_add_f32 v{ST}, v{ST}, v{ST+2*k}')
                    fill.append(f'v_add_f32 v{ST+1}, v{ST+1}, v{ST+2*k+1}')
                fill.extend(halves_add(ST, 2, ST + 2) + ln_stats(isA))
            if i == 48:
                assert not fill
                extra(1); extra(2)
            wmm(i)
            if XS == 0:
                if i % 2 == 0:
                    for _ in range(2 if i < 12 else 1):
                        if nx < 28:
                            xload(nx); nx += 1
                if i == 1:
                    for k in range(7):
                        stload(k)
            else:
                if nx < 28 and (i < 2 * (28 - N0) - 30 or i % 2 == 0 or True if XS in (1, 2) and i < 16 else i % 2 == 0):
                    xload(nx); nx += 1
                if 5 <= i < 19 and i % 2 == 1:
                    stload((i - 5) // 2)
            if i == 35:
                assert nx == 28
                pretouch()
            wread(i + AH)
            pop(2)
            if False: stamp(f'qb_t{t}', True)
        assert nx == 28 and not fill
    stamp(f'{nm}_mm', lp)
    KF, VF, QF = AK, AK + 8, AT_Q
    def pkmul_lane(dst, src, sc):
        a(f'v_pk_mul_f32 v[{dst}:{dst+1}], v[{src}:{src+1}], v[{sc}:{sc+1}] op_sel_hi:[1,0]')
    def v_pads():
        a('s_mov_b32 exec_lo, 0xf0000000')
        a('s_mov_b32 exec_hi, 0xf0000000')
        for r in range(8):
            a(f'v_mov_b32 v{VF+r}, v{V_ONE}')
        a('s_mov_b64 exec, -1')
    def v_epi():
        for r in range(8):
            a(f'v_pk_mul_f32 v[{AV+2*r}:{AV+2*r+1}], v[{AV+2*r}:{AV+2*r+1}], v[{RS+2*r}:{RS+2*r+1}]')
            a(f'v_cvt_pk_bf16_f32 v{VF+r}, v{AV+2*r}, v{AV+2*r+1}')
        v_pads()
    def pass2(npop, hooks):
        if not first:
            extra(0)
        for i in range(56, 84):
            wmm(i)
            wread(i + AH)
            pop(npop)
            if i - 56 in hooks:
                hooks[i - 56]()
    if not isA:
        a(f's_mov_b32 s19, {ONES2}')
        a(f's_lshl_b32 s12, {S_HQ}, 18')
        a('s_lshl_b32 s13, s7, 12')
        a('s_add_u32 s12, s12, s13')
        a(f's_add_u32 s13, s12, {WS_KV}')
        a(f's_add_u32 s13, s13, {S_KVB}')
        for r in range(8):
            pkmul_lane(AK + 2 * r, AK + 2 * r, T)
            a(f'v_cvt_pk_bf16_f32 v{KF+r}, v{AK+2*r}, v{AK+2*r+1}')
            if r == 3:
                a(f'buffer_store_dwordx4 v[{KF}:{KF+3}], v{V_L16}, {SRD_WS}, s13 offen {SC}')
        a('s_mov_b32 exec_lo, 0')
        a(f'v_mov_b32 v{KF+6}, s19')
        a(f'v_mov_b32 v{KF+7}, 0')
        a('s_mov_b32 exec_lo, -1')
        a(f'buffer_store_dwordx4 v[{KF+4}:{KF+7}], v{V_L16}, {SRD_WS}, s13 offen offset:1024 {SC}')
        v_epi()
        for u in range(2):
            a(f'v_permlane32_swap_b32 v{VF+4*u}, v{VF+4*u+2}')
            a(f'v_permlane32_swap_b32 v{VF+4*u+1}, v{VF+4*u+3}')
        a(f'buffer_store_dwordx4 v[{VF}:{VF+3}], v{V_L16}, {SRD_WS}, s13 offen offset:2048 {SC}')
        a.inst(f'buffer_store_dwordx4 v[{VF+4}:{VF+7}], v{V_L16}, {SRD_WS}, s13 offen offset:3072 {SC}', tag='kvs')
        stamp(f'{nm}_epi', lp)
        hk = {k: wob[k] for k in range(14)}
        def sg():
            signal(1, wait_tag='kvs'); advance()
            stamp(f'{nm}_sig', lp)
        hk[QBSIG] = sg
        for t in range(8, 24):
            def z(t=t, f=hk.get(t + 1)):
                for r in range(4):
                    a(f'v_mov_b32 v{X+4*t+r}, 0')
                if f: f()
            hk[t + 1] = z
        pass2(0, hk)
        SD = AV
        for r in range(8):
            pkmul_lane(AQ + 2 * r, AQ + 2 * r, T + 2)
            a(f'v_cvt_pk_bf16_f32 v{QF+r}, v{AQ+2*r}, v{AQ+2*r+1}')
        a('s_mov_b32 exec_lo, 0')
        a(f'v_mov_b32 v{QF+6}, 0')
        a(f'v_mov_b32 v{QF+7}, 0')
        a('s_mov_b32 exec_lo, -1')
        a(f'v_mfma_f32_32x32x16_bf16 v[{SD}:{SD+15}], v[{KF}:{KF+3}], v[{QF}:{QF+3}], 0')
        a(f'v_mfma_f32_32x32x16_bf16 v[{SD}:{SD+15}], v[{KF+4}:{KF+7}], v[{QF+4}:{QF+7}], v[{SD}:{SD+15}]')
        a(f's_lshl_b32 s12, {S_WAVE}, 11')
        a(f's_add_u32 s13, s12, {L_KV}')
        a(f'v_add_u32 v{T+8}, s13, v{V_L16}')
        a(f'ds_write_b128 v{T+8}, v[{QF}:{QF+3}]')
        for i in range(1, 4):
            a(f's_xor_b32 s13, s12, {i*2048}')
            a(f's_add_u32 s13, s13, {L_KV}')
            a(f'v_add_u32 v{T+8+i}, s13, v{V_L16}')
        a(f'v_max3_f32 v{T+4}, v{SD}, v{SD+1}, v{SD+2}')
        a(f'v_max3_f32 v{T+5}, v{SD+3}, v{SD+4}, v{SD+5}')
        for r in range(6, 16, 4):
            a(f'v_max3_f32 v{T+4}, v{SD+r}, v{SD+r+1}, v{T+4}')
            if r + 3 < 16:
                a(f'v_max3_f32 v{T+5}, v{SD+r+2}, v{SD+r+3}, v{T+5}')
        a(f'v_max_f32 v{T+4}, v{T+4}, v{T+5}')
        a(f'v_mov_b32 v{T+5}, v{T+4}')
        a(f'v_permlane32_swap_b32 v{T+4}, v{T+5}')
        a(f'v_max_f32 v{T+4}, v{T+4}, v{T+5}')
        a(f'v_sub_f32 v{T+4}, 0, v{T+4}')
        a(f'v_and_b32 v{T+5}, 0xffff0000, v{T+4}')
        a(f'v_sub_f32 v{T+6}, v{T+4}, v{T+5}')
        a('s_mov_b32 exec_lo, 0')
        a(f'v_perm_b32 v{QF+6}, v{T+6}, v{T+5}, s17')
        a('s_mov_b32 exec_lo, -1')
        a(f'ds_write_b128 v{T+8}, v[{QF+4}:{QF+7}] offset:1024')
        a.wait_tag('wob')
        a('s_waitcnt lgkmcnt(0)')
        a('s_barrier')
        for i in range(1, 4):
            for u in range(2):
                r = QF + 8 * i + 4 * u
                a(f'ds_read_b128 v[{r}:{r+3}], v{T+8+i} offset:{u*1024}')
        if DEBUGQ:
            a(f's_lshl_b32 s12, {S_HQ}, 17')
            a('s_lshl_b32 s13, s7, 11')
            a('s_add_u32 s12, s12, s13')
            a(f's_add_u32 s12, s12, {WS_Q}')
            a(f's_add_u32 s12, s12, {S_BLK}')
            a(f'buffer_store_dwordx4 v[{QF}:{QF+3}], v{V_L16}, {SRD_WS}, s12 offen')
            a(f'buffer_store_dwordx4 v[{QF+4}:{QF+7}], v{V_L16}, {SRD_WS}, s12 offen offset:1024')
    else:
        it = 0 if first else 1
        a(f's_mov_b32 s16, {f32(1e-6)}')
        a(f's_mov_b32 s17, {f32(1e-6)}')
        a(f's_mov_b32 s18, {f32(LOG2E)}')
        a(f's_lshl_b32 s19, {S_WAVE}, 12')
        a(f's_add_u32 s19, s19, {L_KV}')
        a(f'v_add_u32 v{T+8}, s19, v{V_L16}')
        a(f'v_lshlrev_b32 v{T+7}, 2, v0')
        a(f'v_add_u32 v{T+9}, {L_KV}, v{T+7}')
        a(f'v_mov_b32 v{T+4}, 1.0')
        for r in range(8):
            e = E + 2 * (r % 3)
            k = AK + 2 * r
            a(f'v_pk_mul_f32 v[{k}:{k+1}], v[{k}:{k+1}], v[{RS+2*r}:{RS+2*r+1}]')
            a(f'v_pk_mul_f32 v[{e}:{e+1}], v[{k}:{k+1}], s[18:19] op_sel_hi:[1,0]')
            a(f'v_pk_add_f32 v[{k}:{k+1}], v[{k}:{k+1}], 1.0 op_sel_hi:[1,0]')
            a(f'v_exp_f32 v{e}, v{e}')
            a(f'v_exp_f32 v{e+1}, v{e+1}')
            a(f'v_med3_f32 v{k}, v{e}, v{k}, 1.0')
            a(f'v_med3_f32 v{k+1}, v{e+1}, v{k+1}, 1.0')
            a(f'v_pk_add_f32 v[{k}:{k+1}], v[{k}:{k+1}], s[16:17]')
            a(f'v_cvt_pk_bf16_f32 v{KF+r}, v{k}, v{k+1}')
        v_epi()
        KVD = AV
        a(f'v_mfma_f32_32x32x16_bf16 v[{KVD}:{KVD+15}], v[{KF}:{KF+3}], v[{VF}:{VF+3}], 0')
        a(f'v_mfma_f32_32x32x16_bf16 v[{KVD}:{KVD+15}], v[{KF+4}:{KF+7}], v[{VF+4}:{VF+7}], v[{KVD}:{KVD+15}]')
        a(f's_lshl_b32 s22, {S_HQ}, 12')
        a(f's_add_u32 s22, s22, {WS_KVACC + it*65536}')
        a(f's_cmp_ge_u32 {S_WAVE}, 2')
        a(f's_cselect_b32 s23, {OOB}, s22')
        a('s_lshl_b32 s12, s7, 15')
        a(f's_lshl_b32 s13, {S_HQ}, 11')
        a('s_add_u32 s12, s12, s13')
        a(f's_add_u32 s12, s12, {WS_OA + it*BLK}')
        E2 = RS
        def kvw(rg):
            return lambda: a.inst(f'ds_write_b128 v{T+8}, v[{KVD+4*rg}:{KVD+4*rg+3}] offset:{rg*1024}', tag='kvw')
        def kvbar():
            a.wait_tag('kvw', 'lg')
            a('s_barrier')
            for k in range(4):
                a(f'ds_read2st64_b32 v[{E2+4*k}:{E2+4*k+1}], v{T+9} offset0:{4*k} offset1:{4*k+16}')
                a(f'ds_read2st64_b32 v[{E2+4*k+2}:{E2+4*k+3}], v{T+9} offset0:{4*k+32} offset1:{4*k+48}')
        def kvat(k):
            def f():
                a(f'v_add_f32 v{E2+4*k}, v{E2+4*k}, v{E2+4*k+1}')
                a(f'v_add_f32 v{E2+4*k+2}, v{E2+4*k+2}, v{E2+4*k+3}')
                a(f'v_add_f32 v{E2+4*k}, v{E2+4*k}, v{E2+4*k+2}')
                a.inst(f'buffer_atomic_add_f32 v{E2+4*k}, v{T+7}, {SRD_WS}, {"s23" if k == 3 else "s22"} offen offset:{k*1024} sc1', tag='kva')
            return f
        both = lambda f, g: (lambda: (f(), g()))
        hooks = {0: kvw(0), 1: kvw(1), 2: kvw(2), 3: kvw(3), 5: kvbar, 8: both(kvat(0), kvat(1)), 9: both(kvat(2), kvat(3))}
        img_base(1, 's60', 's61')
        if first:
            hooks = {k + 1: f for k, f in hooks.items()}
            hooks[0] = flags_issue
            woa = []
            def chk():
                flags_check()
                woa.extend(stage_wo_issue(0, L_S, 251, 'woa', defer=True))
            hooks[11] = chk
            for k in range(7):
                hooks[12 + k] = (lambda k=k: (woa[2*k](), woa[2*k+1]()))
            hooks[19] = lambda: stage_wo_addr(L_S, 252)
        pass2(0, hooks)
        if first:
            a('s_mov_b32 s17, 0x07060302')
            w = we_build(0, E)
            for x in w[:1] + w[19:]: a(x)
            a(f's_mov_b32 s17, {f32(1e-6)}')
            extra(0)
        signal(1, wait_tag='kva'); advance()
        stamp(f'{nm}_sg1', lp)
        for k in range(NPB):
            wb_kv(k)
        QF = X
        for r in range(8):
            e = E + 2 * (r % 3)
            q = AQ + 2 * r
            pkmul_lane(e, q, T + 2)
            a(f'v_pk_fma_f32 v[{q}:{q+1}], v[{q}:{q+1}], v[{T}:{T+1}], v[{T+4}:{T+5}] op_sel_hi:[1,0,0]')
            a(f'v_exp_f32 v{e}, v{e}')
            a(f'v_exp_f32 v{e+1}, v{e+1}')
            a(f'v_med3_f32 v{q}, v{e}, v{q}, 1.0')
            a(f'v_med3_f32 v{q+1}, v{e+1}, v{q+1}, 1.0')
            a(f'v_pk_add_f32 v[{q}:{q+1}], v[{q}:{q+1}], s[16:17]')
            a(f'v_cvt_pk_bf16_f32 v{QF+r}, v{q}, v{q+1}')
        a('s_mov_b32 exec_lo, 0')
        a(f'v_mov_b32 v{QF+6}, 0')
        a(f'v_mov_b32 v{QF+7}, 0')
        a('s_mov_b32 exec_lo, -1')
        stamp(f'{nm}_epi', lp)
        if DEBUGQ:
            a(f's_add_u32 s13, s12, {WS_DBG + (8 << 20)}')
            a(f'buffer_store_dwordx4 v[{QF}:{QF+3}], v{V_L16}, {SRD_WS}, s13 offen')
            a(f'buffer_store_dwordx4 v[{QF+4}:{QF+7}], v{V_L16}, {SRD_WS}, s13 offen offset:1024')
        if first:
            a.wait_tag('woa')
            a('s_barrier')
            for n, x in enumerate(stage_wo_reads(0, 252)):
                a(x)
                if n % 12 == 11: a('s_waitcnt lgkmcnt(4)')
            stage_wo_pads(0)
        op_resid_load('raw' if first else 'xb')
        ids_qkv_rows(S_HQ)
        poll(SRD_WS, 0xffff, S_PROG)
        stamp(f'{nm}_kv', lp)
        KV, D = 40, 56
        for rg in range(4):
            a(f'buffer_load_dwordx4 v[{KV+4*rg}:{KV+4*rg+3}], v{V_L16}, {SRD_WS}, s22 offen offset:{rg*1024} {SC}')
        op_unpack(); op_addr()
        for r in range(8):
            a(f'v_cvt_pk_bf16_f32 v{KV+r}, v{KV+2*r}, v{KV+2*r+1}')
            if r == 3:
                a(f'v_mfma_f32_32x32x16_bf16 v[{D}:{D+15}], v[{KV}:{KV+3}], v[{QF}:{QF+3}], 0')
        a(f'v_mfma_f32_32x32x16_bf16 v[{D}:{D+15}], v[{KV+4}:{KV+7}], v[{QF+4}:{QF+7}], v[{D}:{D+15}]')
        a(f'v_add_f32 v{T}, s16, v{D+12}')
        a(f'v_mov_b32 v{T+1}, v{T}')
        a(f'v_permlane32_swap_b32 v{T+1}, v{T}')
        a(f'v_rcp_f32 v{T}, v{T}')
        for r in range(8):
            pkmul_lane(D + 2 * r, D + 2 * r, T)
            a(f'v_cvt_pk_bf16_f32 v{QF+8+r}, v{D+2*r}, v{D+2*r+1}')
        lstore([f'buffer_store_dwordx4 v[{QF+8}:{QF+11}], v{V_L16}, {SRD_WS}, s12 offen',
                f'buffer_store_dwordx4 v[{QF+12}:{QF+15}], v{V_L16}, {SRD_WS}, s12 offen offset:1024'])
        signal(1, local=True, pre=lambda: None); advance()
        stamp(f'{nm}_sig', lp)

OP_CH = [(0, 4), (4, 8), (12, 8), (20, 8), (28, 4)]
OP_ACC, OP_OF, OP_XF, OP_T = 112, 32, 224, 232
def op_resid_load(kind):
    XF, T = OP_XF, OP_T
    if kind == 'raw':
        a(f'v_mul_u32_u24 v{T+6}, 896, v{V_N}')
        a(f'v_lshl_add_u32 v{T+6}, v{V_HF}, 3, v{T+6}')
        a(f's_mul_i32 s48, {S_ORT}, {28*1024}')
        a(f's_sub_u32 s49, {S_XT}, s48')
        a('s_lshr_b32 s49, s49, 5')
        a('s_add_u32 s48, s48, s49')
        for k in range(4):
            a(f'buffer_load_dwordx2 v[{XF+2*k}:{XF+2*k+1}], v{T+6}, {SRD_X0}, s48 offen offset:{16*k}')
    else:
        a(f's_add_u32 s48, {S_XT}, {WS_XA if kind == "xa" else WS_XB}')
        if kind == 'xa' and BLK:
            a(f's_add_u32 s48, s48, {S_BLK}')
        a(f'buffer_load_dwordx4 v[{XF}:{XF+3}], v{V_L16}, {SRD_WS}, s48 offen {SC}')
        a(f'buffer_load_dwordx4 v[{XF+4}:{XF+7}], v{V_L16}, {SRD_WS}, s48 offen offset:1024 {SC}')
def op_unpack():
    for r in range(8):
        a(f'v_lshlrev_b32 v{OP_ACC+2*r}, 16, v{OP_XF+r}')
        a(f'v_and_b32 v{OP_ACC+2*r+1}, 0xffff0000, v{OP_XF+r}')
def op_addr():
    T = OP_T
    a(f's_and_b32 s48, {S_OL8}, 0xffffefff') if False else None
    a(f's_lshl_b32 s48, {S_WAVE}, 14')
    a('s_and_b32 s48, s48, 0x8000')
    a(f's_add_u32 s48, s48, {L_S}')
    a(f'v_add_u32 v{T+4}, s48, v{V_L16}')
    a(f'v_lshlrev_b32 v{T+7}, 3, v{V_N}')
    a(f'v_lshl_add_u32 v{T+7}, v{V_HF}, 2, v{T+7}')
    a(f's_lshr_b32 s50, {S_RP}, 1')
    ids_qkv_heads('s50')

def phase_op(isA, nxt_pre):
    nm = 'oa' if isA else 'ob'
    join = uid('op_join')
    ACC, OF, XF, T = OP_ACC, OP_OF, OP_XF, OP_T
    WB = WOA[0 if isA else 1]
    skip = uid('op_skip')
    a(f's_cmp_ge_u32 {S_CP}, 7')
    a(f's_cbranch_scc1 {skip}')
    acc = f'v[{ACC}:{ACC+15}]'
    xo, so = (WS_XA, WS_STA) if isA else (WS_XB, WS_STB)
    ob = WS_OA if isA else WS_O
    poll(SRD_WS, 0xffff, S_PROG)
    stamp(f'{nm}_go', True)
    def iss(c):
        k0, n = OP_CH[c]
        a(f's_add_u32 m0, {S_OL8 if n == 8 else S_OL4}, {k0*1024}')
        a(f's_add_u32 s17, {S_OG8 if n == 8 else S_OG4}, {k0*1024 + ob}')
        if BLK: a(f's_add_u32 s17, s17, {S_BLK}')
        for i in range(n // 2):
            a.inst(f'buffer_load_dwordx4 v{V_L16}, {SRD_WS}, s17 offen offset:{i*1024} {LD} lds', tag=f'o{c}')
    def opn(c):
        k0, n = OP_CH[c]
        a.wait_tag(f'o{c}')
        a('s_barrier')
        if FINE3 and not isA: stamp(f'ob_c{c}', True)
        for s in range(n):
            r = OF + 32 * (c & 1) + 4 * s
            a(f'ds_read_b128 v[{r}:{r+3}], v{T+4} offset:{(k0+s)*1024}')
    for c in range(OPD):
        iss(c)
    a(f's_add_u32 s51, {S_XT}, {xo}')
    a(f's_add_u32 s52, {S_STT}, {so}')
    if BLK:
        a(f's_add_u32 s51, s51, {S_BLK}')
        a(f's_add_u32 s52, s52, {S_BLK}')
    a(f's_mov_b32 s19, {ONES2}')
    opn(0)
    nxt = OPD
    pf = ([(lambda k=k: wb_kv(k)) for k in range(NPB, 7)] + [(lambda k=k: (wb_q(k), wb_q(k + 1) if k < 6 else None)) for k in (0, 2, 4, 6)]) if isA else []
    pf_all = list(pf)
    for c, (k0, n) in enumerate(OP_CH):
        if c == 0 and nxt < len(OP_CH):
            iss(nxt); nxt += 1
        for s in range(n):
            r = OF + 32 * (c & 1) + 4 * s
            k = k0 + s
            a(f'v_mfma_f32_32x32x16_bf16 {acc}, a[{WB+4*k}:{WB+4*k+3}], v[{r}:{r+3}], {acc}')
            if c > 0 and s in (0, 2) and nxt < len(OP_CH):
                iss(nxt); nxt += 1
            elif c > 0 and nxt == len(OP_CH) and pf and s % 2 == 0:
                pf.pop(0)()
            if s == n - OPE and c + 1 < len(OP_CH):
                opn(c + 1)
    assert not pf and nxt == len(OP_CH)
    stamp(f'{nm}_mm', True)
    for r in range(8):
        a(f'v_cvt_pk_bf16_f32 v{XF+r}, v{ACC+2*r}, v{ACC+2*r+1}')
    if not isA:
        a(f's_cmp_lg_u32 {S_IT}, 0')
        a('s_cbranch_scc1 op_final')
    lstore([f'buffer_store_dwordx4 v[{XF}:{XF+3}], v{V_L16}, {SRD_WS}, s51 offen',
            f'buffer_store_dwordx4 v[{XF+4}:{XF+7}], v{V_L16}, {SRD_WS}, s51 offen offset:1024'])
    a(f'v_dot2_f32_bf16 v{T}, v{XF}, s19, 0')
    a(f'v_dot2_f32_bf16 v{T+1}, v{XF}, v{XF}, 0')
    for r in range(1, 8):
        a(f'v_dot2_f32_bf16 v{T}, v{XF+r}, s19, v{T}')
        a(f'v_dot2_f32_bf16 v{T+1}, v{XF+r}, v{XF+r}, v{T+1}')
    a(f'v_permlane32_swap_b32 v{T}, v{T+1}')
    a(f'v_add_f32 v{T}, v{T}, v{T+1}')
    lstore([f'buffer_store_dword v{T}, v{T+7}, {SRD_WS}, s52 offen'])
    stamp(f'{nm}_epi', True)
    signal(local=True, pre=nxt_pre)
    a(f's_branch {join}')
    a.raw(skip + ':'); a.fresh()
    if isA:
        for f in pf_all: f()
        a('s_waitcnt vmcnt(0)')
        a('s_barrier')
    nxt_pre()
    a('s_waitcnt vmcnt(0) lgkmcnt(0)')
    a('s_barrier')
    a.raw(join + ':')
    a.fresh()
    advance()
    stamp(f'{nm}_sig', True)
    def final():
        a.raw('op_final:'); a.fresh()
        a(f'v_mul_u32_u24 v{T+6}, 896, v{V_N}')
        a(f'v_lshl_add_u32 v{T+6}, v{V_HF}, 4, v{T+6}')
        a(f's_mul_i32 s19, {S_ORT}, {28*1024}')
        a(f's_sub_u32 s49, {S_XT}, s19')
        a('s_lshr_b32 s49, s49, 5')
        a('s_add_u32 s19, s19, s49')
        for u in range(2):
            b = XF + 4 * u
            a(f'v_permlane32_swap_b32 v{b}, v{b+2}')
            a(f'v_permlane32_swap_b32 v{b+1}, v{b+3}')
            a(f'buffer_store_dwordx4 v[{b}:{b+3}], v{T+6}, {SRD_OUT}, s19 offen offset:{32*u}')
    return final

def phase_attn(wob_reads):
    Q = 16
    O = 48
    R = AK
    S = 176
    P = S
    T = 112
    IDX = 248
    ORD = [1, 2, 3, 0]
    def kreg(j, t): return f'v[{R+16*j+4*t}:{R+16*j+4*t+3}]'
    def vreg(j, u): return f'v[{R+16*j+8+4*u}:{R+16*j+8+4*u+3}]'
    def qreg(i, t): return f'v[{Q+8*i+4*t}:{Q+8*i+4*t+3}]'
    def sreg(n): return f'v[{S+16*(n%3)}:{S+16*(n%3)+15}]'
    def oreg(i): return f'v[{O+16*i}:{O+16*i+15}]'
    def loadk(j, sr):
        a(f'buffer_load_dwordx4 {kreg(j,0)}, v{V_L16}, {SRD_WS}, {sr} offen {SC}')
        a(f'buffer_load_dwordx4 {kreg(j,1)}, v{V_L16}, {SRD_WS}, {sr} offen offset:1024 {SC}')
    def loadv(j, sr):
        a(f'buffer_load_dwordx4 {vreg(j,0)}, v{V_L16}, {SRD_WS}, {sr} offen offset:2048 {SC}')
        a(f'buffer_load_dwordx4 {vreg(j,1)}, v{V_L16}, {SRD_WS}, {sr} offen offset:3072 {SC}')
    def loadkv(j):
        for k in range(4):
            r = R + 16 * j + 4 * k
            a(f'global_load_dwordx4 v[{r}:{r+3}], v{V_L16}, s[14:15] offset:{k*1024} {SC}')
    NEXT = ['s_add_u32 s13, s13, 1', 's_cmp_eq_u32 s13, s16', 's_cselect_b32 s18, s19, s24',
            's_add_u32 s14, s14, s18', 's_addc_u32 s15, s15, 0']
    def ji(n): return (n >> 2) % 3, ORD[n & 3]
    def M1(n, own=False):
        j, i = (0, 0) if own else ji(n)
        a(f'v_mfma_f32_32x32x16_bf16 {sreg(n)}, {kreg(j,0)}, {qreg(i,0)}, 0')
    def M2(n, own=False):
        j, i = (0, 0) if own else ji(n)
        a(f'v_mfma_f32_32x32x16_bf16 {sreg(n)}, {kreg(j,1)}, {qreg(i,1)}, {sreg(n)}')
    def PV(n, u, own=False):
        j, i = (0, 0) if own else ji(n)
        b = S + 16 * (n % 3) + 8 * u
        a(f'v_smfmac_f32_32x32x32_bf16 {oreg(i)}, {vreg(j,u)}, v[{b}:{b+7}], v{IDX}')
    def e(n, k):
        r = S + 16 * (n % 3) + k
        a(f'v_exp_f32 v{r}, v{r}')
    def step(n, slots, last=99):
        e(n, 4); e(n, 5); e(n, 6); e(n, 7)
        if n + 2 <= last: M1(n + 2)
        for x in slots[0]: x()
        e(n, 8); e(n, 9); e(n, 10); e(n, 11)
        PV(n, 0)
        for x in slots[1]: x()
        e(n, 12); e(n, 13); e(n, 14); e(n, 15)
        if n + 2 <= last: M2(n + 2)
        for x in slots[2]: x()
        if n + 1 <= last:
            e(n + 1, 0); e(n + 1, 1); e(n + 1, 2); e(n + 1, 3)
        PV(n, 1)
        for x in slots[3]: x()
    I = lambda t: (lambda: a(t))
    M1(0); M2(0); M1(1); M2(1)
    a(f'v_mov_b32 v{IDX}, 0xdddd')
    a(f's_lshl_b32 s12, {S_HA}, 18')
    a(f's_add_u32 s12, s12, {WS_KV}')
    a(f's_add_u32 s12, s12, {S_KVB}')
    a(f's_mul_i32 s13, {S_WAVE}, 15')
    a(f's_lshl_b32 s16, {S_QB}, 2')
    a('s_cmp_ge_u32 s13, s16')
    a('s_cselect_b32 s18, 4, 0')
    a('s_add_u32 s18, s18, s13')
    a('s_lshl_b32 s18, s18, 12')
    a('s_add_u32 s18, s18, s12')
    a('s_add_u32 s14, s8, s18')
    a('s_addc_u32 s15, s9, 0')
    ids_qkv_rows(S_HA)
    for k in range(4): e(0, k)
    pre = []
    sv_lines = a.lines
    pre_txt = [f's_mov_b32 s19, {5*4096}', 's_mov_b32 s24, 4096', 's_mov_b32 s17, 4',
               f's_mov_b32 s20, {f32(2.0**-64)}', f's_mov_b32 s21, {f32(2.0**64)}',
               f's_add_u32 s51, {S_OT}, {WS_O}', f's_add_u32 s51, s51, {S_BLK}']
    def first_look():
        a(f'buffer_load_dword v{V_PL}, v{V_T0}, {SRD_WS}, 0 offen sc1')
    def check_and_load():
        Lk = uid('look')
        a(f'v_cmp_le_u32 vcc, {S_PROG}, v{V_PL}')
        a('s_and_b32 s48, vcc_lo, 0xffff')
        a('s_cmp_eq_u32 s48, 0xffff')
        a(f's_cbranch_scc1 {Lk}')
        sv = (list(a.st.hist), list(a.st.vm), list(a.st.lg))
        poll(SRD_WS, 0xffff, S_PROG)
        a.st.hist, a.st.vm, a.st.lg = sv
        a.raw(Lk + ':')
        stamp('at_go', True)
        loadkv(1)
        for x in NEXT: a(x)
        loadkv(2)
    for n in range(4):
        sl = [[I(pre_txt.pop(0))] if pre_txt else [] for _ in range(4)]
        if n == LOOK: sl[1].append(first_look)
        if n == LOOK + 1: sl[3].append(check_and_load)
        step(n, sl, 3)
    for x in NEXT: a(x)
    img_base(0, 's60', 's61')
    a(f's_cmp_lg_u32 {S_IT}, 0')
    a(f's_cselect_b32 s60, {OOB}, s60')
    if FINE: stamp('at_own', True)
    for t in range(1, 4):
        a(f's_xor_b32 s22, {S_WAVE}, {t}')
        a('s_mul_i32 s22, s22, 12288')
        a(f's_add_u32 s22, s22, {L_RED + (t-1)*4096}')
        a(f'v_add_u32 v{T+3+t}, s22, v{V_L16}')
    a(f's_mul_i32 s22, {S_WAVE}, 12288')
    a(f's_add_u32 s22, s22, {L_RED}')
    a(f'v_add_u32 v{T+3}, s22, v{V_L16}')
    if TIMG: touch_img_setup(1)
    wob_reads()
    M1(4); M2(4); M1(5); M2(5)
    for k in range(4): e(4, k)
    a('s_waitcnt vmcnt(4)')
    if FINE: stamp('at_pro', True)
    def dman(n):
        for p in range(n):
            a(f'buffer_load_dwordx4 v{V_L16}, {SRD_WS}, s60 offen offset:{p*1024} {SC} lds')
    def tile_slots(u, load, wait, extra=None):
        sl = [[[], [], [], []] for _ in range(4)]
        if load:
            sl[0][1] = [lambda: loadkv((u + 2) % 3)]
            sl[0][2] = [I(NEXT[0])]; sl[0][3] = [I(NEXT[1])]; sl[1][0] = [I(NEXT[2])]; sl[1][1] = [I(NEXT[3])]; sl[1][2] = [I(NEXT[4])]
        if wait is not None:
            sl[1][3] = [I(f's_waitcnt vmcnt({wait})')]
        for (i, k), f in (extra or {}).items():
            sl[i][k] = sl[i][k] + f
        return sl
    DM = lambda n: {(2, 2): [I('s_mov_b32 m0, s61')], (2, 3): [lambda: dman(n)], (3, 0): [I('s_add_u32 s60, s60, 4096')], (3, 1): [I('s_add_u32 s61, s61, 4096')]}
    def body():
        for u in (1, 2, 3):
            ex = DM(4) if u == 1 else ({(3, 1): [I('s_sub_u32 s17, s17, 1')], (3, 2): [I('s_cmp_lg_u32 s17, 0')]} if u == 3 else None)
            sl = tile_slots(u, True, 8 if u == 2 else 4, ex)
            for i in range(4):
                step(4 * u + i, sl[i])
    def tail():
        a('s_cbranch_scc1 attn_loop')
    a.raw('.p2align 3')
    a.loop('attn_loop', body, tail)
    ex = DM(4)
    if TIMG:
        ex[(1, 3)] = [lambda: touch_img(0)]
        ex[(2, 0)] = [lambda: touch_img(1)]
    sl = tile_slots(13, True, 4 + (2 if TIMG else 0), ex)
    for i in range(4): step(52 + i, sl[i])
    ex = {(0, 0): [I('s_mov_b32 m0, s61')], (0, 1): [lambda: dman(1)]}
    if PRE: ex[(0, 3)] = [pretouch]
    ex[(1, 1)] = [lambda: op_resid_load('xa')]
    sl = tile_slots(14, False, 7 + (3 if PRE else 0) + (2 if TIMG else 0), ex)
    for i in range(4): step(56 + i, sl[i])
    def W(t, rg):
        r = O + 16 * t + 4 * rg
        return I(f'ds_write_b128 v{T+3+t}, v[{r}:{r+3}] offset:{rg*1024}')
    def gather():
        a('s_waitcnt lgkmcnt(0)')
        a('s_barrier')
        for t in range(1, 4):
            for rg in range(4):
                r = O + 16 * t + 4 * rg
                a(f'ds_read_b128 v[{r}:{r+3}], v{T+3} offset:{(t-1)*4096 + rg*1024}')
    step(60, [[], [], [], []], 63)
    step(61, [[], [], [W(1, 0)], [W(1, 1)]], 63)
    step(62, [[W(1, 2)], [W(1, 3)], [W(2, 0)], [W(2, 1), W(2, 2)]], 63)
    step(63, [[W(2, 3)], [], [W(3, 0), W(3, 1), W(3, 2), W(3, 3)], [gather]], 63)
    stamp('at_mm', True)
    for t in range(1, 4):
        for r in range(8):
            a(f'v_pk_add_f32 v[{O+2*r}:{O+2*r+1}], v[{O+2*r}:{O+2*r+1}], v[{O+16*t+2*r}:{O+16*t+2*r+1}]')
    a(f'v_mov_b32 v{T}, v{O+12}')
    a(f'v_mov_b32 v{T+1}, v{O+12}')
    a(f'v_permlane32_swap_b32 v{T+1}, v{T}')
    a(f'v_cmp_le_f32 vcc, s20, v{T}')
    a(f'v_cmp_ge_f32 s[22:23], s21, v{T}')
    a('s_and_b64 vcc, vcc, s[22:23]')
    a('s_cmp_eq_u64 vcc, exec')
    a('s_cbranch_scc0 attn_slow')
    a.raw('attn_fin:')
    a(f'v_rcp_f32 v{T}, v{T}')
    for r in range(8):
        a(f'v_pk_mul_f32 v[{O+2*r}:{O+2*r+1}], v[{O+2*r}:{O+2*r+1}], v[{T}:{T+1}] op_sel_hi:[1,0]')
        a(f'v_cvt_pk_bf16_f32 v{P+r}, v{O+2*r}, v{O+2*r+1}')
    lstore([f'buffer_store_dwordx4 v[{P}:{P+3}], v{V_L16}, {SRD_WS}, s51 offen',
            f'buffer_store_dwordx4 v[{P+4}:{P+7}], v{V_L16}, {SRD_WS}, s51 offen offset:1024'])
    stamp('at_epi', True)
    signal(local=True, pre=lambda: (op_unpack(), op_addr())); advance()
    stamp('at_sig', True)

    def slow():
        a.raw('attn_slow:'); a.fresh()
        a('s_waitcnt vmcnt(0) lgkmcnt(0)')
        a('s_nop 15')
        a('s_mov_b32 exec_lo, 0')
        a(f'v_mov_b32 v{Q+6}, 0')
        a(f'v_mov_b32 v{Q+7}, 0')
        a('s_mov_b32 exec_lo, -1')
        a(f'v_mov_b32 v{T+2}, {f32(-3.0e38)}')
        a('s_mov_b32 s13, s12')
        a('s_mov_b32 s17, 64')
        a('s_nop 4')
        def body1():
            loadk(0, 's13')
            M1(0, True); M2(0, True)
            for r in range(0, 16, 2):
                a(f'v_max3_f32 v{T+2}, v{S+r}, v{S+r+1}, v{T+2}')
            a('s_add_u32 s13, s13, 4096')
            a('s_nop 4')
        def tail1():
            a('s_sub_u32 s17, s17, 1')
            a('s_cmp_lg_u32 s17, 0')
            a('s_cbranch_scc1 attn_slow1')
        a.loop('attn_slow1', body1, tail1)
        a(f'v_mov_b32 v{T+3}, v{T+2}')
        a(f'v_permlane32_swap_b32 v{T+2}, v{T+3}')
        a(f'v_max_f32 v{T+2}, v{T+2}, v{T+3}')
        for r in range(16):
            a(f'v_mov_b32 v{O+r}, 0')
        a('s_mov_b32 s13, s12')
        a('s_mov_b32 s17, 64')
        a('s_nop 15')
        def body2():
            loadk(0, 's13'); loadv(0, 's13')
            M1(0, True); M2(0, True)
            for r in range(16):
                a(f'v_sub_f32 v{S+r}, v{S+r}, v{T+2}')
            for r in range(16):
                e(0, r)
            PV(0, 0, True); PV(0, 1, True)
            a('s_add_u32 s13, s13, 4096')
            a('s_nop 15')
        def tail2():
            a('s_sub_u32 s17, s17, 1')
            a('s_cmp_lg_u32 s17, 0')
            a('s_cbranch_scc1 attn_slow2')
        a.loop('attn_slow2', body2, tail2)
        a(f'v_mov_b32 v{T}, v{O+12}')
        a(f'v_mov_b32 v{T+1}, v{O+12}')
        a(f'v_permlane32_swap_b32 v{T+1}, v{T}')
        a('s_nop 4')
        a('s_branch attn_fin')
    return slow

def wob_reads():
    Lw = uid('wob')
    a(f's_cmp_lg_u32 {S_IT}, 0')
    a(f's_cbranch_scc1 {Lw}')
    sv = (list(a.st.hist), list(a.st.lg))
    stage_wo_addr(L_S, 252)
    for n, x in enumerate(stage_wo_reads(1, 252)):
        a(x)
        if n % 12 == 11: a('s_waitcnt lgkmcnt(4)')
    stage_wo_pads(1)
    a('s_waitcnt lgkmcnt(0)')
    a('s_barrier')
    a.st.hist, a.st.lg = sv
    a.raw(Lw + ':')

def build(path):
    prologue()
    phase_qkv(True, True)
    a.raw('layer_loop:'); a.fresh()
    phase_op(True, lambda: phase_qkv(False, False, 'pre'))
    phase_qkv(False, False, 'main')
    slow = phase_attn(wob_reads)
    final = phase_op(False, lambda: phase_qkv(True, False, 'pre'))
    a(f's_cmp_lg_u32 {S_IT}, 0')
    a('s_cbranch_scc1 k_fin')
    phase_qkv(True, False, 'main')
    a(f's_mov_b32 {S_IT}, 1')
    a(f's_mov_b32 {S_BLK}, {BLK}')
    a(f's_mov_b32 {S_KVB}, {KVB}')
    a('s_branch layer_loop')
    final()
    a.raw('k_fin:')
    if INSTR:
        a('s_waitcnt vmcnt(0)')
        a(f'{CLK} s[96:97]')
        a('s_waitcnt lgkmcnt(0)')
        a(f'v_writelane_b32 v{V_ST}, s96, 63')
        a('s_lshl_b32 s48, s2, 2')
        a(f's_add_u32 s48, s48, {S_WAVE}')
        a('s_lshl_b32 s48, s48, 8')
        a(f's_add_u32 s48, s48, {WS_DBG}')
        a(f'v_lshrrev_b32 v{V_T0}, 2, v{V_L16}')
        a(f'buffer_store_dword v{V_ST}, v{V_T0}, {SRD_WS}, s48 offen')
    if DUR:
        a('s_waitcnt vmcnt(0)')
        a('s_memrealtime s[94:95]')
        a('s_not_b32 s92, s92')
        a('s_waitcnt lgkmcnt(0)')
        a(f'v_mov_b32 v{V_T0}, s92')
        a(f'v_mov_b32 v{V_T1}, s94')
        a(f'v_mov_b32 v{V_PL}, 0')
        a('s_mov_b64 exec, 1')
        a(f'buffer_atomic_umax v{V_T0}, v{V_PL}, {SRD_DBG}, 0 offen offset:56 sc1')
        a(f'buffer_atomic_umax v{V_T1}, v{V_PL}, {SRD_DBG}, 0 offen offset:60 sc1')
    if PADT:
        a('s_waitcnt vmcnt(0)')
        a.raw('pad_loop:')
        a('s_memrealtime s[98:99]')
        a('s_waitcnt lgkmcnt(0)')
        a('s_sub_u32 s98, s98, s96')
        a(f's_cmp_lt_u32 s98, {PADT}')
        a('s_cbranch_scc1 pad_loop')
    a.raw('k_end:')
    a('s_endpgm')
    slow()
    a.raw('code_end:')
    doc = """; Interleaved linear-attention (A) / softmax-MHA (B) layers, S=2048 D=448 H=16 Dh=28 -- one persistent kernel, gfx950.
;
; its queries with the exact two-pass true-row-maximum softmax (attn_slow)."""
    out = [doc,
           f'; @launch grid=(256,1,1) block=(256,1,1) lds={LDS_TOTAL}',
           '.amdgcn_target "amdgcn-amd-amdhsa--gfx950"', '.text', a.text(), '.section .rodata,"a"',
           kernel_desc(KNAME, 512, 102, 256)]
    open(path, 'w').write('\n'.join(out) + '\n')
    if INSTR:
        names = {}
        for i, (n, lp) in enumerate(STAMPS):
            names[i] = n + ('0' if lp else '')
            if lp:
                names[i + 27] = n + '1'
        names[63] = 'end'
        assert len(STAMPS) <= 40
        open(path + '.stamps', 'w').write('\n'.join(f'{i} {n}' for i, n in sorted(names.items())))

if __name__ == '__main__':
    path = sys.argv[1] if len(sys.argv) > 1 else f'cdna_kernels/{NAME}.s'
    INSTR = 'instr' in sys.argv[2:]
    if 'cyc' in sys.argv[2:]: CLK = 's_memtime'
    FINE = 'fine' in sys.argv[2:]
    TIMG = 'timg' in sys.argv[2:]
    FINE3 = 'fine3' in sys.argv[2:]
    TLBW = 'tlb' in sys.argv[2:]
    for x in sys.argv[2:]:
        if x.startswith('look='): LOOK = int(x[5:])
        if x.startswith('padt='): PADT = int(x[5:])
        if x.startswith('npb='): NPB = int(x[4:])
        if x.startswith('nkv0='): NKV0 = int(x[5:])
        if x.startswith('xs='): XS = int(x[3:])
        if x.startswith('opd='): OPD = int(x[4:])
        if x.startswith('ope='): OPE = int(x[4:])
        if x.startswith('prew='): PREW = int(x[5:])
        if x.startswith('qbsig='): QBSIG = int(x[6:])
    DUR = 'dur' in sys.argv[2:]
    WARM = 'warm' in sys.argv[2:]
    PRE = 'nopre' not in sys.argv[2:]
    FORCE_GLOBAL = 'noloc' in sys.argv[2:]
    if 'ldplain' in sys.argv[2:]: LD = ''
    if 'ldnt' in sys.argv[2:]: LD = 'nt'
    if 'ldsc0' in sys.argv[2:]: LD = 'sc0'
    DEBUGQ = 'debugq' in sys.argv[2:]
    FINE2 = 'fine2' in sys.argv[2:]
    TOUCH = 'notouch' not in sys.argv[2:]
    build(path)
    print('wrote', path, 'maxv', a.maxv, 'maxa', a.maxa, 'maxs', a.maxs)
```

```python
import sys, struct
sys.path.insert(0, 'dev')
from asmlib import *

NAME = 'interleave_layers__linear_attn_block__softmax_full_mha__prompt'
KNAME = NAME + '_kernel'

def f32(x):
    return '0x%08x' % struct.unpack('<I', struct.pack('<f', x))[0]

X_SIZE = 64 * 28 * 1024
ST_SIZE = 14 * 2048 * 8
_off = 0
def alloc(n, al=65536):
    global _off
    _off = (_off + al - 1) // al * al
    r = _off
    _off += n
    return r
REUSE = 'noreuse' not in sys.argv
if REUSE:
    WS_XA = WS_XB = alloc(X_SIZE)
    WS_STA = WS_STB = alloc(ST_SIZE, 4096)
    WS_O = WS_OA = alloc(64 * 16 * 2048)
    WS_KV = alloc(2 * 16 * 64 * 4096)
    WS_Q = 0
    BLK = 0
    KVB = 16 * 64 * 4096
else:
    WS_XA = alloc(X_SIZE); WS_XB = alloc(X_SIZE)
    WS_STA = alloc(ST_SIZE); WS_STB = alloc(ST_SIZE)
    WS_OA = alloc(64 * 16 * 2048)
    WS_Q = alloc(16 * 64 * 2048)
    WS_KV = alloc(16 * 64 * 4096)
    WS_O = alloc(64 * 16 * 2048)
    BLK = alloc(0)
    KVB = BLK
    _off = 2 * BLK
IMG_HEAD = 84 * 1024
WS_IMG = [alloc(16 * IMG_HEAD), alloc(16 * IMG_HEAD)]
WS_ZERO = alloc(0)
WS_KVACC = alloc(2 * 16 * 4096)
WS_FLAG = alloc(256 * 128, 4096)
WS_LFLAG = alloc(256 * 128, 4096)
WS_CS = alloc(16384, 4096)
ZERO_SIZE = _off - WS_ZERO
NZERO = ZERO_SIZE // 16384
assert ZERO_SIZE == NZERO * 16384 and NZERO == 13
WS_TOTAL = 1 << 28
WS_DBG = 64 << 20
OOB = 0x40000000

LOG2E = 1.4426950408889634
QSCALE = 28 ** -0.5 * LOG2E
ONES2 = 0x3f803f80
SC = 'sc1'
LD = 'sc1'

L_W = 0
L_S = 84 * 1024
L_KV = L_S + 57344
L_M = L_KV + 16384
L_RS = L_M
L_CS = L_M + 512
LDS_TOTAL = 163840
L_RED = L_S + 4096

INSTR = False
CLK = 's_memrealtime'
FINE = False
WWG = 5
PTG = 4
WQL = True
RPX = True
FCH = 0
ISG = 5
WAQ = True
CT = 0
PADT = 0
TIMG = False
NPB = 5
NKV0 = 4
XS = 0
OPD = 3
OPE = 3
FINE3 = False
TLBW = False
PREW = 0
LOOK = 0
QBSIG = 24
DUR = False
WARM = False
PRE = True
RBX = 1
FORCE_GLOBAL = False
DEBUGQ = False
FINE2 = False
TOUCH = True
POLL_LIMIT = 400000

V_L16, V_N, V_HF, V_T0, V_T1, V_PL, V_ST = 1, 2, 3, 4, 5, 6, 7
V_CS = [8, 11]
V_H64, V_ONE = 14, 15
S_WAVE = 's4'
S_RB, S_HQ, S_RP, S_CP, S_HA, S_QB, S_FLAG, S_BLK = 's40', 's41', 's42', 's43', 's41', 's40', 's46', 's47'
S_PROG, S_IT = 's62', 's63'
S_KVB = 's90'
S_OL8, S_OL4, S_OG8, S_OG4, S_ORT, S_OCT = 's91', 's92', 's93', 's94', 's95', 's3'
S_XT, S_STT, S_OT = 's84', 's85', 's86'
S_LOC, S_XCC = 's44', 's45'
SRD_WS, SRD_OUT, SRD_DBG = 's[8:11]', 's[32:35]', 's[36:39]'
SRD_X0, SRD_W, SRD_WO = 's[64:67]', ['s[68:71]', 's[72:75]'], ['s[76:79]', 's[80:83]']
WOA = [0, 128]

a = Asm()
_uid = [0]
def uid(p):
    _uid[0] += 1
    return f'{p}_{_uid[0]}'

STAMPS = []
def stamp(name, looped=False):
    if INSTR:
        i = len(STAMPS)
        STAMPS.append((name, looped))
        a(f'{CLK} s[96:97]')
        if looped:
            a(f's_mul_i32 s98, {S_IT}, 27')
            a(f's_add_u32 s98, s98, {i}')
            a('s_mov_b32 m0, s98')
            a('s_waitcnt lgkmcnt(0)')
            a(f'v_writelane_b32 v{V_ST}, s96, m0')
        else:
            a('s_waitcnt lgkmcnt(0)')
            a(f'v_writelane_b32 v{V_ST}, s96, {i}')

def poll(srd, mask, target):
    L = uid('poll')
    if mask != -1:
        a(f's_mov_b64 exec, {mask}')
    a(f's_mov_b32 s48, {POLL_LIMIT}')
    a('s_waitcnt lgkmcnt(0)')
    a.raw(L + ':')
    a(f'buffer_load_dword v{V_PL}, v{V_T0}, {srd}, 0 offen sc1')
    a('s_sub_u32 s48, s48, 1')
    a('s_cbranch_scc1 k_end')
    a('s_waitcnt vmcnt(0)')
    a(f'v_cmp_le_u32 vcc, {target}, v{V_PL}')
    a('s_cmp_eq_u64 vcc, exec')
    a(f's_cbranch_scc0 {L}')
    if mask != -1:
        a('s_mov_b64 exec, -1')

def signal(inc=1, lg=True, local=False, with_xcc=False, wait_tag=None, barrier=True, pre=None, post=None):
    L = uid('sig')
    V_T0, V_T1, V_PL = (4, 5, 6) if pre is None else (244, 245, 246)
    if pre: pre()
    if barrier:
        if wait_tag:
            a.wait_tag(wait_tag)
        else:
            a('s_waitcnt vmcnt(0) lgkmcnt(0)' if lg else 's_waitcnt vmcnt(0)')
        a('s_barrier')
    a(f's_cmp_lg_u32 {S_WAVE}, 0')
    a(f's_cbranch_scc1 {L}')
    sv = list(a.st.hist)
    a(f's_add_u32 s48, {S_PROG}, {inc}')
    a(f'v_mov_b32 v{V_T0}, s48')
    a(f'v_mov_b32 v{V_PL}, 0')
    a('s_mov_b64 exec, 1')
    if with_xcc:
        a(f'v_mov_b32 v{V_T1}, {S_XCC}')
        a.raw(f'  buffer_store_dwordx2 v[{V_T0}:{V_T1}], v{V_PL}, {SRD_WS}, {S_FLAG} offen sc1')
    elif local:
        a(f's_add_u32 s48, {S_FLAG}, {WS_LFLAG - WS_FLAG}')
        lstore([f'buffer_store_dword v{V_T0}, v{V_PL}, {SRD_WS}, s48 offen'], track=False)
    else:
        a.raw(f'  buffer_store_dword v{V_T0}, v{V_PL}, {SRD_WS}, {S_FLAG} offen sc1')
    a('s_mov_b64 exec, -1')
    a('s_nop 1')
    a.st.hist = sv
    a.raw(L + ':')
    if post: post()

def lstore(stores, track=True):
    L1, L2 = uid('ls'), uid('ls')
    a(f's_cmp_lg_u32 {S_LOC}, 0')
    a(f's_cbranch_scc1 {L1}')
    n0 = len(a.lines)
    sv = (list(a.st.hist), list(a.st.vm), list(a.st.lg))
    for x in stores:
        a(x + ' sc1')
    t1 = a.lines[n0:]
    a.raw(f'  s_branch {L2}')
    a.raw(L1 + ':')
    a.st.hist, a.st.vm, a.st.lg = list(sv[0]), list(sv[1]), list(sv[2])
    for x in stores:
        a(x)
    a.raw(L2 + ':')
    if not track:
        a.st.vm = list(sv[1])

def advance(n=1):
    a(f's_add_u32 {S_PROG}, {S_PROG}, {n}')

def flag_addr(local=False):
    a(f'v_lshlrev_b32 v{V_T0}, 7, v{V_T0}')
    a(f'v_add_u32 v{V_T0}, {WS_LFLAG if local else WS_FLAG}, v{V_T0}')

def ids16(sreg):
    a(f'v_lshrrev_b32 v{V_T1}, 4, v{V_L16}')
    a(f'v_lshrrev_b32 v{V_T0}, 1, v{V_T1}')
    a(f'v_and_b32 v{V_T1}, 1, v{V_T1}')
    a(f'v_lshl_add_u32 v{V_T0}, v{V_T1}, 3, v{V_T0}')
    a(f's_lshl_b32 s48, {sreg}, 4')
    a(f'v_add_u32 v{V_T0}, s48, v{V_T0}')
    flag_addr()

def ids_qkv_rows(hreg):
    if RBX == 1:
        return ids16(hreg)
    a(f'v_lshrrev_b32 v{V_T0}, 6, v{V_L16}')
    a(f'v_lshlrev_b32 v{V_T0}, 1, v{V_T0}')
    a(f'v_bfe_u32 v{V_T1}, v{V_L16}, 4, 2')
    a(f'v_lshl_add_u32 v{V_T0}, v{V_T1}, 3, v{V_T0}')
    a(f's_lshr_b32 s48, {hreg}, 3')
    a(f's_and_b32 s49, {hreg}, 7')
    a('s_lshl_b32 s49, s49, 5')
    a('s_add_u32 s48, s48, s49')
    a(f'v_add_u32 v{V_T0}, s48, v{V_T0}')
    flag_addr()

def ids_qkv_heads(rbreg):
    if RBX == 1:
        a(f's_lshr_b32 s48, {rbreg}, 1')
        a(f's_and_b32 s49, {rbreg}, 1')
        a('s_lshl_b32 s49, s49, 3')
        a('s_add_u32 s48, s48, s49')
        a(f'v_add_u32 v{V_T0}, s48, v{V_L16}')
        return flag_addr(True)
    a(f'v_lshrrev_b32 v{V_T0}, 7, v{V_L16}')
    a(f'v_bfe_u32 v{V_T1}, v{V_L16}, 4, 3')
    a(f'v_lshl_add_u32 v{V_T0}, v{V_T1}, 5, v{V_T0}')
    a(f's_lshr_b32 s48, {rbreg}, 2')
    a('s_lshl_b32 s48, s48, 1')
    a(f's_and_b32 s49, {rbreg}, 3')
    a('s_lshl_b32 s49, s49, 3')
    a('s_add_u32 s48, s48, s49')
    a(f'v_add_u32 v{V_T0}, s48, v{V_T0}')
    flag_addr()

V_DUM = 250
def pretouch_setup(isA, blk):
    o, x, st = (WS_OA, WS_XA, WS_STA) if isA else (WS_O, WS_XB, WS_STB)
    for r, base, off in (('s87', S_OT, o), ('s88', S_XT, x), ('s89', S_STT, st)):
        if isinstance(blk, int):
            a(f's_add_u32 {r}, {base}, {off + blk}')
        else:
            a(f's_add_u32 {r}, {base}, {off}')
            a(f's_add_u32 {r}, {r}, {blk}')
    a(f'v_lshlrev_b32 v{V_DUM}, 1, v{V_L16}')
def pretouch():
    if PRE:
        a(f'buffer_load_dword v255, v{V_DUM}, {SRD_WS}, s87 offen sc1')
        a(f'buffer_load_dword v255, v{V_DUM}, {SRD_WS}, s88 offen sc1')
        a('s_mov_b64 exec, 0xff')
        a(f'buffer_load_dword v255, v{V_DUM}, {SRD_WS}, s89 offen sc1')
        a('s_mov_b64 exec, -1')

def prewrite():
    if PREW == 0:
        return pretouch()
    if PREW in (2, 3):
        return
    if PREW == 4:
        a(f'buffer_load_dword v255, v{V_DUM}, {SRD_WS}, s88 offen sc1')
        a('s_mov_b64 exec, 0xff')
        a(f'buffer_load_dword v255, v{V_DUM}, {SRD_WS}, s89 offen sc1')
        a('s_mov_b64 exec, -1')
        return
    a(f's_cmp_ge_u32 {S_CP}, 7')
    a(f's_cselect_b32 s88, {OOB}, s88')
    a(f's_cselect_b32 s89, {OOB}, s89')
    for sr in ('s87', 's88'):
        a(f'buffer_store_dwordx4 v[0:3], v{V_L16}, {SRD_WS}, {sr} offen')
        a(f'buffer_store_dwordx4 v[0:3], v{V_L16}, {SRD_WS}, {sr} offen offset:1024')
    a('s_mov_b64 exec, 0xffff')
    a(f'buffer_store_dwordx4 v[0:3], v{V_L16}, {SRD_WS}, s89 offen')
    a('s_mov_b64 exec, -1')

def touch_img_setup(which):
    a(f's_mul_i32 s25, {S_HQ}, {IMG_HEAD}')
    a(f's_and_b32 s49, {S_RB}, 1')
    a(f's_lshl_b32 s49, s49, 2')
    a(f's_add_u32 s49, s49, {S_WAVE}')
    a(f's_mul_i32 s49, s49, {IMG_HEAD // 8}')
    a('s_add_u32 s25, s25, s49')
    a(f's_add_u32 s25, s25, {WS_IMG[which]}')
    a(f's_cmp_lg_u32 {S_IT}, 0')
    a(f's_cselect_b32 s25, {OOB}, s25')
    a('s_add_u32 s26, s25, 8192')
    a(f'v_lshlrev_b32 v254, 3, v{V_L16}')
def touch_img(k):
    if k == 0:
        a(f'buffer_load_dword v255, v254, {SRD_WS}, s25 offen sc1')
    else:
        a('s_mov_b64 exec, 0xfffff')
        a(f'buffer_load_dword v255, v254, {SRD_WS}, s26 offen sc1')
        a('s_mov_b64 exec, -1')

def code_touch_wg(stride=6, lo=0):
    L = uid('ct')
    a(f's_sub_u32 s48, s2, {lo}')
    a('s_cmp_ge_u32 s48, 16')
    a(f's_cbranch_scc1 {L}')
    sv = list(a.st.hist)
    a('s_lshr_b32 s48, s48, 3')
    a(f's_lshl_b32 s48, s48, {8+stride}')
    a(f'v_lshl_add_u32 v254, v0, {stride}, s48')
    a('v_min_u32 v254, code_end-pc_base-4, v254')
    a.raw('  global_load_dword v255, v254, s[54:55]')
    a.st.hist = sv
    a.raw(L + ':')

def code_touch_addr(r):
    a('s_lshr_b32 s6, s2, 3')
    a('s_lshl_b32 s6, s6, 9')
    a(f'v_lshrrev_b32 v{r}, 6, v0')
    a(f'v_lshl_add_u32 v{r}, v{r}, 7, s6')
    a(f'v_and_b32 v254, 63, v0')
    a(f'v_lshl_add_u32 v{r}, v254, 14, v{r}')
    a(f'v_min_u32 v{r}, code_end-pc_base-4, v{r}')
def code_touch(r, raw=False):
    a('s_mov_b64 exec, 7')
    t = f'global_load_dword v255, v{r}, s[54:55]'
    if raw: a.raw('  ' + t)
    else: a(t)
    a('s_mov_b64 exec, -1')

def prologue():
    a.raw(kernel_header(KNAME))
    a('s_cmp_ge_u32 s2, 256')
    a('s_cbranch_scc1 k_end')
    a('s_getpc_b64 s[54:55]')
    a.raw('pc_base:')
    if CT == 0:
        code_touch_wg()
    elif CT in (1, 2):
        code_touch_addr(249)
        code_touch(249, raw=True)
    if PADT: a('s_memrealtime s[96:97]')
    a('s_load_dwordx2 s[64:65], s[0:1], 0')
    a('s_load_dwordx2 s[68:69], s[0:1], 8')
    a('s_load_dwordx2 s[8:9], s[0:1], 64')
    a('s_load_dwordx2 s[76:77], s[0:1], 16')
    a('s_load_dwordx2 s[72:73], s[0:1], 32')
    a('s_load_dwordx2 s[80:81], s[0:1], 40')
    a('s_load_dwordx2 s[32:33], s[0:1], 48')
    a('s_load_dwordx2 s[36:37], s[0:1], 56')
    a(f'v_and_b32 v13, 63, v0')
    a(f'v_lshrrev_b32 v{V_T0}, 6, v0')
    a(f'v_and_b32 v{V_N}, 31, v0')
    a(f'v_readfirstlane_b32 {S_WAVE}, v{V_T0}')
    a(f'v_bfe_u32 v{V_HF}, v0, 5, 1')
    a(f'v_lshlrev_b32 v{V_L16}, 4, v13')
    a(f'v_mov_b32 v{V_ST}, 0')
    a('s_and_b32 s5, s2, 7')
    a('s_lshr_b32 s6, s2, 3')
    if RBX == 2:
        a('s_lshl_b32 s7, s5, 1')
        a('s_and_b32 s7, s7, 12')
        a('s_and_b32 s12, s6, 3')
        a(f's_add_u32 {S_RB}, s7, s12')
        a('s_and_b32 s7, s5, 1')
        a('s_lshl_b32 s7, s7, 3')
        a('s_lshr_b32 s12, s6, 2')
        a(f's_add_u32 {S_HQ}, s7, s12')
    else:
        a('s_lshl_b32 s7, s5, 1')
        a('s_and_b32 s12, s6, 1')
        a(f's_add_u32 {S_RB}, s7, s12')
        a(f's_lshr_b32 {S_HQ}, s6, 1')
    a('s_lshl_b32 s7, s5, 2')
    a('s_and_b32 s12, s6, 3')
    a(f's_add_u32 {S_RP}, s7, s12')
    a(f's_lshr_b32 {S_CP}, s6, 2')
    a(f's_lshr_b32 s7, {S_WAVE}, 1')
    a(f's_lshl_b32 s12, {S_RP}, 1')
    a('s_add_u32 s7, s7, s12')
    a(f's_and_b32 s12, {S_WAVE}, 1')
    a(f's_min_u32 s13, {S_CP}, 6')
    a('s_lshl_b32 s13, s13, 1')
    a('s_add_u32 s12, s12, s13')
    a(f's_mov_b32 {S_ORT}, s7')
    a(f's_lshl_b32 s13, {S_WAVE}, 12')
    a('s_and_b32 s13, s13, 0x1000')
    a(f's_lshl_b32 s14, {S_WAVE}, 14')
    a('s_and_b32 s14, s14, 0x8000')
    a(f's_add_u32 s14, s14, {L_S}')
    a(f's_add_u32 {S_OL8}, s14, s13')
    a('s_lshl_b32 s15, s7, 15')
    a(f's_add_u32 {S_OG8}, s15, s13')
    a('s_lshr_b32 s13, s13, 1')
    a(f's_add_u32 {S_OL4}, s14, s13')
    a(f's_add_u32 {S_OG4}, s15, s13')
    a(f's_mul_i32 {S_XT}, s7, {28*1024}')
    a('s_lshl_b32 s13, s12, 11')
    a(f's_add_u32 {S_XT}, {S_XT}, s13')
    a(f's_lshl_b32 {S_STT}, s12, 14')
    a('s_lshl_b32 s13, s7, 8')
    a(f's_add_u32 {S_STT}, {S_STT}, s13')
    a(f's_lshl_b32 {S_OT}, {S_RB}, 2')
    a(f's_add_u32 {S_OT}, {S_OT}, {S_WAVE}')
    a(f's_lshl_b32 {S_OT}, {S_OT}, 15')
    a(f's_lshl_b32 s13, {S_HQ}, 11')
    a(f's_add_u32 {S_OT}, {S_OT}, s13')
    a(f's_lshl_b32 {S_FLAG}, s2, 7')
    a(f's_add_u32 {S_FLAG}, {S_FLAG}, {WS_FLAG}')
    a(f's_mov_b32 {S_BLK}, 0')
    a(f's_mov_b32 {S_KVB}, 0')
    a(f's_getreg_b32 {S_XCC}, hwreg(HW_REG_XCC_ID, 0, 4)')
    a(f's_add_u32 {S_XCC}, {S_XCC}, 1')
    a(f's_mov_b32 {S_LOC}, 0')
    a(f's_mov_b32 {S_PROG}, 0')
    a(f's_mov_b32 {S_IT}, 0')
    for r in (11, 35, 39, 67, 71, 75, 79, 83):
        a(f's_mov_b32 s{r}, 0x20000')
    a(f's_mov_b32 s10, {WS_TOTAL}')
    a(f's_mov_b32 s34, {2048*448*2}')
    a('s_mov_b32 s38, 256')
    a(f's_mov_b32 s66, {2048*448*2}')
    a(f's_mov_b32 s70, {448*1344*2}')
    a(f's_mov_b32 s74, {448*1344*2}')
    a(f's_mov_b32 s78, {448*448*2}')
    a(f's_mov_b32 s82, {448*448*2}')
    a(f'v_add_u32 v{V_H64}, 65536, v{V_L16}')
    a(f'v_cmp_eq_u32 vcc, 28, v{V_N}')
    a(f'v_mov_b32 v{V_ONE}, {ONES2}')
    a(f'v_cndmask_b32 v{V_ONE}, 0, v{V_ONE}, vcc')
    a('s_waitcnt lgkmcnt(0)')
    for r in (9, 33, 37, 65, 69, 73, 77, 81):
        a(f's_and_b32 s{r}, s{r}, 0xffff')
    if TLBW:
        a('s_lshr_b32 s12, s2, 3')
        a('s_lshl_b32 s12, s12, 2')
        a(f's_add_u32 s12, s12, {S_WAVE}')
        a(f'v_mov_b32 v254, 0')
        a('s_mov_b64 exec, 1')
        a('s_lshr_b32 s13, s12, 2')
        a('s_lshl_b32 s13, s13, 19')
        a('s_and_b32 s14, s12, 3')
        a('s_cmp_eq_u32 s14, 3')
        a(f's_cselect_b32 s13, s13, {OOB}')
        a.raw(f'  buffer_load_dword v255, v254, {SRD_WS}, s13 offen offset:3968 sc1')
        for k, srd in enumerate((SRD_WO[0], SRD_WO[1], SRD_W[1], SRD_OUT, SRD_DBG, SRD_W[0])):
            a(f's_cmp_eq_u32 s12, {4*(3*k+1) + 2}')
            a(f's_cselect_b32 s13, 128, {OOB}') if False else (a(f's_mov_b32 s13, {OOB}'), a('s_cselect_b32 s13, 64, s13'))
            a.raw(f'  buffer_load_dword v255, v254, {srd}, s13 offen sc1')
        a('s_mov_b64 exec, -1')
    stamp('start')

ZROLE0 = 243
def zero_role():
    L = uid('z')
    a(f's_cmp_lt_u32 s2, {ZROLE0}')
    a(f's_cbranch_scc1 {L}')
    a(f's_sub_u32 s3, s2, {ZROLE0}')
    a('s_lshl_b32 s53, s3, 14')
    a(f's_add_u32 s53, s53, {WS_ZERO}')
    a('v_lshlrev_b32 v16, 4, v0')
    for i in range(4):
        a(f'v_mov_b32 v{20+i}, 0')
    for i in range(4):
        a.raw(f'  buffer_store_dwordx4 v[20:23], v16, {SRD_WS}, s53 offen {SC}')
        if i < 3:
            a('s_add_u32 s53, s53, 4096')
    a('s_lshl_b32 s3, s3, 2')
    a.raw(L + ':')

def zero_publish():
    L = uid('z')
    a(f's_cmp_lt_u32 s2, {ZROLE0}')
    a(f's_cbranch_scc1 {L}')
    a(f's_cmp_lg_u32 {S_WAVE}, 0')
    a(f's_cbranch_scc1 {L}')
    sv = list(a.st.hist)
    a(f'v_mov_b32 v{V_T1}, 1')
    a(f'v_mov_b32 v{V_PL}, 0')
    a('s_mov_b64 exec, 1')
    a.raw(f'  buffer_store_dword v{V_T1}, v{V_PL}, {SRD_DBG}, s3 offen sc1')
    a('s_mov_b64 exec, -1')
    a.st.hist = sv
    a.raw(L + ':')

def img_base(which, sg, sl):
    a(f's_mul_i32 {sl}, {S_WAVE}, {21*1024}')
    a(f's_mul_i32 {sg}, {S_HQ}, {IMG_HEAD}')
    a(f's_add_u32 {sg}, {sg}, {sl}')
    a(f's_add_u32 {sg}, {sg}, {WS_IMG[which]}')

def img_dma(n, sg, sl):
    a(f's_mov_b32 m0, {sl}')
    a(f's_add_u32 {sl}, {sl}, {n*1024}')
    for i in range(n):
        a(f'buffer_load_dwordx4 v{V_L16}, {SRD_WS}, {sg} offen offset:{i*1024} {SC} lds')
    a(f's_add_u32 {sg}, {sg}, {n*1024}')

def wb_kv(i):
    a(f's_add_u32 m0, s61, {i*3072}')
    a(f's_add_u32 s59, s60, {i*3072}')
    for p in (1, 2):
        a(f'buffer_load_dwordx4 v{V_L16}, {SRD_WS}, s59 offen offset:{p*1024} {SC} lds')
def wb_q(i):
    op = 's_add_u32' if i >= 0 else 's_sub_u32'
    a(f'{op} m0, s61, {abs(i)*3072}')
    a(f'{op} s59, s60, {abs(i)*3072}')
    a(f'buffer_load_dwordx4 v{V_L16}, {SRD_WS}, s59 offen {SC} lds')

def w_prefetch(which, parts):
    for n in parts:
        img_dma(n, 's60', 's61')

def stage_wo_issue(which, lds, tmp, tag, defer=False):
    a(f'v_lshrrev_b32 v{tmp}, 7, v{V_L16}')
    a(f'v_mul_u32_u24 v{tmp}, 896, v{tmp}')
    a(f'v_lshrrev_b32 v{tmp+1}, 2, v{V_L16}')
    a(f'v_and_b32 v{tmp+1}, 64, v{tmp+1}')
    a(f'v_xor_b32 v{tmp+1}, v{tmp+1}, v{V_L16}')
    a(f'v_and_b32 v{tmp+1}, 0x70, v{tmp+1}')
    a(f's_min_u32 s48, {S_CP}, 6')
    a('s_lshl_b32 s48, s48, 7')
    a(f'v_add3_u32 v{tmp}, v{tmp}, v{tmp+1}, s48')
    a(f's_mul_i32 s26, {S_WAVE}, {112*896}')
    a(f's_mul_i32 s27, {S_WAVE}, {14*1024}')
    def one(i, wh=which, tg=tag):
        a(f's_add_u32 m0, s27, {lds + i*1024}')
        a(f's_add_u32 s25, s26, {i*7168}')
        a.inst(f'buffer_load_dwordx4 v{tmp}, {SRD_WO[wh]}, s25 offen lds', tag=tg)
    class TH(list): pass
    th = TH((lambda i=i: one(i)) for i in range(14))
    th.one = one
    return th

def stage_wo_addr(lds, tmp):
    a(f'v_bfe_u32 v{tmp}, v{V_L16}, 6, 2')
    a(f'v_lshl_add_u32 v{tmp}, v{V_HF}, 2, v{tmp}')
    a(f'v_lshlrev_b32 v{tmp}, 7, v{tmp}')
    a(f'v_bfe_u32 v{tmp+1}, v{V_L16}, 7, 1')
    a(f's_and_b32 s49, {S_WAVE}, 1')
    a(f'v_xor_b32 v{tmp+1}, s49, v{tmp+1}')
    a(f'v_lshl_add_u32 v{tmp}, v{tmp+1}, 6, v{tmp}')
    a(f'v_bfe_u32 v{tmp+1}, v{V_L16}, 8, 1')
    a(f'v_lshl_add_u32 v{tmp}, v{tmp+1}, 5, v{tmp}')
    a(f'v_bfe_u32 v{tmp+1}, v{V_L16}, 4, 2')
    a(f'v_lshl_add_u32 v{tmp}, v{tmp+1}, 3, v{tmp}')
    a(f'v_add_u32 v{tmp}, {lds}, v{tmp}')

def stage_wo_reads(which, tmp):
    B = WOA[which]
    return [f'ds_read_b64_tr_b16 a[{B + 4*(2*h+u) + 2*q}:{B + 4*(2*h+u) + 2*q + 1}], v{tmp} offset:{(28*h + 16*u + 8*q)*128}'
            for h in range(16) for u in range(2) for q in range(2)]

def stage_wo_pads(which):
    B = WOA[which]
    a('s_mov_b32 exec_lo, 0')
    for h in range(16):
        r = B + 4 * (2 * h + 1) + 2
        a(f'v_accvgpr_write_b32 a{r}, 0')
        a(f'v_accvgpr_write_b32 a{r+1}, 0')
    a('s_mov_b32 exec_lo, -1')

X, AK, AV, AQ, WR, RS, WE, XE, T, E = 16, 128, 144, 160, 176, 200, 216, 228, 232, 244
ST = AQ
NWR = 6

def ln_stats(isA):
    L = [f's_mov_b32 s16, {f32(1.0/448)}',
         f'v_mul_f32 v{ST}, s16, v{ST}',
         f'v_mul_f32 v{ST+1}, s16, v{ST+1}',
         f'v_fma_f32 v{ST+1}, -v{ST}, v{ST}, v{ST+1}',
         f'v_max_f32 v{ST+1}, 0, v{ST+1}',
         f'v_add_f32 v{ST+1}, {f32(1e-5)}, v{ST+1}',
         f'v_rsq_f32 v{T}, v{ST+1}',
         f'v_sub_f32 v{ST}, 0, v{ST}',
         f'ds_write_b32 v{T+8}, v{T}']
    L += [f'ds_read_b128 v[{RS+4*g}:{RS+4*g+3}], v{T+9} offset:{32*g}' for g in range(4)]
    L += [f'v_and_b32 v{T+4}, 0xffff0000, v{ST}',
          f'v_sub_f32 v{T+5}, v{ST}, v{T+4}',
          f'v_and_b32 v{T+6}, 0xffff0000, v{T+5}',
          f'v_sub_f32 v{T+7}, v{T+5}, v{T+6}',
          f'v_perm_b32 v{XE}, v{T+4}, v{T+4}, s17',
          f'v_perm_b32 v{XE+1}, v{T+6}, v{T+4}, s17',
          f'v_perm_b32 v{XE+2}, v{T+7}, v{T+6}, s17',
          f'v_mov_b32 v{XE+3}, 0',
          f'v_mul_f32 v{T+2}, {f32(LOG2E if isA else QSCALE)}, v{T}']
    return L

def rs_addr():
    a(f's_lshl_b32 s18, {S_WAVE}, 7')
    a(f's_add_u32 s18, s18, {L_RS}')
    a(f'v_lshl_add_u32 v{T+8}, v{V_N}, 2, s18')
    a(f'v_lshl_add_u32 v{T+9}, v{V_HF}, 4, s18')
    a('s_mov_b32 s17, 0x07060302')

def halves_add(r, n, tmp):
    return ([f'v_mov_b32 v{tmp+i}, v{r+i}' for i in range(n)] +
            [f'v_permlane32_swap_b32 v{r+i}, v{tmp+i}' for i in range(n)] +
            [f'v_add_f32 v{r+i}, v{r+i}, v{tmp+i}' for i in range(n)])

def we_build(which, c):
    L = [f'v_cmp_eq_u32 s[56:57], 0, v{V_HF}']
    for p in (1, 2, 0):
        L += [f'v_cndmask_b32 v{c}, 0, v{V_CS[which]+p}, s[56:57]',
              f'v_and_b32 v{c+1}, 0xffff0000, v{c}',
              f'v_sub_f32 v{c}, v{c}, v{c+1}',
              f'v_and_b32 v{c+2}, 0xffff0000, v{c}',
              f'v_sub_f32 v{c+3}, v{c}, v{c+2}',
              f'v_perm_b32 v{WE+4*p}, v{c+2}, v{c+1}, s17',
              f'v_perm_b32 v{WE+4*p+1}, v{c+1}, v{c+3}, s17',
              f'v_perm_b32 v{WE+4*p+2}, v{c+1}, v{c+2}, s17',
              f'v_mov_b32 v{WE+4*p+3}, 0']
    return L

AT_Q = 16

def phase_qkv(isA, first, mode='all'):
    lp = not isA
    nm = 'qa0' if first else ('qa1' if isA else 'qb')
    wsel = 0 if isA else 1
    trans = [True, not isA, False]
    accb = [AQ, AK, AV]
    started = [False] * 3
    fill = []
    def pop(n):
        for _ in range(n):
            if fill:
                x = fill.pop(0)
                if callable(x): x()
                else: a(x)
    def mm(p, w, x):
        d = f'v[{accb[p]}:{accb[p]+15}]'
        c = d if started[p] else '0'
        started[p] = True
        if trans[p]:
            a(f'v_mfma_f32_32x32x16_bf16 {d}, {w}, {x}, {c}')
        else:
            a(f'v_mfma_f32_32x32x16_bf16 {d}, {x}, {w}, {c}')
    seq = [(t, p) for t in range(28) for p in (1, 2)] + [(t, 0) for t in range(28)]
    AH = NWR - 1
    def wread(i):
        if i < len(seq):
            t, p = seq[i]
            r = WR + 4 * (i % NWR)
            o = L_W + (3 * t + p) * 1024
            if first:
                for q in range(2):
                    a(f'ds_read_b64_tr_b16 v[{r+2*q}:{r+2*q+1}], v{T+10 + (o >= 65536)} offset:{o % 65536 + q*512}')
            else:
                a(f'ds_read_b128 v[{r}:{r+3}], v{V_L16 if o < 65536 else V_H64} offset:{o % 65536}')
    def wmm(i):
        t, p = seq[i]
        r = WR + 4 * (i % NWR)
        mm(p, f'v[{r}:{r+3}]', f'v[{X+4*t}:{X+4*t+3}]')
    def extra(p):
        mm(p, f'v[{WE+4*p}:{WE+4*p+3}]', f'v[{XE}:{XE+3}]')
    if mode != 'pre': a.raw(f'; ======== QKV projection ({nm}) ========')
    n_keep = len(a.lines)
    a(f's_lshl_b32 s7, {S_RB}, 2')
    a(f's_add_u32 s7, s7, {S_WAVE}')
    a(f's_mul_i32 s20, s7, {28*1024}')
    if first:
        XD, XA, WDV, F, TM = AQ + 4, AQ + 6, AQ + 14, RS, WE
        zero_role()
        a(f'v_lshrrev_b32 v{WDV}, 6, v{V_L16}')
        a(f'v_mul_u32_u24 v{WDV}, 2688, v{WDV}')
        a(f'v_and_b32 v{TM}, 48, v{V_L16}')
        a(f's_mul_i32 s12, {S_HQ}, 56')
        a('s_and_b32 s14, s12, 8')
        a('s_sub_u32 s12, s12, s14')
        a(f'v_add3_u32 v{WDV}, v{WDV}, v{TM}, s12')
        a(f's_lshl_b32 s23, {S_RB}, 1')
        a(f's_add_u32 s23, s23, {S_HQ}')
        a('s_mul_i32 s24, s23, 37')
        a('s_lshr_b32 s24, s24, 8')
        a('s_mul_i32 s24, s24, 7')
        a('s_sub_u32 s23, s23, s24')
        a(f's_mul_i32 s15, {S_WAVE}, 3072')
        a(f's_mul_i32 s22, {S_WAVE}, 43008')
        def issue_w(g):
            a(f's_mul_i32 s24, s23, {4*43008}')
            a('s_add_u32 s24, s24, s22')
            for p in (1, 2):
                a(f's_add_u32 m0, s15, {g*12288 + p*1024}')
                a('s_add_u32 s24, s24, 896')
                a.inst(f'buffer_load_dwordx4 v{WDV}, {SRD_W[0]}, s24 offen lds', tag=f'w{g}')
        if FINE2: stamp('p_a')
        issue_w(0)
        a(f'v_lshrrev_b32 v{TM+2}, 7, v{V_L16}')
        a(f'v_mul_u32_u24 v{TM+2}, 896, v{TM+2}')
        a(f'v_bfe_u32 v{TM+3}, v{V_L16}, 4, 3')
        a(f'v_lshrrev_b32 v{TM+4}, 8, v{V_L16}')
        a(f'v_xor_b32 v{TM+3}, v{TM+3}, v{TM+4}')
        a(f'v_lshl_add_u32 v{XD}, v{TM+3}, 4, v{TM+2}')
        a(f'v_xor_b32 v{TM+3}, 4, v{TM+3}')
        a(f'v_lshl_add_u32 v{XD+1}, v{TM+3}, 4, v{TM+2}')
        a(f's_mul_i32 s21, {S_WAVE}, 12288')
        a(f's_add_u32 s21, s21, {L_S}')
        def rot_next():
            a('s_add_u32 s23, s23, 1')
            a('s_cmp_eq_u32 s23, 7')
            a('s_cselect_b32 s23, 0, s23')
        def issue_x(g):
            a(f's_add_u32 m0, s21, {(g%3)*4096}')
            a('s_lshl_b32 s24, s23, 7')
            a('s_add_u32 s24, s24, s20')
            for i in range(4):
                if i: a('s_add_u32 s24, s24, 6144')
                a.inst(f'buffer_load_dwordx4 v{XD+(i&1)}, {SRD_X0}, s24 offen offset:{i*1024} lds', tag=f'g{g}')
            rot_next()
        issue_x(0)
        if FINE2: stamp('p_x0')
        if WARM:
            a('s_lshr_b32 s24, s2, 3')
            a('s_lshl_b32 s24, s24, 2')
            a(f's_add_u32 s24, s24, {S_WAVE}')
            a(f'v_lshlrev_b32 v254, 3, v{V_L16}')
            a(f's_and_b32 s25, {S_RB}, 14')
            a(f's_mul_i32 s25, s25, {128*896}')
            a(f's_mul_i32 s26, s24, {14*128}')
            a('s_add_u32 s25, s25, s26')
            a('s_mov_b64 exec, 0x3fff')
            a(f'buffer_load_dword v255, v254, {SRD_X0}, s25 offen')
            a(f's_mul_i32 s26, s24, {74*128}')
            a('s_mov_b64 exec, 0x3ff')
            a(f'buffer_load_dword v255, v254, {SRD_W[0]}, s26 offen')
            a('s_mov_b64 exec, -1')
            a(f'buffer_load_dword v255, v254, {SRD_W[0]}, s26 offen offset:{10*128}')
        a(f's_lshl_b32 s13, {S_WAVE}, 12')
        a(f's_add_u32 s13, s13, {L_KV}')
        if FINE2: stamp('p_rp')
        a(f'v_bfe_u32 v{TM+2}, v{V_N}, 1, 3')
        a(f'v_lshl_add_u32 v{TM+3}, v{V_N}, 7, s21')
        a(f'v_lshl_add_u32 v{TM+3}, v{V_HF}, 3, v{TM+3}')
        for q in range(8):
            a(f'v_xor_b32 v{TM+4}, {q}, v{TM+2}')
            a(f'v_lshl_add_u32 v{XA+q}, v{TM+4}, 4, v{TM+3}')
        a(f'v_and_b32 v{TM+2}, 0xc0, v{V_L16}')
        a(f'v_lshl_add_u32 v{TM+2}, v{V_HF}, 8, v{TM+2}')
        a(f'v_bfe_u32 v{TM+3}, v{V_L16}, 8, 1')
        a(f'v_lshl_add_u32 v{TM+2}, v{TM+3}, 5, v{TM+2}')
        a(f'v_bfe_u32 v{TM+3}, v{V_L16}, 4, 2')
        a(f'v_lshl_add_u32 v{TM+2}, v{TM+3}, 3, v{TM+2}')
        a(f'v_add_u32 v{T+10}, s14, v{TM+2}')
        a(f'v_add_u32 v{T+11}, 65536, v{T+10}')
        if RPX:
            a(f's_xor_b32 s50, {S_HQ}, 1')
            a('s_xor_b32 s24, s14, 8')
            a('s_add_u32 s24, s24, s13')
            a(f'v_add_u32 v{TM+2}, s24, v{TM+2}')
            a('s_mul_i32 s24, s14, 12')
            a('s_sub_u32 s24, 48, s24')
            a(f'v_add_u32 v{TM+1}, s24, v{WDV}')
        else:
            a(f's_mov_b32 s50, {S_HQ}')
            a(f'v_add_u32 v{TM+2}, s13, v{T+10}')
            a(f'v_mov_b32 v{TM+1}, v{WDV}')
        a(f'v_lshlrev_b32 v{E}, 2, v{V_N}')
        a(f'v_lshrrev_b32 v{V_T0}, 2, v{V_L16}')
        a(f's_mov_b32 s19, {ONES2}')
        a(f'v_mov_b32 v{ST}, 0')
        a(f'v_mov_b32 v{ST+1}, 0')
        rs_addr()
        CA, CS, CR = E + 1, E + 3, XE
        a(f'v_add_u32 v{CA}, s15, v{T+10}')
        a(f'v_add_u32 v{CA+1}, s15, v{T+11}')
        a(f'v_mov_b32 v{CS}, 0')
        a(f'v_mov_b32 v{CS+1}, 0')
        if FINE2: stamp('p_adr')
        issue_w(1); issue_x(1)
        if CT == 3: code_touch_wg()
        if CT == 4: code_touch_wg(6, 224)
        if CT == 5:
            code_touch_addr(249); code_touch(249, raw=True)
        if FINE2: stamp('p_g1')
        if FINE2:
            a.wait_tag('g0'); stamp('p_g0w')
        CRS = [[XE, T + 4], [V_CS[0], X + 108]]
        def cs_read(gg, slot):
            for k, p in enumerate((1, 2)):
                for q in range(2):
                    o = gg * 12288 + p * 1024 + q * 512
                    r = CRS[slot][k] + 2 * q
                    a(f'ds_read_b64_tr_b16 v[{r}:{r+1}], v{CA + (o >= 65536)} offset:{o % 65536}')
        def cs_dot(slot):
            for r in range(4):
                for k in range(2):
                    a(f'v_dot2_f32_bf16 v{CS+k}, v{CRS[slot][k]+r}, s19, v{CS+k}')
        def open_group(g):
            a.wait_tag(f'g{g}')
            if g == ISG:
                a.wait_tag('pub')
            if g == 6:
                a.wait_tag('csw', 'lg')
            a('s_barrier')
            if g == 0:
                zero_publish()
            if g == ISG:
                signal(1, with_xcc=True, barrier=False); advance()
                if FINE: stamp('i_sig')
            for q in range(8):
                r = X + 16 * g + 2 * q
                a(f'ds_read_b64 v[{r}:{r+1}], v{XA+q} offset:{(g%3)*4096}')
            if g < 6:
                cs_read(g, 0)
        def rp_issue():
            for k in range(2):
                a(f's_add_u32 s24, s7, {64*k}')
                a('s_mul_i32 s25, s24, 171')
                a('s_lshr_b32 s25, s25, 9')
                a('s_mul_i32 s26, s25, 45')
                a('s_add_u32 s26, s26, s24')
                a('s_mul_i32 s26, s26, 896')
                if k:
                    a('s_cmp_ge_u32 s24, 84')
                    a(f's_cselect_b32 s26, {OOB}, s26')
                for wh in range(2):
                    a(f's_add_u32 m0, s13, {(2*k+wh)*1024}')
                    a.inst(f'buffer_load_dwordx4 v{TM+1}, {SRD_W[wh]}, s26 offen lds', tag='rp')
                a('s_mul_i32 s25, s25, 3')
                a('s_sub_u32 s25, s24, s25')
                a(f's_mul_i32 s{30+k}, s50, 3')
                a(f's_add_u32 s{30+k}, s{30+k}, s25')
                a(f's_lshl_b32 s{30+k}, s{30+k}, 7')
                a(f's_add_u32 s{30+k}, s{30+k}, {WS_CS}')
                a('s_lshl_b32 s25, s24, 10')
                a(f's_mul_i32 s{28+k}, s50, {IMG_HEAD}')
                a(f's_add_u32 s{28+k}, s{28+k}, s25')
                a(f's_add_u32 s{28+k}, s{28+k}, {WS_IMG[0]}')
                if k:
                    a('s_cmp_ge_u32 s24, 84')
                    a(f's_cselect_b32 s29, {OOB}, s29')
                    a(f's_cselect_b32 s31, {OOB}, s31')
        def rp_read():
            a.wait_tag('rp')
            for b in range(4):
                for q in range(2):
                    a(f'ds_read_b64_tr_b16 v[{F+4*b+2*q}:{F+4*b+2*q+1}], v{TM+2} offset:{b*1024 + q*512}')
        def rp_store():
            for k in range(2):
                a(f'buffer_store_dwordx4 v[{F+8*k}:{F+8*k+3}], v{V_L16}, {SRD_WS}, s{28+k} offen {SC}')
                a(f's_add_u32 s{28+k}, s{28+k}, {WS_IMG[1]-WS_IMG[0]}')
                a(f'buffer_store_dwordx4 v[{F+8*k+4}:{F+8*k+7}], v{V_L16}, {SRD_WS}, s{28+k} offen {SC}')
        def rp_dot():
            for r in range(4):
                for b in range(4):
                    a(f'v_dot2_f32_bf16 v{TM+4+b}, v{F+4*b+r}, s19, {"0" if r == 0 else f"v{TM+4+b}"}')
            fill.extend(halves_add(TM + 4, 4, TM + 8))
        def look(mask_lo, mask_hi, srd, target, pmask):
            Lk = uid('look')
            a(f'v_cmp_le_u32 vcc, {target}, v{V_PL}')
            a(f's_mov_b32 s58, {mask_lo}')
            a(f's_mov_b32 s59, {mask_hi}')
            a('s_and_b64 vcc, vcc, s[58:59]')
            a('s_cmp_eq_u64 vcc, s[58:59]')
            a(f's_cbranch_scc1 {Lk}')
            sv = (list(a.st.hist), list(a.st.vm), list(a.st.lg))
            poll(srd, 's[58:59]', target)
            a.st.hist, a.st.vm, a.st.lg = sv
            a.raw(Lk + ':')
        def rp_pub():
            assert not fill
            look((1 << NZERO) - 1, 0, SRD_DBG, 1, None)
            a('s_mov_b32 exec_hi, 0')
            for k in range(2):
                a(f'buffer_atomic_add_f32 v{TM+4+2*k}, v{E}, {SRD_WS}, s{30+k} offen sc1')
                a(f's_add_u32 s{30+k}, s{30+k}, {16*3*128}')
                a.inst(f'buffer_atomic_add_f32 v{TM+5+2*k}, v{E}, {SRD_WS}, s{30+k} offen sc1', tag='pub')
            a('s_mov_b32 exec_hi, -1')
        def warm_wo():
            a('s_lshr_b32 s24, s2, 3')
            a('s_lshl_b32 s24, s24, 2')
            a(f's_add_u32 s24, s24, {S_WAVE}')
            a(f'v_lshlrev_b32 v254, 3, v{V_L16}')
            a(f's_mul_i32 s26, s24, {25*128}')
            a('s_mov_b64 exec, 0x1ffffff')
            a(f'buffer_load_dword v255, v254, {SRD_WO[0]}, s26 offen')
            a(f'buffer_load_dword v255, v254, {SRD_WO[1]}, s26 offen')
            a('s_mov_b64 exec, -1')
        def flags_issue():
            ids_qkv_rows('s50')
            a('s_and_b32 s48, s2, 7')
            a('s_lshl_b32 s48, s48, 7')
            a(f's_add_u32 s48, s48, {WS_FLAG + 4}')
            a(f'v_lshl_add_u32 v{V_T1}, v{V_N}, 10, s48')
            a(f'v_cmp_eq_u32 vcc, 1, v{V_HF}')
            a(f'v_cndmask_b32 v{V_T0}, v{V_T0}, v{V_T1}, vcc')
            a(f'buffer_load_dword v{V_PL}, v{V_T0}, {SRD_WS}, 0 offen sc1')
            a(f's_mul_i32 s28, {S_HQ}, {IMG_HEAD}')
            a('s_add_u32 s28, s28, s15')
            a(f's_add_u32 s28, s28, {WS_IMG[0]}')
            a(f's_mul_i32 s29, {S_HQ}, 384')
            a(f's_add_u32 s29, s29, {WS_CS}')
        def flags_check():
            look(0xffff, -1, SRD_WS, S_PROG, None)
            stamp(f'{nm}_go', lp)
            for wh in range(2):
                for p in (0, 1, 2):
                    a(f'buffer_load_dword v{V_CS[wh]+p}, v253, {SRD_WS}, s29 offen offset:{p*128} {SC}')
                if wh == 0:
                    a(f's_add_u32 s29, s29, {16*3*128}')
            a(f'v_cmp_eq_u32 vcc, {S_XCC}, v{V_PL}')
            a('s_cmp_eq_u32 vcc_hi, -1')
            a(f's_cselect_b32 {S_XCC if PREW >= 3 else S_LOC}, {0 if FORCE_GLOBAL else 1}, 0')
        def issue_q(g):
            a(f's_mul_i32 s24, s23, {4*43008}')
            a('s_add_u32 s24, s24, s22')
            a(f's_add_u32 m0, s15, {g*12288}')
            rot_next()
            a.inst(f'buffer_load_dwordx4 v{WDV}, {SRD_W[0]}, s24 offen lds', tag='wq')
        AH0 = 4
        open_group(0)
        for i in range(AH0):
            wread(i)
        for g in range(7):
            if FINE: stamp(f'qa0_g{g}')
            if g == 5:
                a.wait_tag('w6')
                cs_read(6, 1)
            for r in range(X + 16 * g, X + 16 * g + 16):
                a(f'v_dot2_f32_bf16 v{ST}, v{r}, s19, v{ST}')
                a(f'v_dot2_f32_bf16 v{ST+1}, v{r}, v{r}, v{ST+1}')
            if g < 6:
                cs_dot(0)
            if g == 2:
                rp_dot()
            if g == 5:
                cs_dot(1)
                for x in halves_add(CS, 2, XE): a(x)
                a(f's_lshl_b32 s12, {S_WAVE}, 8')
                a(f's_add_u32 s12, s12, {L_CS}')
                a(f'v_add_u32 v{XE+2}, s12, v{E}')
                a.inst(f'ds_write2_b32 v{XE+2}, v{CS}, v{CS+1} offset0:0 offset1:32', tag='csw')
            if g == 6:
                c = TM
                L = [f'v_add_u32 v{CA}, {L_CS}, v{E}']
                for k in range(2):
                    L += [f'ds_read2_b32 v[{c+4*k}:{c+4*k+1}], v{CA} offset0:{32*k} offset1:{32*k+64}',
                          f'ds_read2_b32 v[{c+4*k+2}:{c+4*k+3}], v{CA} offset0:{32*k+128} offset1:{32*k+192}']
                L += halves_add(ST, 2, ST + 2) + ln_stats(True)
                for k in range(2):
                    L += [f'v_add_f32 v{c+4*k}, v{c+4*k}, v{c+4*k+1}', f'v_add_f32 v{c+4*k+2}, v{c+4*k+2}, v{c+4*k+3}',
                          f'v_add_f32 v{V_CS[0]+1+k}, v{c+4*k}, v{c+4*k+2}']
                L += we_build(0, T + 4)[:19]
                fill.extend(L)
            for fl in range(8):
                i = 8 * g + fl
                wmm(i)
                if g == 0:
                    if fl == 0: issue_w(2)
                    if fl == 1: issue_x(2)
                    if fl == 4: rp_issue()
                    if fl == 5: issue_w(3)
                    if fl == 7: issue_x(3)
                elif g + 3 < 7:
                    if fl == 5: issue_w(g + 3)
                    if fl == 6: issue_x(g + 3)
                if g == 1 and fl == 4: rp_read()
                if g == 1 and fl == 7: rp_store()
                if g == 2 and fl == 0: a(f'buffer_load_dword v{V_PL}, v{V_T0}, {SRD_DBG}, 0 offen sc1')
                if g == 3 and fl == 0: rp_pub()
                if g == 4 and fl != 3: issue_q(fl - (fl > 3))
                if g == WWG and fl == 0: warm_wo()
                if g == PTG and fl == 7:
                    pretouch_setup(True, 0); prewrite()
                if g == 6 and fl == 3 and not WQL:
                    a.wait_tag('wq')
                    a('s_barrier')
                if fl == 3 and g < 6:
                    open_group(g + 1)
                if i + AH0 < 56 or not WQL:
                    wread(i + AH0)
                pop(4)
        pop(99)
        extra(1); extra(2)
        if not WQL: wread(56 + AH0)
        a(f'v_mov_b32 v253, v{E}')
    else:
        xo, so = (WS_XB, WS_STB) if isA else (WS_XA, WS_STA)
        a(f's_add_u32 s20, s20, {xo}')
        a('s_lshl_b32 s21, s7, 8')
        a(f's_add_u32 s21, s21, {so}')
        if not isA:
            a(f's_add_u32 s20, s20, {S_BLK}')
            a(f's_add_u32 s21, s21, {S_BLK}')
        a(f'v_lshlrev_b32 v{T+11}, 3, v{V_N}')
        a(f'v_lshl_add_u32 v{T+11}, v{V_HF}, 14, v{T+11}')
        rs_addr()
        pretouch_setup(isA, BLK if isA else S_BLK)
        a(f'v_lshrrev_b32 v{V_T1}, 4, v{V_L16}')
        a('s_lshr_b32 s48, s7, 3')
        a('s_lshr_b32 s49, s7, 1')
        a('s_and_b32 s49, s49, 3')
        a('s_lshl_b32 s49, s49, 3')
        a('s_add_u32 s48, s48, s49')
        a(f'v_lshl_add_u32 v{V_T0}, v{V_T1}, 5, s48')
        flag_addr(True)
        for x in we_build(wsel, X):
            a(x)
        if not isA:
            wob = stage_wo_issue(1, L_S, 251, 'wob', defer=True)
            a(f's_cmp_lg_u32 {S_IT}, 0')
            a(f's_cselect_b32 s26, {OOB}, s26')
        early = isA or NPB >= 3
        if early:
            for i in range(AH):
                wread(i)
        if mode == 'pre':
            return
        if mode == 'main':
            del a.lines[n_keep:]
            a.fresh()
        if not early:
            for i in range(AH):
                wread(i)
        poll(SRD_WS, 0x7f, S_PROG)
        stamp(f'{nm}_go', lp)
        def xload(t):
            r = X + 4 * t
            a(f'buffer_load_dwordx4 v[{r}:{r+3}], v{V_L16}, {SRD_WS}, s20 offen offset:{(t%4)*1024} {LD}')
            if t % 4 == 3 and t != 27:
                a('s_add_u32 s20, s20, 4096')
        def stload(i):
            a(f'buffer_load_dwordx2 v[{ST+2*i}:{ST+2*i+1}], v{T+11}, {SRD_WS}, s21 offen {LD}')
            if i < 6:
                a('s_add_u32 s21, s21, 32768')
        N0 = [8, 4, 6, 12][XS]
        for t in range(N0):
            xload(t)
        nx = N0
        for i in range(56):
            t = i >> 1
            if i == 24:
                for k in range(1, 7):
                    fill.append(f'v_add_f32 v{ST}, v{ST}, v{ST+2*k}')
                    fill.append(f'v_add_f32 v{ST+1}, v{ST+1}, v{ST+2*k+1}')
                fill.extend(halves_add(ST, 2, ST + 2) + ln_stats(isA))
            if i == 48:
                assert not fill
                extra(1); extra(2)
            wmm(i)
            if XS == 0:
                if i % 2 == 0:
                    for _ in range(2 if i < 12 else 1):
                        if nx < 28:
                            xload(nx); nx += 1
                if i == 1:
                    for k in range(7):
                        stload(k)
            else:
                if nx < 28 and (i < 2 * (28 - N0) - 30 or i % 2 == 0 or True if XS in (1, 2) and i < 16 else i % 2 == 0):
                    xload(nx); nx += 1
                if 5 <= i < 19 and i % 2 == 1:
                    stload((i - 5) // 2)
            if i == 35:
                assert nx == 28
                pretouch()
            wread(i + AH)
            pop(2)
            if False: stamp(f'qb_t{t}', True)
        assert nx == 28 and not fill
    stamp(f'{nm}_mm', lp)
    KF, VF, QF = AK, AK + 8, AT_Q
    def pkmul_lane(dst, src, sc):
        a(f'v_pk_mul_f32 v[{dst}:{dst+1}], v[{src}:{src+1}], v[{sc}:{sc+1}] op_sel_hi:[1,0]')
    def v_pads():
        a('s_mov_b32 exec_lo, 0xf0000000')
        a('s_mov_b32 exec_hi, 0xf0000000')
        for r in range(8):
            a(f'v_mov_b32 v{VF+r}, v{V_ONE}')
        a('s_mov_b64 exec, -1')
    def v_epi():
        for r in range(8):
            a(f'v_pk_mul_f32 v[{AV+2*r}:{AV+2*r+1}], v[{AV+2*r}:{AV+2*r+1}], v[{RS+2*r}:{RS+2*r+1}]')
            a(f'v_cvt_pk_bf16_f32 v{VF+r}, v{AV+2*r}, v{AV+2*r+1}')
        v_pads()
    def pass2(npop, hooks):
        if not first:
            extra(0)
        for i in range(56, 84):
            wmm(i)
            wread(i + AH)
            pop(npop)
            if i - 56 in hooks:
                hooks[i - 56]()
    if not isA:
        a(f's_mov_b32 s19, {ONES2}')
        a(f's_lshl_b32 s12, {S_HQ}, 18')
        a('s_lshl_b32 s13, s7, 12')
        a('s_add_u32 s12, s12, s13')
        a(f's_add_u32 s13, s12, {WS_KV}')
        a(f's_add_u32 s13, s13, {S_KVB}')
        for r in range(8):
            pkmul_lane(AK + 2 * r, AK + 2 * r, T)
            a(f'v_cvt_pk_bf16_f32 v{KF+r}, v{AK+2*r}, v{AK+2*r+1}')
            if r == 3:
                a(f'buffer_store_dwordx4 v[{KF}:{KF+3}], v{V_L16}, {SRD_WS}, s13 offen {SC}')
        a('s_mov_b32 exec_lo, 0')
        a(f'v_mov_b32 v{KF+6}, s19')
        a(f'v_mov_b32 v{KF+7}, 0')
        a('s_mov_b32 exec_lo, -1')
        a(f'buffer_store_dwordx4 v[{KF+4}:{KF+7}], v{V_L16}, {SRD_WS}, s13 offen offset:1024 {SC}')
        v_epi()
        for u in range(2):
            a(f'v_permlane32_swap_b32 v{VF+4*u}, v{VF+4*u+2}')
            a(f'v_permlane32_swap_b32 v{VF+4*u+1}, v{VF+4*u+3}')
        a(f'buffer_store_dwordx4 v[{VF}:{VF+3}], v{V_L16}, {SRD_WS}, s13 offen offset:2048 {SC}')
        a.inst(f'buffer_store_dwordx4 v[{VF+4}:{VF+7}], v{V_L16}, {SRD_WS}, s13 offen offset:3072 {SC}', tag='kvs')
        stamp(f'{nm}_epi', lp)
        hk = {k: wob[k] for k in range(14)}
        def sg():
            signal(1, wait_tag='kvs'); advance()
            stamp(f'{nm}_sig', lp)
        hk[QBSIG] = sg
        for t in range(8, 24):
            def z(t=t, f=hk.get(t + 1)):
                for r in range(4):
                    a(f'v_mov_b32 v{X+4*t+r}, 0')
                if f: f()
            hk[t + 1] = z
        pass2(0, hk)
        SD = AV
        for r in range(8):
            pkmul_lane(AQ + 2 * r, AQ + 2 * r, T + 2)
            a(f'v_cvt_pk_bf16_f32 v{QF+r}, v{AQ+2*r}, v{AQ+2*r+1}')
        a('s_mov_b32 exec_lo, 0')
        a(f'v_mov_b32 v{QF+6}, 0')
        a(f'v_mov_b32 v{QF+7}, 0')
        a('s_mov_b32 exec_lo, -1')
        a(f'v_mfma_f32_32x32x16_bf16 v[{SD}:{SD+15}], v[{KF}:{KF+3}], v[{QF}:{QF+3}], 0')
        a(f'v_mfma_f32_32x32x16_bf16 v[{SD}:{SD+15}], v[{KF+4}:{KF+7}], v[{QF+4}:{QF+7}], v[{SD}:{SD+15}]')
        a(f's_lshl_b32 s12, {S_WAVE}, 11')
        a(f's_add_u32 s13, s12, {L_KV}')
        a(f'v_add_u32 v{T+8}, s13, v{V_L16}')
        a(f'ds_write_b128 v{T+8}, v[{QF}:{QF+3}]')
        for i in range(1, 4):
            a(f's_xor_b32 s13, s12, {i*2048}')
            a(f's_add_u32 s13, s13, {L_KV}')
            a(f'v_add_u32 v{T+8+i}, s13, v{V_L16}')
        a(f'v_max3_f32 v{T+4}, v{SD}, v{SD+1}, v{SD+2}')
        a(f'v_max3_f32 v{T+5}, v{SD+3}, v{SD+4}, v{SD+5}')
        for r in range(6, 16, 4):
            a(f'v_max3_f32 v{T+4}, v{SD+r}, v{SD+r+1}, v{T+4}')
            if r + 3 < 16:
                a(f'v_max3_f32 v{T+5}, v{SD+r+2}, v{SD+r+3}, v{T+5}')
        a(f'v_max_f32 v{T+4}, v{T+4}, v{T+5}')
        a(f'v_mov_b32 v{T+5}, v{T+4}')
        a(f'v_permlane32_swap_b32 v{T+4}, v{T+5}')
        a(f'v_max_f32 v{T+4}, v{T+4}, v{T+5}')
        a(f'v_sub_f32 v{T+4}, 0, v{T+4}')
        a(f'v_and_b32 v{T+5}, 0xffff0000, v{T+4}')
        a(f'v_sub_f32 v{T+6}, v{T+4}, v{T+5}')
        a('s_mov_b32 exec_lo, 0')
        a(f'v_perm_b32 v{QF+6}, v{T+6}, v{T+5}, s17')
        a('s_mov_b32 exec_lo, -1')
        a(f'ds_write_b128 v{T+8}, v[{QF+4}:{QF+7}] offset:1024')
        a.wait_tag('wob')
        a('s_waitcnt lgkmcnt(0)')
        a('s_barrier')
        for i in range(1, 4):
            for u in range(2):
                r = QF + 8 * i + 4 * u
                a(f'ds_read_b128 v[{r}:{r+3}], v{T+8+i} offset:{u*1024}')
        if DEBUGQ:
            a(f's_lshl_b32 s12, {S_HQ}, 17')
            a('s_lshl_b32 s13, s7, 11')
            a('s_add_u32 s12, s12, s13')
            a(f's_add_u32 s12, s12, {WS_Q}')
            a(f's_add_u32 s12, s12, {S_BLK}')
            a(f'buffer_store_dwordx4 v[{QF}:{QF+3}], v{V_L16}, {SRD_WS}, s12 offen')
            a(f'buffer_store_dwordx4 v[{QF+4}:{QF+7}], v{V_L16}, {SRD_WS}, s12 offen offset:1024')
    else:
        it = 0 if first else 1
        a(f's_mov_b32 s16, {f32(1e-6)}')
        a(f's_mov_b32 s17, {f32(1e-6)}')
        a(f's_mov_b32 s18, {f32(LOG2E)}')
        a(f's_lshl_b32 s19, {S_WAVE}, 12')
        a(f's_add_u32 s19, s19, {L_KV}')
        a(f'v_add_u32 v{T+8}, s19, v{V_L16}')
        a(f'v_lshlrev_b32 v{T+7}, 2, v0')
        a(f'v_add_u32 v{T+9}, {L_KV}, v{T+7}')
        a(f'v_mov_b32 v{T+4}, 1.0')
        for r in range(8):
            e = E + 2 * (r % 3)
            k = AK + 2 * r
            a(f'v_pk_mul_f32 v[{k}:{k+1}], v[{k}:{k+1}], v[{RS+2*r}:{RS+2*r+1}]')
            a(f'v_pk_mul_f32 v[{e}:{e+1}], v[{k}:{k+1}], s[18:19] op_sel_hi:[1,0]')
            a(f'v_pk_add_f32 v[{k}:{k+1}], v[{k}:{k+1}], 1.0 op_sel_hi:[1,0]')
            a(f'v_exp_f32 v{e}, v{e}')
            a(f'v_exp_f32 v{e+1}, v{e+1}')
            a(f'v_med3_f32 v{k}, v{e}, v{k}, 1.0')
            a(f'v_med3_f32 v{k+1}, v{e+1}, v{k+1}, 1.0')
            a(f'v_pk_add_f32 v[{k}:{k+1}], v[{k}:{k+1}], s[16:17]')
            a(f'v_cvt_pk_bf16_f32 v{KF+r}, v{k}, v{k+1}')
        if first and WQL:
            a.wait_tag('wq')
            a('s_barrier')
            for i in range(56, 56 + AH):
                wread(i)
        v_epi()
        KVD = AV
        a(f'v_mfma_f32_32x32x16_bf16 v[{KVD}:{KVD+15}], v[{KF}:{KF+3}], v[{VF}:{VF+3}], 0')
        a(f'v_mfma_f32_32x32x16_bf16 v[{KVD}:{KVD+15}], v[{KF+4}:{KF+7}], v[{VF+4}:{VF+7}], v[{KVD}:{KVD+15}]')
        a(f's_lshl_b32 s22, {S_HQ}, 12')
        a(f's_add_u32 s22, s22, {WS_KVACC + it*65536}')
        a(f's_cmp_ge_u32 {S_WAVE}, 2')
        a(f's_cselect_b32 s23, {OOB}, s22')
        a('s_lshl_b32 s12, s7, 15')
        a(f's_lshl_b32 s13, {S_HQ}, 11')
        a('s_add_u32 s12, s12, s13')
        a(f's_add_u32 s12, s12, {WS_OA + it*BLK}')
        E2 = RS
        def kvw(rg):
            return lambda: a.inst(f'ds_write_b128 v{T+8}, v[{KVD+4*rg}:{KVD+4*rg+3}] offset:{rg*1024}', tag='kvw')
        def kvbar():
            a.wait_tag('kvw', 'lg')
            a('s_barrier')
            for k in range(4):
                a(f'ds_read2st64_b32 v[{E2+4*k}:{E2+4*k+1}], v{T+9} offset0:{4*k} offset1:{4*k+16}')
                a(f'ds_read2st64_b32 v[{E2+4*k+2}:{E2+4*k+3}], v{T+9} offset0:{4*k+32} offset1:{4*k+48}')
        def kvat(k):
            def f():
                a(f'v_add_f32 v{E2+4*k}, v{E2+4*k}, v{E2+4*k+1}')
                a(f'v_add_f32 v{E2+4*k+2}, v{E2+4*k+2}, v{E2+4*k+3}')
                a(f'v_add_f32 v{E2+4*k}, v{E2+4*k}, v{E2+4*k+2}')
                a.inst(f'buffer_atomic_add_f32 v{E2+4*k}, v{T+7}, {SRD_WS}, {"s23" if k == 3 else "s22"} offen offset:{k*1024} sc1', tag='kva')
            return f
        both = lambda f, g: (lambda: (f(), g()))
        hooks = {0: kvw(0), 1: kvw(1), 2: kvw(2), 3: kvw(3), 5: kvbar, 8: both(kvat(0), kvat(1)), 9: both(kvat(2), kvat(3))}
        img_base(1, 's60', 's61')
        if first:
            hooks = {k + 1: f for k, f in hooks.items()}
            woa = []
            if FCH == 0:
                hooks[0] = flags_issue
                def chk():
                    flags_check()
                    woa.extend(stage_wo_issue(0, L_S, 251, 'woa', defer=True))
                hooks[11] = chk
                hooks[19] = lambda: stage_wo_addr(L_S, 252)
            elif FCH == 1:
                hooks[11] = lambda: woa.extend(stage_wo_issue(0, L_S, 251, 'woa', defer=True))
                hooks[20] = flags_issue
            else:
                def csq_read():
                    a(f'v_add_u32 v{E}, s15, v{T+10}')
                    a(f'v_add_u32 v{E+1}, s15, v{T+11}')
                    for gg in range(7):
                        for q in range(2):
                            o = gg * 12288 + q * 512
                            r = X + 4 * gg + 2 * q
                            a(f'ds_read_b64_tr_b16 v[{r}:{r+1}], v{E + (o >= 65536)} offset:{o % 65536}')
                    woa.extend(stage_wo_issue(0, L_S, 251, 'woa', defer=True))
                def csq_dot():
                    a(f's_mov_b32 s24, {ONES2}')
                    for r in range(28):
                        c = E + 2 + (r & 1)
                        a(f'v_dot2_f32_bf16 v{c}, v{X+r}, s24, {"0" if r < 2 else f"v{c}"}')
                    a(f'v_add_f32 v{E+2}, v{E+2}, v{E+3}')
                    for x in halves_add(E + 2, 1, E + 3): a(x)
                    a(f's_lshl_b32 s24, {S_WAVE}, 7')
                    a(f's_add_u32 s24, s24, {L_CS + 1024}')
                    a(f'v_add_u32 v{E+3}, s24, v253')
                    a.inst(f'ds_write_b32 v{E+3}, v{E+2}', tag='cqw')
                hooks[11] = csq_read
                hooks[19] = csq_dot
                hooks[22] = flags_issue
            for k in range(7):
                hooks[12 + k] = (lambda k=k: (woa[2*k](), woa[2*k+1]()))
        pass2(0, hooks)
        def qextra():
            a('s_mov_b32 s17, 0x07060302')
            w = we_build(0, E)
            for x in w[:1] + w[19:]: a(x)
            a(f's_mov_b32 s17, {f32(1e-6)}')
            extra(0)
        def woa_reads():
            a.wait_tag('woa')
            a('s_barrier')
            for n, x in enumerate(stage_wo_reads(0, 252)):
                a(x)
                if n % 12 == 11: a('s_waitcnt lgkmcnt(4)')
            stage_wo_pads(0)
        if first and FCH == 0:
            qextra()
        if first and FCH == 2:
            a.wait_tag('cqw', 'lg')
        signal(1, wait_tag='kva', pre=lambda: None)
        stamp(f'{nm}_sg1', lp)
        if first and FCH == 1:
            flags_check()
            stage_wo_addr(L_S, 252)
        if first and FCH == 2:
            a(f'v_add_u32 v{X+32}, {L_CS + 1024}, v253')
            a(f'ds_read2_b32 v[{X+34}:{X+35}], v{X+32} offset0:0 offset1:32')
            a(f'ds_read2_b32 v[{X+36}:{X+37}], v{X+32} offset0:64 offset1:96')
            a(f'v_add_f32 v{X+34}, v{X+34}, v{X+35}')
            a(f'v_add_f32 v{X+36}, v{X+36}, v{X+37}')
            a(f'v_add_f32 v{V_CS[0]}, v{X+34}, v{X+36}')
            qextra()
        else:
            advance()
            for k in range(NPB):
                wb_kv(k)
        if first and FCH == 1:
            woa_reads()
            qextra()
        QF = X
        for r in range(8):
            e = E + 2 * (r % 3)
            q = AQ + 2 * r
            pkmul_lane(e, q, T + 2)
            a(f'v_pk_fma_f32 v[{q}:{q+1}], v[{q}:{q+1}], v[{T}:{T+1}], v[{T+4}:{T+5}] op_sel_hi:[1,0,0]')
            a(f'v_exp_f32 v{e}, v{e}')
            a(f'v_exp_f32 v{e+1}, v{e+1}')
            a(f'v_med3_f32 v{q}, v{e}, v{q}, 1.0')
            a(f'v_med3_f32 v{q+1}, v{e+1}, v{q+1}, 1.0')
            a(f'v_pk_add_f32 v[{q}:{q+1}], v[{q}:{q+1}], s[16:17]')
            a(f'v_cvt_pk_bf16_f32 v{QF+r}, v{q}, v{q+1}')
        a('s_mov_b32 exec_lo, 0')
        a(f'v_mov_b32 v{QF+6}, 0')
        a(f'v_mov_b32 v{QF+7}, 0')
        a('s_mov_b32 exec_lo, -1')
        stamp(f'{nm}_epi', lp)
        if DEBUGQ:
            a(f's_add_u32 s13, s12, {WS_DBG + (8 << 20)}')
            a(f'buffer_store_dwordx4 v[{QF}:{QF+3}], v{V_L16}, {SRD_WS}, s13 offen')
            a(f'buffer_store_dwordx4 v[{QF+4}:{QF+7}], v{V_L16}, {SRD_WS}, s13 offen offset:1024')
        if first and FCH == 2:
            flags_check()
            advance()
            for k in range(NPB):
                wb_kv(k)
            stage_wo_addr(L_S, 252)
        if first and FCH != 1:
            woa_reads()
        op_resid_load('raw' if first else 'xb')
        ids_qkv_rows(S_HQ)
        poll(SRD_WS, 0xffff, S_PROG)
        stamp(f'{nm}_kv', lp)
        KV, D = 40, 56
        for rg in range(4):
            a(f'buffer_load_dwordx4 v[{KV+4*rg}:{KV+4*rg+3}], v{V_L16}, {SRD_WS}, s22 offen offset:{rg*1024} {SC}')
        op_unpack(); op_addr()
        for r in range(8):
            a(f'v_cvt_pk_bf16_f32 v{KV+r}, v{KV+2*r}, v{KV+2*r+1}')
            if r == 3:
                a(f'v_mfma_f32_32x32x16_bf16 v[{D}:{D+15}], v[{KV}:{KV+3}], v[{QF}:{QF+3}], 0')
        a(f'v_mfma_f32_32x32x16_bf16 v[{D}:{D+15}], v[{KV+4}:{KV+7}], v[{QF+4}:{QF+7}], v[{D}:{D+15}]')
        a(f'v_add_f32 v{T}, s16, v{D+12}')
        a(f'v_mov_b32 v{T+1}, v{T}')
        a(f'v_permlane32_swap_b32 v{T+1}, v{T}')
        a(f'v_rcp_f32 v{T}, v{T}')
        for r in range(8):
            pkmul_lane(D + 2 * r, D + 2 * r, T)
            a(f'v_cvt_pk_bf16_f32 v{QF+8+r}, v{D+2*r}, v{D+2*r+1}')
        lstore([f'buffer_store_dwordx4 v[{QF+8}:{QF+11}], v{V_L16}, {SRD_WS}, s12 offen',
                f'buffer_store_dwordx4 v[{QF+12}:{QF+15}], v{V_L16}, {SRD_WS}, s12 offen offset:1024'])
        signal(1, local=True, pre=lambda: None); advance()
        stamp(f'{nm}_sig', lp)

OP_CH = [(0, 4), (4, 8), (12, 8), (20, 8), (28, 4)]
OP_ACC, OP_OF, OP_XF, OP_T = 112, 32, 224, 232
def op_resid_load(kind):
    XF, T = OP_XF, OP_T
    if kind == 'raw':
        a(f'v_mul_u32_u24 v{T+6}, 896, v{V_N}')
        a(f'v_lshl_add_u32 v{T+6}, v{V_HF}, 3, v{T+6}')
        a(f's_mul_i32 s48, {S_ORT}, {28*1024}')
        a(f's_sub_u32 s49, {S_XT}, s48')
        a('s_lshr_b32 s49, s49, 5')
        a('s_add_u32 s48, s48, s49')
        for k in range(4):
            a(f'buffer_load_dwordx2 v[{XF+2*k}:{XF+2*k+1}], v{T+6}, {SRD_X0}, s48 offen offset:{16*k}')
    else:
        a(f's_add_u32 s48, {S_XT}, {WS_XA if kind == "xa" else WS_XB}')
        if kind == 'xa' and BLK:
            a(f's_add_u32 s48, s48, {S_BLK}')
        a(f'buffer_load_dwordx4 v[{XF}:{XF+3}], v{V_L16}, {SRD_WS}, s48 offen {SC}')
        a(f'buffer_load_dwordx4 v[{XF+4}:{XF+7}], v{V_L16}, {SRD_WS}, s48 offen offset:1024 {SC}')
def op_unpack():
    for r in range(8):
        a(f'v_lshlrev_b32 v{OP_ACC+2*r}, 16, v{OP_XF+r}')
        a(f'v_and_b32 v{OP_ACC+2*r+1}, 0xffff0000, v{OP_XF+r}')
def op_addr():
    T = OP_T
    a(f's_and_b32 s48, {S_OL8}, 0xffffefff') if False else None
    a(f's_lshl_b32 s48, {S_WAVE}, 14')
    a('s_and_b32 s48, s48, 0x8000')
    a(f's_add_u32 s48, s48, {L_S}')
    a(f'v_add_u32 v{T+4}, s48, v{V_L16}')
    a(f'v_lshlrev_b32 v{T+7}, 3, v{V_N}')
    a(f'v_lshl_add_u32 v{T+7}, v{V_HF}, 2, v{T+7}')
    a(f's_lshr_b32 s50, {S_RP}, 1')
    ids_qkv_heads('s50')

def phase_op(isA, nxt_pre):
    nm = 'oa' if isA else 'ob'
    join = uid('op_join')
    ACC, OF, XF, T = OP_ACC, OP_OF, OP_XF, OP_T
    WB = WOA[0 if isA else 1]
    skip = uid('op_skip')
    a(f's_cmp_ge_u32 {S_CP}, 7')
    a(f's_cbranch_scc1 {skip}')
    acc = f'v[{ACC}:{ACC+15}]'
    xo, so = (WS_XA, WS_STA) if isA else (WS_XB, WS_STB)
    ob = WS_OA if isA else WS_O
    poll(SRD_WS, 0xffff, S_PROG)
    stamp(f'{nm}_go', True)
    def iss(c):
        k0, n = OP_CH[c]
        a(f's_add_u32 m0, {S_OL8 if n == 8 else S_OL4}, {k0*1024}')
        a(f's_add_u32 s17, {S_OG8 if n == 8 else S_OG4}, {k0*1024 + ob}')
        if BLK: a(f's_add_u32 s17, s17, {S_BLK}')
        for i in range(n // 2):
            a.inst(f'buffer_load_dwordx4 v{V_L16}, {SRD_WS}, s17 offen offset:{i*1024} {LD} lds', tag=f'o{c}')
    def opn(c):
        k0, n = OP_CH[c]
        a.wait_tag(f'o{c}')
        a('s_barrier')
        if FINE3 and not isA: stamp(f'ob_c{c}', True)
        for s in range(n):
            r = OF + 32 * (c & 1) + 4 * s
            a(f'ds_read_b128 v[{r}:{r+3}], v{T+4} offset:{(k0+s)*1024}')
    for c in range(OPD):
        iss(c)
    a(f's_add_u32 s51, {S_XT}, {xo}')
    a(f's_add_u32 s52, {S_STT}, {so}')
    if BLK:
        a(f's_add_u32 s51, s51, {S_BLK}')
        a(f's_add_u32 s52, s52, {S_BLK}')
    a(f's_mov_b32 s19, {ONES2}')
    opn(0)
    nxt = OPD
    pf = ([(lambda k=k: wb_kv(k)) for k in range(NPB, 7)] + [(lambda k=k: (wb_q(k), wb_q(k + 1) if k < 6 else None)) for k in (0, 2, 4, 6)]) if isA else ([(lambda k=k: (wb_q(k - 7), wb_q(k - 6) if k < 6 else None)) for k in (0, 2, 4, 6)] if WAQ else [])
    pf_all = list(pf)
    for c, (k0, n) in enumerate(OP_CH):
        if c == 0 and nxt < len(OP_CH):
            iss(nxt); nxt += 1
        for s in range(n):
            r = OF + 32 * (c & 1) + 4 * s
            k = k0 + s
            a(f'v_mfma_f32_32x32x16_bf16 {acc}, a[{WB+4*k}:{WB+4*k+3}], v[{r}:{r+3}], {acc}')
            if c > 0 and s in (0, 2) and nxt < len(OP_CH):
                iss(nxt); nxt += 1
            elif c > 0 and nxt == len(OP_CH) and pf and s % 2 == 0:
                pf.pop(0)()
            if s == n - OPE and c + 1 < len(OP_CH):
                opn(c + 1)
    assert not pf and nxt == len(OP_CH)
    stamp(f'{nm}_mm', True)
    for r in range(8):
        a(f'v_cvt_pk_bf16_f32 v{XF+r}, v{ACC+2*r}, v{ACC+2*r+1}')
    if not isA:
        a(f's_cmp_lg_u32 {S_IT}, 0')
        a('s_cbranch_scc1 op_final')
    lstore([f'buffer_store_dwordx4 v[{XF}:{XF+3}], v{V_L16}, {SRD_WS}, s51 offen',
            f'buffer_store_dwordx4 v[{XF+4}:{XF+7}], v{V_L16}, {SRD_WS}, s51 offen offset:1024'])
    a(f'v_dot2_f32_bf16 v{T}, v{XF}, s19, 0')
    a(f'v_dot2_f32_bf16 v{T+1}, v{XF}, v{XF}, 0')
    for r in range(1, 8):
        a(f'v_dot2_f32_bf16 v{T}, v{XF+r}, s19, v{T}')
        a(f'v_dot2_f32_bf16 v{T+1}, v{XF+r}, v{XF+r}, v{T+1}')
    a(f'v_permlane32_swap_b32 v{T}, v{T+1}')
    a(f'v_add_f32 v{T}, v{T}, v{T+1}')
    lstore([f'buffer_store_dword v{T}, v{T+7}, {SRD_WS}, s52 offen'])
    stamp(f'{nm}_epi', True)
    signal(local=True, pre=nxt_pre)
    a(f's_branch {join}')
    a.raw(skip + ':'); a.fresh()
    if pf_all:
        for f in pf_all: f()
        a('s_waitcnt vmcnt(0)')
        a('s_barrier')
    nxt_pre()
    a('s_waitcnt vmcnt(0) lgkmcnt(0)')
    a('s_barrier')
    a.raw(join + ':')
    a.fresh()
    advance()
    stamp(f'{nm}_sig', True)
    def final():
        a.raw('op_final:'); a.fresh()
        a(f'v_mul_u32_u24 v{T+6}, 896, v{V_N}')
        a(f'v_lshl_add_u32 v{T+6}, v{V_HF}, 4, v{T+6}')
        a(f's_mul_i32 s19, {S_ORT}, {28*1024}')
        a(f's_sub_u32 s49, {S_XT}, s19')
        a('s_lshr_b32 s49, s49, 5')
        a('s_add_u32 s19, s19, s49')
        for u in range(2):
            b = XF + 4 * u
            a(f'v_permlane32_swap_b32 v{b}, v{b+2}')
            a(f'v_permlane32_swap_b32 v{b+1}, v{b+3}')
            a(f'buffer_store_dwordx4 v[{b}:{b+3}], v{T+6}, {SRD_OUT}, s19 offen offset:{32*u}')
    return final

def phase_attn(wob_reads):
    Q = 16
    O = 48
    R = AK
    S = 176
    P = S
    T = 112
    IDX = 248
    ORD = [1, 2, 3, 0]
    def kreg(j, t): return f'v[{R+16*j+4*t}:{R+16*j+4*t+3}]'
    def vreg(j, u): return f'v[{R+16*j+8+4*u}:{R+16*j+8+4*u+3}]'
    def qreg(i, t): return f'v[{Q+8*i+4*t}:{Q+8*i+4*t+3}]'
    def sreg(n): return f'v[{S+16*(n%3)}:{S+16*(n%3)+15}]'
    def oreg(i): return f'v[{O+16*i}:{O+16*i+15}]'
    def loadk(j, sr):
        a(f'buffer_load_dwordx4 {kreg(j,0)}, v{V_L16}, {SRD_WS}, {sr} offen {SC}')
        a(f'buffer_load_dwordx4 {kreg(j,1)}, v{V_L16}, {SRD_WS}, {sr} offen offset:1024 {SC}')
    def loadv(j, sr):
        a(f'buffer_load_dwordx4 {vreg(j,0)}, v{V_L16}, {SRD_WS}, {sr} offen offset:2048 {SC}')
        a(f'buffer_load_dwordx4 {vreg(j,1)}, v{V_L16}, {SRD_WS}, {sr} offen offset:3072 {SC}')
    def loadkv(j):
        for k in range(4):
            r = R + 16 * j + 4 * k
            a(f'global_load_dwordx4 v[{r}:{r+3}], v{V_L16}, s[14:15] offset:{k*1024} {SC}')
    NEXT = ['s_add_u32 s13, s13, 1', 's_cmp_eq_u32 s13, s16', 's_cselect_b32 s18, s19, s24',
            's_add_u32 s14, s14, s18', 's_addc_u32 s15, s15, 0']
    def ji(n): return (n >> 2) % 3, ORD[n & 3]
    def M1(n, own=False):
        j, i = (0, 0) if own else ji(n)
        a(f'v_mfma_f32_32x32x16_bf16 {sreg(n)}, {kreg(j,0)}, {qreg(i,0)}, 0')
    def M2(n, own=False):
        j, i = (0, 0) if own else ji(n)
        a(f'v_mfma_f32_32x32x16_bf16 {sreg(n)}, {kreg(j,1)}, {qreg(i,1)}, {sreg(n)}')
    def PV(n, u, own=False):
        j, i = (0, 0) if own else ji(n)
        b = S + 16 * (n % 3) + 8 * u
        a(f'v_smfmac_f32_32x32x32_bf16 {oreg(i)}, {vreg(j,u)}, v[{b}:{b+7}], v{IDX}')
    def e(n, k):
        r = S + 16 * (n % 3) + k
        a(f'v_exp_f32 v{r}, v{r}')
    def step(n, slots, last=99):
        e(n, 4); e(n, 5); e(n, 6); e(n, 7)
        if n + 2 <= last: M1(n + 2)
        for x in slots[0]: x()
        e(n, 8); e(n, 9); e(n, 10); e(n, 11)
        PV(n, 0)
        for x in slots[1]: x()
        e(n, 12); e(n, 13); e(n, 14); e(n, 15)
        if n + 2 <= last: M2(n + 2)
        for x in slots[2]: x()
        if n + 1 <= last:
            e(n + 1, 0); e(n + 1, 1); e(n + 1, 2); e(n + 1, 3)
        PV(n, 1)
        for x in slots[3]: x()
    I = lambda t: (lambda: a(t))
    M1(0); M2(0); M1(1); M2(1)
    a(f'v_mov_b32 v{IDX}, 0xdddd')
    a(f's_lshl_b32 s12, {S_HA}, 18')
    a(f's_add_u32 s12, s12, {WS_KV}')
    a(f's_add_u32 s12, s12, {S_KVB}')
    a(f's_mul_i32 s13, {S_WAVE}, 15')
    a(f's_lshl_b32 s16, {S_QB}, 2')
    a('s_cmp_ge_u32 s13, s16')
    a('s_cselect_b32 s18, 4, 0')
    a('s_add_u32 s18, s18, s13')
    a('s_lshl_b32 s18, s18, 12')
    a('s_add_u32 s18, s18, s12')
    a('s_add_u32 s14, s8, s18')
    a('s_addc_u32 s15, s9, 0')
    ids_qkv_rows(S_HA)
    for k in range(4): e(0, k)
    pre = []
    sv_lines = a.lines
    pre_txt = [f's_mov_b32 s19, {5*4096}', 's_mov_b32 s24, 4096', 's_mov_b32 s17, 4',
               f's_mov_b32 s20, {f32(2.0**-64)}', f's_mov_b32 s21, {f32(2.0**64)}',
               f's_add_u32 s51, {S_OT}, {WS_O}', f's_add_u32 s51, s51, {S_BLK}']
    def first_look():
        a(f'buffer_load_dword v{V_PL}, v{V_T0}, {SRD_WS}, 0 offen sc1')
    def check_and_load():
        Lk = uid('look')
        a(f'v_cmp_le_u32 vcc, {S_PROG}, v{V_PL}')
        a('s_and_b32 s48, vcc_lo, 0xffff')
        a('s_cmp_eq_u32 s48, 0xffff')
        a(f's_cbranch_scc1 {Lk}')
        sv = (list(a.st.hist), list(a.st.vm), list(a.st.lg))
        poll(SRD_WS, 0xffff, S_PROG)
        a.st.hist, a.st.vm, a.st.lg = sv
        a.raw(Lk + ':')
        stamp('at_go', True)
        loadkv(1)
        for x in NEXT: a(x)
        loadkv(2)
    for n in range(4):
        sl = [[I(pre_txt.pop(0))] if pre_txt else [] for _ in range(4)]
        if n == LOOK: sl[1].append(first_look)
        if n == LOOK + 1: sl[3].append(check_and_load)
        step(n, sl, 3)
    for x in NEXT: a(x)
    img_base(0, 's60', 's61')
    a(f's_cmp_lg_u32 {S_IT}, 0')
    a(f's_cselect_b32 s60, {OOB}, s60')
    if FINE: stamp('at_own', True)
    for t in range(1, 4):
        a(f's_xor_b32 s22, {S_WAVE}, {t}')
        a('s_mul_i32 s22, s22, 12288')
        a(f's_add_u32 s22, s22, {L_RED + (t-1)*4096}')
        a(f'v_add_u32 v{T+3+t}, s22, v{V_L16}')
    a(f's_mul_i32 s22, {S_WAVE}, 12288')
    a(f's_add_u32 s22, s22, {L_RED}')
    a(f'v_add_u32 v{T+3}, s22, v{V_L16}')
    if CT == 2: code_touch_addr(249)
    wob_reads()
    M1(4); M2(4); M1(5); M2(5)
    for k in range(4): e(4, k)
    a('s_waitcnt vmcnt(4)')
    if FINE: stamp('at_pro', True)
    def dman(n):
        for p in range(n):
            a(f'buffer_load_dwordx4 v{V_L16}, {SRD_WS}, s60 offen offset:{p*1024} {SC} lds')
    def tile_slots(u, load, wait, extra=None):
        sl = [[[], [], [], []] for _ in range(4)]
        if load:
            sl[0][1] = [lambda: loadkv((u + 2) % 3)]
            sl[0][2] = [I(NEXT[0])]; sl[0][3] = [I(NEXT[1])]; sl[1][0] = [I(NEXT[2])]; sl[1][1] = [I(NEXT[3])]; sl[1][2] = [I(NEXT[4])]
        if wait is not None:
            sl[1][3] = [I(f's_waitcnt vmcnt({wait})')]
        for (i, k), f in (extra or {}).items():
            sl[i][k] = sl[i][k] + f
        return sl
    def dmkv():
        for p in (1, 2):
            a(f'buffer_load_dwordx4 v{V_L16}, {SRD_WS}, s60 offen offset:{p*1024} {SC} lds')
    if WAQ:
        DM = lambda n: {(2, 2): [I('s_mov_b32 m0, s61')], (2, 3): [dmkv], (3, 0): [I('s_add_u32 s60, s60, 3072')], (3, 1): [I('s_add_u32 s61, s61, 3072')]}
    else:
        DM = lambda n: {(2, 2): [I('s_mov_b32 m0, s61')], (2, 3): [lambda: dman(n)], (3, 0): [I('s_add_u32 s60, s60, 4096')], (3, 1): [I('s_add_u32 s61, s61, 4096')]}
    nd = 2 if WAQ else 4
    def body():
        for u in (1, 2, 3):
            ex = DM(4) if u == 1 else ({(3, 1): [I('s_sub_u32 s17, s17, 1')], (3, 2): [I('s_cmp_lg_u32 s17, 0')]} if u == 3 else None)
            sl = tile_slots(u, True, 4 + nd if u == 2 else 4, ex)
            for i in range(4):
                step(4 * u + i, sl[i])
    def tail():
        a('s_cbranch_scc1 attn_loop')
    a.raw('.p2align 3')
    a.loop('attn_loop', body, tail)
    ex = DM(4)
    sl = tile_slots(13, True, 4, ex)
    for i in range(4): step(52 + i, sl[i])
    if WAQ:
        ex = DM(0)
        ex[(0, 0)] = [I('s_mov_b32 m0, s61')]; ex[(0, 1)] = [dmkv]; ex[(0, 2)] = [I('s_add_u32 s60, s60, 3072')]; ex[(1, 0)] = [I('s_add_u32 s61, s61, 3072')]
    else:
        ex = {(0, 0): [I('s_mov_b32 m0, s61')], (0, 1): [lambda: dman(1)]}
    if PRE: ex[(0, 3)] = [pretouch]
    ex[(1, 1)] = [lambda: op_resid_load('xa')]
    sl = tile_slots(14, False, (6 if WAQ else 7) + (3 if PRE else 0), ex)
    for i in range(4): step(56 + i, sl[i])
    def W(t, rg):
        r = O + 16 * t + 4 * rg
        return I(f'ds_write_b128 v{T+3+t}, v[{r}:{r+3}] offset:{rg*1024}')
    def gather():
        a('s_waitcnt lgkmcnt(0)')
        a('s_barrier')
        for t in range(1, 4):
            for rg in range(4):
                r = O + 16 * t + 4 * rg
                a(f'ds_read_b128 v[{r}:{r+3}], v{T+3} offset:{(t-1)*4096 + rg*1024}')
    step(60, [[], [], [], []], 63)
    step(61, [[], [], [W(1, 0)], [W(1, 1)]], 63)
    step(62, [[W(1, 2)], [W(1, 3)], [W(2, 0)], [W(2, 1), W(2, 2)]], 63)
    step(63, [[W(2, 3)], [], [W(3, 0), W(3, 1), W(3, 2), W(3, 3)], [gather]], 63)
    stamp('at_mm', True)
    for t in range(1, 4):
        for r in range(8):
            a(f'v_pk_add_f32 v[{O+2*r}:{O+2*r+1}], v[{O+2*r}:{O+2*r+1}], v[{O+16*t+2*r}:{O+16*t+2*r+1}]')
    a(f'v_mov_b32 v{T}, v{O+12}')
    a(f'v_mov_b32 v{T+1}, v{O+12}')
    a(f'v_permlane32_swap_b32 v{T+1}, v{T}')
    a(f'v_cmp_le_f32 vcc, s20, v{T}')
    a(f'v_cmp_ge_f32 s[22:23], s21, v{T}')
    a('s_and_b64 vcc, vcc, s[22:23]')
    a('s_cmp_eq_u64 vcc, exec')
    a('s_cbranch_scc0 attn_slow')
    a.raw('attn_fin:')
    a(f'v_rcp_f32 v{T}, v{T}')
    for r in range(8):
        a(f'v_pk_mul_f32 v[{O+2*r}:{O+2*r+1}], v[{O+2*r}:{O+2*r+1}], v[{T}:{T+1}] op_sel_hi:[1,0]')
        a(f'v_cvt_pk_bf16_f32 v{P+r}, v{O+2*r}, v{O+2*r+1}')
    lstore([f'buffer_store_dwordx4 v[{P}:{P+3}], v{V_L16}, {SRD_WS}, s51 offen',
            f'buffer_store_dwordx4 v[{P+4}:{P+7}], v{V_L16}, {SRD_WS}, s51 offen offset:1024'])
    stamp('at_epi', True)
    signal(local=True, pre=lambda: (op_unpack(), op_addr())); advance()
    stamp('at_sig', True)

    def slow():
        a.raw('attn_slow:'); a.fresh()
        a('s_waitcnt vmcnt(0) lgkmcnt(0)')
        a('s_nop 15')
        a('s_mov_b32 exec_lo, 0')
        a(f'v_mov_b32 v{Q+6}, 0')
        a(f'v_mov_b32 v{Q+7}, 0')
        a('s_mov_b32 exec_lo, -1')
        a(f'v_mov_b32 v{T+2}, {f32(-3.0e38)}')
        a('s_mov_b32 s13, s12')
        a('s_mov_b32 s17, 64')
        a('s_nop 4')
        def body1():
            loadk(0, 's13')
            M1(0, True); M2(0, True)
            for r in range(0, 16, 2):
                a(f'v_max3_f32 v{T+2}, v{S+r}, v{S+r+1}, v{T+2}')
            a('s_add_u32 s13, s13, 4096')
            a('s_nop 4')
        def tail1():
            a('s_sub_u32 s17, s17, 1')
            a('s_cmp_lg_u32 s17, 0')
            a('s_cbranch_scc1 attn_slow1')
        a.loop('attn_slow1', body1, tail1)
        a(f'v_mov_b32 v{T+3}, v{T+2}')
        a(f'v_permlane32_swap_b32 v{T+2}, v{T+3}')
        a(f'v_max_f32 v{T+2}, v{T+2}, v{T+3}')
        for r in range(16):
            a(f'v_mov_b32 v{O+r}, 0')
        a('s_mov_b32 s13, s12')
        a('s_mov_b32 s17, 64')
        a('s_nop 15')
        def body2():
            loadk(0, 's13'); loadv(0, 's13')
            M1(0, True); M2(0, True)
            for r in range(16):
                a(f'v_sub_f32 v{S+r}, v{S+r}, v{T+2}')
            for r in range(16):
                e(0, r)
            PV(0, 0, True); PV(0, 1, True)
            a('s_add_u32 s13, s13, 4096')
            a('s_nop 15')
        def tail2():
            a('s_sub_u32 s17, s17, 1')
            a('s_cmp_lg_u32 s17, 0')
            a('s_cbranch_scc1 attn_slow2')
        a.loop('attn_slow2', body2, tail2)
        a(f'v_mov_b32 v{T}, v{O+12}')
        a(f'v_mov_b32 v{T+1}, v{O+12}')
        a(f'v_permlane32_swap_b32 v{T+1}, v{T}')
        a('s_nop 4')
        a('s_branch attn_fin')
    return slow

def wob_reads():
    Lw = uid('wob')
    a(f's_cmp_lg_u32 {S_IT}, 0')
    a(f's_cbranch_scc1 {Lw}')
    sv = (list(a.st.hist), list(a.st.lg))
    stage_wo_addr(L_S, 252)
    for n, x in enumerate(stage_wo_reads(1, 252)):
        a(x)
        if n % 12 == 11: a('s_waitcnt lgkmcnt(4)')
    stage_wo_pads(1)
    a('s_waitcnt lgkmcnt(0)')
    a('s_barrier')
    a.st.hist, a.st.lg = sv
    a.raw(Lw + ':')

def build(path):
    prologue()
    phase_qkv(True, True)
    if PREW == 4: a(f's_mov_b32 {S_LOC}, {S_XCC}')
    a.raw('layer_loop:'); a.fresh()
    phase_op(True, lambda: phase_qkv(False, False, 'pre'))
    if PREW == 3: a(f's_mov_b32 {S_LOC}, {S_XCC}')
    phase_qkv(False, False, 'main')
    slow = phase_attn(wob_reads)
    final = phase_op(False, lambda: phase_qkv(True, False, 'pre'))
    a(f's_cmp_lg_u32 {S_IT}, 0')
    a('s_cbranch_scc1 k_fin')
    phase_qkv(True, False, 'main')
    a(f's_mov_b32 {S_IT}, 1')
    a(f's_mov_b32 {S_BLK}, {BLK}')
    a(f's_mov_b32 {S_KVB}, {KVB}')
    a('s_branch layer_loop')
    final()
    a.raw('k_fin:')
    if INSTR:
        a('s_waitcnt vmcnt(0)')
        a(f'{CLK} s[96:97]')
        a('s_waitcnt lgkmcnt(0)')
        a(f'v_writelane_b32 v{V_ST}, s96, 63')
        a('s_lshl_b32 s48, s2, 2')
        a(f's_add_u32 s48, s48, {S_WAVE}')
        a('s_lshl_b32 s48, s48, 8')
        a(f's_add_u32 s48, s48, {WS_DBG}')
        a(f'v_lshrrev_b32 v{V_T0}, 2, v{V_L16}')
        a(f'buffer_store_dword v{V_ST}, v{V_T0}, {SRD_WS}, s48 offen')
    if DUR:
        a('s_waitcnt vmcnt(0)')
        a('s_memrealtime s[94:95]')
        a('s_not_b32 s92, s92')
        a('s_waitcnt lgkmcnt(0)')
        a(f'v_mov_b32 v{V_T0}, s92')
        a(f'v_mov_b32 v{V_T1}, s94')
        a(f'v_mov_b32 v{V_PL}, 0')
        a('s_mov_b64 exec, 1')
        a(f'buffer_atomic_umax v{V_T0}, v{V_PL}, {SRD_DBG}, 0 offen offset:56 sc1')
        a(f'buffer_atomic_umax v{V_T1}, v{V_PL}, {SRD_DBG}, 0 offen offset:60 sc1')
    if PADT:
        a('s_waitcnt vmcnt(0)')
        a.raw('pad_loop:')
        a('s_memrealtime s[98:99]')
        a('s_waitcnt lgkmcnt(0)')
        a('s_sub_u32 s98, s98, s96')
        a(f's_cmp_lt_u32 s98, {PADT}')
        a('s_cbranch_scc1 pad_loop')
    a.raw('k_end:')
    a('s_endpgm')
    slow()
    a.raw('code_end:')
    doc = """; Interleaved linear-attention (A) / softmax-MHA (B) layers, S=2048 D=448 H=16 Dh=28 -- one persistent kernel, gfx950.
;
; its queries with the exact two-pass true-row-maximum softmax (attn_slow)."""
    out = [doc,
           f'; @launch grid=(256,1,1) block=(256,1,1) lds={LDS_TOTAL}',
           '.amdgcn_target "amdgcn-amd-amdhsa--gfx950"', '.text', a.text(), '.section .rodata,"a"',
           kernel_desc(KNAME, 512, 102, 256)]
    open(path, 'w').write('\n'.join(out) + '\n')
    if INSTR:
        names = {}
        for i, (n, lp) in enumerate(STAMPS):
            names[i] = n + ('0' if lp else '')
            if lp:
                names[i + 27] = n + '1'
        names[63] = 'end'
        assert len(STAMPS) <= 40
        open(path + '.stamps', 'w').write('\n'.join(f'{i} {n}' for i, n in sorted(names.items())))

if __name__ == '__main__':
    path = sys.argv[1] if len(sys.argv) > 1 else f'cdna_kernels/{NAME}.s'
    INSTR = 'instr' in sys.argv[2:]
    if 'cyc' in sys.argv[2:]: CLK = 's_memtime'
    FINE = 'fine' in sys.argv[2:]
    WQL = 'nowql' not in sys.argv[2:]
    RPX = 'norpx' not in sys.argv[2:]
    WAQ = 'nowaq' not in sys.argv[2:]
    TIMG = 'timg' in sys.argv[2:]
    FINE3 = 'fine3' in sys.argv[2:]
    TLBW = 'tlb' in sys.argv[2:]
    for x in sys.argv[2:]:
        if x.startswith('look='): LOOK = int(x[5:])
        if x.startswith('wwg='): WWG = int(x[4:])
        if x.startswith('ptg='): PTG = int(x[4:])
        if x.startswith('fch='): FCH = int(x[4:])
        if x.startswith('isg='): ISG = int(x[4:])
        if x.startswith('ct='): CT = int(x[3:])
        if x.startswith('padt='): PADT = int(x[5:])
        if x.startswith('npb='): NPB = int(x[4:])
        if x.startswith('nkv0='): NKV0 = int(x[5:])
        if x.startswith('xs='): XS = int(x[3:])
        if x.startswith('opd='): OPD = int(x[4:])
        if x.startswith('ope='): OPE = int(x[4:])
        if x.startswith('prew='): PREW = int(x[5:])
        if x.startswith('qbsig='): QBSIG = int(x[6:])
    DUR = 'dur' in sys.argv[2:]
    WARM = 'warm' in sys.argv[2:]
    PRE = 'nopre' not in sys.argv[2:]
    FORCE_GLOBAL = 'noloc' in sys.argv[2:]
    if 'ldplain' in sys.argv[2:]: LD = ''
    if 'ldnt' in sys.argv[2:]: LD = 'nt'
    if 'ldsc0' in sys.argv[2:]: LD = 'sc0'
    DEBUGQ = 'debugq' in sys.argv[2:]
    FINE2 = 'fine2' in sys.argv[2:]
    TOUCH = 'notouch' not in sys.argv[2:]
    build(path)
    print('wrote', path, 'maxv', a.maxv, 'maxa', a.maxa, 'maxs', a.maxs)
```

```python
import sys, struct
sys.path.insert(0, 'dev')
from asmlib import *

NAME = 'interleave_layers__linear_attn_block__softmax_full_mha__prompt'
KNAME = NAME + '_kernel'

def f32(x):
    return '0x%08x' % struct.unpack('<I', struct.pack('<f', x))[0]

X_SIZE = 64 * 28 * 1024
ST_SIZE = 14 * 2048 * 8
_off = 0
def alloc(n, al=65536):
    global _off
    _off = (_off + al - 1) // al * al
    r = _off
    _off += n
    return r
REUSE = 'noreuse' not in sys.argv
if REUSE:
    WS_XA = WS_XB = alloc(X_SIZE)
    WS_STA = WS_STB = alloc(ST_SIZE, 4096)
    WS_O = WS_OA = alloc(64 * 16 * 2048)
    WS_KV = alloc(2 * 16 * 64 * 4096)
    WS_Q = 0
    BLK = 0
    KVB = 16 * 64 * 4096
else:
    WS_XA = alloc(X_SIZE); WS_XB = alloc(X_SIZE)
    WS_STA = alloc(ST_SIZE); WS_STB = alloc(ST_SIZE)
    WS_OA = alloc(64 * 16 * 2048)
    WS_Q = alloc(16 * 64 * 2048)
    WS_KV = alloc(16 * 64 * 4096)
    WS_O = alloc(64 * 16 * 2048)
    BLK = alloc(0)
    KVB = BLK
    _off = 2 * BLK
IMG_HEAD = 84 * 1024
WS_IMG = [alloc(16 * IMG_HEAD), alloc(16 * IMG_HEAD)]
WS_ZERO = alloc(0)
WS_KVACC = alloc(2 * 16 * 4096)
WS_FLAG = alloc(256 * 128, 4096)
WS_LFLAG = alloc(256 * 128, 4096)
WS_CS = alloc(16384, 4096)
ZERO_SIZE = _off - WS_ZERO
NZERO = ZERO_SIZE // 16384
assert ZERO_SIZE == NZERO * 16384 and NZERO == 13
WS_TOTAL = 1 << 28
WS_DBG = 64 << 20
OOB = 0x40000000

LOG2E = 1.4426950408889634
QSCALE = 28 ** -0.5 * LOG2E
ONES2 = 0x3f803f80
SC = 'sc1'
LD = 'sc1'

L_W = 0
L_S = 84 * 1024
L_KV = L_S + 57344
L_M = L_KV + 16384
L_RS = L_M
L_CS = L_M + 512
LDS_TOTAL = 163840
L_RED = L_S + 4096

INSTR = False
CLK = 's_memrealtime'
FINE = False
WWG = 5
PTG = 4
WQL = True
RPX = True
FCH = 0
ISG = 5
WAQ = True
CT = 0
PADT = 0
TIMG = False
NPB = 5
NKV0 = 4
XS = 0
OPD = 3
OPE = 3
FINE3 = False
TLBW = False
PREW = 0
LOOK = 0
QBSIG = 24
DUR = False
WARM = False
PRE = True
RBX = 1
FORCE_GLOBAL = False
DEBUGQ = False
FINE2 = False
TOUCH = True
POLL_LIMIT = 400000

V_L16, V_N, V_HF, V_T0, V_T1, V_PL, V_ST = 1, 2, 3, 4, 5, 6, 7
V_CS = [8, 11]
V_H64, V_ONE = 14, 15
S_WAVE = 's4'
S_RB, S_HQ, S_RP, S_CP, S_HA, S_QB, S_FLAG, S_BLK = 's40', 's41', 's42', 's43', 's41', 's40', 's46', 's47'
S_PROG, S_IT = 's62', 's63'
S_KVB = 's90'
S_OL8, S_OL4, S_OG8, S_OG4, S_ORT, S_OCT = 's91', 's92', 's93', 's94', 's95', 's3'
S_XT, S_STT, S_OT = 's84', 's85', 's86'
S_LOC, S_XCC = 's44', 's45'
SRD_WS, SRD_OUT, SRD_DBG = 's[8:11]', 's[32:35]', 's[36:39]'
SRD_X0, SRD_W, SRD_WO = 's[64:67]', ['s[68:71]', 's[72:75]'], ['s[76:79]', 's[80:83]']
WOA = [0, 128]

a = Asm()
_uid = [0]
def uid(p):
    _uid[0] += 1
    return f'{p}_{_uid[0]}'

STAMPS = []
def stamp(name, looped=False):
    if INSTR:
        i = len(STAMPS)
        STAMPS.append((name, looped))
        a(f'{CLK} s[96:97]')
        if looped:
            a(f's_mul_i32 s98, {S_IT}, 27')
            a(f's_add_u32 s98, s98, {i}')
            a('s_mov_b32 m0, s98')
            a('s_waitcnt lgkmcnt(0)')
            a(f'v_writelane_b32 v{V_ST}, s96, m0')
        else:
            a('s_waitcnt lgkmcnt(0)')
            a(f'v_writelane_b32 v{V_ST}, s96, {i}')

def poll(srd, mask, target):
    L = uid('poll')
    if mask != -1:
        a(f's_mov_b64 exec, {mask}')
    a(f's_mov_b32 s48, {POLL_LIMIT}')
    a('s_waitcnt lgkmcnt(0)')
    a.raw(L + ':')
    a(f'buffer_load_dword v{V_PL}, v{V_T0}, {srd}, 0 offen sc1')
    a('s_sub_u32 s48, s48, 1')
    a('s_cbranch_scc1 k_end')
    a('s_waitcnt vmcnt(0)')
    a(f'v_cmp_le_u32 vcc, {target}, v{V_PL}')
    a('s_cmp_eq_u64 vcc, exec')
    a(f's_cbranch_scc0 {L}')
    if mask != -1:
        a('s_mov_b64 exec, -1')

def signal(inc=1, lg=True, local=False, with_xcc=False, wait_tag=None, barrier=True, pre=None, post=None):
    L = uid('sig')
    V_T0, V_T1, V_PL = (4, 5, 6) if pre is None else (244, 245, 246)
    if pre: pre()
    if barrier:
        if wait_tag:
            a.wait_tag(wait_tag)
        else:
            a('s_waitcnt vmcnt(0) lgkmcnt(0)' if lg else 's_waitcnt vmcnt(0)')
        a('s_barrier')
    a(f's_cmp_lg_u32 {S_WAVE}, 0')
    a(f's_cbranch_scc1 {L}')
    sv = list(a.st.hist)
    a(f's_add_u32 s48, {S_PROG}, {inc}')
    a(f'v_mov_b32 v{V_T0}, s48')
    a(f'v_mov_b32 v{V_PL}, 0')
    a('s_mov_b64 exec, 1')
    if with_xcc:
        a(f'v_mov_b32 v{V_T1}, {S_XCC}')
        a.raw(f'  buffer_store_dwordx2 v[{V_T0}:{V_T1}], v{V_PL}, {SRD_WS}, {S_FLAG} offen sc1')
    elif local:
        a(f's_add_u32 s48, {S_FLAG}, {WS_LFLAG - WS_FLAG}')
        lstore([f'buffer_store_dword v{V_T0}, v{V_PL}, {SRD_WS}, s48 offen'], track=False)
    else:
        a.raw(f'  buffer_store_dword v{V_T0}, v{V_PL}, {SRD_WS}, {S_FLAG} offen sc1')
    a('s_mov_b64 exec, -1')
    a('s_nop 1')
    a.st.hist = sv
    a.raw(L + ':')
    if post: post()

def lstore(stores, track=True):
    L1, L2 = uid('ls'), uid('ls')
    a(f's_cmp_lg_u32 {S_LOC}, 0')
    a(f's_cbranch_scc1 {L1}')
    n0 = len(a.lines)
    sv = (list(a.st.hist), list(a.st.vm), list(a.st.lg))
    for x in stores:
        a(x + ' sc1')
    t1 = a.lines[n0:]
    a.raw(f'  s_branch {L2}')
    a.raw(L1 + ':')
    a.st.hist, a.st.vm, a.st.lg = list(sv[0]), list(sv[1]), list(sv[2])
    for x in stores:
        a(x)
    a.raw(L2 + ':')
    if not track:
        a.st.vm = list(sv[1])

def advance(n=1):
    a(f's_add_u32 {S_PROG}, {S_PROG}, {n}')

def flag_addr(local=False):
    a(f'v_lshlrev_b32 v{V_T0}, 7, v{V_T0}')
    a(f'v_add_u32 v{V_T0}, {WS_LFLAG if local else WS_FLAG}, v{V_T0}')

def ids16(sreg):
    a(f'v_lshrrev_b32 v{V_T1}, 4, v{V_L16}')
    a(f'v_lshrrev_b32 v{V_T0}, 1, v{V_T1}')
    a(f'v_and_b32 v{V_T1}, 1, v{V_T1}')
    a(f'v_lshl_add_u32 v{V_T0}, v{V_T1}, 3, v{V_T0}')
    a(f's_lshl_b32 s48, {sreg}, 4')
    a(f'v_add_u32 v{V_T0}, s48, v{V_T0}')
    flag_addr()

def ids_qkv_rows(hreg):
    if RBX == 1:
        return ids16(hreg)
    a(f'v_lshrrev_b32 v{V_T0}, 6, v{V_L16}')
    a(f'v_lshlrev_b32 v{V_T0}, 1, v{V_T0}')
    a(f'v_bfe_u32 v{V_T1}, v{V_L16}, 4, 2')
    a(f'v_lshl_add_u32 v{V_T0}, v{V_T1}, 3, v{V_T0}')
    a(f's_lshr_b32 s48, {hreg}, 3')
    a(f's_and_b32 s49, {hreg}, 7')
    a('s_lshl_b32 s49, s49, 5')
    a('s_add_u32 s48, s48, s49')
    a(f'v_add_u32 v{V_T0}, s48, v{V_T0}')
    flag_addr()

def ids_qkv_heads(rbreg):
    if RBX == 1:
        a(f's_lshr_b32 s48, {rbreg}, 1')
        a(f's_and_b32 s49, {rbreg}, 1')
        a('s_lshl_b32 s49, s49, 3')
        a('s_add_u32 s48, s48, s49')
        a(f'v_add_u32 v{V_T0}, s48, v{V_L16}')
        return flag_addr(True)
    a(f'v_lshrrev_b32 v{V_T0}, 7, v{V_L16}')
    a(f'v_bfe_u32 v{V_T1}, v{V_L16}, 4, 3')
    a(f'v_lshl_add_u32 v{V_T0}, v{V_T1}, 5, v{V_T0}')
    a(f's_lshr_b32 s48, {rbreg}, 2')
    a('s_lshl_b32 s48, s48, 1')
    a(f's_and_b32 s49, {rbreg}, 3')
    a('s_lshl_b32 s49, s49, 3')
    a('s_add_u32 s48, s48, s49')
    a(f'v_add_u32 v{V_T0}, s48, v{V_T0}')
    flag_addr()

V_DUM = 250
def pretouch_setup(isA, blk):
    o, x, st = (WS_OA, WS_XA, WS_STA) if isA else (WS_O, WS_XB, WS_STB)
    for r, base, off in (('s87', S_OT, o), ('s88', S_XT, x), ('s89', S_STT, st)):
        if isinstance(blk, int):
            a(f's_add_u32 {r}, {base}, {off + blk}')
        else:
            a(f's_add_u32 {r}, {base}, {off}')
            a(f's_add_u32 {r}, {r}, {blk}')
    a(f'v_lshlrev_b32 v{V_DUM}, 1, v{V_L16}')
def pretouch():
    if PRE:
        a(f'buffer_load_dword v255, v{V_DUM}, {SRD_WS}, s87 offen sc1')
        a(f'buffer_load_dword v255, v{V_DUM}, {SRD_WS}, s88 offen sc1')
        a('s_mov_b64 exec, 0xff')
        a(f'buffer_load_dword v255, v{V_DUM}, {SRD_WS}, s89 offen sc1')
        a('s_mov_b64 exec, -1')

def prewrite():
    if PREW == 0:
        return pretouch()
    if PREW in (2, 3):
        return
    if PREW == 4:
        a(f'buffer_load_dword v255, v{V_DUM}, {SRD_WS}, s88 offen sc1')
        a('s_mov_b64 exec, 0xff')
        a(f'buffer_load_dword v255, v{V_DUM}, {SRD_WS}, s89 offen sc1')
        a('s_mov_b64 exec, -1')
        return
    a(f's_cmp_ge_u32 {S_CP}, 7')
    a(f's_cselect_b32 s88, {OOB}, s88')
    a(f's_cselect_b32 s89, {OOB}, s89')
    for sr in ('s87', 's88'):
        a(f'buffer_store_dwordx4 v[0:3], v{V_L16}, {SRD_WS}, {sr} offen')
        a(f'buffer_store_dwordx4 v[0:3], v{V_L16}, {SRD_WS}, {sr} offen offset:1024')
    a('s_mov_b64 exec, 0xffff')
    a(f'buffer_store_dwordx4 v[0:3], v{V_L16}, {SRD_WS}, s89 offen')
    a('s_mov_b64 exec, -1')

def touch_img_setup(which):
    a(f's_mul_i32 s25, {S_HQ}, {IMG_HEAD}')
    a(f's_and_b32 s49, {S_RB}, 1')
    a(f's_lshl_b32 s49, s49, 2')
    a(f's_add_u32 s49, s49, {S_WAVE}')
    a(f's_mul_i32 s49, s49, {IMG_HEAD // 8}')
    a('s_add_u32 s25, s25, s49')
    a(f's_add_u32 s25, s25, {WS_IMG[which]}')
    a(f's_cmp_lg_u32 {S_IT}, 0')
    a(f's_cselect_b32 s25, {OOB}, s25')
    a('s_add_u32 s26, s25, 8192')
    a(f'v_lshlrev_b32 v254, 3, v{V_L16}')
def touch_img(k):
    if k == 0:
        a(f'buffer_load_dword v255, v254, {SRD_WS}, s25 offen sc1')
    else:
        a('s_mov_b64 exec, 0xfffff')
        a(f'buffer_load_dword v255, v254, {SRD_WS}, s26 offen sc1')
        a('s_mov_b64 exec, -1')

def code_touch_wg(stride=6, lo=0):
    L = uid('ct')
    a(f's_sub_u32 s48, s2, {lo}')
    a('s_cmp_ge_u32 s48, 16')
    a(f's_cbranch_scc1 {L}')
    sv = list(a.st.hist)
    a('s_lshr_b32 s48, s48, 3')
    a(f's_lshl_b32 s48, s48, {8+stride}')
    a(f'v_lshl_add_u32 v254, v0, {stride}, s48')
    a('v_min_u32 v254, code_end-pc_base-4, v254')
    a.raw('  global_load_dword v255, v254, s[54:55]')
    a.st.hist = sv
    a.raw(L + ':')

def code_touch_addr(r):
    a('s_lshr_b32 s6, s2, 3')
    a('s_lshl_b32 s6, s6, 9')
    a(f'v_lshrrev_b32 v{r}, 6, v0')
    a(f'v_lshl_add_u32 v{r}, v{r}, 7, s6')
    a(f'v_and_b32 v254, 63, v0')
    a(f'v_lshl_add_u32 v{r}, v254, 14, v{r}')
    a(f'v_min_u32 v{r}, code_end-pc_base-4, v{r}')
def code_touch(r, raw=False):
    a('s_mov_b64 exec, 7')
    t = f'global_load_dword v255, v{r}, s[54:55]'
    if raw: a.raw('  ' + t)
    else: a(t)
    a('s_mov_b64 exec, -1')

def prologue():
    a.raw(kernel_header(KNAME))
    a('s_cmp_ge_u32 s2, 256')
    a('s_cbranch_scc1 k_end')
    a('s_load_dwordx2 s[64:65], s[0:1], 0')
    a('s_load_dwordx2 s[68:69], s[0:1], 8')
    a('s_load_dwordx2 s[8:9], s[0:1], 64')
    a('s_load_dwordx2 s[76:77], s[0:1], 16')
    a('s_load_dwordx2 s[72:73], s[0:1], 32')
    a('s_load_dwordx2 s[80:81], s[0:1], 40')
    a('s_load_dwordx2 s[32:33], s[0:1], 48')
    a('s_load_dwordx2 s[36:37], s[0:1], 56')
    a('s_getpc_b64 s[54:55]')
    a.raw('pc_base:')
    if CT == 0:
        code_touch_wg()
    elif CT in (1, 2):
        code_touch_addr(249)
        code_touch(249, raw=True)
    if PADT: a('s_memrealtime s[96:97]')
    a(f'v_and_b32 v13, 63, v0')
    a(f'v_lshrrev_b32 v{V_T0}, 6, v0')
    a(f'v_and_b32 v{V_N}, 31, v0')
    a(f'v_readfirstlane_b32 {S_WAVE}, v{V_T0}')
    a(f'v_bfe_u32 v{V_HF}, v0, 5, 1')
    a(f'v_lshlrev_b32 v{V_L16}, 4, v13')
    a(f'v_mov_b32 v{V_ST}, 0')
    a('s_and_b32 s5, s2, 7')
    a('s_lshr_b32 s6, s2, 3')
    if RBX == 2:
        a('s_lshl_b32 s7, s5, 1')
        a('s_and_b32 s7, s7, 12')
        a('s_and_b32 s12, s6, 3')
        a(f's_add_u32 {S_RB}, s7, s12')
        a('s_and_b32 s7, s5, 1')
        a('s_lshl_b32 s7, s7, 3')
        a('s_lshr_b32 s12, s6, 2')
        a(f's_add_u32 {S_HQ}, s7, s12')
    else:
        a('s_lshl_b32 s7, s5, 1')
        a('s_and_b32 s12, s6, 1')
        a(f's_add_u32 {S_RB}, s7, s12')
        a(f's_lshr_b32 {S_HQ}, s6, 1')
    for r in (67, 71):
        a(f's_mov_b32 s{r}, 0x20000')
    a(f's_mov_b32 s66, {2048*448*2}')
    a(f's_mov_b32 s70, {448*1344*2}')

def prologue_late():
    a('s_lshl_b32 s24, s5, 2')
    a('s_and_b32 s25, s6, 3')
    a(f's_add_u32 {S_RP}, s24, s25')
    a(f's_lshr_b32 {S_CP}, s6, 2')
    a(f's_lshr_b32 s24, {S_WAVE}, 1')
    a(f's_lshl_b32 s25, {S_RP}, 1')
    a('s_add_u32 s24, s24, s25')
    a(f's_and_b32 s25, {S_WAVE}, 1')
    a(f's_min_u32 s26, {S_CP}, 6')
    a('s_lshl_b32 s26, s26, 1')
    a('s_add_u32 s25, s25, s26')
    a(f's_mov_b32 {S_ORT}, s24')
    a(f's_lshl_b32 s26, {S_WAVE}, 12')
    a('s_and_b32 s26, s26, 0x1000')
    a(f's_lshl_b32 s27, {S_WAVE}, 14')
    a('s_and_b32 s27, s27, 0x8000')
    a(f's_add_u32 s27, s27, {L_S}')
    a(f's_add_u32 {S_OL8}, s27, s26')
    a('s_lshl_b32 s28, s24, 15')
    a(f's_add_u32 {S_OG8}, s28, s26')
    a('s_lshr_b32 s26, s26, 1')
    a(f's_add_u32 {S_OL4}, s27, s26')
    a(f's_add_u32 {S_OG4}, s28, s26')
    a(f's_mul_i32 {S_XT}, s24, {28*1024}')
    a('s_lshl_b32 s26, s25, 11')
    a(f's_add_u32 {S_XT}, {S_XT}, s26')
    a(f's_lshl_b32 {S_STT}, s25, 14')
    a('s_lshl_b32 s26, s24, 8')
    a(f's_add_u32 {S_STT}, {S_STT}, s26')
    a(f's_lshl_b32 {S_OT}, {S_RB}, 2')
    a(f's_add_u32 {S_OT}, {S_OT}, {S_WAVE}')
    a(f's_lshl_b32 {S_OT}, {S_OT}, 15')
    a(f's_lshl_b32 s26, {S_HQ}, 11')
    a(f's_add_u32 {S_OT}, {S_OT}, s26')
    a(f's_lshl_b32 {S_FLAG}, s2, 7')
    a(f's_add_u32 {S_FLAG}, {S_FLAG}, {WS_FLAG}')
    a(f's_mov_b32 {S_BLK}, 0')
    a(f's_mov_b32 {S_KVB}, 0')
    a(f's_getreg_b32 {S_XCC}, hwreg(HW_REG_XCC_ID, 0, 4)')
    a(f's_add_u32 {S_XCC}, {S_XCC}, 1')
    a(f's_mov_b32 {S_LOC}, 0')
    a(f's_mov_b32 {S_PROG}, 0')
    a(f's_mov_b32 {S_IT}, 0')
    for r in (11, 35, 39, 75, 79, 83):
        a(f's_mov_b32 s{r}, 0x20000')
    a(f's_mov_b32 s10, {WS_TOTAL}')
    a(f's_mov_b32 s34, {2048*448*2}')
    a('s_mov_b32 s38, 256')
    a(f's_mov_b32 s74, {448*1344*2}')
    a(f's_mov_b32 s78, {448*448*2}')
    a(f's_mov_b32 s82, {448*448*2}')
    a(f'v_add_u32 v{V_H64}, 65536, v{V_L16}')
    a(f'v_cmp_eq_u32 vcc, 28, v{V_N}')
    a(f'v_mov_b32 v{V_ONE}, {ONES2}')
    a(f'v_cndmask_b32 v{V_ONE}, 0, v{V_ONE}, vcc')
    for r in (9, 33, 37, 73, 77, 81):
        a(f's_and_b32 s{r}, s{r}, 0xffff')
    stamp('start')

ZROLE0 = 243
def zero_role():
    L = uid('z')
    a(f's_cmp_lt_u32 s2, {ZROLE0}')
    a(f's_cbranch_scc1 {L}')
    a(f's_sub_u32 s3, s2, {ZROLE0}')
    a('s_lshl_b32 s53, s3, 14')
    a(f's_add_u32 s53, s53, {WS_ZERO}')
    a('v_lshlrev_b32 v16, 4, v0')
    for i in range(4):
        a(f'v_mov_b32 v{20+i}, 0')
    for i in range(4):
        a.raw(f'  buffer_store_dwordx4 v[20:23], v16, {SRD_WS}, s53 offen {SC}')
        if i < 3:
            a('s_add_u32 s53, s53, 4096')
    a('s_lshl_b32 s3, s3, 2')
    a.raw(L + ':')

def zero_publish():
    L = uid('z')
    a(f's_cmp_lt_u32 s2, {ZROLE0}')
    a(f's_cbranch_scc1 {L}')
    a(f's_cmp_lg_u32 {S_WAVE}, 0')
    a(f's_cbranch_scc1 {L}')
    sv = list(a.st.hist)
    a(f'v_mov_b32 v{V_T1}, 1')
    a(f'v_mov_b32 v{V_PL}, 0')
    a('s_mov_b64 exec, 1')
    a.raw(f'  buffer_store_dword v{V_T1}, v{V_PL}, {SRD_DBG}, s3 offen sc1')
    a('s_mov_b64 exec, -1')
    a.st.hist = sv
    a.raw(L + ':')

def img_base(which, sg, sl):
    a(f's_mul_i32 {sl}, {S_WAVE}, {21*1024}')
    a(f's_mul_i32 {sg}, {S_HQ}, {IMG_HEAD}')
    a(f's_add_u32 {sg}, {sg}, {sl}')
    a(f's_add_u32 {sg}, {sg}, {WS_IMG[which]}')

def img_dma(n, sg, sl):
    a(f's_mov_b32 m0, {sl}')
    a(f's_add_u32 {sl}, {sl}, {n*1024}')
    for i in range(n):
        a(f'buffer_load_dwordx4 v{V_L16}, {SRD_WS}, {sg} offen offset:{i*1024} {SC} lds')
    a(f's_add_u32 {sg}, {sg}, {n*1024}')

def wb_kv(i):
    a(f's_add_u32 m0, s61, {i*3072}')
    a(f's_add_u32 s59, s60, {i*3072}')
    for p in (1, 2):
        a(f'buffer_load_dwordx4 v{V_L16}, {SRD_WS}, s59 offen offset:{p*1024} {SC} lds')
def wb_q(i):
    op = 's_add_u32' if i >= 0 else 's_sub_u32'
    a(f'{op} m0, s61, {abs(i)*3072}')
    a(f'{op} s59, s60, {abs(i)*3072}')
    a(f'buffer_load_dwordx4 v{V_L16}, {SRD_WS}, s59 offen {SC} lds')

def w_prefetch(which, parts):
    for n in parts:
        img_dma(n, 's60', 's61')

def stage_wo_issue(which, lds, tmp, tag, defer=False):
    a(f'v_lshrrev_b32 v{tmp}, 7, v{V_L16}')
    a(f'v_mul_u32_u24 v{tmp}, 896, v{tmp}')
    a(f'v_lshrrev_b32 v{tmp+1}, 2, v{V_L16}')
    a(f'v_and_b32 v{tmp+1}, 64, v{tmp+1}')
    a(f'v_xor_b32 v{tmp+1}, v{tmp+1}, v{V_L16}')
    a(f'v_and_b32 v{tmp+1}, 0x70, v{tmp+1}')
    a(f's_min_u32 s48, {S_CP}, 6')
    a('s_lshl_b32 s48, s48, 7')
    a(f'v_add3_u32 v{tmp}, v{tmp}, v{tmp+1}, s48')
    a(f's_mul_i32 s26, {S_WAVE}, {112*896}')
    a(f's_mul_i32 s27, {S_WAVE}, {14*1024}')
    def one(i, wh=which, tg=tag):
        a(f's_add_u32 m0, s27, {lds + i*1024}')
        a(f's_add_u32 s25, s26, {i*7168}')
        a.inst(f'buffer_load_dwordx4 v{tmp}, {SRD_WO[wh]}, s25 offen lds', tag=tg)
    class TH(list): pass
    th = TH((lambda i=i: one(i)) for i in range(14))
    th.one = one
    return th

def stage_wo_addr(lds, tmp):
    a(f'v_bfe_u32 v{tmp}, v{V_L16}, 6, 2')
    a(f'v_lshl_add_u32 v{tmp}, v{V_HF}, 2, v{tmp}')
    a(f'v_lshlrev_b32 v{tmp}, 7, v{tmp}')
    a(f'v_bfe_u32 v{tmp+1}, v{V_L16}, 7, 1')
    a(f's_and_b32 s49, {S_WAVE}, 1')
    a(f'v_xor_b32 v{tmp+1}, s49, v{tmp+1}')
    a(f'v_lshl_add_u32 v{tmp}, v{tmp+1}, 6, v{tmp}')
    a(f'v_bfe_u32 v{tmp+1}, v{V_L16}, 8, 1')
    a(f'v_lshl_add_u32 v{tmp}, v{tmp+1}, 5, v{tmp}')
    a(f'v_bfe_u32 v{tmp+1}, v{V_L16}, 4, 2')
    a(f'v_lshl_add_u32 v{tmp}, v{tmp+1}, 3, v{tmp}')
    a(f'v_add_u32 v{tmp}, {lds}, v{tmp}')

def stage_wo_reads(which, tmp):
    B = WOA[which]
    return [f'ds_read_b64_tr_b16 a[{B + 4*(2*h+u) + 2*q}:{B + 4*(2*h+u) + 2*q + 1}], v{tmp} offset:{(28*h + 16*u + 8*q)*128}'
            for h in range(16) for u in range(2) for q in range(2)]

def stage_wo_pads(which):
    B = WOA[which]
    a('s_mov_b32 exec_lo, 0')
    for h in range(16):
        r = B + 4 * (2 * h + 1) + 2
        a(f'v_accvgpr_write_b32 a{r}, 0')
        a(f'v_accvgpr_write_b32 a{r+1}, 0')
    a('s_mov_b32 exec_lo, -1')

X, AK, AV, AQ, WR, RS, WE, XE, T, E = 16, 128, 144, 160, 176, 200, 216, 228, 232, 244
ST = AQ
NWR = 6

def ln_stats(isA):
    L = [f's_mov_b32 s16, {f32(1.0/448)}',
         f'v_mul_f32 v{ST}, s16, v{ST}',
         f'v_mul_f32 v{ST+1}, s16, v{ST+1}',
         f'v_fma_f32 v{ST+1}, -v{ST}, v{ST}, v{ST+1}',
         f'v_max_f32 v{ST+1}, 0, v{ST+1}',
         f'v_add_f32 v{ST+1}, {f32(1e-5)}, v{ST+1}',
         f'v_rsq_f32 v{T}, v{ST+1}',
         f'v_sub_f32 v{ST}, 0, v{ST}',
         f'ds_write_b32 v{T+8}, v{T}']
    L += [f'ds_read_b128 v[{RS+4*g}:{RS+4*g+3}], v{T+9} offset:{32*g}' for g in range(4)]
    L += [f'v_and_b32 v{T+4}, 0xffff0000, v{ST}',
          f'v_sub_f32 v{T+5}, v{ST}, v{T+4}',
          f'v_and_b32 v{T+6}, 0xffff0000, v{T+5}',
          f'v_sub_f32 v{T+7}, v{T+5}, v{T+6}',
          f'v_perm_b32 v{XE}, v{T+4}, v{T+4}, s17',
          f'v_perm_b32 v{XE+1}, v{T+6}, v{T+4}, s17',
          f'v_perm_b32 v{XE+2}, v{T+7}, v{T+6}, s17',
          f'v_mov_b32 v{XE+3}, 0',
          f'v_mul_f32 v{T+2}, {f32(LOG2E if isA else QSCALE)}, v{T}']
    return L

def rs_addr():
    a(f's_lshl_b32 s18, {S_WAVE}, 7')
    a(f's_add_u32 s18, s18, {L_RS}')
    a(f'v_lshl_add_u32 v{T+8}, v{V_N}, 2, s18')
    a(f'v_lshl_add_u32 v{T+9}, v{V_HF}, 4, s18')
    a('s_mov_b32 s17, 0x07060302')

def halves_add(r, n, tmp):
    return ([f'v_mov_b32 v{tmp+i}, v{r+i}' for i in range(n)] +
            [f'v_permlane32_swap_b32 v{r+i}, v{tmp+i}' for i in range(n)] +
            [f'v_add_f32 v{r+i}, v{r+i}, v{tmp+i}' for i in range(n)])

def we_build(which, c):
    L = [f'v_cmp_eq_u32 s[56:57], 0, v{V_HF}']
    for p in (1, 2, 0):
        L += [f'v_cndmask_b32 v{c}, 0, v{V_CS[which]+p}, s[56:57]',
              f'v_and_b32 v{c+1}, 0xffff0000, v{c}',
              f'v_sub_f32 v{c}, v{c}, v{c+1}',
              f'v_and_b32 v{c+2}, 0xffff0000, v{c}',
              f'v_sub_f32 v{c+3}, v{c}, v{c+2}',
              f'v_perm_b32 v{WE+4*p}, v{c+2}, v{c+1}, s17',
              f'v_perm_b32 v{WE+4*p+1}, v{c+1}, v{c+3}, s17',
              f'v_perm_b32 v{WE+4*p+2}, v{c+1}, v{c+2}, s17',
              f'v_mov_b32 v{WE+4*p+3}, 0']
    return L

AT_Q = 16

def phase_qkv(isA, first, mode='all'):
    lp = not isA
    nm = 'qa0' if first else ('qa1' if isA else 'qb')
    wsel = 0 if isA else 1
    trans = [True, not isA, False]
    accb = [AQ, AK, AV]
    started = [False] * 3
    fill = []
    def pop(n):
        for _ in range(n):
            if fill:
                x = fill.pop(0)
                if callable(x): x()
                else: a(x)
    def mm(p, w, x):
        d = f'v[{accb[p]}:{accb[p]+15}]'
        c = d if started[p] else '0'
        started[p] = True
        if trans[p]:
            a(f'v_mfma_f32_32x32x16_bf16 {d}, {w}, {x}, {c}')
        else:
            a(f'v_mfma_f32_32x32x16_bf16 {d}, {x}, {w}, {c}')
    seq = [(t, p) for t in range(28) for p in (1, 2)] + [(t, 0) for t in range(28)]
    AH = NWR - 1
    def wread(i):
        if i < len(seq):
            t, p = seq[i]
            r = WR + 4 * (i % NWR)
            o = L_W + (3 * t + p) * 1024
            if first:
                for q in range(2):
                    a(f'ds_read_b64_tr_b16 v[{r+2*q}:{r+2*q+1}], v{T+10 + (o >= 65536)} offset:{o % 65536 + q*512}')
            else:
                a(f'ds_read_b128 v[{r}:{r+3}], v{V_L16 if o < 65536 else V_H64} offset:{o % 65536}')
    def wmm(i):
        t, p = seq[i]
        r = WR + 4 * (i % NWR)
        mm(p, f'v[{r}:{r+3}]', f'v[{X+4*t}:{X+4*t+3}]')
    def extra(p):
        mm(p, f'v[{WE+4*p}:{WE+4*p+3}]', f'v[{XE}:{XE+3}]')
    if mode != 'pre': a.raw(f'; ======== QKV projection ({nm}) ========')
    n_keep = len(a.lines)
    a(f's_lshl_b32 s7, {S_RB}, 2')
    a(f's_add_u32 s7, s7, {S_WAVE}')
    a(f's_mul_i32 s20, s7, {28*1024}')
    if first:
        XD, XA, WDV, F, TM = AQ + 4, AQ + 6, AQ + 14, RS, WE
        a(f'v_lshrrev_b32 v{WDV}, 6, v{V_L16}')
        a(f'v_mul_u32_u24 v{WDV}, 2688, v{WDV}')
        a(f'v_and_b32 v{TM}, 48, v{V_L16}')
        a(f's_mul_i32 s12, {S_HQ}, 56')
        a('s_and_b32 s14, s12, 8')
        a('s_sub_u32 s12, s12, s14')
        a(f'v_add3_u32 v{WDV}, v{WDV}, v{TM}, s12')
        a(f's_lshl_b32 s23, {S_RB}, 1')
        a(f's_add_u32 s23, s23, {S_HQ}')
        a('s_mul_i32 s24, s23, 37')
        a('s_lshr_b32 s24, s24, 8')
        a('s_mul_i32 s24, s24, 7')
        a('s_sub_u32 s23, s23, s24')
        a(f's_mul_i32 s15, {S_WAVE}, 3072')
        a(f's_mul_i32 s22, {S_WAVE}, 43008')
        def issue_w(g):
            a(f's_mul_i32 s24, s23, {4*43008}')
            a('s_add_u32 s24, s24, s22')
            for p in (1, 2):
                a(f's_add_u32 m0, s15, {g*12288 + p*1024}')
                a('s_add_u32 s24, s24, 896')
                a.inst(f'buffer_load_dwordx4 v{WDV}, {SRD_W[0]}, s24 offen lds', tag=f'w{g}')
        a(f'v_lshrrev_b32 v{TM+2}, 7, v{V_L16}')
        a(f'v_mul_u32_u24 v{TM+2}, 896, v{TM+2}')
        a(f'v_bfe_u32 v{TM+3}, v{V_L16}, 4, 3')
        a(f'v_lshrrev_b32 v{TM+4}, 8, v{V_L16}')
        a(f'v_xor_b32 v{TM+3}, v{TM+3}, v{TM+4}')
        a(f'v_lshl_add_u32 v{XD}, v{TM+3}, 4, v{TM+2}')
        a(f'v_xor_b32 v{TM+3}, 4, v{TM+3}')
        a(f'v_lshl_add_u32 v{XD+1}, v{TM+3}, 4, v{TM+2}')
        a(f's_mul_i32 s21, {S_WAVE}, 12288')
        a(f's_add_u32 s21, s21, {L_S}')
        def rot_next():
            a('s_add_u32 s23, s23, 1')
            a('s_cmp_eq_u32 s23, 7')
            a('s_cselect_b32 s23, 0, s23')
        def issue_x(g):
            a(f's_add_u32 m0, s21, {(g%3)*4096}')
            a('s_lshl_b32 s24, s23, 7')
            a('s_add_u32 s24, s24, s20')
            for i in range(4):
                if i: a('s_add_u32 s24, s24, 6144')
                a.inst(f'buffer_load_dwordx4 v{XD+(i&1)}, {SRD_X0}, s24 offen offset:{i*1024} lds', tag=f'g{g}')
            rot_next()
        a('s_waitcnt lgkmcnt(0)')
        a('s_and_b32 s65, s65, 0xffff')
        a('s_and_b32 s69, s69, 0xffff')
        issue_w(0); issue_x(0)
        prologue_late()
        zero_role()
        if FINE2: stamp('p_x0')
        if WARM:
            a('s_lshr_b32 s24, s2, 3')
            a('s_lshl_b32 s24, s24, 2')
            a(f's_add_u32 s24, s24, {S_WAVE}')
            a(f'v_lshlrev_b32 v254, 3, v{V_L16}')
            a(f's_and_b32 s25, {S_RB}, 14')
            a(f's_mul_i32 s25, s25, {128*896}')
            a(f's_mul_i32 s26, s24, {14*128}')
            a('s_add_u32 s25, s25, s26')
            a('s_mov_b64 exec, 0x3fff')
            a(f'buffer_load_dword v255, v254, {SRD_X0}, s25 offen')
            a(f's_mul_i32 s26, s24, {74*128}')
            a('s_mov_b64 exec, 0x3ff')
            a(f'buffer_load_dword v255, v254, {SRD_W[0]}, s26 offen')
            a('s_mov_b64 exec, -1')
            a(f'buffer_load_dword v255, v254, {SRD_W[0]}, s26 offen offset:{10*128}')
        a(f's_lshl_b32 s13, {S_WAVE}, 12')
        a(f's_add_u32 s13, s13, {L_KV}')
        if FINE2: stamp('p_rp')
        a(f'v_bfe_u32 v{TM+2}, v{V_N}, 1, 3')
        a(f'v_lshl_add_u32 v{TM+3}, v{V_N}, 7, s21')
        a(f'v_lshl_add_u32 v{TM+3}, v{V_HF}, 3, v{TM+3}')
        for q in range(8):
            a(f'v_xor_b32 v{TM+4}, {q}, v{TM+2}')
            a(f'v_lshl_add_u32 v{XA+q}, v{TM+4}, 4, v{TM+3}')
        a(f'v_and_b32 v{TM+2}, 0xc0, v{V_L16}')
        a(f'v_lshl_add_u32 v{TM+2}, v{V_HF}, 8, v{TM+2}')
        a(f'v_bfe_u32 v{TM+3}, v{V_L16}, 8, 1')
        a(f'v_lshl_add_u32 v{TM+2}, v{TM+3}, 5, v{TM+2}')
        a(f'v_bfe_u32 v{TM+3}, v{V_L16}, 4, 2')
        a(f'v_lshl_add_u32 v{TM+2}, v{TM+3}, 3, v{TM+2}')
        a(f'v_add_u32 v{T+10}, s14, v{TM+2}')
        a(f'v_add_u32 v{T+11}, 65536, v{T+10}')
        if RPX:
            a(f's_xor_b32 s50, {S_HQ}, 1')
            a('s_xor_b32 s24, s14, 8')
            a('s_add_u32 s24, s24, s13')
            a(f'v_add_u32 v{TM+2}, s24, v{TM+2}')
            a('s_mul_i32 s24, s14, 12')
            a('s_sub_u32 s24, 48, s24')
            a(f'v_add_u32 v{TM+1}, s24, v{WDV}')
        else:
            a(f's_mov_b32 s50, {S_HQ}')
            a(f'v_add_u32 v{TM+2}, s13, v{T+10}')
            a(f'v_mov_b32 v{TM+1}, v{WDV}')
        a(f'v_lshlrev_b32 v{E}, 2, v{V_N}')
        a(f'v_lshrrev_b32 v{V_T0}, 2, v{V_L16}')
        a(f's_mov_b32 s19, {ONES2}')
        a(f'v_mov_b32 v{ST}, 0')
        a(f'v_mov_b32 v{ST+1}, 0')
        rs_addr()
        CA, CS, CR = E + 1, E + 3, XE
        a(f'v_add_u32 v{CA}, s15, v{T+10}')
        a(f'v_add_u32 v{CA+1}, s15, v{T+11}')
        a(f'v_mov_b32 v{CS}, 0')
        a(f'v_mov_b32 v{CS+1}, 0')
        if FINE2: stamp('p_adr')
        issue_w(1); issue_x(1)
        if CT == 3: code_touch_wg()
        if CT == 4: code_touch_wg(6, 224)
        if CT == 5:
            code_touch_addr(249); code_touch(249, raw=True)
        if FINE2: stamp('p_g1')
        if FINE2:
            a.wait_tag('g0'); stamp('p_g0w')
        CRS = [[XE, T + 4], [V_CS[0], X + 108]]
        def cs_read(gg, slot):
            for k, p in enumerate((1, 2)):
                for q in range(2):
                    o = gg * 12288 + p * 1024 + q * 512
                    r = CRS[slot][k] + 2 * q
                    a(f'ds_read_b64_tr_b16 v[{r}:{r+1}], v{CA + (o >= 65536)} offset:{o % 65536}')
        def cs_dot(slot):
            for r in range(4):
                for k in range(2):
                    a(f'v_dot2_f32_bf16 v{CS+k}, v{CRS[slot][k]+r}, s19, v{CS+k}')
        def open_group(g):
            a.wait_tag(f'g{g}')
            if g == ISG:
                a.wait_tag('pub')
            if g == 6:
                a.wait_tag('csw', 'lg')
            a('s_barrier')
            if g == 0:
                zero_publish()
            if g == ISG:
                signal(1, with_xcc=True, barrier=False); advance()
                if FINE: stamp('i_sig')
            for q in range(8):
                r = X + 16 * g + 2 * q
                a(f'ds_read_b64 v[{r}:{r+1}], v{XA+q} offset:{(g%3)*4096}')
            if g < 6:
                cs_read(g, 0)
        def rp_issue():
            for k in range(2):
                a(f's_add_u32 s24, s7, {64*k}')
                a('s_mul_i32 s25, s24, 171')
                a('s_lshr_b32 s25, s25, 9')
                a('s_mul_i32 s26, s25, 45')
                a('s_add_u32 s26, s26, s24')
                a('s_mul_i32 s26, s26, 896')
                if k:
                    a('s_cmp_ge_u32 s24, 84')
                    a(f's_cselect_b32 s26, {OOB}, s26')
                for wh in range(2):
                    a(f's_add_u32 m0, s13, {(2*k+wh)*1024}')
                    a.inst(f'buffer_load_dwordx4 v{TM+1}, {SRD_W[wh]}, s26 offen lds', tag='rp')
                a('s_mul_i32 s25, s25, 3')
                a('s_sub_u32 s25, s24, s25')
                a(f's_mul_i32 s{30+k}, s50, 3')
                a(f's_add_u32 s{30+k}, s{30+k}, s25')
                a(f's_lshl_b32 s{30+k}, s{30+k}, 7')
                a(f's_add_u32 s{30+k}, s{30+k}, {WS_CS}')
                a('s_lshl_b32 s25, s24, 10')
                a(f's_mul_i32 s{28+k}, s50, {IMG_HEAD}')
                a(f's_add_u32 s{28+k}, s{28+k}, s25')
                a(f's_add_u32 s{28+k}, s{28+k}, {WS_IMG[0]}')
                if k:
                    a('s_cmp_ge_u32 s24, 84')
                    a(f's_cselect_b32 s29, {OOB}, s29')
                    a(f's_cselect_b32 s31, {OOB}, s31')
        def rp_read():
            a.wait_tag('rp')
            for b in range(4):
                for q in range(2):
                    a(f'ds_read_b64_tr_b16 v[{F+4*b+2*q}:{F+4*b+2*q+1}], v{TM+2} offset:{b*1024 + q*512}')
        def rp_store():
            for k in range(2):
                a(f'buffer_store_dwordx4 v[{F+8*k}:{F+8*k+3}], v{V_L16}, {SRD_WS}, s{28+k} offen {SC}')
                a(f's_add_u32 s{28+k}, s{28+k}, {WS_IMG[1]-WS_IMG[0]}')
                a(f'buffer_store_dwordx4 v[{F+8*k+4}:{F+8*k+7}], v{V_L16}, {SRD_WS}, s{28+k} offen {SC}')
        def rp_dot():
            for r in range(4):
                for b in range(4):
                    a(f'v_dot2_f32_bf16 v{TM+4+b}, v{F+4*b+r}, s19, {"0" if r == 0 else f"v{TM+4+b}"}')
            fill.extend(halves_add(TM + 4, 4, TM + 8))
        def look(mask_lo, mask_hi, srd, target, pmask):
            Lk = uid('look')
            a(f'v_cmp_le_u32 vcc, {target}, v{V_PL}')
            a(f's_mov_b32 s58, {mask_lo}')
            a(f's_mov_b32 s59, {mask_hi}')
            a('s_and_b64 vcc, vcc, s[58:59]')
            a('s_cmp_eq_u64 vcc, s[58:59]')
            a(f's_cbranch_scc1 {Lk}')
            sv = (list(a.st.hist), list(a.st.vm), list(a.st.lg))
            poll(srd, 's[58:59]', target)
            a.st.hist, a.st.vm, a.st.lg = sv
            a.raw(Lk + ':')
        def rp_pub():
            assert not fill
            look((1 << NZERO) - 1, 0, SRD_DBG, 1, None)
            a('s_mov_b32 exec_hi, 0')
            for k in range(2):
                a(f'buffer_atomic_add_f32 v{TM+4+2*k}, v{E}, {SRD_WS}, s{30+k} offen sc1')
                a(f's_add_u32 s{30+k}, s{30+k}, {16*3*128}')
                a.inst(f'buffer_atomic_add_f32 v{TM+5+2*k}, v{E}, {SRD_WS}, s{30+k} offen sc1', tag='pub')
            a('s_mov_b32 exec_hi, -1')
        def warm_wo():
            a('s_lshr_b32 s24, s2, 3')
            a('s_lshl_b32 s24, s24, 2')
            a(f's_add_u32 s24, s24, {S_WAVE}')
            a(f'v_lshlrev_b32 v254, 3, v{V_L16}')
            a(f's_mul_i32 s26, s24, {25*128}')
            a('s_mov_b64 exec, 0x1ffffff')
            a(f'buffer_load_dword v255, v254, {SRD_WO[0]}, s26 offen')
            a(f'buffer_load_dword v255, v254, {SRD_WO[1]}, s26 offen')
            a('s_mov_b64 exec, -1')
        def flags_issue():
            ids_qkv_rows('s50')
            a('s_and_b32 s48, s2, 7')
            a('s_lshl_b32 s48, s48, 7')
            a(f's_add_u32 s48, s48, {WS_FLAG + 4}')
            a(f'v_lshl_add_u32 v{V_T1}, v{V_N}, 10, s48')
            a(f'v_cmp_eq_u32 vcc, 1, v{V_HF}')
            a(f'v_cndmask_b32 v{V_T0}, v{V_T0}, v{V_T1}, vcc')
            a(f'buffer_load_dword v{V_PL}, v{V_T0}, {SRD_WS}, 0 offen sc1')
            a(f's_mul_i32 s28, {S_HQ}, {IMG_HEAD}')
            a('s_add_u32 s28, s28, s15')
            a(f's_add_u32 s28, s28, {WS_IMG[0]}')
            a(f's_mul_i32 s29, {S_HQ}, 384')
            a(f's_add_u32 s29, s29, {WS_CS}')
        def flags_check():
            look(0xffff, -1, SRD_WS, S_PROG, None)
            stamp(f'{nm}_go', lp)
            for wh in range(2):
                for p in (0, 1, 2):
                    a(f'buffer_load_dword v{V_CS[wh]+p}, v253, {SRD_WS}, s29 offen offset:{p*128} {SC}')
                if wh == 0:
                    a(f's_add_u32 s29, s29, {16*3*128}')
            a(f'v_cmp_eq_u32 vcc, {S_XCC}, v{V_PL}')
            a('s_cmp_eq_u32 vcc_hi, -1')
            a(f's_cselect_b32 {S_XCC if PREW >= 3 else S_LOC}, {0 if FORCE_GLOBAL else 1}, 0')
        def issue_q(g):
            a(f's_mul_i32 s24, s23, {4*43008}')
            a('s_add_u32 s24, s24, s22')
            a(f's_add_u32 m0, s15, {g*12288}')
            rot_next()
            a.inst(f'buffer_load_dwordx4 v{WDV}, {SRD_W[0]}, s24 offen lds', tag='wq')
        AH0 = 4
        open_group(0)
        for i in range(AH0):
            wread(i)
        for g in range(7):
            if FINE: stamp(f'qa0_g{g}')
            if g == 5:
                a.wait_tag('w6')
                cs_read(6, 1)
            for r in range(X + 16 * g, X + 16 * g + 16):
                a(f'v_dot2_f32_bf16 v{ST}, v{r}, s19, v{ST}')
                a(f'v_dot2_f32_bf16 v{ST+1}, v{r}, v{r}, v{ST+1}')
            if g < 6:
                cs_dot(0)
            if g == 2:
                rp_dot()
            if g == 5:
                cs_dot(1)
                for x in halves_add(CS, 2, XE): a(x)
                a(f's_lshl_b32 s12, {S_WAVE}, 8')
                a(f's_add_u32 s12, s12, {L_CS}')
                a(f'v_add_u32 v{XE+2}, s12, v{E}')
                a.inst(f'ds_write2_b32 v{XE+2}, v{CS}, v{CS+1} offset0:0 offset1:32', tag='csw')
            if g == 6:
                c = TM
                L = [f'v_add_u32 v{CA}, {L_CS}, v{E}']
                for k in range(2):
                    L += [f'ds_read2_b32 v[{c+4*k}:{c+4*k+1}], v{CA} offset0:{32*k} offset1:{32*k+64}',
                          f'ds_read2_b32 v[{c+4*k+2}:{c+4*k+3}], v{CA} offset0:{32*k+128} offset1:{32*k+192}']
                L += halves_add(ST, 2, ST + 2) + ln_stats(True)
                for k in range(2):
                    L += [f'v_add_f32 v{c+4*k}, v{c+4*k}, v{c+4*k+1}', f'v_add_f32 v{c+4*k+2}, v{c+4*k+2}, v{c+4*k+3}',
                          f'v_add_f32 v{V_CS[0]+1+k}, v{c+4*k}, v{c+4*k+2}']
                L += we_build(0, T + 4)[:19]
                fill.extend(L)
            for fl in range(8):
                i = 8 * g + fl
                wmm(i)
                if g == 0:
                    if fl == 0: issue_w(2)
                    if fl == 1: issue_x(2)
                    if fl == 4: rp_issue()
                    if fl == 5: issue_w(3)
                    if fl == 7: issue_x(3)
                elif g + 3 < 7:
                    if fl == 5: issue_w(g + 3)
                    if fl == 6: issue_x(g + 3)
                if g == 1 and fl == 4: rp_read()
                if g == 1 and fl == 7: rp_store()
                if g == 2 and fl == 0: a(f'buffer_load_dword v{V_PL}, v{V_T0}, {SRD_DBG}, 0 offen sc1')
                if g == 3 and fl == 0: rp_pub()
                if g == 4 and fl != 3: issue_q(fl - (fl > 3))
                if g == WWG and fl == 0: warm_wo()
                if g == PTG and fl == 7:
                    pretouch_setup(True, 0); prewrite()
                if g == 6 and fl == 3 and not WQL:
                    a.wait_tag('wq')
                    a('s_barrier')
                if fl == 3 and g < 6:
                    open_group(g + 1)
                if i + AH0 < 56 or not WQL:
                    wread(i + AH0)
                pop(4)
        pop(99)
        extra(1); extra(2)
        if not WQL: wread(56 + AH0)
        a(f'v_mov_b32 v253, v{E}')
    else:
        xo, so = (WS_XB, WS_STB) if isA else (WS_XA, WS_STA)
        a(f's_add_u32 s20, s20, {xo}')
        a('s_lshl_b32 s21, s7, 8')
        a(f's_add_u32 s21, s21, {so}')
        if not isA:
            a(f's_add_u32 s20, s20, {S_BLK}')
            a(f's_add_u32 s21, s21, {S_BLK}')
        a(f'v_lshlrev_b32 v{T+11}, 3, v{V_N}')
        a(f'v_lshl_add_u32 v{T+11}, v{V_HF}, 14, v{T+11}')
        rs_addr()
        pretouch_setup(isA, BLK if isA else S_BLK)
        a(f'v_lshrrev_b32 v{V_T1}, 4, v{V_L16}')
        a('s_lshr_b32 s48, s7, 3')
        a('s_lshr_b32 s49, s7, 1')
        a('s_and_b32 s49, s49, 3')
        a('s_lshl_b32 s49, s49, 3')
        a('s_add_u32 s48, s48, s49')
        a(f'v_lshl_add_u32 v{V_T0}, v{V_T1}, 5, s48')
        flag_addr(True)
        for x in we_build(wsel, X):
            a(x)
        if not isA:
            wob = stage_wo_issue(1, L_S, 251, 'wob', defer=True)
            a(f's_cmp_lg_u32 {S_IT}, 0')
            a(f's_cselect_b32 s26, {OOB}, s26')
        early = isA or NPB >= 3
        if early:
            for i in range(AH):
                wread(i)
        if mode == 'pre':
            return
        if mode == 'main':
            del a.lines[n_keep:]
            a.fresh()
        if not early:
            for i in range(AH):
                wread(i)
        poll(SRD_WS, 0x7f, S_PROG)
        stamp(f'{nm}_go', lp)
        def xload(t):
            r = X + 4 * t
            a(f'buffer_load_dwordx4 v[{r}:{r+3}], v{V_L16}, {SRD_WS}, s20 offen offset:{(t%4)*1024} {LD}')
            if t % 4 == 3 and t != 27:
                a('s_add_u32 s20, s20, 4096')
        def stload(i):
            a(f'buffer_load_dwordx2 v[{ST+2*i}:{ST+2*i+1}], v{T+11}, {SRD_WS}, s21 offen {LD}')
            if i < 6:
                a('s_add_u32 s21, s21, 32768')
        N0 = [8, 4, 6, 12][XS]
        for t in range(N0):
            xload(t)
        nx = N0
        for i in range(56):
            t = i >> 1
            if i == 24:
                for k in range(1, 7):
                    fill.append(f'v_add_f32 v{ST}, v{ST}, v{ST+2*k}')
                    fill.append(f'v_add_f32 v{ST+1}, v{ST+1}, v{ST+2*k+1}')
                fill.extend(halves_add(ST, 2, ST + 2) + ln_stats(isA))
            if i == 48:
                assert not fill
                extra(1); extra(2)
            wmm(i)
            if XS == 0:
                if i % 2 == 0:
                    for _ in range(2 if i < 12 else 1):
                        if nx < 28:
                            xload(nx); nx += 1
                if i == 1:
                    for k in range(7):
                        stload(k)
            else:
                if nx < 28 and (i < 2 * (28 - N0) - 30 or i % 2 == 0 or True if XS in (1, 2) and i < 16 else i % 2 == 0):
                    xload(nx); nx += 1
                if 5 <= i < 19 and i % 2 == 1:
                    stload((i - 5) // 2)
            if i == 35:
                assert nx == 28
                pretouch()
            wread(i + AH)
            pop(2)
            if False: stamp(f'qb_t{t}', True)
        assert nx == 28 and not fill
    stamp(f'{nm}_mm', lp)
    KF, VF, QF = AK, AK + 8, AT_Q
    def pkmul_lane(dst, src, sc):
        a(f'v_pk_mul_f32 v[{dst}:{dst+1}], v[{src}:{src+1}], v[{sc}:{sc+1}] op_sel_hi:[1,0]')
    def v_pads():
        a('s_mov_b32 exec_lo, 0xf0000000')
        a('s_mov_b32 exec_hi, 0xf0000000')
        for r in range(8):
            a(f'v_mov_b32 v{VF+r}, v{V_ONE}')
        a('s_mov_b64 exec, -1')
    def v_epi():
        for r in range(8):
            a(f'v_pk_mul_f32 v[{AV+2*r}:{AV+2*r+1}], v[{AV+2*r}:{AV+2*r+1}], v[{RS+2*r}:{RS+2*r+1}]')
            a(f'v_cvt_pk_bf16_f32 v{VF+r}, v{AV+2*r}, v{AV+2*r+1}')
        v_pads()
    def pass2(npop, hooks):
        if not first:
            extra(0)
        for i in range(56, 84):
            wmm(i)
            wread(i + AH)
            pop(npop)
            if i - 56 in hooks:
                hooks[i - 56]()
    if not isA:
        a(f's_mov_b32 s19, {ONES2}')
        a(f's_lshl_b32 s12, {S_HQ}, 18')
        a('s_lshl_b32 s13, s7, 12')
        a('s_add_u32 s12, s12, s13')
        a(f's_add_u32 s13, s12, {WS_KV}')
        a(f's_add_u32 s13, s13, {S_KVB}')
        for r in range(8):
            pkmul_lane(AK + 2 * r, AK + 2 * r, T)
            a(f'v_cvt_pk_bf16_f32 v{KF+r}, v{AK+2*r}, v{AK+2*r+1}')
            if r == 3:
                a(f'buffer_store_dwordx4 v[{KF}:{KF+3}], v{V_L16}, {SRD_WS}, s13 offen {SC}')
        a('s_mov_b32 exec_lo, 0')
        a(f'v_mov_b32 v{KF+6}, s19')
        a(f'v_mov_b32 v{KF+7}, 0')
        a('s_mov_b32 exec_lo, -1')
        a(f'buffer_store_dwordx4 v[{KF+4}:{KF+7}], v{V_L16}, {SRD_WS}, s13 offen offset:1024 {SC}')
        v_epi()
        for u in range(2):
            a(f'v_permlane32_swap_b32 v{VF+4*u}, v{VF+4*u+2}')
            a(f'v_permlane32_swap_b32 v{VF+4*u+1}, v{VF+4*u+3}')
        a(f'buffer_store_dwordx4 v[{VF}:{VF+3}], v{V_L16}, {SRD_WS}, s13 offen offset:2048 {SC}')
        a.inst(f'buffer_store_dwordx4 v[{VF+4}:{VF+7}], v{V_L16}, {SRD_WS}, s13 offen offset:3072 {SC}', tag='kvs')
        stamp(f'{nm}_epi', lp)
        hk = {k: wob[k] for k in range(14)}
        def sg():
            signal(1, wait_tag='kvs'); advance()
            stamp(f'{nm}_sig', lp)
        hk[QBSIG] = sg
        for t in range(8, 24):
            def z(t=t, f=hk.get(t + 1)):
                for r in range(4):
                    a(f'v_mov_b32 v{X+4*t+r}, 0')
                if f: f()
            hk[t + 1] = z
        pass2(0, hk)
        SD = AV
        for r in range(8):
            pkmul_lane(AQ + 2 * r, AQ + 2 * r, T + 2)
            a(f'v_cvt_pk_bf16_f32 v{QF+r}, v{AQ+2*r}, v{AQ+2*r+1}')
        a('s_mov_b32 exec_lo, 0')
        a(f'v_mov_b32 v{QF+6}, 0')
        a(f'v_mov_b32 v{QF+7}, 0')
        a('s_mov_b32 exec_lo, -1')
        a(f'v_mfma_f32_32x32x16_bf16 v[{SD}:{SD+15}], v[{KF}:{KF+3}], v[{QF}:{QF+3}], 0')
        a(f'v_mfma_f32_32x32x16_bf16 v[{SD}:{SD+15}], v[{KF+4}:{KF+7}], v[{QF+4}:{QF+7}], v[{SD}:{SD+15}]')
        a(f's_lshl_b32 s12, {S_WAVE}, 11')
        a(f's_add_u32 s13, s12, {L_KV}')
        a(f'v_add_u32 v{T+8}, s13, v{V_L16}')
        a(f'ds_write_b128 v{T+8}, v[{QF}:{QF+3}]')
        for i in range(1, 4):
            a(f's_xor_b32 s13, s12, {i*2048}')
            a(f's_add_u32 s13, s13, {L_KV}')
            a(f'v_add_u32 v{T+8+i}, s13, v{V_L16}')
        a(f'v_max3_f32 v{T+4}, v{SD}, v{SD+1}, v{SD+2}')
        a(f'v_max3_f32 v{T+5}, v{SD+3}, v{SD+4}, v{SD+5}')
        for r in range(6, 16, 4):
            a(f'v_max3_f32 v{T+4}, v{SD+r}, v{SD+r+1}, v{T+4}')
            if r + 3 < 16:
                a(f'v_max3_f32 v{T+5}, v{SD+r+2}, v{SD+r+3}, v{T+5}')
        a(f'v_max_f32 v{T+4}, v{T+4}, v{T+5}')
        a(f'v_mov_b32 v{T+5}, v{T+4}')
        a(f'v_permlane32_swap_b32 v{T+4}, v{T+5}')
        a(f'v_max_f32 v{T+4}, v{T+4}, v{T+5}')
        a(f'v_sub_f32 v{T+4}, 0, v{T+4}')
        a(f'v_and_b32 v{T+5}, 0xffff0000, v{T+4}')
        a(f'v_sub_f32 v{T+6}, v{T+4}, v{T+5}')
        a('s_mov_b32 exec_lo, 0')
        a(f'v_perm_b32 v{QF+6}, v{T+6}, v{T+5}, s17')
        a('s_mov_b32 exec_lo, -1')
        a(f'ds_write_b128 v{T+8}, v[{QF+4}:{QF+7}] offset:1024')
        a.wait_tag('wob')
        a('s_waitcnt lgkmcnt(0)')
        a('s_barrier')
        for i in range(1, 4):
            for u in range(2):
                r = QF + 8 * i + 4 * u
                a(f'ds_read_b128 v[{r}:{r+3}], v{T+8+i} offset:{u*1024}')
        if DEBUGQ:
            a(f's_lshl_b32 s12, {S_HQ}, 17')
            a('s_lshl_b32 s13, s7, 11')
            a('s_add_u32 s12, s12, s13')
            a(f's_add_u32 s12, s12, {WS_Q}')
            a(f's_add_u32 s12, s12, {S_BLK}')
            a(f'buffer_store_dwordx4 v[{QF}:{QF+3}], v{V_L16}, {SRD_WS}, s12 offen')
            a(f'buffer_store_dwordx4 v[{QF+4}:{QF+7}], v{V_L16}, {SRD_WS}, s12 offen offset:1024')
    else:
        it = 0 if first else 1
        a(f's_mov_b32 s16, {f32(1e-6)}')
        a(f's_mov_b32 s17, {f32(1e-6)}')
        a(f's_mov_b32 s18, {f32(LOG2E)}')
        a(f's_lshl_b32 s19, {S_WAVE}, 12')
        a(f's_add_u32 s19, s19, {L_KV}')
        a(f'v_add_u32 v{T+8}, s19, v{V_L16}')
        a(f'v_lshlrev_b32 v{T+7}, 2, v0')
        a(f'v_add_u32 v{T+9}, {L_KV}, v{T+7}')
        a(f'v_mov_b32 v{T+4}, 1.0')
        for r in range(8):
            e = E + 2 * (r % 3)
            k = AK + 2 * r
            a(f'v_pk_mul_f32 v[{k}:{k+1}], v[{k}:{k+1}], v[{RS+2*r}:{RS+2*r+1}]')
            a(f'v_pk_mul_f32 v[{e}:{e+1}], v[{k}:{k+1}], s[18:19] op_sel_hi:[1,0]')
            a(f'v_pk_add_f32 v[{k}:{k+1}], v[{k}:{k+1}], 1.0 op_sel_hi:[1,0]')
            a(f'v_exp_f32 v{e}, v{e}')
            a(f'v_exp_f32 v{e+1}, v{e+1}')
            a(f'v_med3_f32 v{k}, v{e}, v{k}, 1.0')
            a(f'v_med3_f32 v{k+1}, v{e+1}, v{k+1}, 1.0')
            a(f'v_pk_add_f32 v[{k}:{k+1}], v[{k}:{k+1}], s[16:17]')
            a(f'v_cvt_pk_bf16_f32 v{KF+r}, v{k}, v{k+1}')
        if first and WQL:
            a.wait_tag('wq')
            a('s_barrier')
            for i in range(56, 56 + AH):
                wread(i)
        v_epi()
        KVD = AV
        a(f'v_mfma_f32_32x32x16_bf16 v[{KVD}:{KVD+15}], v[{KF}:{KF+3}], v[{VF}:{VF+3}], 0')
        a(f'v_mfma_f32_32x32x16_bf16 v[{KVD}:{KVD+15}], v[{KF+4}:{KF+7}], v[{VF+4}:{VF+7}], v[{KVD}:{KVD+15}]')
        a(f's_lshl_b32 s22, {S_HQ}, 12')
        a(f's_add_u32 s22, s22, {WS_KVACC + it*65536}')
        a(f's_cmp_ge_u32 {S_WAVE}, 2')
        a(f's_cselect_b32 s23, {OOB}, s22')
        a('s_lshl_b32 s12, s7, 15')
        a(f's_lshl_b32 s13, {S_HQ}, 11')
        a('s_add_u32 s12, s12, s13')
        a(f's_add_u32 s12, s12, {WS_OA + it*BLK}')
        E2 = RS
        def kvw(rg):
            return lambda: a.inst(f'ds_write_b128 v{T+8}, v[{KVD+4*rg}:{KVD+4*rg+3}] offset:{rg*1024}', tag='kvw')
        def kvbar():
            a.wait_tag('kvw', 'lg')
            a('s_barrier')
            for k in range(4):
                a(f'ds_read2st64_b32 v[{E2+4*k}:{E2+4*k+1}], v{T+9} offset0:{4*k} offset1:{4*k+16}')
                a(f'ds_read2st64_b32 v[{E2+4*k+2}:{E2+4*k+3}], v{T+9} offset0:{4*k+32} offset1:{4*k+48}')
        def kvat(k):
            def f():
                a(f'v_add_f32 v{E2+4*k}, v{E2+4*k}, v{E2+4*k+1}')
                a(f'v_add_f32 v{E2+4*k+2}, v{E2+4*k+2}, v{E2+4*k+3}')
                a(f'v_add_f32 v{E2+4*k}, v{E2+4*k}, v{E2+4*k+2}')
                a.inst(f'buffer_atomic_add_f32 v{E2+4*k}, v{T+7}, {SRD_WS}, {"s23" if k == 3 else "s22"} offen offset:{k*1024} sc1', tag='kva')
            return f
        both = lambda f, g: (lambda: (f(), g()))
        hooks = {0: kvw(0), 1: kvw(1), 2: kvw(2), 3: kvw(3), 5: kvbar, 8: both(kvat(0), kvat(1)), 9: both(kvat(2), kvat(3))}
        img_base(1, 's60', 's61')
        if first:
            hooks = {k + 1: f for k, f in hooks.items()}
            woa = []
            if FCH == 0:
                hooks[0] = flags_issue
                def chk():
                    flags_check()
                    woa.extend(stage_wo_issue(0, L_S, 251, 'woa', defer=True))
                hooks[11] = chk
                hooks[19] = lambda: stage_wo_addr(L_S, 252)
            elif FCH == 1:
                hooks[11] = lambda: woa.extend(stage_wo_issue(0, L_S, 251, 'woa', defer=True))
                hooks[20] = flags_issue
            else:
                def csq_read():
                    a(f'v_add_u32 v{E}, s15, v{T+10}')
                    a(f'v_add_u32 v{E+1}, s15, v{T+11}')
                    for gg in range(7):
                        for q in range(2):
                            o = gg * 12288 + q * 512
                            r = X + 4 * gg + 2 * q
                            a(f'ds_read_b64_tr_b16 v[{r}:{r+1}], v{E + (o >= 65536)} offset:{o % 65536}')
                    woa.extend(stage_wo_issue(0, L_S, 251, 'woa', defer=True))
                def csq_dot():
                    a(f's_mov_b32 s24, {ONES2}')
                    for r in range(28):
                        c = E + 2 + (r & 1)
                        a(f'v_dot2_f32_bf16 v{c}, v{X+r}, s24, {"0" if r < 2 else f"v{c}"}')
                    a(f'v_add_f32 v{E+2}, v{E+2}, v{E+3}')
                    for x in halves_add(E + 2, 1, E + 3): a(x)
                    a(f's_lshl_b32 s24, {S_WAVE}, 7')
                    a(f's_add_u32 s24, s24, {L_CS + 1024}')
                    a(f'v_add_u32 v{E+3}, s24, v253')
                    a.inst(f'ds_write_b32 v{E+3}, v{E+2}', tag='cqw')
                hooks[11] = csq_read
                hooks[19] = csq_dot
                hooks[22] = flags_issue
            for k in range(7):
                hooks[12 + k] = (lambda k=k: (woa[2*k](), woa[2*k+1]()))
        pass2(0, hooks)
        def qextra():
            a('s_mov_b32 s17, 0x07060302')
            w = we_build(0, E)
            for x in w[:1] + w[19:]: a(x)
            a(f's_mov_b32 s17, {f32(1e-6)}')
            extra(0)
        def woa_reads():
            a.wait_tag('woa')
            a('s_barrier')
            for n, x in enumerate(stage_wo_reads(0, 252)):
                a(x)
                if n % 12 == 11: a('s_waitcnt lgkmcnt(4)')
            stage_wo_pads(0)
        if first and FCH == 0:
            qextra()
        if first and FCH == 2:
            a.wait_tag('cqw', 'lg')
        signal(1, wait_tag='kva', pre=lambda: None)
        stamp(f'{nm}_sg1', lp)
        if first and FCH == 1:
            flags_check()
            stage_wo_addr(L_S, 252)
        if first and FCH == 2:
            a(f'v_add_u32 v{X+32}, {L_CS + 1024}, v253')
            a(f'ds_read2_b32 v[{X+34}:{X+35}], v{X+32} offset0:0 offset1:32')
            a(f'ds_read2_b32 v[{X+36}:{X+37}], v{X+32} offset0:64 offset1:96')
            a(f'v_add_f32 v{X+34}, v{X+34}, v{X+35}')
            a(f'v_add_f32 v{X+36}, v{X+36}, v{X+37}')
            a(f'v_add_f32 v{V_CS[0]}, v{X+34}, v{X+36}')
            qextra()
        else:
            advance()
            for k in range(NPB):
                wb_kv(k)
        if first and FCH == 1:
            woa_reads()
            qextra()
        QF = X
        for r in range(8):
            e = E + 2 * (r % 3)
            q = AQ + 2 * r
            pkmul_lane(e, q, T + 2)
            a(f'v_pk_fma_f32 v[{q}:{q+1}], v[{q}:{q+1}], v[{T}:{T+1}], v[{T+4}:{T+5}] op_sel_hi:[1,0,0]')
            a(f'v_exp_f32 v{e}, v{e}')
            a(f'v_exp_f32 v{e+1}, v{e+1}')
            a(f'v_med3_f32 v{q}, v{e}, v{q}, 1.0')
            a(f'v_med3_f32 v{q+1}, v{e+1}, v{q+1}, 1.0')
            a(f'v_pk_add_f32 v[{q}:{q+1}], v[{q}:{q+1}], s[16:17]')
            a(f'v_cvt_pk_bf16_f32 v{QF+r}, v{q}, v{q+1}')
        a('s_mov_b32 exec_lo, 0')
        a(f'v_mov_b32 v{QF+6}, 0')
        a(f'v_mov_b32 v{QF+7}, 0')
        a('s_mov_b32 exec_lo, -1')
        stamp(f'{nm}_epi', lp)
        if DEBUGQ:
            a(f's_add_u32 s13, s12, {WS_DBG + (8 << 20)}')
            a(f'buffer_store_dwordx4 v[{QF}:{QF+3}], v{V_L16}, {SRD_WS}, s13 offen')
            a(f'buffer_store_dwordx4 v[{QF+4}:{QF+7}], v{V_L16}, {SRD_WS}, s13 offen offset:1024')
        if first and FCH == 2:
            flags_check()
            advance()
            for k in range(NPB):
                wb_kv(k)
            stage_wo_addr(L_S, 252)
        if first and FCH != 1:
            woa_reads()
        op_resid_load('raw' if first else 'xb')
        ids_qkv_rows(S_HQ)
        poll(SRD_WS, 0xffff, S_PROG)
        stamp(f'{nm}_kv', lp)
        KV, D = 40, 56
        for rg in range(4):
            a(f'buffer_load_dwordx4 v[{KV+4*rg}:{KV+4*rg+3}], v{V_L16}, {SRD_WS}, s22 offen offset:{rg*1024} {SC}')
        op_unpack(); op_addr()
        for r in range(8):
            a(f'v_cvt_pk_bf16_f32 v{KV+r}, v{KV+2*r}, v{KV+2*r+1}')
            if r == 3:
                a(f'v_mfma_f32_32x32x16_bf16 v[{D}:{D+15}], v[{KV}:{KV+3}], v[{QF}:{QF+3}], 0')
        a(f'v_mfma_f32_32x32x16_bf16 v[{D}:{D+15}], v[{KV+4}:{KV+7}], v[{QF+4}:{QF+7}], v[{D}:{D+15}]')
        a(f'v_add_f32 v{T}, s16, v{D+12}')
        a(f'v_mov_b32 v{T+1}, v{T}')
        a(f'v_permlane32_swap_b32 v{T+1}, v{T}')
        a(f'v_rcp_f32 v{T}, v{T}')
        for r in range(8):
            pkmul_lane(D + 2 * r, D + 2 * r, T)
            a(f'v_cvt_pk_bf16_f32 v{QF+8+r}, v{D+2*r}, v{D+2*r+1}')
        lstore([f'buffer_store_dwordx4 v[{QF+8}:{QF+11}], v{V_L16}, {SRD_WS}, s12 offen',
                f'buffer_store_dwordx4 v[{QF+12}:{QF+15}], v{V_L16}, {SRD_WS}, s12 offen offset:1024'])
        signal(1, local=True, pre=lambda: None); advance()
        stamp(f'{nm}_sig', lp)

OP_CH = [(0, 4), (4, 8), (12, 8), (20, 8), (28, 4)]
OP_ACC, OP_OF, OP_XF, OP_T = 112, 32, 224, 232
def op_resid_load(kind):
    XF, T = OP_XF, OP_T
    if kind == 'raw':
        a(f'v_mul_u32_u24 v{T+6}, 896, v{V_N}')
        a(f'v_lshl_add_u32 v{T+6}, v{V_HF}, 3, v{T+6}')
        a(f's_mul_i32 s48, {S_ORT}, {28*1024}')
        a(f's_sub_u32 s49, {S_XT}, s48')
        a('s_lshr_b32 s49, s49, 5')
        a('s_add_u32 s48, s48, s49')
        for k in range(4):
            a(f'buffer_load_dwordx2 v[{XF+2*k}:{XF+2*k+1}], v{T+6}, {SRD_X0}, s48 offen offset:{16*k}')
    else:
        a(f's_add_u32 s48, {S_XT}, {WS_XA if kind == "xa" else WS_XB}')
        if kind == 'xa' and BLK:
            a(f's_add_u32 s48, s48, {S_BLK}')
        a(f'buffer_load_dwordx4 v[{XF}:{XF+3}], v{V_L16}, {SRD_WS}, s48 offen {SC}')
        a(f'buffer_load_dwordx4 v[{XF+4}:{XF+7}], v{V_L16}, {SRD_WS}, s48 offen offset:1024 {SC}')
def op_unpack():
    for r in range(8):
        a(f'v_lshlrev_b32 v{OP_ACC+2*r}, 16, v{OP_XF+r}')
        a(f'v_and_b32 v{OP_ACC+2*r+1}, 0xffff0000, v{OP_XF+r}')
def op_addr():
    T = OP_T
    a(f's_and_b32 s48, {S_OL8}, 0xffffefff') if False else None
    a(f's_lshl_b32 s48, {S_WAVE}, 14')
    a('s_and_b32 s48, s48, 0x8000')
    a(f's_add_u32 s48, s48, {L_S}')
    a(f'v_add_u32 v{T+4}, s48, v{V_L16}')
    a(f'v_lshlrev_b32 v{T+7}, 3, v{V_N}')
    a(f'v_lshl_add_u32 v{T+7}, v{V_HF}, 2, v{T+7}')
    a(f's_lshr_b32 s50, {S_RP}, 1')
    ids_qkv_heads('s50')

def phase_op(isA, nxt_pre):
    nm = 'oa' if isA else 'ob'
    join = uid('op_join')
    ACC, OF, XF, T = OP_ACC, OP_OF, OP_XF, OP_T
    WB = WOA[0 if isA else 1]
    skip = uid('op_skip')
    a(f's_cmp_ge_u32 {S_CP}, 7')
    a(f's_cbranch_scc1 {skip}')
    acc = f'v[{ACC}:{ACC+15}]'
    xo, so = (WS_XA, WS_STA) if isA else (WS_XB, WS_STB)
    ob = WS_OA if isA else WS_O
    poll(SRD_WS, 0xffff, S_PROG)
    stamp(f'{nm}_go', True)
    def iss(c):
        k0, n = OP_CH[c]
        a(f's_add_u32 m0, {S_OL8 if n == 8 else S_OL4}, {k0*1024}')
        a(f's_add_u32 s17, {S_OG8 if n == 8 else S_OG4}, {k0*1024 + ob}')
        if BLK: a(f's_add_u32 s17, s17, {S_BLK}')
        for i in range(n // 2):
            a.inst(f'buffer_load_dwordx4 v{V_L16}, {SRD_WS}, s17 offen offset:{i*1024} {LD} lds', tag=f'o{c}')
    def opn(c):
        k0, n = OP_CH[c]
        a.wait_tag(f'o{c}')
        a('s_barrier')
        if FINE3 and not isA: stamp(f'ob_c{c}', True)
        for s in range(n):
            r = OF + 32 * (c & 1) + 4 * s
            a(f'ds_read_b128 v[{r}:{r+3}], v{T+4} offset:{(k0+s)*1024}')
    for c in range(OPD):
        iss(c)
    a(f's_add_u32 s51, {S_XT}, {xo}')
    a(f's_add_u32 s52, {S_STT}, {so}')
    if BLK:
        a(f's_add_u32 s51, s51, {S_BLK}')
        a(f's_add_u32 s52, s52, {S_BLK}')
    a(f's_mov_b32 s19, {ONES2}')
    opn(0)
    nxt = OPD
    pf = ([(lambda k=k: wb_kv(k)) for k in range(NPB, 7)] + [(lambda k=k: (wb_q(k), wb_q(k + 1) if k < 6 else None)) for k in (0, 2, 4, 6)]) if isA else ([(lambda k=k: (wb_q(k - 7), wb_q(k - 6) if k < 6 else None)) for k in (0, 2, 4, 6)] if WAQ else [])
    pf_all = list(pf)
    for c, (k0, n) in enumerate(OP_CH):
        if c == 0 and nxt < len(OP_CH):
            iss(nxt); nxt += 1
        for s in range(n):
            r = OF + 32 * (c & 1) + 4 * s
            k = k0 + s
            a(f'v_mfma_f32_32x32x16_bf16 {acc}, a[{WB+4*k}:{WB+4*k+3}], v[{r}:{r+3}], {acc}')
            if c > 0 and s in (0, 2) and nxt < len(OP_CH):
                iss(nxt); nxt += 1
            elif c > 0 and nxt == len(OP_CH) and pf and s % 2 == 0:
                pf.pop(0)()
            if s == n - OPE and c + 1 < len(OP_CH):
                opn(c + 1)
    assert not pf and nxt == len(OP_CH)
    stamp(f'{nm}_mm', True)
    for r in range(8):
        a(f'v_cvt_pk_bf16_f32 v{XF+r}, v{ACC+2*r}, v{ACC+2*r+1}')
    if not isA:
        a(f's_cmp_lg_u32 {S_IT}, 0')
        a('s_cbranch_scc1 op_final')
    lstore([f'buffer_store_dwordx4 v[{XF}:{XF+3}], v{V_L16}, {SRD_WS}, s51 offen',
            f'buffer_store_dwordx4 v[{XF+4}:{XF+7}], v{V_L16}, {SRD_WS}, s51 offen offset:1024'])
    a(f'v_dot2_f32_bf16 v{T}, v{XF}, s19, 0')
    a(f'v_dot2_f32_bf16 v{T+1}, v{XF}, v{XF}, 0')
    for r in range(1, 8):
        a(f'v_dot2_f32_bf16 v{T}, v{XF+r}, s19, v{T}')
        a(f'v_dot2_f32_bf16 v{T+1}, v{XF+r}, v{XF+r}, v{T+1}')
    a(f'v_permlane32_swap_b32 v{T}, v{T+1}')
    a(f'v_add_f32 v{T}, v{T}, v{T+1}')
    lstore([f'buffer_store_dword v{T}, v{T+7}, {SRD_WS}, s52 offen'])
    stamp(f'{nm}_epi', True)
    signal(local=True, pre=nxt_pre)
    a(f's_branch {join}')
    a.raw(skip + ':'); a.fresh()
    if pf_all:
        for f in pf_all: f()
        a('s_waitcnt vmcnt(0)')
        a('s_barrier')
    nxt_pre()
    a('s_waitcnt vmcnt(0) lgkmcnt(0)')
    a('s_barrier')
    a.raw(join + ':')
    a.fresh()
    advance()
    stamp(f'{nm}_sig', True)
    def final():
        a.raw('op_final:'); a.fresh()
        a(f'v_mul_u32_u24 v{T+6}, 896, v{V_N}')
        a(f'v_lshl_add_u32 v{T+6}, v{V_HF}, 4, v{T+6}')
        a(f's_mul_i32 s19, {S_ORT}, {28*1024}')
        a(f's_sub_u32 s49, {S_XT}, s19')
        a('s_lshr_b32 s49, s49, 5')
        a('s_add_u32 s19, s19, s49')
        for u in range(2):
            b = XF + 4 * u
            a(f'v_permlane32_swap_b32 v{b}, v{b+2}')
            a(f'v_permlane32_swap_b32 v{b+1}, v{b+3}')
            a(f'buffer_store_dwordx4 v[{b}:{b+3}], v{T+6}, {SRD_OUT}, s19 offen offset:{32*u}')
    return final

def phase_attn(wob_reads):
    Q = 16
    O = 48
    R = AK
    S = 176
    P = S
    T = 112
    IDX = 248
    ORD = [1, 2, 3, 0]
    def kreg(j, t): return f'v[{R+16*j+4*t}:{R+16*j+4*t+3}]'
    def vreg(j, u): return f'v[{R+16*j+8+4*u}:{R+16*j+8+4*u+3}]'
    def qreg(i, t): return f'v[{Q+8*i+4*t}:{Q+8*i+4*t+3}]'
    def sreg(n): return f'v[{S+16*(n%3)}:{S+16*(n%3)+15}]'
    def oreg(i): return f'v[{O+16*i}:{O+16*i+15}]'
    def loadk(j, sr):
        a(f'buffer_load_dwordx4 {kreg(j,0)}, v{V_L16}, {SRD_WS}, {sr} offen {SC}')
        a(f'buffer_load_dwordx4 {kreg(j,1)}, v{V_L16}, {SRD_WS}, {sr} offen offset:1024 {SC}')
    def loadv(j, sr):
        a(f'buffer_load_dwordx4 {vreg(j,0)}, v{V_L16}, {SRD_WS}, {sr} offen offset:2048 {SC}')
        a(f'buffer_load_dwordx4 {vreg(j,1)}, v{V_L16}, {SRD_WS}, {sr} offen offset:3072 {SC}')
    def loadkv(j):
        for k in range(4):
            r = R + 16 * j + 4 * k
            a(f'global_load_dwordx4 v[{r}:{r+3}], v{V_L16}, s[14:15] offset:{k*1024} {SC}')
    NEXT = ['s_add_u32 s13, s13, 1', 's_cmp_eq_u32 s13, s16', 's_cselect_b32 s18, s19, s24',
            's_add_u32 s14, s14, s18', 's_addc_u32 s15, s15, 0']
    def ji(n): return (n >> 2) % 3, ORD[n & 3]
    def M1(n, own=False):
        j, i = (0, 0) if own else ji(n)
        a(f'v_mfma_f32_32x32x16_bf16 {sreg(n)}, {kreg(j,0)}, {qreg(i,0)}, 0')
    def M2(n, own=False):
        j, i = (0, 0) if own else ji(n)
        a(f'v_mfma_f32_32x32x16_bf16 {sreg(n)}, {kreg(j,1)}, {qreg(i,1)}, {sreg(n)}')
    def PV(n, u, own=False):
        j, i = (0, 0) if own else ji(n)
        b = S + 16 * (n % 3) + 8 * u
        a(f'v_smfmac_f32_32x32x32_bf16 {oreg(i)}, {vreg(j,u)}, v[{b}:{b+7}], v{IDX}')
    def e(n, k):
        r = S + 16 * (n % 3) + k
        a(f'v_exp_f32 v{r}, v{r}')
    def step(n, slots, last=99):
        e(n, 4); e(n, 5); e(n, 6); e(n, 7)
        if n + 2 <= last: M1(n + 2)
        for x in slots[0]: x()
        e(n, 8); e(n, 9); e(n, 10); e(n, 11)
        PV(n, 0)
        for x in slots[1]: x()
        e(n, 12); e(n, 13); e(n, 14); e(n, 15)
        if n + 2 <= last: M2(n + 2)
        for x in slots[2]: x()
        if n + 1 <= last:
            e(n + 1, 0); e(n + 1, 1); e(n + 1, 2); e(n + 1, 3)
        PV(n, 1)
        for x in slots[3]: x()
    I = lambda t: (lambda: a(t))
    M1(0); M2(0); M1(1); M2(1)
    a(f'v_mov_b32 v{IDX}, 0xdddd')
    a(f's_lshl_b32 s12, {S_HA}, 18')
    a(f's_add_u32 s12, s12, {WS_KV}')
    a(f's_add_u32 s12, s12, {S_KVB}')
    a(f's_mul_i32 s13, {S_WAVE}, 15')
    a(f's_lshl_b32 s16, {S_QB}, 2')
    a('s_cmp_ge_u32 s13, s16')
    a('s_cselect_b32 s18, 4, 0')
    a('s_add_u32 s18, s18, s13')
    a('s_lshl_b32 s18, s18, 12')
    a('s_add_u32 s18, s18, s12')
    a('s_add_u32 s14, s8, s18')
    a('s_addc_u32 s15, s9, 0')
    ids_qkv_rows(S_HA)
    for k in range(4): e(0, k)
    pre = []
    sv_lines = a.lines
    pre_txt = [f's_mov_b32 s19, {5*4096}', 's_mov_b32 s24, 4096', 's_mov_b32 s17, 4',
               f's_mov_b32 s20, {f32(2.0**-64)}', f's_mov_b32 s21, {f32(2.0**64)}',
               f's_add_u32 s51, {S_OT}, {WS_O}', f's_add_u32 s51, s51, {S_BLK}']
    def first_look():
        a(f'buffer_load_dword v{V_PL}, v{V_T0}, {SRD_WS}, 0 offen sc1')
    def check_and_load():
        Lk = uid('look')
        a(f'v_cmp_le_u32 vcc, {S_PROG}, v{V_PL}')
        a('s_and_b32 s48, vcc_lo, 0xffff')
        a('s_cmp_eq_u32 s48, 0xffff')
        a(f's_cbranch_scc1 {Lk}')
        sv = (list(a.st.hist), list(a.st.vm), list(a.st.lg))
        poll(SRD_WS, 0xffff, S_PROG)
        a.st.hist, a.st.vm, a.st.lg = sv
        a.raw(Lk + ':')
        stamp('at_go', True)
        loadkv(1)
        for x in NEXT: a(x)
        loadkv(2)
    for n in range(4):
        sl = [[I(pre_txt.pop(0))] if pre_txt else [] for _ in range(4)]
        if n == LOOK: sl[1].append(first_look)
        if n == LOOK + 1: sl[3].append(check_and_load)
        step(n, sl, 3)
    for x in NEXT: a(x)
    img_base(0, 's60', 's61')
    a(f's_cmp_lg_u32 {S_IT}, 0')
    a(f's_cselect_b32 s60, {OOB}, s60')
    if FINE: stamp('at_own', True)
    for t in range(1, 4):
        a(f's_xor_b32 s22, {S_WAVE}, {t}')
        a('s_mul_i32 s22, s22, 12288')
        a(f's_add_u32 s22, s22, {L_RED + (t-1)*4096}')
        a(f'v_add_u32 v{T+3+t}, s22, v{V_L16}')
    a(f's_mul_i32 s22, {S_WAVE}, 12288')
    a(f's_add_u32 s22, s22, {L_RED}')
    a(f'v_add_u32 v{T+3}, s22, v{V_L16}')
    if CT == 2: code_touch_addr(249)
    wob_reads()
    M1(4); M2(4); M1(5); M2(5)
    for k in range(4): e(4, k)
    a('s_waitcnt vmcnt(4)')
    if FINE: stamp('at_pro', True)
    def dman(n):
        for p in range(n):
            a(f'buffer_load_dwordx4 v{V_L16}, {SRD_WS}, s60 offen offset:{p*1024} {SC} lds')
    def tile_slots(u, load, wait, extra=None):
        sl = [[[], [], [], []] for _ in range(4)]
        if load:
            sl[0][1] = [lambda: loadkv((u + 2) % 3)]
            sl[0][2] = [I(NEXT[0])]; sl[0][3] = [I(NEXT[1])]; sl[1][0] = [I(NEXT[2])]; sl[1][1] = [I(NEXT[3])]; sl[1][2] = [I(NEXT[4])]
        if wait is not None:
            sl[1][3] = [I(f's_waitcnt vmcnt({wait})')]
        for (i, k), f in (extra or {}).items():
            sl[i][k] = sl[i][k] + f
        return sl
    def dmkv():
        for p in (1, 2):
            a(f'buffer_load_dwordx4 v{V_L16}, {SRD_WS}, s60 offen offset:{p*1024} {SC} lds')
    if WAQ:
        DM = lambda n: {(2, 2): [I('s_mov_b32 m0, s61')], (2, 3): [dmkv], (3, 0): [I('s_add_u32 s60, s60, 3072')], (3, 1): [I('s_add_u32 s61, s61, 3072')]}
    else:
        DM = lambda n: {(2, 2): [I('s_mov_b32 m0, s61')], (2, 3): [lambda: dman(n)], (3, 0): [I('s_add_u32 s60, s60, 4096')], (3, 1): [I('s_add_u32 s61, s61, 4096')]}
    nd = 2 if WAQ else 4
    def body():
        for u in (1, 2, 3):
            ex = DM(4) if u == 1 else ({(3, 1): [I('s_sub_u32 s17, s17, 1')], (3, 2): [I('s_cmp_lg_u32 s17, 0')]} if u == 3 else None)
            sl = tile_slots(u, True, 4 + nd if u == 2 else 4, ex)
            for i in range(4):
                step(4 * u + i, sl[i])
    def tail():
        a('s_cbranch_scc1 attn_loop')
    a.raw('.p2align 3')
    a.loop('attn_loop', body, tail)
    ex = DM(4)
    sl = tile_slots(13, True, 4, ex)
    for i in range(4): step(52 + i, sl[i])
    if WAQ:
        ex = DM(0)
        ex[(0, 0)] = [I('s_mov_b32 m0, s61')]; ex[(0, 1)] = [dmkv]; ex[(0, 2)] = [I('s_add_u32 s60, s60, 3072')]; ex[(1, 0)] = [I('s_add_u32 s61, s61, 3072')]
    else:
        ex = {(0, 0): [I('s_mov_b32 m0, s61')], (0, 1): [lambda: dman(1)]}
    if PRE: ex[(0, 3)] = [pretouch]
    ex[(1, 1)] = [lambda: op_resid_load('xa')]
    sl = tile_slots(14, False, (6 if WAQ else 7) + (3 if PRE else 0), ex)
    for i in range(4): step(56 + i, sl[i])
    def W(t, rg):
        r = O + 16 * t + 4 * rg
        return I(f'ds_write_b128 v{T+3+t}, v[{r}:{r+3}] offset:{rg*1024}')
    def gather():
        a('s_waitcnt lgkmcnt(0)')
        a('s_barrier')
        for t in range(1, 4):
            for rg in range(4):
                r = O + 16 * t + 4 * rg
                a(f'ds_read_b128 v[{r}:{r+3}], v{T+3} offset:{(t-1)*4096 + rg*1024}')
    step(60, [[], [], [], []], 63)
    step(61, [[], [], [W(1, 0)], [W(1, 1)]], 63)
    step(62, [[W(1, 2)], [W(1, 3)], [W(2, 0)], [W(2, 1), W(2, 2)]], 63)
    step(63, [[W(2, 3)], [], [W(3, 0), W(3, 1), W(3, 2), W(3, 3)], [gather]], 63)
    stamp('at_mm', True)
    for t in range(1, 4):
        for r in range(8):
            a(f'v_pk_add_f32 v[{O+2*r}:{O+2*r+1}], v[{O+2*r}:{O+2*r+1}], v[{O+16*t+2*r}:{O+16*t+2*r+1}]')
    a(f'v_mov_b32 v{T}, v{O+12}')
    a(f'v_mov_b32 v{T+1}, v{O+12}')
    a(f'v_permlane32_swap_b32 v{T+1}, v{T}')
    a(f'v_cmp_le_f32 vcc, s20, v{T}')
    a(f'v_cmp_ge_f32 s[22:23], s21, v{T}')
    a('s_and_b64 vcc, vcc, s[22:23]')
    a('s_cmp_eq_u64 vcc, exec')
    a('s_cbranch_scc0 attn_slow')
    a.raw('attn_fin:')
    a(f'v_rcp_f32 v{T}, v{T}')
    for r in range(8):
        a(f'v_pk_mul_f32 v[{O+2*r}:{O+2*r+1}], v[{O+2*r}:{O+2*r+1}], v[{T}:{T+1}] op_sel_hi:[1,0]')
        a(f'v_cvt_pk_bf16_f32 v{P+r}, v{O+2*r}, v{O+2*r+1}')
    lstore([f'buffer_store_dwordx4 v[{P}:{P+3}], v{V_L16}, {SRD_WS}, s51 offen',
            f'buffer_store_dwordx4 v[{P+4}:{P+7}], v{V_L16}, {SRD_WS}, s51 offen offset:1024'])
    stamp('at_epi', True)
    signal(local=True, pre=lambda: (op_unpack(), op_addr())); advance()
    stamp('at_sig', True)

    def slow():
        a.raw('attn_slow:'); a.fresh()
        a('s_waitcnt vmcnt(0) lgkmcnt(0)')
        a('s_nop 15')
        a('s_mov_b32 exec_lo, 0')
        a(f'v_mov_b32 v{Q+6}, 0')
        a(f'v_mov_b32 v{Q+7}, 0')
        a('s_mov_b32 exec_lo, -1')
        a(f'v_mov_b32 v{T+2}, {f32(-3.0e38)}')
        a('s_mov_b32 s13, s12')
        a('s_mov_b32 s17, 64')
        a('s_nop 4')
        def body1():
            loadk(0, 's13')
            M1(0, True); M2(0, True)
            for r in range(0, 16, 2):
                a(f'v_max3_f32 v{T+2}, v{S+r}, v{S+r+1}, v{T+2}')
            a('s_add_u32 s13, s13, 4096')
            a('s_nop 4')
        def tail1():
            a('s_sub_u32 s17, s17, 1')
            a('s_cmp_lg_u32 s17, 0')
            a('s_cbranch_scc1 attn_slow1')
        a.loop('attn_slow1', body1, tail1)
        a(f'v_mov_b32 v{T+3}, v{T+2}')
        a(f'v_permlane32_swap_b32 v{T+2}, v{T+3}')
        a(f'v_max_f32 v{T+2}, v{T+2}, v{T+3}')
        for r in range(16):
            a(f'v_mov_b32 v{O+r}, 0')
        a('s_mov_b32 s13, s12')
        a('s_mov_b32 s17, 64')
        a('s_nop 15')
        def body2():
            loadk(0, 's13'); loadv(0, 's13')
            M1(0, True); M2(0, True)
            for r in range(16):
                a(f'v_sub_f32 v{S+r}, v{S+r}, v{T+2}')
            for r in range(16):
                e(0, r)
            PV(0, 0, True); PV(0, 1, True)
            a('s_add_u32 s13, s13, 4096')
            a('s_nop 15')
        def tail2():
            a('s_sub_u32 s17, s17, 1')
            a('s_cmp_lg_u32 s17, 0')
            a('s_cbranch_scc1 attn_slow2')
        a.loop('attn_slow2', body2, tail2)
        a(f'v_mov_b32 v{T}, v{O+12}')
        a(f'v_mov_b32 v{T+1}, v{O+12}')
        a(f'v_permlane32_swap_b32 v{T+1}, v{T}')
        a('s_nop 4')
        a('s_branch attn_fin')
    return slow

def wob_reads():
    Lw = uid('wob')
    a(f's_cmp_lg_u32 {S_IT}, 0')
    a(f's_cbranch_scc1 {Lw}')
    sv = (list(a.st.hist), list(a.st.lg))
    stage_wo_addr(L_S, 252)
    for n, x in enumerate(stage_wo_reads(1, 252)):
        a(x)
        if n % 12 == 11: a('s_waitcnt lgkmcnt(4)')
    stage_wo_pads(1)
    a('s_waitcnt lgkmcnt(0)')
    a('s_barrier')
    a.st.hist, a.st.lg = sv
    a.raw(Lw + ':')

def build(path):
    prologue()
    phase_qkv(True, True)
    if PREW == 4: a(f's_mov_b32 {S_LOC}, {S_XCC}')
    a.raw('layer_loop:'); a.fresh()
    phase_op(True, lambda: phase_qkv(False, False, 'pre'))
    if PREW == 3: a(f's_mov_b32 {S_LOC}, {S_XCC}')
    phase_qkv(False, False, 'main')
    slow = phase_attn(wob_reads)
    final = phase_op(False, lambda: phase_qkv(True, False, 'pre'))
    a(f's_cmp_lg_u32 {S_IT}, 0')
    a('s_cbranch_scc1 k_fin')
    phase_qkv(True, False, 'main')
    a(f's_mov_b32 {S_IT}, 1')
    a(f's_mov_b32 {S_BLK}, {BLK}')
    a(f's_mov_b32 {S_KVB}, {KVB}')
    a('s_branch layer_loop')
    final()
    a.raw('k_fin:')
    if INSTR:
        a('s_waitcnt vmcnt(0)')
        a(f'{CLK} s[96:97]')
        a('s_waitcnt lgkmcnt(0)')
        a(f'v_writelane_b32 v{V_ST}, s96, 63')
        a('s_lshl_b32 s48, s2, 2')
        a(f's_add_u32 s48, s48, {S_WAVE}')
        a('s_lshl_b32 s48, s48, 8')
        a(f's_add_u32 s48, s48, {WS_DBG}')
        a(f'v_lshrrev_b32 v{V_T0}, 2, v{V_L16}')
        a(f'buffer_store_dword v{V_ST}, v{V_T0}, {SRD_WS}, s48 offen')
    if DUR:
        a('s_waitcnt vmcnt(0)')
        a('s_memrealtime s[94:95]')
        a('s_not_b32 s92, s92')
        a('s_waitcnt lgkmcnt(0)')
        a(f'v_mov_b32 v{V_T0}, s92')
        a(f'v_mov_b32 v{V_T1}, s94')
        a(f'v_mov_b32 v{V_PL}, 0')
        a('s_mov_b64 exec, 1')
        a(f'buffer_atomic_umax v{V_T0}, v{V_PL}, {SRD_DBG}, 0 offen offset:56 sc1')
        a(f'buffer_atomic_umax v{V_T1}, v{V_PL}, {SRD_DBG}, 0 offen offset:60 sc1')
    if PADT:
        a('s_waitcnt vmcnt(0)')
        a.raw('pad_loop:')
        a('s_memrealtime s[98:99]')
        a('s_waitcnt lgkmcnt(0)')
        a('s_sub_u32 s98, s98, s96')
        a(f's_cmp_lt_u32 s98, {PADT}')
        a('s_cbranch_scc1 pad_loop')
    a.raw('k_end:')
    a('s_endpgm')
    slow()
    a.raw('code_end:')
    doc = """; Interleaved linear-attention (A) / softmax-MHA (B) layers, S=2048 D=448 H=16 Dh=28 -- one persistent kernel, gfx950.
;
; its queries with the exact two-pass true-row-maximum softmax (attn_slow)."""
    out = [doc,
           f'; @launch grid=(256,1,1) block=(256,1,1) lds={LDS_TOTAL}',
           '.amdgcn_target "amdgcn-amd-amdhsa--gfx950"', '.text', a.text(), '.section .rodata,"a"',
           kernel_desc(KNAME, 512, 102, 256)]
    open(path, 'w').write('\n'.join(out) + '\n')
    if INSTR:
        names = {}
        for i, (n, lp) in enumerate(STAMPS):
            names[i] = n + ('0' if lp else '')
            if lp:
                names[i + 27] = n + '1'
        names[63] = 'end'
        assert len(STAMPS) <= 40
        open(path + '.stamps', 'w').write('\n'.join(f'{i} {n}' for i, n in sorted(names.items())))

if __name__ == '__main__':
    path = sys.argv[1] if len(sys.argv) > 1 else f'cdna_kernels/{NAME}.s'
    INSTR = 'instr' in sys.argv[2:]
    if 'cyc' in sys.argv[2:]: CLK = 's_memtime'
    FINE = 'fine' in sys.argv[2:]
    WQL = 'nowql' not in sys.argv[2:]
    RPX = 'norpx' not in sys.argv[2:]
    WAQ = 'nowaq' not in sys.argv[2:]
    TIMG = 'timg' in sys.argv[2:]
    FINE3 = 'fine3' in sys.argv[2:]
    TLBW = 'tlb' in sys.argv[2:]
    for x in sys.argv[2:]:
        if x.startswith('look='): LOOK = int(x[5:])
        if x.startswith('wwg='): WWG = int(x[4:])
        if x.startswith('ptg='): PTG = int(x[4:])
        if x.startswith('fch='): FCH = int(x[4:])
        if x.startswith('isg='): ISG = int(x[4:])
        if x.startswith('ct='): CT = int(x[3:])
        if x.startswith('padt='): PADT = int(x[5:])
        if x.startswith('npb='): NPB = int(x[4:])
        if x.startswith('nkv0='): NKV0 = int(x[5:])
        if x.startswith('xs='): XS = int(x[3:])
        if x.startswith('opd='): OPD = int(x[4:])
        if x.startswith('ope='): OPE = int(x[4:])
        if x.startswith('prew='): PREW = int(x[5:])
        if x.startswith('qbsig='): QBSIG = int(x[6:])
    DUR = 'dur' in sys.argv[2:]
    WARM = 'warm' in sys.argv[2:]
    PRE = 'nopre' not in sys.argv[2:]
    FORCE_GLOBAL = 'noloc' in sys.argv[2:]
    if 'ldplain' in sys.argv[2:]: LD = ''
    if 'ldnt' in sys.argv[2:]: LD = 'nt'
    if 'ldsc0' in sys.argv[2:]: LD = 'sc0'
    DEBUGQ = 'debugq' in sys.argv[2:]
    FINE2 = 'fine2' in sys.argv[2:]
    TOUCH = 'notouch' not in sys.argv[2:]
    build(path)
    print('wrote', path, 'maxv', a.maxv, 'maxa', a.maxa, 'maxs', a.maxs)
```
